```python
import torch

def _softmax(x, axis=-1):
    return torch.softmax(x, dim=axis)
def _gelu(x):
    return torch.nn.functional.gelu(x, approximate="tanh")
def _silu(x):
    return torch.nn.functional.silu(x)
def _sigmoid(x):
    return torch.sigmoid(x)
def _layernorm(x, axis=-1, eps=1e-5):
    m = x.mean(dim=axis, keepdim=True)
    v = x.var(dim=axis, keepdim=True, unbiased=False)
    return (x - m) / torch.sqrt(v + eps)
def _scatter_add(tgt, idx, src, axis=0):
    return tgt.clone().index_add_(axis, idx, src)
def _segment_sum(src, seg, n):
    out = torch.zeros((n,) + src.shape[1:], dtype=src.dtype)
    return out.index_add_(0, seg, src)
def _pad(x, pw):
    flat = tuple(v for pair in reversed(pw) for v in pair)
    return torch.nn.functional.pad(x, flat)

kernel_name = 'recurrent_scan__compressed_kv_cla__geglu_ffn__prompt'

def setup_inputs():

    _w = (lambda a: (lambda t: t.to(torch.bfloat16) if t.is_floating_point() else t)(torch.as_tensor(a)))
    def _A_setup():
        B, H, Sq, Sk, D, M = 1, 32, 2048, 2048, 128, 512
        Dc = 4 * D
        return {
            "x": _w((lambda *s: torch.randn(*s, dtype=torch.bfloat16) * 0.05)(B, Sq, M)),
            "c_kv": _w((lambda *s: torch.randn(*s, dtype=torch.bfloat16) * 0.2)(B, Sk, Dc)),
            "w_q": _w((lambda *s: torch.randn(*s, dtype=torch.bfloat16) * 3.2)(M, H, D) * (M ** -0.5)),
            "w_uk": _w((lambda *s: torch.randn(*s, dtype=torch.bfloat16) * 3.2)(Dc, H, D) * (Dc ** -0.5)),
            "w_uv": _w((lambda *s: torch.randn(*s, dtype=torch.bfloat16) * 0.2)(Dc, H, D) * (Dc ** -0.5)),
            "w_o": _w((lambda *s: torch.randn(*s, dtype=torch.bfloat16) * 0.2)(H, D, M) * ((H * D) ** -0.5)),
        }
    _A_in = _A_setup()

    def _B_setup():
        B, S, D, F = 1, 2048, 512, 1792
        return {
            "x": _w((lambda *s: torch.randn(*s, dtype=torch.bfloat16) * 0.05)(B, S, D)),
            "w_gate": _w((lambda *s: torch.randn(*s, dtype=torch.bfloat16) * 0.1)(D, F)),
            "w_up": _w((lambda *s: torch.randn(*s, dtype=torch.bfloat16) * 0.1)(D, F)),
            "w_down": _w((lambda *s: torch.randn(*s, dtype=torch.bfloat16) * 0.1)(F, D)),
        }
    _B_in = _B_setup()

    return {
        "A_x": _A_in["x"],
        "A_c_kv": _A_in["c_kv"],
        "A_w_q": _A_in["w_q"],
        "A_w_uk": _A_in["w_uk"],
        "A_w_uv": _A_in["w_uv"],
        "A_w_o": _A_in["w_o"],
        "B_x": _B_in["x"],
        "B_w_gate": _B_in["w_gate"],
        "B_w_up": _B_in["w_up"],
        "B_w_down": _B_in["w_down"],
    }

def reference(A_x, A_c_kv, A_w_q, A_w_uk, A_w_uv, A_w_o, B_x, B_w_gate, B_w_up, B_w_down):
    def _A_ref(x, c_kv, w_q, w_uk, w_uv, w_o):
        B, Sq, M = x.shape[0], x.shape[1], x.shape[2]
        Sk = c_kv.shape[1]
        H, D = w_q.shape[1], w_q.shape[2]
        q = torch.einsum("bqm,mhd->bhqd", x, w_q)
        k = torch.einsum("bkc,chd->bhkd", c_kv, w_uk)
        v = torch.einsum("bkc,chd->bhkd", c_kv, w_uv)
        scores = torch.einsum("bhqd,bhkd->bhqk", q, k) * (D ** -0.5)
        off = Sk - Sq
        qi = torch.arange(Sq)[:, None]
        kj = torch.arange(Sk)[None, :]
        cmask = kj <= (qi + off)
        scores = torch.where(cmask[None, None], scores, -1e9)
        p = _softmax(scores, axis=-1)
        ctx = torch.einsum("bhqk,bhkd->bhqd", p, v)
        return torch.einsum("bhqd,hdm->bqm", ctx, w_o)

    def _B_ref(x, w_gate, w_up, w_down):
        return (_gelu(x @ w_gate) * (x @ w_up)) @ w_down

    x = A_x
    xn = _layernorm(x, axis=-1)
    s = _A_ref(xn, A_c_kv, A_w_q, A_w_uk, A_w_uv, A_w_o)
    g = _silu(_B_ref(xn, B_w_gate, B_w_up, B_w_down))
    return x + s * g
```

```python
import re


STORE_MODS = ""


class R:
    __slots__ = ("k", "i", "n")

    def __init__(self, k, i, n=1):
        self.k, self.i, self.n = k, i, n

    def __str__(self):
        if self.k in ("vcc", "exec", "m0", "scc"):
            return self.k
        if self.n == 1:
            return "%s%d" % (self.k, self.i)
        return "%s[%d:%d]" % (self.k, self.i, self.i + self.n - 1)

    def regs(self):
        if self.k in ("vcc", "exec", "m0", "scc"):
            return {(self.k, 0)}
        return {(self.k, self.i + j) for j in range(self.n)}

    def sub(self, off, n=1):
        assert off + n <= self.n, (str(self), off, n)
        return R(self.k, self.i + off, n)

    def __getitem__(self, j):
        return self.sub(j, 1)


def v(i, n=1):
    assert 0 <= i and i + n <= 256, (i, n)
    return R("v", i, n)


def a(i, n=1):
    assert 0 <= i and i + n <= 256, (i, n)
    return R("a", i, n)


def s(i, n=1):
    assert 0 <= i and i + n <= 102, (i, n)
    return R("s", i, n)


VCC = R("vcc", 0)
EXEC = R("exec", 0)
M0 = R("m0", 0)

TRANS = ("v_exp_f32", "v_log_f32", "v_rcp_f32", "v_rsq_f32", "v_sqrt_f32", "v_sin_f32", "v_cos_f32")
NO_DST_S = ("s_cmp", "s_waitcnt", "s_barrier", "s_branch", "s_cbranch", "s_nop", "s_setprio", "s_endpgm",
            "s_sleep", "s_bitcmp")


class Neg:
    def __init__(self, r):
        self.r = r

    def __str__(self):
        return "-" + str(self.r)


class Inst:
    __slots__ = ("op", "ops", "mods", "rd", "wr", "kind", "tag", "cost", "label", "comment")

    def __init__(self, op, ops=(), mods="", tag=None, comment=None):
        self.op, self.ops, self.mods, self.tag, self.comment = op, list(ops), mods, tag, comment
        self.label = None
        self.rd, self.wr = set(), set()
        self._classify()

    def _rs(self, o):
        if isinstance(o, Neg):
            o = o.r
        return o.regs() if isinstance(o, R) else set()

    def _classify(self):
        op, ops = self.op, self.ops
        rd, wr = set(), set()
        if op == "label":
            self.kind = "label"
        elif op.startswith("v_mfma"):
            self.kind = "mfma"
            wr |= self._rs(ops[0])
            for o in ops[1:]:
                rd |= self._rs(o)
        elif op.startswith("v_"):
            self.kind = "trans" if op in TRANS else "valu"
            if op.startswith("v_permlane") and "swap" in op:
                for o in ops:
                    rd |= self._rs(o)
                    wr |= self._rs(o)
            elif op == "v_nop":
                pass
            else:
                wr |= self._rs(ops[0])
                for o in ops[1:]:
                    rd |= self._rs(o)
                if op.startswith("v_fmac") or op.startswith("v_pk_fmac") or op.startswith("v_dot2c"):
                    rd |= self._rs(ops[0])
        elif op.startswith("ds_"):
            self.kind = "ds"
            if op.startswith("ds_write"):
                for o in ops:
                    rd |= self._rs(o)
            else:
                wr |= self._rs(ops[0])
                for o in ops[1:]:
                    rd |= self._rs(o)
        elif op.startswith("buffer_") or op.startswith("global_"):
            self.kind = "vmem"
            if op in ("buffer_wbl2", "buffer_inv"):
                pass
            elif "load" in op and " lds" in (" " + self.mods):
                for o in ops:
                    rd |= self._rs(o)
                rd |= {("m0", 0)}
            elif "load" in op:
                wr |= self._rs(ops[0])
                for o in ops[1:]:
                    rd |= self._rs(o)
            elif "atomic" in op:
                for o in ops:
                    rd |= self._rs(o)
                if "sc0" in self.mods.split():
                    wr |= self._rs(ops[0])
            else:
                for o in ops:
                    rd |= self._rs(o)
        elif op.startswith("s_load") or op.startswith("s_memtime") or op.startswith("s_memrealtime") or op.startswith("s_buffer_load") or op.startswith("s_atomic"):
            self.kind = "smem"
            wr |= self._rs(ops[0])
            for o in ops[1:]:
                rd |= self._rs(o)
        elif op.startswith("s_"):
            self.kind = "salu"
            if any(op.startswith(p) for p in NO_DST_S):
                for o in ops:
                    rd |= self._rs(o)
            else:
                wr |= self._rs(ops[0])
                for o in ops[1:]:
                    rd |= self._rs(o)
                if "saveexec" in op:
                    wr |= {("exec", 0)}
                if op in ("s_addk_i32", "s_mulk_i32"):
                    rd |= self._rs(ops[0])
            if op.startswith("s_cbranch_vcc"):
                rd |= {("vcc", 0)}
        else:
            raise ValueError("unknown op " + op)
        self.rd, self.wr = rd, wr
        k = self.kind
        if k == "trans":
            self.cost = 8
        elif k == "mfma":
            self.cost = 8
        elif k == "vmem":
            self.cost = 8
        elif k == "label":
            self.cost = 0
        elif op == "s_nop":
            self.cost = 4 * (int(ops[0]) + 1)
        else:
            self.cost = 4

    def states(self):
        if self.kind == "label":
            return 0
        if self.op == "s_nop":
            return int(self.ops[0]) + 1
        return 1

    def text(self):
        if STORE_MODS and self.op.startswith("buffer_store") and self.tag != "final":
            if STORE_MODS not in self.mods:
                self.mods = self.mods + " " + STORE_MODS
        if self.kind == "label":
            return "%s:" % self.ops[0]
        t = self.op
        if self.ops:
            t += " " + ", ".join(_fmt(o) for o in self.ops)
        if self.mods:
            t += " " + self.mods
        if self.comment:
            t += "   ; " + self.comment
        return "    " + t


def _fmt(o):
    if isinstance(o, float):
        if o in (0.5, -0.5, 1.0, -1.0, 2.0, -2.0, 4.0, -4.0):
            return repr(o)
        if o == 0.0:
            return "0"
        import struct
        return "0x%08x" % struct.unpack("<I", struct.pack("<f", o))[0]
    if isinstance(o, int):
        if -16 <= o <= 64:
            return str(o)
        return "0x%x" % (o & 0xFFFFFFFF)
    return str(o)


def mfma_passes(op):
    return 8 if "32x32" in op else 4


class Emitter:
    def __init__(self):
        self.insts = []
        self.lgkm = []
        self.vm = []
        self.auto = True

    def raw(self, inst):
        self.insts.append(inst)
        return inst

    def label(self, name):
        self.raw(Inst("label", [name]))

    def _need(self, fifo, regs):
        last = -1
        for i, (wr, tag) in enumerate(fifo):
            if wr & regs:
                last = i
        if last < 0:
            return None
        return len(fifo) - 1 - last

    def _emit_wait(self, vm=None, lgkm=None):
        parts = []
        if vm is not None:
            assert vm <= 63
            parts.append("vmcnt(%d)" % vm)
            self.vm = self.vm[len(self.vm) - vm:] if vm else []
        if lgkm is not None:
            assert lgkm <= 15
            parts.append("lgkmcnt(%d)" % lgkm)
            self.lgkm = self.lgkm[len(self.lgkm) - lgkm:] if lgkm else []
        if parts:
            self.raw(Inst("s_waitcnt", [" ".join(parts)]))

    def I(self, op, *ops, mods="", tag=None, comment=None):
        inst = Inst(op, ops, mods, tag, comment)
        return self.emit(inst)

    def emit(self, inst):
        if self.auto and inst.kind != "label":
            touched = inst.rd | inst.wr
            nl = self._need(self.lgkm, touched)
            nv = self._need(self.vm, touched)
            if inst.kind == "ds" and len(self.lgkm) >= 15:
                nl = 8 if nl is None else min(nl, 8)
            if inst.kind == "vmem" and len(self.vm) >= 63:
                nv = 62 if nv is None else min(nv, 62)
            if nl is not None or nv is not None:
                self._emit_wait(vm=nv, lgkm=nl)
        self.raw(inst)
        if inst.kind == "ds":
            self.lgkm.append((set(inst.wr), inst.tag))
        elif inst.kind == "vmem":
            self.vm.append((set(inst.wr), inst.tag))
        return inst

    def wait_vm_tag(self, pred):
        last = -1
        for i, (wr, tag) in enumerate(self.vm):
            if pred(tag):
                last = i
        if last >= 0:
            self._emit_wait(vm=len(self.vm) - 1 - last)

    def wait_all(self, vm=True, lgkm=True):
        self._emit_wait(vm=0 if vm else None, lgkm=0 if lgkm else None)

    def wait_lgkm0(self):
        if self.lgkm:
            self._emit_wait(lgkm=0)

    def state(self):
        return ([(frozenset(w), t) for w, t in self.lgkm], [(frozenset(w), t) for w, t in self.vm])

    def set_state(self, st):
        self.lgkm = [(set(w), t) for w, t in st[0]]
        self.vm = [(set(w), t) for w, t in st[1]]

    def text(self):
        return "\n".join(i.text() for i in fix_hazards(self.insts)) + "\n"


def _req(p, c):
    req = 0
    pk, ck = p.kind, c.kind
    if pk in ("valu", "trans"):
        pw_v = {r for r in p.wr if r[0] in ("v", "a")}
        pw_s = {r for r in p.wr if r[0] in ("s", "vcc")}
        if ck == "mfma" and (pw_v & c.rd):
            req = max(req, 2)
        if pk == "trans" and ck in ("valu", "trans", "mfma") and (pw_v & c.rd):
            req = max(req, 1)
        if ck == "valu" and c.op.startswith("v_permlane") and (pw_v & c.rd):
            req = max(req, 2)
        if ck == "valu" and (c.op.startswith("v_readlane") or c.op.startswith("v_readfirstlane")) and (pw_v & c.rd):
            req = max(req, 1)
        if ck in ("valu", "trans") and "dpp" in c.mods.lower().replace("row_", "dpp_").replace("quad_perm", "dpp_") and (pw_v & c.rd):
            req = max(req, 2)
        if pw_s:
            if ck in ("valu", "trans", "mfma") and (pw_s & c.rd):
                req = max(req, 4 if c.op.startswith("v_readlane") or c.op.startswith("v_writelane") else 2)
            if ck == "vmem" and (pw_s & c.rd):
                req = max(req, 5)
            if ck in ("salu", "smem") and (pw_s & c.rd):
                req = max(req, 1)
    elif pk == "mfma":
        n = mfma_passes(p.op)
        big = 12 if n == 8 else 8
        if ck == "mfma":
            cC = c._rs(c.ops[3])
            cAB = c._rs(c.ops[1]) | c._rs(c.ops[2])
            if p.wr & cAB:
                req = max(req, big)
            if p.wr & cC:
                same = (isinstance(c.ops[3], R) and c.ops[3].k == p.ops[0].k and c.ops[3].i == p.ops[0].i
                        and c.ops[3].n == p.ops[0].n and mfma_passes(c.op) == n)
                if not same:
                    req = max(req, big - 2)
            if (p.wr & c.wr) and not (p.wr & cC):
                req = max(req, big - 2)
        elif ck in ("valu", "trans", "vmem", "ds"):
            if p.wr & (c.rd | c.wr):
                req = max(req, big)
            if ck in ("valu", "trans"):
                pC = p._rs(p.ops[3])
                if pC & c.wr:
                    req = max(req, 7 if n == 8 else 3)
    elif pk == "salu":
        if ("m0", 0) in p.wr and ck == "vmem" and ("m0", 0) in c.rd:
            req = max(req, 1)
    elif pk == "vmem":
        if "store" in p.op and ("x4" in p.op or "x3" in p.op):
            data = p._rs(p.ops[0]) if p.op.startswith("buffer_") else p._rs(p.ops[1])
            if data & c.wr:
                req = max(req, 2 if ck in ("valu", "trans") else 1)
    return req


def fix_hazards(insts, window=24):
    out = []
    for c in insts:
        if c.kind == "label":
            out.append(c)
            continue
        need = 0
        dist = 0
        j = len(out) - 1
        cnt = 0
        while j >= 0 and dist < 20 and cnt < window * 2:
            p = out[j]
            if p.kind != "label":
                r = _req(p, c)
                if r > dist:
                    need = max(need, r - dist)
                dist += p.states()
            j -= 1
            cnt += 1
        while need > 0:
            n = min(need, 16)
            out.append(Inst("s_nop", [n - 1], comment="hazard"))
            need -= n
        out.append(c)
    return out


def interleave(em, mfmas, fillers, budget=None, lead=0, close=False):
    n = len(mfmas)
    tot = sum(_fc(f) for f in fillers)
    ngap = max(n - 1, 1) if close else max(n, 1)
    per = tot / ngap if budget is None else budget
    fi = 0
    acc = 0.0
    for i, m in enumerate(mfmas):
        if close and i == n - 1:
            while fi < len(fillers):
                f = fillers[fi]
                _em(em, f[1] if isinstance(f, tuple) else f)
                fi += 1
        _em(em, m)
        target = per * (i + 1) + lead
        while fi < len(fillers):
            f = fillers[fi]
            mi = f[0] if isinstance(f, tuple) else -1
            if mi > i:
                break
            c = _fc(f)
            if acc + c * 0.5 > target:
                break
            _em(em, f[1] if isinstance(f, tuple) else f)
            acc += c
            fi += 1
    while fi < len(fillers):
        f = fillers[fi]
        _em(em, f[1] if isinstance(f, tuple) else f)
        fi += 1


def _fc(f):
    if isinstance(f, tuple):
        f = f[1]
    if isinstance(f, Inst):
        return f.cost
    return getattr(f, "cost", 4)


def _em(em, x):
    if isinstance(x, Inst):
        em.emit(x)
    else:
        x(em)


def kernel_header(name):
    return (".globl %s\n.p2align 8\n.type %s,@function\n%s:\n" % (name, name, name))


def kernel_desc(name, vgpr, sgpr, accum):
    return ("""
.amdhsa_kernel %s
  .amdhsa_next_free_vgpr %d
  .amdhsa_next_free_sgpr %d
  .amdhsa_accum_offset %d
  .amdhsa_group_segment_fixed_size 0
  .amdhsa_kernarg_size 104
  .amdhsa_user_sgpr_count 2
  .amdhsa_user_sgpr_kernarg_segment_ptr 1
  .amdhsa_system_sgpr_workgroup_id_x 1
.end_amdhsa_kernel
""" % (name, vgpr, sgpr, accum))
```

```python
import sys, math
sys.path.insert(0, "dev")
from asmlib import *

NAME = "recurrent_scan__compressed_kv_cla__geglu_ffn__prompt"
WS_XN = 0x0000000
WS_K = 0x0200000
WS_V = 0x1200000
WS_A3 = 0x2200000
WS_BYTES = 0x10000000
MFMA = "v_mfma_f32_32x32x16_bf16"

P_X, P_CKV, P_WQ, P_WUK, P_WUV, P_WO, P_BX, P_WG, P_WU, P_WD, P_OUT, P_DBG, P_WS = [4 + 2 * i for i in range(13)]


def I(op, *ops, mods="", tag=None, comment=None):
    return Inst(op, ops, mods, tag, comment)


def emit_all(e, lst):
    for x in lst:
        if isinstance(x, tuple):
            x = x[1]
        if isinstance(x, Inst):
            e.emit(x)
        else:
            x(e)


PROFILE = False
PACE = 2
WS_PROF = 0x8000000


def stamp(e, idx):
    if not PROFILE:
        return
    e.wait_lgkm0()
    e.I("s_memtime", s(82, 2))
    e.I("s_waitcnt", "lgkmcnt(0)")
    e.I("s_mov_b32", s(84 + idx), s(82))
    if idx == 0:
        e.I("s_memrealtime", s(82, 2))
        e.I("s_waitcnt", "lgkmcnt(0)")
        e.I("s_mov_b32", s(98), s(82))


def stamp_flush(e, kidx, srd_ws, sw, n, vt=(v(2), v(3))):
    if not PROFILE:
        return
    e.wait_all()
    e.I("s_memrealtime", s(82, 2))
    e.I("s_waitcnt", "lgkmcnt(0)")
    e.I("s_mov_b32", s(99), s(82))
    e.I("s_lshl_b32", s(82), s(2), 2)
    e.I("s_add_u32", s(82), s(82), sw)
    e.I("s_lshl_b32", s(82), s(82), 6)
    e.I("s_add_u32", s(82), s(82), WS_PROF + kidx * 65536)
    e.I("v_mov_b32", vt[1], 0)
    for i in list(range(n)) + [14, 15]:
        e.I("v_mov_b32", vt[0], s(84 + i))
        e.I("buffer_store_dword", vt[0], vt[1], srd_ws, s(82), mods="offen offset:%d" % (4 * i))


def prologue(e, nwg, endlabel):
    e.I("s_cmp_ge_u32", s(2), nwg)
    e.I("s_cbranch_scc1", endlabel)
    e.I("s_load_dwordx16", s(4, 16), s(0, 2), 0)
    e.I("s_load_dwordx8", s(20, 8), s(0, 2), 64)
    e.I("s_load_dwordx2", s(28, 2), s(0, 2), 96)


def make_srd(e, d, p, nbytes):
    e.I("s_mov_b32", s(d), s(p))
    e.I("s_mov_b32", s(d + 1), s(p + 1))
    e.I("s_mov_b32", s(d + 2), nbytes)
    e.I("s_mov_b32", s(d + 3), 0x20000)


def head_j(e, sh, sj, t0, t1):
    e.I("s_and_b32", t0, s(2), 7)
    e.I("s_lshl_b32", t0, t0, 2)
    e.I("s_bfe_u32", t1, s(2), (2 << 16) | 3)
    e.I("s_add_u32", sh, t0, t1)
    e.I("s_lshr_b32", sj, s(2), 5)


def tr_addr(e, dst0, dst1, vl, tmp, base, kperm):
    t0, t1, t2 = tmp
    e.I("v_lshrrev_b32", t0, 5, vl)
    e.I("v_lshlrev_b32", t0, (2 if kperm else 3) + 7, t0)
    e.I("v_bfe_u32", t1, vl, 2, 2)
    e.I("v_lshlrev_b32", t1, 7, t1)
    e.I("v_add_u32", t0, t0, t1)
    e.I("v_bfe_u32", t1, vl, 4, 1)
    e.I("v_lshlrev_b32", t1, 5, t1)
    e.I("v_add_u32", t0, t0, t1)
    e.I("v_and_b32", t1, 3, vl)
    e.I("v_lshlrev_b32", t1, 3, t1)
    e.I("v_add_u32", t0, t0, t1)
    if base is not None and not (isinstance(base, int) and base == 0):
        e.I("v_add_u32", t0, base, t0)
    e.I("v_bfe_u32", t2, vl, 3, 1)
    e.I("v_lshlrev_b32", t2, 6, t2)
    e.I("v_add_u32", dst0, t0, t2)
    e.I("v_xor_b32", t2, 64, t2)
    e.I("v_add_u32", dst1, t0, t2)


def wdma_voff(e, dsts, vl, tmp, rs):
    t0, t1 = tmp
    e.I("v_lshrrev_b32", t0, 3, vl)
    e.I("v_mul_u32_u24", t0, rs, t0)
    e.I("v_bfe_u32", t1, vl, 4, 1)
    e.I("v_lshlrev_b32", t1, 2, t1)
    e.I("v_xor_b32", t1, t1, vl)
    e.I("v_and_b32", t1, 7, t1)
    e.I("v_lshlrev_b32", t1, 4, t1)
    e.I("v_add_u32", dsts[0], t0, t1)
    for i in range(1, len(dsts)):
        e.I("v_add_u32", dsts[i], 8 * rs - 1024, dsts[i - 1])


class Seg:
    def __init__(self, nb, role, acc, src, fill=()):
        self.nb, self.role, self.acc, self.src, self.fill = nb, role, acc, src, list(fill)
        self.kps = 4 if nb == 4 else 8
        self.nst = 32 // self.kps


class Gemm:
    def __init__(self, e, ns, vtr, pool, s_m0, s_tmp, segs):
        self.e, self.ns, self.vtr, self.pool = e, ns, vtr, pool
        self.s_m0, self.s_tmp, self.segs = s_m0, s_tmp, segs
        self.ks = []
        self.stages = []
        for sg in segs:
            g0 = len(self.stages)
            for st in range(sg.nst):
                self.stages.append((sg, st))
            for sidx in range(32):
                self.ks.append((sg, sidx, g0 + sidx // sg.kps, sidx % sg.kps))

    def xfrag(self, rb, sidx):
        return a((rb * 32 + sidx) * 4, 4)

    def wfrag(self, t, nb):
        return self.pool.sub(((t & 1) * 4 + nb) * 4, 4)

    def w_reads(self, t):
        sg, sidx, g, sl = self.ks[t]
        out = []
        for nb in range(sg.nb):
            half, seg = nb >> 1, nb & 1
            f = self.wfrag(t, nb)
            for p in range(2):
                off = (g % self.ns) * 16384 + half * 8192 + (16 * sl + 4 * p) * 128
                out.append(I("ds_read_b64_tr_b16", f.sub(2 * p, 2), self.vtr[seg], mods="offset:%d" % off))
        return out

    def w_dma(self, g):
        sg, st = self.stages[g]
        src = sg.src
        out = [I("s_add_u32", M0, self.s_m0, (g % self.ns) * 16384),
               I("s_add_u32", self.s_tmp, src["s_base"], st * src["stage_stride"])]
        for i in range(4):
            out.append(I("buffer_load_dwordx4", src["voff"][i], src["srd"], self.s_tmp,
                         mods="offen offset:%d lds" % (1024 * i), tag=("W", g)))
        return out

    def mfmas(self, t):
        sg, sidx, g, sl = self.ks[t]
        out = []
        for nb in range(sg.nb):
            for rb in range(2):
                d = sg.acc(rb, nb)
                c = 0 if sidx == 0 else d
                w, x = self.wfrag(t, nb), self.xfrag(rb, sidx)
                out.append(I(MFMA, d, w, x, c) if sg.role == "WX" else I(MFMA, d, x, w, c))
        return out

    def run(self, hook=None, seg_end=None, queue=None, released=None, on_barrier=None, pace=2):
        e = self.e
        nt = len(self.ks)
        nstage = len(self.stages)
        q = self.q = list(queue or [])
        rel = self.rel = set(released or [])
        st = {"n": 0, "last": -99}

        def need(key):
            while any(k == key for k, _ in q):
                k, insts = q.pop(0)
                assert k in rel, ("job needed before its slot is released", k)
                emit_all(e, insts)
            e.wait_vm_tag(lambda tg: tg == key)
        self.need = need

        def tick(em):
            st["n"] += 1
            if q and q[0][0] in rel and st["n"] - st["last"] >= pace:
                k, insts = q.pop(0)
                emit_all(e, insts)
                st["last"] = st["n"]
        tick.cost = 0
        need(("W", 0))
        e.I("s_barrier")
        emit_all(e, self.w_reads(0))
        for t in range(nt):
            sg, sidx, g, sl = self.ks[t]
            last = sl == sg.kps - 1
            if last and t + 1 < nt:
                e.wait_lgkm0()
                need(("W", g + 1))
                e.I("s_barrier")
                rel.add(("W", g + self.ns))
                if on_barrier:
                    on_barrier(g)
            rd = self.w_reads(t + 1) if t + 1 < nt else []
            ex = hook(t) if hook else []
            n = len(sg.fill)
            ex = ex + sg.fill[(sidx * n) // 32: ((sidx + 1) * n) // 32]
            fill = merge(rd, ex)
            ms = []
            for m in self.mfmas(t):
                ms.append(Both(m, tick))
            interleave(e, ms, fill)
            if sidx == 31 and seg_end:
                seg_end(sg)

    def w_jobs(self, g):
        ins = self.w_dma(g)
        return [(("W", g), ins[0:3])] + [(("W", g), [x]) for x in ins[3:]]


class Both:
    def __init__(self, m, f):
        self.m, self.f = m, f
        self.cost = 8

    def __call__(self, em):
        em.emit(self.m)
        self.f(em)


def merge(x, y):
    out = []
    i = j = 0
    while i < len(x) or j < len(y):
        if j >= len(y) or (i < len(x) and i * len(y) <= j * len(x)):
            out.append(x[i]); i += 1
        else:
            out.append(y[j]); j += 1
    return out


def cvt_inplace(d, hh):
    return [I("v_cvt_pk_bf16_f32", d[8 * hh + q], d[8 * hh + 2 * q], d[8 * hh + 2 * q + 1]) for q in range(4)]


def gen_k1():
    e = Emitter()
    END = "K1_END"
    prologue(e, 256, END)
    S_X, S_CKV, S_WK, S_WV, S_WS = 32, 36, 40, 44, 48
    sw, sh, sj = s(52), s(53), s(54)
    vl, vl16 = v(1), v(2)
    t0, t1, t2 = v(3), v(4), v(5)
    SET = [v(64, 64), v(128, 64), v(192, 64)]
    pool = v(32, 32)
    e.I("v_and_b32", vl, 63, v(0))
    e.I("v_lshrrev_b32", t0, 6, v(0))
    e.I("v_lshlrev_b32", vl16, 4, vl)
    e.I("v_readfirstlane_b32", sw, t0)
    head_j(e, sh, sj, s(55), s(56))
    XS_BASE, XS_W = 65536, 24576
    vXd = [v(8), v(9)]
    e.I("v_lshrrev_b32", t0, 3, vl)
    e.I("v_lshlrev_b32", t1, 10, t0)
    e.I("v_lshrrev_b32", t0, 1, t0)
    e.I("v_xor_b32", t0, t0, vl)
    e.I("v_and_b32", t0, 7, t0)
    e.I("v_lshlrev_b32", t2, 4, t0)
    e.I("v_add_u32", vXd[0], t1, t2)
    e.I("v_xor_b32", t2, 64, t2)
    e.I("v_add_u32", vXd[1], t1, t2)
    sXrow = [s(60 + i) for i in range(8)]
    e.I("s_lshl_b32", s(58), sj, 18)
    e.I("s_lshl_b32", s(59), sw, 16)
    e.I("s_add_u32", s(58), s(58), s(59))
    for i in range(8):
        e.I("s_add_u32", sXrow[i], s(58), i * 8192 - (i & 3) * 1024)
    sXlds = s(68)
    e.I("s_mul_i32", sXlds, sw, XS_W)
    e.I("s_add_u32", sXlds, sXlds, XS_BASE)
    vW = [v(24 + i) for i in range(4)]
    wdma_voff(e, vW, vl, (t0, t1), 8192)
    sWb, sM0, sTmp, sWb2, sWb3 = s(69), s(70), s(71), s(80), s(81)
    e.I("s_and_b32", s(72), sw, 1)
    e.I("s_lshl_b32", s(72), s(72), 18)
    e.I("s_lshr_b32", s(73), sw, 1)
    e.I("s_lshl_b32", s(73), s(73), 7)
    e.I("s_lshl_b32", s(74), sh, 8)
    e.I("s_add_u32", sWb, s(74), s(72))
    e.I("s_add_u32", sWb, sWb, s(73))
    e.I("s_lshl_b32", s(72), sw, 18)
    e.I("s_add_u32", sWb2, s(74), s(72))
    e.I("s_add_u32", sWb3, sWb2, 128)
    e.I("s_lshl_b32", sM0, sw, 12)
    e.I("s_waitcnt", "lgkmcnt(0)")
    make_srd(e, S_CKV, P_CKV, 2048 * 1024)
    make_srd(e, S_WK, P_WUK, 512 * 8192)
    stamp(e, 0)

    def x_dma(p):
        out = []
        for i in range(8):
            if i % 4 == 0:
                out.append(I("s_add_u32", M0, sXlds, (p % 3) * 8192 + (i >> 2) * 4096))
            out.append(I("buffer_load_dwordx4", vXd[i & 1], s(S_CKV, 4), sXrow[i],
                         mods="offen offset:%d lds" % (1024 * (i & 3)), tag=("X", p)))
        out.append(I("v_add_u32", vXd[0], 128, vXd[0]))
        out.append(I("v_add_u32", vXd[1], 128, vXd[1]))
        return out

    vXr = [v(10 + i) for i in range(4)]

    def x_reads(p):
        out = [(lambda em: G.need(("X", p))) if p else (lambda em: em.wait_vm_tag(lambda tg: tg == ("X", p)))]
        for sl in range(4):
            for rb in range(2):
                out.append(I("ds_read_b128", a((rb * 32 + 4 * p + sl) * 4, 4), vXr[sl],
                             mods="offset:%d" % ((p % 3) * 8192 + rb * 4096)))
        return out

    srcK = dict(srd=s(S_WK, 4), voff=vW, s_base=sWb, stage_stride=64 * 8192)
    srcV0 = dict(srd=s(S_WV, 4), voff=vW, s_base=sWb2, stage_stride=128 * 8192)
    srcV1 = dict(srd=s(S_WV, 4), voff=vW, s_base=sWb3, stage_stride=128 * 8192)
    vtr = [v(14), v(15)]
    accA = lambda rb, nb: SET[rb].sub(nb * 16, 16)
    accB = lambda rb, nb: SET[2].sub((rb * 2 + nb) * 16, 16)
    accC = lambda rb, nb: SET[0].sub((rb * 2 + nb) * 16, 16)
    sKo, sVo, sSt = s(76), s(77), s(79)

    def store_block(d, sbase, rb, idxs):
        out = []
        for hh in range(2):
            out += cvt_inplace(d, hh)
            off = rb * 8192 + idxs[hh] * 1024
            out.append(I("s_add_u32", sSt, sbase, off & ~4095))
            out.append(I("buffer_store_dwordx4", d.sub(8 * hh, 4), vl16, s(S_WS, 4), sSt,
                         mods="offen offset:%d" % (off & 4095)))
        return out
    epiA = []
    for rb in range(2):
        for nb in range(4):
            epiA += store_block(accA(rb, nb), sKo, rb, (2 * nb, 2 * nb + 1))
    epiB, epiC = [], []
    for rb in range(2):
        for nb in range(2):
            epiB += store_block(accB(rb, nb), sVo, rb, (nb, 4 + nb))
            epiC += store_block(accC(rb, nb), sVo, rb, (2 + nb, 6 + nb))

    Z = SET[2]
    vLNa, vLNs = v(6), v(7)
    LN0, LN1 = Z.sub(0, 4), Z.sub(4, 4)
    X = [Z[8 + i] for i in range(16)]
    D = [Z[24 + i] for i in range(16)]
    sm, sw2, mean, var, pk, mb, vb, sd, rc = [Z[40 + i] for i in range(9)]
    ln = []
    A_ = lambda *x, **k: ln.append(I(*x, **k))
    for i in range(4):
        A_("v_lshlrev_b32", X[2 * i], 16, LN0[i])
        A_("v_and_b32", X[2 * i + 1], 0xffff0000, LN0[i])
        A_("v_lshlrev_b32", X[8 + 2 * i], 16, LN1[i])
        A_("v_and_b32", X[8 + 2 * i + 1], 0xffff0000, LN1[i])

    def allreduce32(r):
        for off in (0x041F, 0x081F, 0x101F, 0x201F, 0x401F):
            A_("ds_swizzle_b32", sw2, r, mods="offset:0x%04x" % off)
            A_("v_nop"); A_("v_nop"); A_("v_nop")
            A_("v_add_f32", r, r, sw2)
    A_("v_add_f32", sm, X[0], X[1])
    for i in range(2, 16):
        A_("v_add_f32", sm, sm, X[i])
    allreduce32(sm)
    A_("v_mul_f32", mean, 1.0 / 512, sm)
    for i in range(16):
        A_("v_sub_f32", D[i], X[i], mean)
    A_("v_mul_f32", sm, D[0], D[0])
    for i in range(1, 16):
        A_("v_fmac_f32", sm, D[i], D[i])
    allreduce32(sm)
    A_("v_mul_f32", var, 1.0 / 512, sm)
    A_("v_cvt_pk_bf16_f32", pk, mean, var)
    A_("v_lshlrev_b32", mb, 16, pk)
    A_("v_and_b32", vb, 0xffff0000, pk)
    A_("v_add_f32", vb, 1e-5, vb)
    A_("v_cvt_pk_bf16_f32", pk, vb, vb)
    A_("v_lshlrev_b32", vb, 16, pk)
    A_("v_sqrt_f32", vb, vb)
    A_("v_cvt_pk_bf16_f32", pk, vb, vb)
    A_("v_lshlrev_b32", sd, 16, pk)
    A_("v_rcp_f32", rc, sd)
    for i in range(16):
        A_("v_sub_f32", D[i], X[i], mb)
    for i in range(8):
        A_("v_cvt_pk_bf16_f32", pk, D[2 * i], D[2 * i + 1])
        A_("v_lshlrev_b32", D[2 * i], 16, pk)
        A_("v_and_b32", D[2 * i + 1], 0xffff0000, pk)
    for i in range(16):
        A_("v_mul_f32", X[i], D[i], rc)
        A_("v_fma_f32", D[i], Neg(X[i]), sd, D[i])
        A_("v_fmac_f32", X[i], D[i], rc)
    for i in range(4):
        A_("v_cvt_pk_bf16_f32", LN0[i], X[2 * i], X[2 * i + 1])
        A_("v_cvt_pk_bf16_f32", LN1[i], X[8 + 2 * i], X[8 + 2 * i + 1])
    A_("buffer_store_dwordx4", LN0, vLNs, s(S_WS, 4), s(74), mods="offen")
    A_("buffer_store_dwordx4", LN1, vLNs, s(S_WS, 4), s(75), mods="offen")
    ln = [x for x in ln if x.op != "v_nop"]
    pad = [lambda em: None] * (len(ln) // 2)
    for p_ in pad:
        pass
    segs = [Seg(4, "WX", accA, srcK, pad + ln), Seg(2, "XW", accB, srcV0, epiA), Seg(2, "XW", accC, srcV1, epiB)]
    G = Gemm(e, 4, vtr, pool, sM0, sTmp, segs)
    emit_all(e, x_dma(0))
    emit_all(e, G.w_dma(0))
    emit_all(e, x_dma(1))
    emit_all(e, G.w_dma(1))

    def x_jobs(p):
        ins = x_dma(p)
        k = ("X", p)
        return [(k, ins[0:2]), (k, [ins[2]]), (k, [ins[3]]), (k, [ins[4]]), (k, ins[5:7]), (k, [ins[7]]), (k, [ins[8]]),
                (k, ins[9:12])]
    queue = []
    for g in range(2, 16):
        if g < 8:
            queue += x_jobs(g)
        queue += G.w_jobs(g)
    make_srd(e, S_X, P_X, 2048 * 1024)
    make_srd(e, S_WV, P_WUV, 512 * 8192)
    make_srd(e, S_WS, P_WS, WS_BYTES)
    e.I("v_lshrrev_b32", t0, 5, v(0))
    e.I("v_lshlrev_b32", t1, 10, t0)
    e.I("v_and_b32", t2, 31, vl)
    e.I("v_lshlrev_b32", vLNa, 4, t2)
    e.I("v_add_u32", vLNa, vLNa, t1)
    e.I("v_lshrrev_b32", t1, 1, t2)
    e.I("v_lshlrev_b32", t1, 10, t1)
    e.I("v_and_b32", t2, 1, t2)
    e.I("v_lshlrev_b32", t2, 9, t2)
    e.I("v_add_u32", t1, t1, t2)
    e.I("v_lshlrev_b32", t0, 4, t0)
    e.I("v_add_u32", vLNs, t1, t0)
    e.I("s_lshl_b32", s(57), s(2), 13)
    e.I("buffer_load_dwordx4", LN0, vLNa, s(S_X, 4), s(57), mods="offen")
    e.I("buffer_load_dwordx4", LN1, vLNa, s(S_X, 4), s(57), mods="offen offset:512")
    e.I("s_lshr_b32", s(74), s(2), 2)
    e.I("s_lshl_b32", s(74), s(74), 15)
    e.I("s_and_b32", s(75), s(2), 3)
    e.I("s_lshl_b32", s(75), s(75), 7)
    e.I("s_add_u32", s(74), s(74), s(75))
    if WS_XN:
        e.I("s_add_u32", s(74), s(74), WS_XN)
    e.I("s_add_u32", s(75), s(74), 16384)
    e.I("v_and_b32", t0, 31, vl)
    e.I("v_lshlrev_b32", t1, 7, t0)
    e.I("v_add_u32", t1, sXlds, t1)
    e.I("v_bfe_u32", t0, vl, 1, 3)
    e.I("v_lshrrev_b32", t2, 5, vl)
    e.I("v_xor_b32", t0, t0, t2)
    for sl in range(4):
        e.I("v_xor_b32", t2, 2 * sl, t0)
        e.I("v_lshlrev_b32", t2, 4, t2)
        e.I("v_add_u32", vXr[sl], t1, t2)
    tr_addr(e, vtr[0], vtr[1], vl, (t0, t1, t2), 0, False)
    e.I("s_lshl_b32", s(78), sh, 6)
    e.I("s_lshl_b32", s(79), sj, 3)
    e.I("s_add_u32", s(78), s(78), s(79))
    e.I("s_lshl_b32", s(79), sw, 1)
    e.I("s_add_u32", s(78), s(78), s(79))
    e.I("s_lshl_b32", s(78), s(78), 13)
    e.I("s_add_u32", sKo, s(78), WS_K)
    e.I("s_add_u32", sVo, s(78), WS_V)
    stamp(e, 1)
    emit_all(e, x_reads(0))
    stamp(e, 2)

    def hook(t):
        g, sl = t >> 2, t & 3
        out = []
        if t < 32:
            if g < 7 and sl == 2:
                out += x_reads(g + 1)
        return out
    cnt = [3]

    def seg_end(sg):
        stamp(e, cnt[0]); cnt[0] += 1
    G.run(hook, seg_end, queue=queue, released={("W", 2), ("W", 3), ("X", 2)},
          on_barrier=lambda g: (G.rel.add(("X", g + 3)), G.rel.add(("X", g + 4))), pace=PACE)
    emit_all(e, epiC)
    stamp(e, 6)
    if PROFILE:
        e.wait_all()
    stamp(e, 7)
    stamp_flush(e, 0, s(S_WS, 4), sw, 8)
    e.label(END)
    e.I("s_endpgm")
    return e.text(), dict(vgpr=512, sgpr=102, accum=256, grid=256, block=256, lds=163840)


KERNELS = [("k1_kernel", gen_k1)]
try:
    from gen_k2 import gen_k2
    KERNELS.append(("k2_kernel", gen_k2))
    from gen_k3 import gen_k3, gen_k4
    KERNELS.append(("k3_kernel", gen_k3))

except ImportError as ex:
    print("note:", ex)


def build(kernels=None):
    ks = KERNELS if kernels is None else kernels
    hdr = open("cdna_kernels/%s.s.ref" % NAME).read().split("; Override")[0]
    out = [hdr]
    bodies, descs = [], []
    for name, fn in ks:
        txt, d = fn()
        out.append("; @launch kernel=%s grid=(%d,1,1) block=(%d,1,1) lds=%d\n" % (name, d["grid"], d["block"], d["lds"]))
        bodies.append(kernel_header(name) + txt)
        descs.append(".p2align 6" + kernel_desc(name, d["vgpr"], d["sgpr"], d["accum"]))
    out.append('.amdgcn_target "amdgcn-amd-amdhsa--gfx950"\n.text\n')
    out += bodies
    out.append('.section .rodata,"a"\n')
    out += descs
    return "".join(out)
```

```python
import sys
sys.path.insert(0, "dev")
from asmlib import *
import gen
from gen import *

LOG2E = 1.4426950408889634
QSCALE = LOG2E / (128 ** 0.5)
GC1 = -2.0 * (2.0 / math.pi) ** 0.5 * LOG2E
GC2 = GC1 * 0.044715
THRESH = float(2 ** 24)
CR = [(r & 3) + 8 * (r >> 2) for r in range(16)]


EXP = set()


def gen_k2():
    e = Emitter()
    END = "K2_END"
    prologue(e, 256, END)
    S_WS, S_WGU, S_WQ, S_H, S_K, S_V = 32, 36, 40, 44, 48, 52
    sw, sh, sj = s(56), s(57), s(58)
    sM0, sTmp, sSt = s(59), s(60), s(61)
    sXA, sXB = s(62), s(63)
    sWgu, sWq0, sWq1 = s(64), s(65), s(66)
    sHo = [s(67), s(68)]
    sCo = [s(69), s(70)]
    sKg, sVg, sRot = s(71), s(72), s(73)
    sCnt, sKv, sRet, sBact, sThr = s(74), s(75), s(76), s(77), s(78)
    sT0, sT1 = s(79), s(80)
    MASKS = [s(40, 2), s(42, 2), s(44, 2), s(46, 2)]
    vl, vl16 = v(1), v(2)
    t0, t1, t2 = v(3), v(4), v(5)
    vtr = [v(6), v(7)]
    vWg = [v(8 + i) for i in range(4)]
    vWq = [v(12 + i) for i in range(4)]
    vC2 = v(16)
    GT = [v(17 + i) for i in range(8)]
    SET = [v(64, 64), v(128, 64), v(192, 64)]
    pool = v(32, 32)
    WR = 98304

    e.I("v_and_b32", vl, 63, v(0))
    e.I("v_lshrrev_b32", t0, 6, v(0))
    e.I("v_lshlrev_b32", vl16, 4, vl)
    e.I("v_readfirstlane_b32", sw, t0)
    head_j(e, sh, sj, sT0, sT1)
    sQA, sQB = s(81), s(30)
    e.I("s_lshl_b32", sT0, sj, 2)
    e.I("s_add_u32", sQB, sT0, sw)
    e.I("s_sub_u32", sQA, 60, sT0)
    e.I("s_add_u32", sQA, sQA, sw)
    e.I("s_lshl_b32", sXA, sQA, 15)
    e.I("s_lshl_b32", sXB, sQB, 15)
    if WS_XN:
        e.I("s_add_u32", sXA, sXA, WS_XN)
        e.I("s_add_u32", sXB, sXB, WS_XN)
    wdma_voff(e, vWg, vl, (t0, t1), 3584)
    wdma_voff(e, vWq, vl, (t0, t1), 8192)
    e.I("s_and_b32", sT0, sw, 1)
    e.I("s_mul_i32", sT0, sT0, 32 * 3584)
    e.I("s_lshl_b32", sT1, sh, 7)
    e.I("s_add_u32", sWgu, sT0, sT1)
    e.I("s_lshl_b32", sT0, sw, 18)
    e.I("s_lshl_b32", sT1, sh, 8)
    e.I("s_add_u32", sWq0, sT0, sT1)
    e.I("s_add_u32", sWq1, sWq0, 128)
    e.I("s_lshl_b32", sM0, sw, 12)
    e.I("s_add_u32", sM0, sM0, WR)
    e.I("s_waitcnt", "lgkmcnt(0)")
    make_srd(e, S_WS, P_WS, WS_BYTES)
    e.I("s_cmp_lt_u32", sw, 2)
    e.I("s_cselect_b32", s(S_WGU), s(P_WG), s(P_WU))
    e.I("s_cselect_b32", s(S_WGU + 1), s(P_WG + 1), s(P_WU + 1))
    e.I("s_mov_b32", s(S_WGU + 2), 512 * 3584)
    e.I("s_mov_b32", s(S_WGU + 3), 0x20000)
    make_srd(e, S_WQ, P_WQ, 512 * 8192)
    stamp(e, 0)

    def x_piece(p):
        out = []
        k = ("X", p)
        for rb in range(2):
            sb = sXA if rb == 0 else sXB
            for i in range(4):
                ins = []
                if i == 0:
                    ins.append(I("s_add_u32", sT0 if rb == 0 else sT1, sb, p * 4096))
                ins.append(I("buffer_load_dwordx4", a((rb * 32 + 4 * p + i) * 4, 4), vl16, s(S_WS, 4),
                             sT0 if rb == 0 else sT1, mods="offen offset:%d" % (1024 * i), tag=k))
                out.append((k, ins))
        return out

    def rest_setup():
        tr_addr(e, vtr[0], vtr[1], vl, (t0, t1, t2), WR, False)
        e.I("v_mov_b32", vC2, GC2)
        for qb, sq in ((0, sQA), (1, sQB)):
            e.I("s_mul_i32", sT0, sq, 368 * 1024)
            e.I("s_add_u32", sT0, sT0, WS_A3)
            e.I("s_lshl_b32", sT1, sh, 13)
            e.I("s_add_u32", sCo[qb], sT0, sT1)
            e.I("s_lshl_b32", sT1, sh, 12)
            e.I("s_add_u32", sHo[qb], sT0, sT1)
            e.I("s_add_u32", sHo[qb], sHo[qb], 256 * 1024)
        e.I("s_lshl_b32", sT0, sh, 19)
        for srd, off in ((S_K, WS_K), (S_V, WS_V)):
            e.I("s_add_u32", sT1, sT0, off)
            e.I("s_add_u32", s(srd), s(P_WS), sT1)
            e.I("s_addc_u32", s(srd + 1), s(P_WS + 1), 0)
            e.I("s_lshl_b32", sT1, sj, 15)
            e.I("s_sub_u32", s(srd + 2), 64 * 8192, sT1)
            e.I("s_mov_b32", s(srd + 3), 0x20000)
        e.I("s_lshl_b32", sKg, sw, 12)
        e.I("s_mov_b32", sVg, sKg)
        e.I("s_mov_b32", sThr, THRESH)

    def kv_jobs(kind, st):
        k = (kind, st)
        srd = s(S_K if kind == "K" else S_V, 4)
        base = (0 if kind == "K" else 65536) + (st & 3) * 16384
        out = []
        for i in range(4):
            ins = []
            if i == 0:
                ins.append(I("s_lshl_b32", sSt, sw, 12))
                ins.append(I("s_add_u32", M0, sSt, base))
                ins.append(I("s_add_u32", sSt, sSt, st * 16384))
            ins.append(I("buffer_load_dwordx4", vl16, srd, sSt, mods="offen offset:%d lds" % (1024 * i), tag=k))
            out.append((k, ins))
        return out

    srcGU = dict(srd=s(S_WGU, 4), voff=vWg, s_base=sWgu, stage_stride=64 * 3584)
    srcQ0 = dict(srd=s(S_WQ, 4), voff=vWq, s_base=sWq0, stage_stride=128 * 8192)
    srcQ1 = dict(srd=s(S_WQ, 4), voff=vWq, s_base=sWq1, stage_stride=128 * 8192)
    accA = lambda rb, nb: SET[rb].sub(nb * 16, 16)
    accB = lambda rb, nb: SET[2].sub((rb * 2 + nb) * 16, 16)
    accC = lambda rb, nb: SET[0].sub((rb * 2 + nb) * 16, 16)
    sHs = s(54)

    def gu_epi(rb):
        out = []
        for nb in range(2):
            g_, u_ = accA(rb, nb), accA(rb, nb + 2)
            for hh in range(2):
                for half4 in range(2):
                    rs = [8 * hh + 4 * half4 + i for i in range(4)]
                    T = GT[0:4]
                    T2 = GT[4:8]
                    for i, r in enumerate(rs):
                        out.append(I("v_mul_f32", T[i], g_[r], g_[r]))
                    for i, r in enumerate(rs):
                        out.append(I("v_fmaak_f32", T[i], T[i], vC2, GC1))
                    for i, r in enumerate(rs):
                        out.append(I("v_mul_f32", T[i], T[i], g_[r]))
                    for i, r in enumerate(rs):
                        out.append(I("v_exp_f32", T[i], T[i]))
                    for i, r in enumerate(rs):
                        out.append(I("v_mul_f32", T2[i], g_[r], u_[r]))
                    for i, r in enumerate(rs):
                        out.append(I("v_add_f32", T[i], 1.0, T[i]))
                    for i, r in enumerate(rs):
                        out.append(I("v_rcp_f32", T[i], T[i]))
                    out.append(I("s_nop", 0))
                    for i, r in enumerate(rs):
                        out.append(I("v_mul_f32", g_[r], T2[i], T[i]))
                out += cvt_inplace(g_, hh)
                off = (2 * nb + hh) * 1024
                out.append(I("buffer_store_dwordx4", g_.sub(8 * hh, 4), vl16, s(S_WS, 4), sHo[rb],
                             mods="offen offset:%d" % off))
        return out

    def qfrag(qb, sidx):
        b, t = sidx >> 1, sidx & 1
        return SET[2].sub((qb * 2 + (b & 1)) * 16 + 8 * t + (4 if b >= 2 else 0), 4)

    def q_epi(acc, b0):
        out = []
        for rb in range(2):
            for nb in range(2):
                d = acc(rb, nb)
                for r in range(16):
                    out.append(I("v_mul_f32", d[r], QSCALE, d[r]))
                for t in range(2):
                    f = qfrag(rb, 2 * (b0 + nb) + t)
                    for q in range(4):
                        out.append(I("v_cvt_pk_bf16_f32", f[q], d[8 * t + 2 * q], d[8 * t + 2 * q + 1]))
        return out

    def proj(with_gu, tagp):
        if with_gu:
            segs = [Seg(4, "WX", accA, srcGU), Seg(2, "WX", accB, srcQ0, gu_epi(0)),
                    Seg(2, "WX", accC, srcQ1, gu_epi(1) + q_epi(accB, 0))]
        else:
            segs = [Seg(2, "WX", accB, srcQ0), Seg(2, "WX", accC, srcQ1, q_epi(accB, 0))]
        G = Gemm(e, 4, vtr, pool, sM0, sTmp, segs)
        nst = len(G.stages)
        xs = 1 if with_gu else 2
        for p in range(xs):
            for k, ins in x_piece(p):
                emit_all(e, ins)
        emit_all(e, G.w_dma(0))
        for p in range(xs, 2 * xs):
            for k, ins in x_piece(p):
                emit_all(e, ins)
        emit_all(e, G.w_dma(1))
        rest_setup()
        queue = []
        for g in range(2, nst):
            for p in range(g * xs, (g + 1) * xs):
                if p < 8:
                    queue += x_piece(p)
            queue += G.w_jobs(g)
            if g == nst - 4:
                queue += kv_jobs("K", 0) + kv_jobs("K", 1) + kv_jobs("V", 0)
            if g == nst - 2:
                queue += kv_jobs("K", 2) + kv_jobs("V", 1)
        queue += kv_jobs("K", 3) + kv_jobs("V", 2)
        rel = {("W", 2), ("W", 3)} | {("X", p) for p in range(8)} | {("K", i) for i in range(3)} | {("V", 0), ("V", 1)}

        def on_barrier(g):
            if g == nst - 2:
                G.rel.add(("V", 2))
                G.rel.add(("K", 3))

        def hook(t):
            sg, sidx, g, sl = G.ks[t]
            if t < 32 and sidx % 4 == 0:
                p = sidx // 4
                return_list = []

                def f(em, p=p):
                    while any(k == ("X", p) for k, _ in G.q):
                        k, ins = G.q.pop(0)
                        emit_all(e, ins)
                f(e)
            return []
        cnt = [2]

        def seg_end(sg):
            if with_gu:
                stamp(e, cnt[0]); cnt[0] += 1
        if with_gu:
            stamp(e, 1)
        G.run(hook, seg_end, queue=queue, released=rel, on_barrier=on_barrier, pace=gen.PACE)
        while G.q:
            k, ins = G.q.pop(0)
            assert k in G.rel, k
            emit_all(e, ins)
        emit_all(e, q_epi(accC, 2))
        tags = [t for _, t in e.vm]
        assert all(t in (("K", 3), ("V", 2), None) for t in tags[-8:]), tags[-8:]
        assert all(t not in (("K", 0), ("K", 1), ("V", 0)) for t in tags[-16:]), tags[-16:]
        e.wait_vm_tag(lambda tg: tg == ("K", 0))
        e.wait_lgkm0()

    e.I("s_cmp_ge_u32", sh, 28)
    e.I("s_cbranch_scc1", "K2_NOGU")
    st0 = e.state()
    proj(True, "a")
    e.I("s_branch", "K2_ATT")
    e.label("K2_NOGU")
    e.set_state(st0)
    proj(False, "b")
    e.label("K2_ATT")
    e.vm = []
    e.lgkm = []
    e.I("s_nop", 1)
    stamp(e, 5)

    S = lambda par, qb: SET[0].sub((par * 2 + qb) * 16, 16)
    NM = lambda qb: SET[1].sub(qb * 16, 16)
    P = lambda par, qb: SET[1].sub(32 + (par * 2 + qb) * 8, 8)
    O = lambda qb, b: a((qb * 4 + b) * 16, 16)
    KF = lambda fs, si: a(128 + 64 * fs + 4 * si, 4)
    VF = lambda fs, t, b: a(128 + 64 * fs + 32 + 4 * (t * 4 + b), 4)
    vKr, vVr = v(6), v(7)
    vDq = [v(8), v(9)]
    vL = [[v(10), v(11)], [v(24), v(25)]]
    vTs = [v(12), v(13)]
    vTm, vDqT = v(14), [v(15), v(16)]
    vNinf = v(17)
    ET = [v(18 + i) for i in range(6)]
    vQx, vKx, vNx, vInvB, vPw = v(26), v(27), v(28), v(29), v(30)
    RT = [v(32 + i) for i in range(32)]
    QS = 131072
    sPw = sBact

    e.I("v_and_b32", t0, 31, vl)
    e.I("v_lshrrev_b32", t1, 5, vl)
    e.I("v_lshlrev_b32", t1, 2, t1)
    e.I("v_sub_u32", t0, t0, t1)
    e.I("s_lshl_b32", sT0, sQA, 5)
    e.I("s_lshl_b32", sT1, sQB, 5)
    e.I("v_add_u32", vDq[0], sT0, t0)
    e.I("v_add_u32", vDq[1], sT1, t0)
    e.I("v_mov_b32", vNinf, 0xff800000)
    e.I("v_mov_b32", vL[0][0], 0)
    e.I("v_mov_b32", vL[0][1], 0)
    e.I("v_add_u32", vKr, 16384, vl16)
    e.I("v_add_u32", vVr, 65536, vl16)
    e.I("s_lshl_b32", sRot, sw, 12)
    e.I("s_add_u32", sKg, sKg, 4 * 16384)
    e.I("s_add_u32", sVg, sVg, 3 * 16384)
    e.I("s_mov_b32", sKv, 0)
    e.I("s_and_b32", sPw, sw, 1)
    e.I("s_lshl_b32", sPw, sPw, 13)
    e.I("s_lshl_b32", sT0, sw, 13)
    e.I("s_add_u32", sT0, sT0, QS)
    e.I("v_add_u32", vQx, sT0, vl16)
    e.I("s_barrier")
    for si in range(8):
        e.I("ds_read_b128", KF(1, si), vl16, mods="offset:%d" % (si * 1024))
    for si in range(8):
        e.I("ds_read_b128", KF(0, si), vl16, mods="offset:%d" % (8192 + si * 1024))
    for si in range(8):
        for qb in range(2):
            e.I(MFMA, S(0, qb), KF(1, si), qfrag(qb, si), 0 if si == 0 else S(0, qb))
        e.I("ds_write_b128", vQx, qfrag(0, si), mods="offset:%d" % (si * 1024))
    e.I("v_xor_b32", vQx, 8192, vQx)

    def mask_S_inplace(em, Sx, dq):
        for r0 in range(0, 16, 4):
            for i in range(4):
                em.I("v_cmp_ge_i32", MASKS[i], dq, CR[r0 + i])
            for i in range(4):
                em.I("v_cndmask_b32", Sx[r0 + i], vNinf, Sx[r0 + i], MASKS[i])

    def rowmax(em, Sx, dst, tmp):
        em.I("v_max3_f32", dst, Sx[0], Sx[1], Sx[2])
        for r in range(3, 15, 2):
            em.I("v_max3_f32", dst, dst, Sx[r], Sx[r + 1])
        em.I("v_max_f32", dst, dst, Sx[15])
        em.I("v_mov_b32", tmp, dst)
        em.I("v_permlane32_swap_b32", dst, tmp)
        em.I("v_max_f32", dst, dst, tmp)

    for qb in range(2):
        Sx = S(0, qb)
        if qb == 1:
            mask_S_inplace(e, Sx, vDq[1])
        rowmax(e, Sx, RT[0], RT[1])
        for r in range(16):
            e.I("v_sub_f32", Sx[r], Sx[r], RT[0])
        for r in range(16):
            e.I("v_sub_f32", NM(qb)[r], 0, RT[0])
    e.wait_lgkm0()
    stamp(e, 6)

    ret_labels = []

    def sm_stream(par, qb, masked):
        Sx, Px = S(par, qb), P(par, qb)
        out = []
        if masked:
            out.append(I("v_subrev_u32", vDqT[qb], sKv, vDq[qb]))

        def front(k):
            o = []
            if masked:
                o.append(I("v_cmp_ge_i32", MASKS[(2 * k) & 3], vDqT[qb], CR[2 * k]))
                o.append(I("v_cmp_ge_i32", MASKS[(2 * k + 1) & 3], vDqT[qb], CR[2 * k + 1]))
            o.append(I("v_exp_f32", ET[(2 * k) % 6], Sx[2 * k]))
            o.append(I("v_exp_f32", ET[(2 * k + 1) % 6], Sx[2 * k + 1]))
            return o

        def back(k):
            ta, tb = ET[(2 * k) % 6], ET[(2 * k + 1) % 6]
            o = []
            if masked:
                o.append(I("v_cndmask_b32", ta, 0, ta, MASKS[(2 * k) & 3]))
                o.append(I("v_cndmask_b32", tb, 0, tb, MASKS[(2 * k + 1) & 3]))
            if k == 0:
                o.append(I("v_add_f32", vTs[qb], ta, tb))
            else:
                o.append(I("v_add_f32", vTs[qb], vTs[qb], ta))
                o.append(I("v_add_f32", vTs[qb], vTs[qb], tb))
            o.append(I("v_cvt_pk_bf16_f32", Px[k], ta, tb))
            return o
        out += front(0)
        for k in range(8):
            if k + 1 < 8:
                out += front(k + 1)
            out += back(k)
        return out

    def qk_mfmas(par):
        return [I(MFMA, S(1 - par, qb), KF(par, si), qfrag(qb, si), NM(qb) if si == 0 else S(1 - par, qb))
                for si in range(8) for qb in range(2)]

    def pv_mfmas(par, first=(), order=None):
        ms = []
        for t in range(2):
            for b in range(4):
                for qb in range(2):
                    c = 0 if (qb in first and t == 0) else O(qb, b)
                    ms.append(I(MFMA, O(qb, b), VF(par, t, b), P(1 - par, qb).sub(4 * t, 4), c))
        return ms

    def k_reads(par, vaddr, off):
        return [I("ds_read_b128", KF(1 - par, si), vaddr, mods="offset:%d" % (off + si * 1024)) for si in range(8)]

    def v_reads(par, vaddr, off):
        return [I("ds_read_b128", VF(1 - par, si >> 2, si & 3), vaddr, mods="offset:%d" % (off + si * 1024))
                for si in range(8)]

    def step(par, name, qk, masks, pv, rds, dma, kvinc, pv_first=(), extra=(), tail=(), late_rd=True):
        ms = (qk_mfmas(par) if qk else []) + (pv_mfmas(par, pv_first) if pv else [])
        val = sm_stream(par, 0, masks[0]) + sm_stream(par, 1, masks[1])
        if "nords" in EXP:
            rds = []
        if "nodma" in EXP:
            dma = None
        if "nosm" in EXP:
            val = val[:4]
        cut = (len(val) * (9 if late_rd else 7)) // 10
        fill = merge(val[:cut], rds) + val[cut:]
        if extra:
            fill = merge(fill, list(extra))
        if dma:
            fill = merge(fill, dma)
        fill.append(I("v_max_f32", vTm, vTs[0], vTs[1]))
        fill.append(I("v_cmp_nge_f32", VCC, sThr, vTm))
        rid = len(ret_labels)
        ret_labels.append(("K2_RET_%s" % name, par))
        fill.append(I("s_mov_b32", sRet, rid))
        for qb in range(2):
            fill.append(I("v_add_f32", vL[1 - par][qb], vL[par][qb], vTs[qb]))
        fill += list(tail)
        interleave(e, ms, fill, close=True)
        e.I("s_cbranch_vccnz", "K2_RARE%d" % par)
        e.label("K2_RET_%s" % name)
        e.I("s_add_u32", sKv, sKv, kvinc)
        for x in EXP:
            if x.startswith("pad"):
                for _ in range(int(x[3:])):
                    e.I("s_nop", 15)

    def dma_group(kind, vdelta=16384):
        srd = s(S_K if kind == "K" else S_V, 4)
        sg = sKg if kind == "K" else sVg
        out = []
        if kind == "K":
            out.append(I("s_mov_b32", M0, sRot))
        else:
            out.append(I("s_sub_u32", sSt, sRot, vdelta))
            out.append(I("s_and_b32", sSt, sSt, 0xffff))
            out.append(I("s_add_u32", M0, sSt, 65536))
        for i in range(4):
            x = I("buffer_load_dwordx4", vl16, srd, sg, mods="offen offset:%d lds" % (1024 * i))
            x.cost = 16
            out.append(x)
        out.append(I("s_add_u32", sg, sg, 16384))
        return out

    def top():
        e.I("s_waitcnt", "vmcnt(16) lgkmcnt(0)")
        e.lgkm = []
        e.vm = []
        if "nobar" not in EXP:
            e.I("s_barrier")

    ROT = [I("s_add_u32", sRot, sRot, 16384), I("s_and_b32", sRot, sRot, 0xffff)]

    def iter1(name, maskB, first=False, last=False):
        top()
        step(0, name + "a", True, (False, maskB), not first,
             merge([] if last else k_reads(0, vKr, 0), v_reads(0, vVr, 0)), dma_group("K"), 32)
        tail = [I("v_add_u32", vVr, 65536, vKr), I("v_add_u32", vKr, 16384, vKr), I("v_and_b32", vKr, 0xffff, vKr),
                I("s_sub_u32", sCnt, sCnt, 1)] + ROT
        if last:
            rq = [I("ds_read_b128", qfrag(1, si), vQx, mods="offset:%d" % (si * 1024)) for si in range(8)]
            rds = [I("v_add_u32", vKx, sPw, vKr)] + merge(k_reads(1, vKx, 0), v_reads(1, vVr, 8192)) + rq
        else:
            rds = merge(k_reads(1, vKr, 8192), v_reads(1, vVr, 8192))
        step(1, name + "b", not last, (False, maskB), True, rds, dma_group("V"), 32,
             pv_first=(0, 1) if first else (), tail=tail, late_rd=False)

    def step2(par, name, masked, qk=True, pv=True, pv_first=(), extra=()):
        top()
        tail = [I("v_add_u32", vKr, 16384, vKr), I("v_and_b32", vKr, 0xffff, vKr),
                I("v_add_u32", vVr, 16384, vVr), I("v_and_b32", vVr, 0xffff, vVr), I("v_or_b32", vVr, 0x10000, vVr)] + ROT
        step(par, name, qk, (masked, masked), pv, merge(k_reads(par, vKr, 0), v_reads(par, vVr, 0)),
             dma_group("K") + dma_group("V", 32768), 64, pv_first=pv_first, extra=extra, tail=tail, late_rd=False)

    def loop(name, body):
        e.I("s_cmp_eq_u32", sCnt, 0)
        e.I("s_cbranch_scc1", "K2_%s_X" % name)
        e.label("K2_%s_L" % name)
        body()
        e.I("s_cmp_lg_u32", sCnt, 0)
        e.I("s_cbranch_scc1", "K2_%s_L" % name)
        e.label("K2_%s_X" % name)

    def ctx_store(qb_o, scale_regs, sbase, src2=None):
        out = []
        n = 0
        for b in range(4):
            for t in range(2):
                T = [RT[(n % 3) * 8 + 8 + r] for r in range(8)]
                Tq = v(RT[(n % 3) * 8 + 8].i, 4)
                n += 1
                for r in range(8):
                    out.append(I("v_accvgpr_read_b32", T[r], O(qb_o, b)[8 * t + r]))
                for r in range(8):
                    out.append(I("v_mul_f32", T[r], T[r], scale_regs[0]))
                if src2 is not None:
                    for r in range(8):
                        out.append(I("v_fmac_f32", T[r], src2[b * 16 + 8 * t + r], scale_regs[1]))
                for q in range(4):
                    out.append(I("v_cvt_pk_bf16_f32", T[q], T[2 * q], T[2 * q + 1]))
                off = (2 * b + t) * 1024
                if off % 4096 == 0:
                    out.append(I("s_add_u32", sTmp, sbase, off))
                out.append(I("buffer_store_dwordx4", Tq, vl16, s(S_WS, 4), sTmp, mods="offen offset:%d" % (off & 4095)))
        return out

    iter1("V0", True, first=True)
    e.I("s_lshl_b32", sCnt, sj, 1)
    e.I("s_sub_u32", sCnt, sCnt, 1)
    e.I("s_max_i32", sCnt, sCnt, 0)
    loop("V1", lambda: iter1("V1", False))
    e.I("s_min_u32", sCnt, sj, 1)
    loop("V2", lambda: iter1("V2", True))
    iter1("V2L", True, last=True)
    stamp(e, 7)
    top()
    e.I("v_add_u32", vNx, 49152, vVr)
    e.I("v_and_b32", vNx, 0xc000, vNx)
    e.I("v_lshlrev_b32", t0, 2, vl)
    e.I("v_add_u32", vNx, vNx, t0)
    e.I("s_lshl_b32", sT0, sw, 8)
    e.I("s_add_u32", sT0, sT0, 65536)
    e.I("v_add_u32", vNx, sT0, vNx)
    e.I("ds_write_b32", vNx, NM(0)[0])
    e.I("v_xor_b32", vNx, 256, vNx)
    e.I("v_mov_b32", RT[0], vL[0][1])
    e.I("v_mov_b32", RT[1], vL[0][1])
    e.I("v_mov_b32", vL[1][0], vL[0][0])
    e.I("v_permlane32_swap_b32", RT[0], RT[1])
    e.I("v_mov_b32", vL[1][1], 0)
    e.I("v_add_f32", RT[0], RT[0], RT[1])
    e.I("v_rcp_f32", vInvB, RT[0])
    e.I("v_add_u32", vKr, sPw, vKr)
    e.I("v_add_u32", vVr, sPw, vVr)
    e.I("s_lshr_b32", sT0, sPw, 8)
    e.I("s_add_u32", sKv, sKv, sT0)
    e.I("s_lshl_b32", sT0, sT0, 1)
    e.I("v_add_u32", vDq[1], 32, vDq[0])
    e.I("v_subrev_u32", vDq[1], sT0, vDq[1])
    pvm = pv_mfmas(0)
    pvB = [m for m in pvm if m.ops[0].i >= 64]
    pvA = [m for m in pvm if m.ops[0].i < 64]
    interleave(e, pvB, k_reads(0, vKr, 0) + dma_group("K"))
    e.wait_lgkm0()
    e.I("s_barrier")
    e.I("ds_read_b32", RT[2], vNx)
    interleave(e, pvA[:4], ROT + [I("v_add_u32", vKr, 16384, vKr), I("v_and_b32", vKr, 0xffff, vKr)])
    interleave(e, pvA[4:], [I("v_mov_b32", NM(1)[r], RT[2]) for r in range(16)])
    bepi = ctx_store(1, [vInvB], sCo[1])
    nb1 = len(bepi) // 2
    qkm = qk_mfmas(0)
    interleave(e, [m for m in qkm if m.ops[0].i == S(1, 0).i] + [m for m in qkm if m.ops[0].i == S(1, 1).i], bepi[:nb1])
    step2(1, "P0", True, pv=False, extra=bepi[nb1:])
    step2(0, "P1", True, pv_first=(1,))
    e.I("s_cmp_eq_u32", sj, 7)
    e.I("s_cbranch_scc1", "K2_DRAIN")
    e.I("s_lshl_b32", sCnt, sj, 1)
    e.I("s_sub_u32", sCnt, 13, sCnt)

    def p2():
        step2(1, "P2a", False)
        step2(0, "P2b", False, extra=[I("s_sub_u32", sCnt, sCnt, 1)])
    loop("P2", p2)
    step2(1, "P3", True)
    step2(0, "P4", True, qk=False)
    e.label("K2_DRAIN")
    e.I("s_waitcnt", "lgkmcnt(0)")
    e.lgkm = []
    for m in pv_mfmas(1):
        e.emit(m)
    stamp(e, 8)
    MS = 17408
    e.I("s_mul_i32", sT0, sw, MS)
    e.I("v_add_u32", vQx, sT0, vl16)
    e.I("v_lshlrev_b32", t0, 2, vl)
    e.I("v_add_u32", vNx, sT0, t0)
    e.I("s_waitcnt", "vmcnt(0)")
    e.I("s_barrier")
    e.I("ds_write_b32", vNx, NM(1)[0], mods="offset:16384")
    e.I("ds_write_b32", vNx, vL[1][1], mods="offset:16640")
    for b in range(4):
        for i in range(4):
            e.I("ds_write_b128", vQx, O(1, b).sub(4 * i, 4), mods="offset:%d" % ((b * 4 + i) * 1024))
    e.I("s_xor_b32", sT1, sw, 1)
    e.I("s_mul_i32", sT0, sT1, MS)
    e.I("v_add_u32", vQx, sT0, vl16)
    e.I("v_add_u32", vNx, sT0, t0)
    e.wait_lgkm0()
    e.I("s_barrier")
    nm2, l2, nm, f1, f2, lt, tq = RT[0], RT[1], RT[2], RT[3], RT[4], RT[5], RT[6]
    e.I("ds_read_b32", nm2, vNx, mods="offset:16384")
    e.I("ds_read_b32", l2, vNx, mods="offset:16640")
    O2 = SET[0]
    for i in range(16):
        e.I("ds_read_b128", O2.sub(4 * i, 4), vQx, mods="offset:%d" % (i * 1024))
    e.I("v_min_f32", nm, NM(0)[0], nm2)
    e.I("v_sub_f32", f1, nm, NM(0)[0])
    e.I("v_sub_f32", f2, nm, nm2)
    e.I("v_exp_f32", f1, f1)
    e.I("v_exp_f32", f2, f2)
    e.I("v_mul_f32", lt, vL[1][0], f1)
    e.I("v_fmac_f32", lt, l2, f2)
    e.I("v_mov_b32", tq, lt)
    e.I("v_permlane32_swap_b32", lt, tq)
    e.I("v_add_f32", lt, lt, tq)
    e.I("v_rcp_f32", lt, lt)
    e.I("v_mul_f32", f1, f1, lt)
    e.I("v_mul_f32", f2, f2, lt)
    emit_all(e, ctx_store(0, [f1, f2], sCo[0], src2=O2))
    stamp(e, 9)
    stamp_flush(e, 1, s(S_WS, 4), sw, 10)
    e.I("s_endpgm")

    for par in range(2):
        e.label("K2_RARE%d" % par)
        e.vm, e.lgkm = [], []
        e.I("s_nop", 15)
        e.I("s_nop", 7)
        for qb in range(2):
            Sx, Sn, Px = S(par, qb), S(1 - par, qb), P(par, qb)
            dq, dl, f, tmp = RT[0], RT[1], RT[2], RT[3]
            e.I("v_subrev_u32", dq, sKv, vDq[qb])
            mask_S_inplace(e, Sx, dq)
            rowmax(e, Sx, dl, tmp)
            e.I("v_max_f32", dl, 0, dl)
            e.I("v_sub_f32", f, 0, dl)
            e.I("v_exp_f32", f, f)
            for r in range(16):
                e.I("v_sub_f32", Sx[r], Sx[r], dl)
            e.I("v_mul_f32", vL[1 - par][qb], vL[par][qb], f)
            for r in range(16):
                e.I("v_exp_f32", RT[8 + r], Sx[r])
            for r in range(16):
                e.I("v_sub_f32", Sn[r], Sn[r], dl)
            for r in range(16):
                e.I("v_add_f32", vL[1 - par][qb], vL[1 - par][qb], RT[8 + r])
            for k in range(8):
                e.I("v_cvt_pk_bf16_f32", Px[k], RT[8 + 2 * k], RT[9 + 2 * k])
            for r in range(16):
                e.I("v_sub_f32", NM(qb)[r], NM(qb)[r], dl)
            for b in range(4):
                for r0 in range(0, 16, 8):
                    for r in range(8):
                        e.I("v_accvgpr_read_b32", RT[8 + r], O(qb, b)[r0 + r])
                    for r in range(8):
                        e.I("v_mul_f32", RT[8 + r], RT[8 + r], f)
                    for r in range(8):
                        e.I("v_accvgpr_write_b32", O(qb, b)[r0 + r], RT[8 + r])
        e.I("s_nop", 3)
        mine = [(i, l) for i, (l, pp) in enumerate(ret_labels) if pp == par]
        for i, l in mine[:-1]:
            e.I("s_cmp_eq_u32", sRet, i)
            e.I("s_cbranch_scc1", l)
        e.I("s_branch", mine[-1][1])
    e.label(END)
    e.I("s_endpgm")
    return e.text(), dict(vgpr=512, sgpr=102, accum=256, grid=256, block=256, lds=163840)
```

```python
import sys
sys.path.insert(0, "dev")
from asmlib import *
import gen
from gen import *

LOG2E = 1.4426950408889634
WS_P = 0x4000000
NS0 = 21
AD = 20
NSL = 6
POLL_AT = 2


def gen_k3():
    e = Emitter()
    gen.STAMP_MAP = None
    END = "K3_END"
    prologue(e, 256, END)
    S_WS, S_WO, S_WD, S_X, S_OUT, S_DBG = 32, 36, 40, 44, 48, 52
    sw, ssp, str_, stc = s(56), s(57), s(58), s(59)
    sA, sWo, sWd, sM0, sT0, sT1, sTa, sTw = s(60), s(61), s(62), s(63), s(64), s(65), s(66), s(67)
    sX, sP, sSpin, sFl = s(68), s(69), s(70), s(71)
    vl, vl16 = v(1), v(2)
    t0, t1, t2 = v(3), v(4), v(5)
    vtr = [v(6), v(7)]
    vtr2 = [v(12), v(13)]
    vW = [v(8 + i) for i in range(4)]
    vX, vFo, vOne, vPoll = v(14), v(15), v(16), v(17)
    WP = v(20, 16)
    XR = v(36, 16)
    ACC = [v(64, 32), v(96, 32)]
    PS = v(128, 32)
    AR = a(0, 4 * AD)
    code_prefetch(e, "k3", "k3_kernel", "TEXT_END", s(100, 2), t0, v(156, 4) if False else v(52, 4), 1)
    e.I("v_and_b32", vl, 63, v(0))
    e.I("v_lshrrev_b32", t0, 6, v(0))
    e.I("v_lshlrev_b32", vl16, 4, vl)
    e.I("v_readfirstlane_b32", sw, t0)
    e.I("s_and_b32", ssp, s(2), 1)
    e.I("s_bfe_u32", sT0, s(2), (2 << 16) | 1)
    e.I("s_lshl_b32", sT0, sT0, 2)
    e.I("s_bfe_u32", sT1, s(2), (2 << 16) | 3)
    e.I("s_add_u32", str_, sT0, sT1)
    e.I("s_lshr_b32", stc, s(2), 5)
    wdma_voff(e, vW, vl, (t0, t1), 1024)
    e.I("s_lshl_b32", sT0, str_, 2)
    e.I("s_add_u32", sT0, sT0, sw)
    e.I("s_mul_i32", sA, sT0, 368 * 1024)
    e.I("s_add_u32", sA, sA, WS_A3)
    e.I("s_lshl_b32", sT0, sw, 15)
    e.I("s_lshl_b32", sT1, stc, 7)
    e.I("s_add_u32", sWo, sT0, sT1)
    e.I("s_lshl_b32", sM0, sw, 12)
    e.I("s_waitcnt", "lgkmcnt(0)")
    make_srd(e, S_WS, P_WS, WS_BYTES)
    make_srd(e, S_WO, P_WO, 4096 * 1024)
    make_srd(e, S_WD, P_WD, 1792 * 1024)
    stamp(e, 0)

    def setup2():
        tr_addr(e, vtr[0], vtr[1], vl, (t0, t1, t2), 0, True)
        e.I("v_add_u32", vtr2[0], 65536, vtr[0])
        e.I("v_add_u32", vtr2[1], 65536, vtr[1])
        make_srd(e, S_X, P_X, 2048 * 1024)
        make_srd(e, S_OUT, P_OUT, 2048 * 1024)
        make_srd(e, S_DBG, P_DBG, 256)
        e.I("s_lshl_b32", sT0, str_, 3)
        e.I("s_add_u32", sT0, sT0, stc)
        e.I("s_lshl_b32", sP, sT0, 2)
        e.I("s_add_u32", sP, sP, sw)
        e.I("s_lshl_b32", sP, sP, 13)
        e.I("s_add_u32", sP, sP, WS_P)
        e.I("s_lshr_b32", sT1, sT0, 1)
        e.I("s_lshl_b32", sT1, sT1, 2)
        e.I("v_mov_b32", vFo, sT1)
        e.I("s_and_b32", sT0, sT0, 1)
        e.I("s_lshl_b32", sFl, sT0, 4)
        e.I("s_lshl_b32", sT0, 1, sFl)
        e.I("v_mov_b32", vOne, sT0)
        e.I("s_lshl_b32", sX, str_, 2)
        e.I("s_add_u32", sX, sX, sw)
        e.I("s_lshl_b32", sX, sX, 15)
        e.I("s_lshl_b32", sT0, stc, 7)
        e.I("s_add_u32", sX, sX, sT0)
        e.I("v_and_b32", t0, 31, vl)
        e.I("v_lshlrev_b32", t0, 10, t0)
        e.I("v_lshrrev_b32", t1, 5, vl)
        e.I("v_lshlrev_b32", t1, 3, t1)
        e.I("v_add_u32", vX, t0, t1)
        if gen.PF_TLB:
            e.I("v_lshlrev_b32", t0, 20, vl)
            Untracked(I("buffer_load_dword", v(52), t0, s(S_OUT, 4), 0, mods="offen"))(e)

    def program(split):
        stages = list(range(NS0)) if split == 0 else list(range(NS0, 46))
        ns = len(stages)
        nk = ns * 8
        k0 = stages[0] * 8

        def afrag(t):
            return AR.sub((t % AD) * 4, 4)

        def wfrag(t, mb):
            return WP.sub(((t & 1) * 2 + mb) * 4, 4)

        def a_load(t):
            out = []
            if t % 4 == 0:
                out.append(I("s_add_u32", sTa, sA, (k0 + t) * 1024))
            out.append(I("buffer_load_dwordx4", afrag(t), vl16, s(S_WS, 4), sTa, mods="offen offset:%d" % (1024 * (t % 4))))
            return out

        def w_dma(i):
            g = stages[i]
            srd, row = (S_WO, g * 128) if g < 32 else (S_WD, (g - 32) * 128)
            out = [[I("s_add_u32", M0, sM0, (i % NSL) * 16384), I("s_add_u32", sTw, sWo, row * 1024)]]
            for q in range(4):
                x = I("buffer_load_dwordx4", vW[q], s(srd, 4), sTw, mods="offen offset:%d lds" % (1024 * q), tag=("W", i))
                if q == 0:
                    out[0].append(x)
                else:
                    out.append([x])
            return out

        def reads(t):
            i, sl = t // 8, t % 8
            off = (i % NSL) * 16384 + 16 * sl * 128
            at = vtr if off < 65536 else vtr2
            if at is vtr2:
                off -= 65536
            return [I("ds_read_b64_tr_b16", wfrag(t, mb).sub(2 * p, 2), at[mb], mods="offset:%d" % (off + p * 1024))
                    for mb in range(2) for p in range(2)]

        def mf(t):
            g = stages[t // 8]
            acc = ACC[0 if g < 32 else 1]
            first = t == 0 or (g == 32 and t % 8 == 0)
            return [I(MFMA, acc.sub(mb * 16, 16), wfrag(t, mb), afrag(t), 0 if first else acc.sub(mb * 16, 16))
                    for mb in range(2)]

        for x in w_dma(0):
            emit_all(e, x)
        for t in range(8):
            emit_all(e, a_load(t))
        for x in w_dma(1):
            emit_all(e, x)
        setup2()
        for t in range(8, AD):
            emit_all(e, a_load(t))
        wq = []
        for i in range(2, NSL - 1):
            wq += w_dma(i)
        if split == 1:
            stamp(e, 1)
        e.wait_vm_tag(lambda tg: tg == ("W", 0))
        e.I("s_barrier")
        emit_all(e, reads(0))
        nxt = NSL - 1
        if nxt < ns:
            wq += w_dma(nxt)
            nxt += 1
        for t in range(nk):
            i, sl = t // 8, t % 8
            if sl == 7 and t + 1 < nk:
                e.wait_lgkm0()
                while any(x[-1].tag == ("W", i + 1) for x in wq):
                    emit_all(e, wq.pop(0))
                e.wait_vm_tag(lambda tg: tg == ("W", i + 1))
                if split == 1 and i == ns - 2 - POLL_AT:
                    e.I("buffer_load_dword", vPoll, vFo, s(S_DBG, 4), 0, mods="offen sc1")
                if split == 1 and i == ns - 1 - POLL_AT:
                    poll()
                e.I("s_barrier")
                if nxt < ns:
                    wq += w_dma(nxt)
                    nxt += 1
                if split == 1 and i == ns - 1 - POLL_AT:
                    wq += fin_loads()
            ms = mf(t)
            rd = reads(t + 1) if t + 1 < nk else []
            e.emit(ms[0])
            emit_all(e, rd[:2])
            if wq and (t % 2 == 0 or len(wq) > 6):
                emit_all(e, wq.pop(0))
            e.emit(ms[1])
            emit_all(e, rd[2:])
            if t + AD < nk:
                emit_all(e, a_load(t + AD))
            elif wq:
                emit_all(e, wq.pop(0))
        while wq:
            emit_all(e, wq.pop(0))

    def poll():
        e.I("v_readfirstlane_b32", sT0, vPoll)
        e.I("s_lshr_b32", sT0, sT0, sFl)
        e.I("s_and_b32", sT0, sT0, 0xffff)
        e.I("s_cmp_lg_u32", sT0, 0)
        e.I("s_cbranch_scc1", "K3_POLLX")
        e.I("s_mov_b32", sSpin, 1 << 16)
        e.label("K3_POLL")
        e.raw(I("buffer_load_dword", vPoll, vFo, s(S_DBG, 4), 0, mods="offen sc1"))
        e.raw(I("s_waitcnt", "vmcnt(0)"))
        e.I("v_readfirstlane_b32", sT0, vPoll)
        e.I("s_lshr_b32", sT0, sT0, sFl)
        e.I("s_and_b32", sT0, sT0, 0xffff)
        e.I("s_sub_u32", sSpin, sSpin, 1)
        e.I("s_cmp_eq_u32", sSpin, 0)
        e.I("s_cbranch_scc1", "K3_POLLX")
        e.I("s_cmp_lg_u32", sT0, 0)
        e.I("s_cbranch_scc1", "K3_POLLX")
        e.I("s_sleep", 2)
        e.I("s_branch", "K3_POLL")
        e.label("K3_POLLX")

    def fin_loads():
        out = []
        for n in range(8):
            ins = []
            if n % 4 == 0:
                ins.append(I("s_add_u32", sT1, sP, n * 1024))
            ins.append(I("buffer_load_dwordx4", PS.sub(4 * n, 4), vl16, s(S_WS, 4), sT1,
                         mods="offen offset:%d sc1" % ((n % 4) * 1024)))
            out.append(ins)
        for n in range(8):
            out.append([I("buffer_load_dwordx2", XR.sub(2 * n, 2), vX, s(S_X, 4), sX,
                          mods="offen offset:%d" % ((n >> 2) * 64 + (n & 3) * 16))])
        return out

    e.I("s_cmp_eq_u32", ssp, 1)
    e.I("s_cbranch_scc1", "K3_CONS")
    st0 = e.state()
    program(0)
    for n in range(8):
        if n % 4 == 0:
            e.I("s_add_u32", sT1, sP, n * 1024)
        e.I("buffer_store_dwordx4", ACC[0].sub(4 * n, 4), vl16, s(S_WS, 4), sT1,
            mods="offen offset:%d sc1" % ((n % 4) * 1024), tag="final")
    e.wait_all()
    e.I("s_barrier")
    e.I("s_cmp_lg_u32", sw, 0)
    e.I("s_cbranch_scc1", END)
    e.I("s_mov_b64", EXEC, 1)
    e.I("buffer_atomic_add", vOne, vFo, s(S_DBG, 4), 0, mods="offen")
    e.I("s_endpgm")
    e.label("K3_CONS")
    e.set_state(st0)
    program(1)
    stamp(e, 2)
    PK = [v(52), v(53)]
    for n in range(8):
        SS = [ACC[0][4 * n + i] for i in range(4)]
        DD = [ACC[1][4 * n + i] for i in range(4)]
        G_ = [v(56 + i) for i in range(4)]
        XX = [v(60 + i) for i in range(4)]
        for i in range(4):
            e.I("v_add_f32", SS[i], SS[i], PS[4 * n + i])

        def rnd(vals):
            for k in range(2):
                e.I("v_cvt_pk_bf16_f32", PK[k], vals[2 * k], vals[2 * k + 1])
            for k in range(2):
                e.I("v_lshlrev_b32", vals[2 * k], 16, PK[k])
                e.I("v_and_b32", vals[2 * k + 1], 0xffff0000, PK[k])
        rnd(SS)
        rnd(DD)
        for i in range(4):
            e.I("v_mul_f32", G_[i], -LOG2E, DD[i])
        for i in range(4):
            e.I("v_exp_f32", G_[i], G_[i])
        for i in range(4):
            e.I("v_add_f32", G_[i], 1.0, G_[i])
        for i in range(4):
            e.I("v_rcp_f32", G_[i], G_[i])
        for i in range(4):
            e.I("v_mul_f32", G_[i], G_[i], DD[i])
        rnd(G_)
        for i in range(4):
            e.I("v_mul_f32", SS[i], SS[i], G_[i])
        rnd(SS)
        for k in range(2):
            e.I("v_lshlrev_b32", XX[2 * k], 16, XR[2 * n + k])
            e.I("v_and_b32", XX[2 * k + 1], 0xffff0000, XR[2 * n + k])
        for i in range(4):
            e.I("v_add_f32", SS[i], SS[i], XX[i])
        OR = PS.sub(4 * n, 2)
        for k in range(2):
            e.I("v_cvt_pk_bf16_f32", OR[k], SS[2 * k], SS[2 * k + 1])
        e.I("buffer_store_dwordx2", OR, vX, s(S_OUT, 4), sX,
            mods="offen offset:%d" % ((n >> 2) * 64 + (n & 3) * 16), tag="final")
    stamp(e, 3)
    stamp_flush(e, 1 if gen.FUSE else 2, s(S_WS, 4), sw, 4)
    e.label(END)
    e.I("s_endpgm")
    return e.text(), dict(vgpr=160 + 4 * AD, sgpr=102, accum=160, grid=256, block=256, lds=NSL * 16384)


gen_k4 = None
```

```python
import sys
sys.path.insert(0, "dev")
import gen
path = sys.argv[1] if len(sys.argv) > 1 else "cdna_kernels/%s.s" % gen.NAME
gen.PROFILE = len(sys.argv) > 2 and sys.argv[2] == "prof"
import os, gen_k2
gen_k2.EXP = set(os.environ.get("EXP", "").split(","))
import asmlib
asmlib.STORE_MODS = os.environ.get("STM", "sc1")
gen.PF_CODE = os.environ.get("PFC", "1") == "1"
gen.PF_TLB = os.environ.get("PFT", "1") == "1"
gen.PF_W = os.environ.get("PFW", "1") == "1"
import gen_k3
for kv in os.environ.get("K3P", "").split(","):
    if kv:
        k_, v_ = kv.split("="); setattr(gen_k3, k_, int(v_))
open(path, "w").write(gen.build())
print("wrote", path)
```

```python
import sys, math
sys.path.insert(0, "dev")
from asmlib import *

NAME = "recurrent_scan__compressed_kv_cla__geglu_ffn__prompt"
WS_XN = 0x0000000
WS_K = 0x0200000
WS_V = 0x1200000
WS_A3 = 0x2200000
WS_BYTES = 0x10000000
MFMA = "v_mfma_f32_32x32x16_bf16"

P_X, P_CKV, P_WQ, P_WUK, P_WUV, P_WO, P_BX, P_WG, P_WU, P_WD, P_OUT, P_DBG, P_WS = [4 + 2 * i for i in range(13)]


def I(op, *ops, mods="", tag=None, comment=None):
    return Inst(op, ops, mods, tag, comment)


def emit_all(e, lst):
    for x in lst:
        if isinstance(x, tuple):
            x = x[1]
        if isinstance(x, Inst):
            e.emit(x)
        else:
            x(e)


PROFILE = False
PACE = 2
WS_PROF = 0x8000000


def stamp(e, idx):
    if not PROFILE:
        return
    e.wait_lgkm0()
    e.I("s_memtime", s(82, 2))
    e.I("s_waitcnt", "lgkmcnt(0)")
    e.I("s_mov_b32", s(84 + idx), s(82))
    if idx == 0:
        e.I("s_memrealtime", s(82, 2))
        e.I("s_waitcnt", "lgkmcnt(0)")
        e.I("s_mov_b32", s(98), s(82))


def stamp_flush(e, kidx, srd_ws, sw, n, vt=(v(2), v(3))):
    if not PROFILE:
        return
    e.wait_all()
    e.I("s_memrealtime", s(82, 2))
    e.I("s_waitcnt", "lgkmcnt(0)")
    e.I("s_mov_b32", s(99), s(82))
    e.I("s_lshl_b32", s(82), s(2), 2)
    e.I("s_add_u32", s(82), s(82), sw)
    e.I("s_lshl_b32", s(82), s(82), 6)
    e.I("s_add_u32", s(82), s(82), WS_PROF + kidx * 65536)
    e.I("v_mov_b32", vt[1], 0)
    for i in list(range(n)) + [14, 15]:
        e.I("v_mov_b32", vt[0], s(84 + i))
        e.I("buffer_store_dword", vt[0], vt[1], srd_ws, s(82), mods="offen offset:%d" % (4 * i))


def prologue(e, nwg, endlabel):
    e.I("s_cmp_ge_u32", s(2), nwg)
    e.I("s_cbranch_scc1", endlabel)
    e.I("s_load_dwordx16", s(4, 16), s(0, 2), 0)
    e.I("s_load_dwordx8", s(20, 8), s(0, 2), 64)
    e.I("s_load_dwordx2", s(28, 2), s(0, 2), 96)


PF_CODE = True
PF_W = True


class Untracked:
    def __init__(self, inst):
        self.inst = inst
        self.cost = 8
        self.tag = "pf"

    def __call__(self, em):
        if len(em.vm) >= 63:
            em._emit_wait(vm=62)
        em.raw(self.inst)
        em.vm.append((set(), "pf"))


def code_prefetch(e, name, first, last, sbase, vtmp, vdst, nload):
    if not PF_CODE:
        return
    lab = "L_pc_" + name
    e.I("s_getpc_b64", sbase)
    e.label(lab)
    e.I("s_add_u32", sbase[0], sbase[0], "%s-%s" % (first, lab))
    e.I("s_addc_u32", sbase[1], sbase[1], -1)
    e.I("s_lshr_b32", s(3), s(2), 3)
    e.I("s_lshl_b32", s(3), s(3), 12)
    e.I("v_lshlrev_b32", vtmp, 4, v(0))
    e.I("v_add_u32", vtmp, s(3), vtmp)
    for i in range(nload):
        if i:
            e.I("v_add_u32", vtmp, 131072, vtmp)
        e.I("v_min_u32", vtmp, "%s-%s-16" % (last, first), vtmp)
        Untracked(I("global_load_dwordx4", vdst, vtmp, sbase))(e)


def make_srd(e, d, p, nbytes):
    e.I("s_mov_b32", s(d), s(p))
    e.I("s_mov_b32", s(d + 1), s(p + 1))
    e.I("s_mov_b32", s(d + 2), nbytes)
    e.I("s_mov_b32", s(d + 3), 0x20000)


def head_j(e, sh, sj, t0, t1):
    e.I("s_and_b32", t0, s(2), 7)
    e.I("s_lshl_b32", t0, t0, 2)
    e.I("s_bfe_u32", t1, s(2), (2 << 16) | 3)
    e.I("s_add_u32", sh, t0, t1)
    e.I("s_lshr_b32", sj, s(2), 5)


def tr_addr(e, dst0, dst1, vl, tmp, base, kperm):
    t0, t1, t2 = tmp
    e.I("v_lshrrev_b32", t0, 5, vl)
    e.I("v_lshlrev_b32", t0, (2 if kperm else 3) + 7, t0)
    e.I("v_bfe_u32", t1, vl, 2, 2)
    e.I("v_lshlrev_b32", t1, 7, t1)
    e.I("v_add_u32", t0, t0, t1)
    e.I("v_bfe_u32", t1, vl, 4, 1)
    e.I("v_lshlrev_b32", t1, 5, t1)
    e.I("v_add_u32", t0, t0, t1)
    e.I("v_and_b32", t1, 3, vl)
    e.I("v_lshlrev_b32", t1, 3, t1)
    e.I("v_add_u32", t0, t0, t1)
    if base is not None and not (isinstance(base, int) and base == 0):
        e.I("v_add_u32", t0, base, t0)
    e.I("v_bfe_u32", t2, vl, 3, 1)
    e.I("v_lshlrev_b32", t2, 6, t2)
    e.I("v_add_u32", dst0, t0, t2)
    e.I("v_xor_b32", t2, 64, t2)
    e.I("v_add_u32", dst1, t0, t2)


def wdma_voff(e, dsts, vl, tmp, rs):
    t0, t1 = tmp
    e.I("v_lshrrev_b32", t0, 3, vl)
    e.I("v_mul_u32_u24", t0, rs, t0)
    e.I("v_bfe_u32", t1, vl, 4, 1)
    e.I("v_lshlrev_b32", t1, 2, t1)
    e.I("v_xor_b32", t1, t1, vl)
    e.I("v_and_b32", t1, 7, t1)
    e.I("v_lshlrev_b32", t1, 4, t1)
    e.I("v_add_u32", dsts[0], t0, t1)
    for i in range(1, len(dsts)):
        e.I("v_add_u32", dsts[i], 8 * rs - 1024, dsts[i - 1])


class Seg:
    def __init__(self, nb, role, acc, src, fill=()):
        self.nb, self.role, self.acc, self.src, self.fill = nb, role, acc, src, list(fill)
        self.kps = 4 if nb == 4 else 8
        self.nst = 32 // self.kps


class Gemm:
    def __init__(self, e, ns, vtr, pool, s_m0, s_tmp, segs):
        self.e, self.ns, self.vtr, self.pool = e, ns, vtr, pool
        self.s_m0, self.s_tmp, self.segs = s_m0, s_tmp, segs
        self.ks = []
        self.stages = []
        for sg in segs:
            g0 = len(self.stages)
            for st in range(sg.nst):
                self.stages.append((sg, st))
            for sidx in range(32):
                self.ks.append((sg, sidx, g0 + sidx // sg.kps, sidx % sg.kps))

    def xfrag(self, rb, sidx):
        return a((rb * 32 + sidx) * 4, 4)

    def wfrag(self, t, nb):
        return self.pool.sub(((t & 1) * 4 + nb) * 4, 4)

    def w_reads(self, t):
        sg, sidx, g, sl = self.ks[t]
        out = []
        for nb in range(sg.nb):
            half, seg = nb >> 1, nb & 1
            f = self.wfrag(t, nb)
            for p in range(2):
                off = (g % self.ns) * 16384 + half * 8192 + (16 * sl + 4 * p) * 128
                out.append(I("ds_read_b64_tr_b16", f.sub(2 * p, 2), self.vtr[seg], mods="offset:%d" % off))
        return out

    def w_dma(self, g):
        sg, st = self.stages[g]
        src = sg.src
        out = [I("s_add_u32", M0, self.s_m0, (g % self.ns) * 16384),
               I("s_add_u32", self.s_tmp, src["s_base"], st * src["stage_stride"])]
        for i in range(4):
            out.append(I("buffer_load_dwordx4", src["voff"][i], src["srd"], self.s_tmp,
                         mods="offen offset:%d lds" % (1024 * i), tag=("W", g)))
        return out

    def mfmas(self, t):
        sg, sidx, g, sl = self.ks[t]
        out = []
        for nb in range(sg.nb):
            for rb in range(2):
                d = sg.acc(rb, nb)
                c = 0 if sidx == 0 else d
                w, x = self.wfrag(t, nb), self.xfrag(rb, sidx)
                out.append(I(MFMA, d, w, x, c) if sg.role == "WX" else I(MFMA, d, x, w, c))
        return out

    def run(self, hook=None, seg_end=None, queue=None, released=None, on_barrier=None, pace=2):
        e = self.e
        nt = len(self.ks)
        nstage = len(self.stages)
        q = self.q = list(queue or [])
        rel = self.rel = set(released or [])
        st = {"n": 0, "last": -99}

        def need(key):
            while any(k == key for k, _ in q):
                k, insts = q.pop(0)
                assert k in rel, ("job needed before its slot is released", k)
                emit_all(e, insts)
            e.wait_vm_tag(lambda tg: tg == key)
        self.need = need

        def tick(em):
            st["n"] += 1
            if q and q[0][0] in rel and st["n"] - st["last"] >= pace:
                k, insts = q.pop(0)
                emit_all(e, insts)
                st["last"] = st["n"]
        tick.cost = 0
        need(("W", 0))
        e.I("s_barrier")
        emit_all(e, self.w_reads(0))
        for t in range(nt):
            sg, sidx, g, sl = self.ks[t]
            last = sl == sg.kps - 1
            if last and t + 1 < nt:
                e.wait_lgkm0()
                need(("W", g + 1))
                e.I("s_barrier")
                rel.add(("W", g + self.ns))
                if on_barrier:
                    on_barrier(g)
            rd = self.w_reads(t + 1) if t + 1 < nt else []
            ex = hook(t) if hook else []
            n = len(sg.fill)
            ex = ex + sg.fill[(sidx * n) // 32: ((sidx + 1) * n) // 32]
            fill = merge(rd, ex)
            ms = []
            for m in self.mfmas(t):
                ms.append(Both(m, tick))
            interleave(e, ms, fill)
            if sidx == 31 and seg_end:
                seg_end(sg)

    def w_jobs(self, g):
        ins = self.w_dma(g)
        return [(("W", g), ins[0:3])] + [(("W", g), [x]) for x in ins[3:]]


class Both:
    def __init__(self, m, f):
        self.m, self.f = m, f
        self.cost = 8

    def __call__(self, em):
        em.emit(self.m)
        self.f(em)


def merge(x, y):
    out = []
    i = j = 0
    while i < len(x) or j < len(y):
        if j >= len(y) or (i < len(x) and i * len(y) <= j * len(x)):
            out.append(x[i]); i += 1
        else:
            out.append(y[j]); j += 1
    return out


def cvt_inplace(d, hh):
    return [I("v_cvt_pk_bf16_f32", d[8 * hh + q], d[8 * hh + 2 * q], d[8 * hh + 2 * q + 1]) for q in range(4)]


def gen_k1():
    e = Emitter()
    END = "K1_END"
    prologue(e, 256, END)
    S_X, S_CKV, S_WK, S_WV, S_WS = 32, 36, 40, 44, 48
    sw, sh, sj = s(52), s(53), s(54)
    vl, vl16 = v(1), v(2)
    t0, t1, t2 = v(3), v(4), v(5)
    SET = [v(64, 64), v(128, 64), v(192, 64)]
    pool = v(32, 32)
    PFD = v(28, 4)
    code_prefetch(e, "k1", "k1_kernel", "TEXT_END", s(30, 2), t0, PFD, 1)
    e.I("v_and_b32", vl, 63, v(0))
    e.I("v_lshrrev_b32", t0, 6, v(0))
    e.I("v_lshlrev_b32", vl16, 4, vl)
    e.I("v_readfirstlane_b32", sw, t0)
    head_j(e, sh, sj, s(55), s(56))
    XS_BASE, XS_W = 65536, 24576
    vXd = [v(8), v(9)]
    e.I("v_lshrrev_b32", t0, 3, vl)
    e.I("v_lshlrev_b32", t1, 10, t0)
    e.I("v_lshrrev_b32", t0, 1, t0)
    e.I("v_xor_b32", t0, t0, vl)
    e.I("v_and_b32", t0, 7, t0)
    e.I("v_lshlrev_b32", t2, 4, t0)
    e.I("v_add_u32", vXd[0], t1, t2)
    e.I("v_xor_b32", t2, 64, t2)
    e.I("v_add_u32", vXd[1], t1, t2)
    sXrow = [s(60 + i) for i in range(8)]
    e.I("s_lshl_b32", s(58), sj, 18)
    e.I("s_lshl_b32", s(59), sw, 16)
    e.I("s_add_u32", s(58), s(58), s(59))
    for i in range(8):
        e.I("s_add_u32", sXrow[i], s(58), i * 8192 - (i & 3) * 1024)
    sXlds = s(68)
    e.I("s_mul_i32", sXlds, sw, XS_W)
    e.I("s_add_u32", sXlds, sXlds, XS_BASE)
    vW = [v(24 + i) for i in range(4)]
    wdma_voff(e, vW, vl, (t0, t1), 8192)
    sWb, sM0, sTmp, sWb2, sWb3 = s(69), s(70), s(71), s(80), s(81)
    e.I("s_and_b32", s(72), sw, 1)
    e.I("s_lshl_b32", s(72), s(72), 18)
    e.I("s_lshr_b32", s(73), sw, 1)
    e.I("s_lshl_b32", s(73), s(73), 7)
    e.I("s_lshl_b32", s(74), sh, 8)
    e.I("s_add_u32", sWb, s(74), s(72))
    e.I("s_add_u32", sWb, sWb, s(73))
    e.I("s_lshl_b32", s(72), sw, 18)
    e.I("s_add_u32", sWb2, s(74), s(72))
    e.I("s_add_u32", sWb3, sWb2, 128)
    e.I("s_lshl_b32", sM0, sw, 12)
    e.I("s_waitcnt", "lgkmcnt(0)")
    make_srd(e, S_CKV, P_CKV, 2048 * 1024)
    make_srd(e, S_WK, P_WUK, 512 * 8192)
    stamp(e, 0)

    def x_dma(p):
        out = []
        for i in range(8):
            if i % 4 == 0:
                out.append(I("s_add_u32", M0, sXlds, (p % 3) * 8192 + (i >> 2) * 4096))
            out.append(I("buffer_load_dwordx4", vXd[i & 1], s(S_CKV, 4), sXrow[i],
                         mods="offen offset:%d lds" % (1024 * (i & 3)), tag=("X", p)))
        out.append(I("v_add_u32", vXd[0], 128, vXd[0]))
        out.append(I("v_add_u32", vXd[1], 128, vXd[1]))
        return out

    vXr = [v(10 + i) for i in range(4)]

    def x_reads(p):
        out = [(lambda em: G.need(("X", p))) if p else (lambda em: em.wait_vm_tag(lambda tg: tg == ("X", p)))]
        for sl in range(4):
            for rb in range(2):
                out.append(I("ds_read_b128", a((rb * 32 + 4 * p + sl) * 4, 4), vXr[sl],
                             mods="offset:%d" % ((p % 3) * 8192 + rb * 4096)))
        return out

    srcK = dict(srd=s(S_WK, 4), voff=vW, s_base=sWb, stage_stride=64 * 8192)
    srcV0 = dict(srd=s(S_WV, 4), voff=vW, s_base=sWb2, stage_stride=128 * 8192)
    srcV1 = dict(srd=s(S_WV, 4), voff=vW, s_base=sWb3, stage_stride=128 * 8192)
    vtr = [v(14), v(15)]
    accA = lambda rb, nb: SET[rb].sub(nb * 16, 16)
    accB = lambda rb, nb: SET[2].sub((rb * 2 + nb) * 16, 16)
    accC = lambda rb, nb: SET[0].sub((rb * 2 + nb) * 16, 16)
    sKo, sVo, sSt = s(76), s(77), s(79)

    def store_block(d, sbase, rb, idxs):
        out = []
        for hh in range(2):
            out += cvt_inplace(d, hh)
            off = rb * 8192 + idxs[hh] * 1024
            out.append(I("s_add_u32", sSt, sbase, off & ~4095))
            out.append(I("buffer_store_dwordx4", d.sub(8 * hh, 4), vl16, s(S_WS, 4), sSt,
                         mods="offen offset:%d" % (off & 4095)))
        return out
    epiA = []
    for rb in range(2):
        for nb in range(4):
            epiA += store_block(accA(rb, nb), sKo, rb, (2 * nb, 2 * nb + 1))
    epiB, epiC = [], []
    for rb in range(2):
        for nb in range(2):
            epiB += store_block(accB(rb, nb), sVo, rb, (nb, 4 + nb))
            epiC += store_block(accC(rb, nb), sVo, rb, (2 + nb, 6 + nb))

    Z = SET[2]
    vLNa, vLNs = v(6), v(7)
    LN0, LN1 = Z.sub(0, 4), Z.sub(4, 4)
    X = [Z[8 + i] for i in range(16)]
    D = [Z[24 + i] for i in range(16)]
    sm, sw2, mean, var, pk, mb, vb, sd, rc = [Z[40 + i] for i in range(9)]
    ln = []
    A_ = lambda *x, **k: ln.append(I(*x, **k))
    for i in range(4):
        A_("v_lshlrev_b32", X[2 * i], 16, LN0[i])
        A_("v_and_b32", X[2 * i + 1], 0xffff0000, LN0[i])
        A_("v_lshlrev_b32", X[8 + 2 * i], 16, LN1[i])
        A_("v_and_b32", X[8 + 2 * i + 1], 0xffff0000, LN1[i])

    def allreduce32(r):
        for off in (0x041F, 0x081F, 0x101F, 0x201F, 0x401F):
            A_("ds_swizzle_b32", sw2, r, mods="offset:0x%04x" % off)
            A_("v_nop"); A_("v_nop"); A_("v_nop")
            A_("v_add_f32", r, r, sw2)
    A_("v_add_f32", sm, X[0], X[1])
    for i in range(2, 16):
        A_("v_add_f32", sm, sm, X[i])
    allreduce32(sm)
    A_("v_mul_f32", mean, 1.0 / 512, sm)
    for i in range(16):
        A_("v_sub_f32", D[i], X[i], mean)
    A_("v_mul_f32", sm, D[0], D[0])
    for i in range(1, 16):
        A_("v_fmac_f32", sm, D[i], D[i])
    allreduce32(sm)
    A_("v_mul_f32", var, 1.0 / 512, sm)
    A_("v_cvt_pk_bf16_f32", pk, mean, var)
    A_("v_lshlrev_b32", mb, 16, pk)
    A_("v_and_b32", vb, 0xffff0000, pk)
    A_("v_add_f32", vb, 1e-5, vb)
    A_("v_cvt_pk_bf16_f32", pk, vb, vb)
    A_("v_lshlrev_b32", vb, 16, pk)
    A_("v_sqrt_f32", vb, vb)
    A_("v_cvt_pk_bf16_f32", pk, vb, vb)
    A_("v_lshlrev_b32", sd, 16, pk)
    A_("v_rcp_f32", rc, sd)
    for i in range(16):
        A_("v_sub_f32", D[i], X[i], mb)
    for i in range(8):
        A_("v_cvt_pk_bf16_f32", pk, D[2 * i], D[2 * i + 1])
        A_("v_lshlrev_b32", D[2 * i], 16, pk)
        A_("v_and_b32", D[2 * i + 1], 0xffff0000, pk)
    for i in range(16):
        A_("v_mul_f32", X[i], D[i], rc)
        A_("v_fma_f32", D[i], Neg(X[i]), sd, D[i])
        A_("v_fmac_f32", X[i], D[i], rc)
    for i in range(4):
        A_("v_cvt_pk_bf16_f32", LN0[i], X[2 * i], X[2 * i + 1])
        A_("v_cvt_pk_bf16_f32", LN1[i], X[8 + 2 * i], X[8 + 2 * i + 1])
    A_("buffer_store_dwordx4", LN0, vLNs, s(S_WS, 4), s(74), mods="offen")
    A_("buffer_store_dwordx4", LN1, vLNs, s(S_WS, 4), s(75), mods="offen")
    ln = [x for x in ln if x.op != "v_nop"]
    pad = [lambda em: None] * (len(ln) // 2)
    for p_ in pad:
        pass
    segs = [Seg(4, "WX", accA, srcK, pad + ln), Seg(2, "XW", accB, srcV0, epiA), Seg(2, "XW", accC, srcV1, epiB)]
    G = Gemm(e, 4, vtr, pool, sM0, sTmp, segs)
    emit_all(e, x_dma(0))
    emit_all(e, G.w_dma(0))
    emit_all(e, x_dma(1))
    emit_all(e, G.w_dma(1))

    def x_jobs(p):
        ins = x_dma(p)
        k = ("X", p)
        return [(k, ins[0:2]), (k, [ins[2]]), (k, [ins[3]]), (k, [ins[4]]), (k, ins[5:7]), (k, [ins[7]]), (k, [ins[8]]),
                (k, ins[9:12])]
    queue = []
    for g in range(2, 16):
        if g < 8:
            queue += x_jobs(g)
        queue += G.w_jobs(g)
    make_srd(e, S_X, P_X, 2048 * 1024)
    make_srd(e, S_WV, P_WUV, 512 * 8192)
    make_srd(e, S_WS, P_WS, WS_BYTES)
    e.I("v_lshrrev_b32", t0, 5, v(0))
    e.I("v_lshlrev_b32", t1, 10, t0)
    e.I("v_and_b32", t2, 31, vl)
    e.I("v_lshlrev_b32", vLNa, 4, t2)
    e.I("v_add_u32", vLNa, vLNa, t1)
    e.I("v_lshrrev_b32", t1, 1, t2)
    e.I("v_lshlrev_b32", t1, 10, t1)
    e.I("v_and_b32", t2, 1, t2)
    e.I("v_lshlrev_b32", t2, 9, t2)
    e.I("v_add_u32", t1, t1, t2)
    e.I("v_lshlrev_b32", t0, 4, t0)
    e.I("v_add_u32", vLNs, t1, t0)
    e.I("s_lshl_b32", s(57), s(2), 13)
    e.I("buffer_load_dwordx4", LN0, vLNa, s(S_X, 4), s(57), mods="offen")
    e.I("buffer_load_dwordx4", LN1, vLNa, s(S_X, 4), s(57), mods="offen offset:512")
    e.I("s_lshr_b32", s(74), s(2), 2)
    e.I("s_lshl_b32", s(74), s(74), 15)
    e.I("s_and_b32", s(75), s(2), 3)
    e.I("s_lshl_b32", s(75), s(75), 7)
    e.I("s_add_u32", s(74), s(74), s(75))
    if WS_XN:
        e.I("s_add_u32", s(74), s(74), WS_XN)
    e.I("s_add_u32", s(75), s(74), 16384)
    e.I("v_and_b32", t0, 31, vl)
    e.I("v_lshlrev_b32", t1, 7, t0)
    e.I("v_add_u32", t1, sXlds, t1)
    e.I("v_bfe_u32", t0, vl, 1, 3)
    e.I("v_lshrrev_b32", t2, 5, vl)
    e.I("v_xor_b32", t0, t0, t2)
    for sl in range(4):
        e.I("v_xor_b32", t2, 2 * sl, t0)
        e.I("v_lshlrev_b32", t2, 4, t2)
        e.I("v_add_u32", vXr[sl], t1, t2)
    tr_addr(e, vtr[0], vtr[1], vl, (t0, t1, t2), 0, False)
    e.I("s_lshl_b32", s(78), sh, 6)
    e.I("s_lshl_b32", s(79), sj, 3)
    e.I("s_add_u32", s(78), s(78), s(79))
    e.I("s_lshl_b32", s(79), sw, 1)
    e.I("s_add_u32", s(78), s(78), s(79))
    e.I("s_lshl_b32", s(78), s(78), 13)
    e.I("s_add_u32", sKo, s(78), WS_K)
    e.I("s_add_u32", sVo, s(78), WS_V)
    stamp(e, 1)
    emit_all(e, x_reads(0))
    stamp(e, 2)

    def hook(t):
        g, sl = t >> 2, t & 3
        out = []
        if t < 32:
            if g < 7 and sl == 2:
                out += x_reads(g + 1)
        elif PF_W and t % 8 == 1:
            n = (t - 32) // 8
            if n == 0:
                out.append(I("s_lshl_b32", s(31), s(2), 2))
                out.append(I("s_add_u32", s(31), s(31), sw))
                out.append(I("s_lshl_b32", s(30), s(31), 12))
                out.append(I("s_lshl_b32", s(31), s(31), 11))
            p_, nbytes, so, off = ((P_WQ, 512 * 8192, s(30), n * 1024) if n < 4 else
                                   (P_WG if n < 6 else P_WU, 512 * 3584, s(31), (n & 1) * 1024))
            if n in (0, 4, 6):
                out += [I("s_mov_b32", s(S_X), s(p_)), I("s_mov_b32", s(S_X + 1), s(p_ + 1)),
                        I("s_mov_b32", s(S_X + 2), nbytes)]
            out.append(Untracked(I("buffer_load_dwordx4", PFD, vl16, s(S_X, 4), so, mods="offen offset:%d" % off)))
        return out
    cnt = [3]

    def seg_end(sg):
        stamp(e, cnt[0]); cnt[0] += 1
    G.run(hook, seg_end, queue=queue, released={("W", 2), ("W", 3), ("X", 2)},
          on_barrier=lambda g: (G.rel.add(("X", g + 3)), G.rel.add(("X", g + 4))), pace=PACE)
    emit_all(e, epiC)
    stamp(e, 6)
    if PROFILE:
        e.wait_all()
    stamp(e, 7)
    stamp_flush(e, 0, s(S_WS, 4), sw, 8)
    e.label(END)
    e.I("s_endpgm")
    return e.text(), dict(vgpr=512, sgpr=102, accum=256, grid=256, block=256, lds=163840)


KERNELS = [("k1_kernel", gen_k1)]
try:
    from gen_k2 import gen_k2
    KERNELS.append(("k2_kernel", gen_k2))
    from gen_k3 import gen_k3, gen_k4
    KERNELS.append(("k3_kernel", gen_k3))

except ImportError as ex:
    print("note:", ex)


def build(kernels=None):
    ks = KERNELS if kernels is None else kernels
    hdr = open("cdna_kernels/%s.s.ref" % NAME).read().split("; Override")[0]
    out = [hdr]
    bodies, descs = [], []
    for name, fn in ks:
        txt, d = fn()
        out.append("; @launch kernel=%s grid=(%d,1,1) block=(%d,1,1) lds=%d\n" % (name, d["grid"], d["block"], d["lds"]))
        bodies.append(kernel_header(name) + txt)
        descs.append(".p2align 6" + kernel_desc(name, d["vgpr"], d["sgpr"], d["accum"]))
    out.append('.amdgcn_target "amdgcn-amd-amdhsa--gfx950"\n.text\n')
    out += bodies
    out.append("TEXT_END:\n")
    out.append('.section .rodata,"a"\n')
    out += descs
    return "".join(out)
```

```python
import sys
sys.path.insert(0, "dev")
from asmlib import *
import gen
from gen import *

LOG2E = 1.4426950408889634
QSCALE = LOG2E / (128 ** 0.5)
GC1 = -2.0 * (2.0 / math.pi) ** 0.5 * LOG2E
GC2 = GC1 * 0.044715
THRESH = float(2 ** 24)
CR = [(r & 3) + 8 * (r >> 2) for r in range(16)]


EXP = set()


def gen_k2():
    e = Emitter()
    END = "K2_END"
    prologue(e, 256, END)
    S_WS, S_WGU, S_WQ, S_H, S_K, S_V = 32, 36, 40, 44, 48, 52
    sw, sh, sj = s(56), s(57), s(58)
    sM0, sTmp, sSt = s(59), s(60), s(61)
    sXA, sXB = s(62), s(63)
    sWgu, sWq0, sWq1 = s(64), s(65), s(66)
    sHo = [s(67), s(68)]
    sCo = [s(69), s(70)]
    sKg, sVg, sRot = s(71), s(72), s(73)
    sCnt, sKv, sRet, sBact, sThr = s(74), s(75), s(76), s(77), s(78)
    sT0, sT1 = s(79), s(80)
    MASKS = [s(40, 2), s(42, 2), s(44, 2), s(46, 2)]
    vl, vl16 = v(1), v(2)
    t0, t1, t2 = v(3), v(4), v(5)
    vtr = [v(6), v(7)]
    vWg = [v(8 + i) for i in range(4)]
    vWq = [v(12 + i) for i in range(4)]
    vC2 = v(16)
    GT = [v(17 + i) for i in range(8)]
    SET = [v(64, 64), v(128, 64), v(192, 64)]
    pool = v(32, 32)
    WR = 98304

    PFD = v(28, 4)
    code_prefetch(e, "k2", "k2_kernel", "TEXT_END", s(100, 2), t0, PFD, 1)
    e.I("v_and_b32", vl, 63, v(0))
    e.I("v_lshrrev_b32", t0, 6, v(0))
    e.I("v_lshlrev_b32", vl16, 4, vl)
    e.I("v_readfirstlane_b32", sw, t0)
    head_j(e, sh, sj, sT0, sT1)
    sQA, sQB = s(81), s(30)
    e.I("s_lshl_b32", sT0, sj, 2)
    e.I("s_add_u32", sQB, sT0, sw)
    e.I("s_sub_u32", sQA, 60, sT0)
    e.I("s_add_u32", sQA, sQA, sw)
    e.I("s_lshl_b32", sXA, sQA, 15)
    e.I("s_lshl_b32", sXB, sQB, 15)
    if WS_XN:
        e.I("s_add_u32", sXA, sXA, WS_XN)
        e.I("s_add_u32", sXB, sXB, WS_XN)
    wdma_voff(e, vWg, vl, (t0, t1), 3584)
    wdma_voff(e, vWq, vl, (t0, t1), 8192)
    e.I("s_and_b32", sT0, sw, 1)
    e.I("s_mul_i32", sT0, sT0, 32 * 3584)
    e.I("s_lshl_b32", sT1, sh, 7)
    e.I("s_add_u32", sWgu, sT0, sT1)
    e.I("s_lshl_b32", sT0, sw, 18)
    e.I("s_lshl_b32", sT1, sh, 8)
    e.I("s_add_u32", sWq0, sT0, sT1)
    e.I("s_add_u32", sWq1, sWq0, 128)
    e.I("s_lshl_b32", sM0, sw, 12)
    e.I("s_add_u32", sM0, sM0, WR)
    e.I("s_waitcnt", "lgkmcnt(0)")
    make_srd(e, S_WS, P_WS, WS_BYTES)
    e.I("s_cmp_lt_u32", sw, 2)
    e.I("s_cselect_b32", s(S_WGU), s(P_WG), s(P_WU))
    e.I("s_cselect_b32", s(S_WGU + 1), s(P_WG + 1), s(P_WU + 1))
    e.I("s_mov_b32", s(S_WGU + 2), 512 * 3584)
    e.I("s_mov_b32", s(S_WGU + 3), 0x20000)
    make_srd(e, S_WQ, P_WQ, 512 * 8192)
    stamp(e, 0)

    def x_piece(p):
        out = []
        k = ("X", p)
        for rb in range(2):
            sb = sXA if rb == 0 else sXB
            for i in range(4):
                ins = []
                if i == 0:
                    ins.append(I("s_add_u32", sT0 if rb == 0 else sT1, sb, p * 4096))
                ins.append(I("buffer_load_dwordx4", a((rb * 32 + 4 * p + i) * 4, 4), vl16, s(S_WS, 4),
                             sT0 if rb == 0 else sT1, mods="offen offset:%d" % (1024 * i), tag=k))
                out.append((k, ins))
        return out

    def rest_setup():
        tr_addr(e, vtr[0], vtr[1], vl, (t0, t1, t2), WR, False)
        e.I("v_mov_b32", vC2, GC2)
        for qb, sq in ((0, sQA), (1, sQB)):
            e.I("s_mul_i32", sT0, sq, 368 * 1024)
            e.I("s_add_u32", sT0, sT0, WS_A3)
            e.I("s_lshl_b32", sT1, sh, 13)
            e.I("s_add_u32", sCo[qb], sT0, sT1)
            e.I("s_lshl_b32", sT1, sh, 12)
            e.I("s_add_u32", sHo[qb], sT0, sT1)
            e.I("s_add_u32", sHo[qb], sHo[qb], 256 * 1024)
        e.I("s_lshl_b32", sT0, sh, 19)
        for srd, off in ((S_K, WS_K), (S_V, WS_V)):
            e.I("s_add_u32", sT1, sT0, off)
            e.I("s_add_u32", s(srd), s(P_WS), sT1)
            e.I("s_addc_u32", s(srd + 1), s(P_WS + 1), 0)
            e.I("s_lshl_b32", sT1, sj, 15)
            e.I("s_sub_u32", s(srd + 2), 64 * 8192, sT1)
            e.I("s_mov_b32", s(srd + 3), 0x20000)
        e.I("s_lshl_b32", sKg, sw, 12)
        e.I("s_mov_b32", sVg, sKg)
        e.I("s_mov_b32", sThr, THRESH)

    def kv_jobs(kind, st):
        k = (kind, st)
        srd = s(S_K if kind == "K" else S_V, 4)
        base = (0 if kind == "K" else 65536) + (st & 3) * 16384
        out = []
        for i in range(4):
            ins = []
            if i == 0:
                ins.append(I("s_lshl_b32", sSt, sw, 12))
                ins.append(I("s_add_u32", M0, sSt, base))
                ins.append(I("s_add_u32", sSt, sSt, st * 16384))
            ins.append(I("buffer_load_dwordx4", vl16, srd, sSt, mods="offen offset:%d lds" % (1024 * i), tag=k))
            out.append((k, ins))
        return out

    srcGU = dict(srd=s(S_WGU, 4), voff=vWg, s_base=sWgu, stage_stride=64 * 3584)
    srcQ0 = dict(srd=s(S_WQ, 4), voff=vWq, s_base=sWq0, stage_stride=128 * 8192)
    srcQ1 = dict(srd=s(S_WQ, 4), voff=vWq, s_base=sWq1, stage_stride=128 * 8192)
    accA = lambda rb, nb: SET[rb].sub(nb * 16, 16)
    accB = lambda rb, nb: SET[2].sub((rb * 2 + nb) * 16, 16)
    accC = lambda rb, nb: SET[0].sub((rb * 2 + nb) * 16, 16)
    sHs = s(54)

    def gu_epi(rb):
        out = []
        for nb in range(2):
            g_, u_ = accA(rb, nb), accA(rb, nb + 2)
            for hh in range(2):
                for half4 in range(2):
                    rs = [8 * hh + 4 * half4 + i for i in range(4)]
                    T = GT[0:4]
                    T2 = GT[4:8]
                    for i, r in enumerate(rs):
                        out.append(I("v_mul_f32", T[i], g_[r], g_[r]))
                    for i, r in enumerate(rs):
                        out.append(I("v_fmaak_f32", T[i], T[i], vC2, GC1))
                    for i, r in enumerate(rs):
                        out.append(I("v_mul_f32", T[i], T[i], g_[r]))
                    for i, r in enumerate(rs):
                        out.append(I("v_exp_f32", T[i], T[i]))
                    for i, r in enumerate(rs):
                        out.append(I("v_mul_f32", T2[i], g_[r], u_[r]))
                    for i, r in enumerate(rs):
                        out.append(I("v_add_f32", T[i], 1.0, T[i]))
                    for i, r in enumerate(rs):
                        out.append(I("v_rcp_f32", T[i], T[i]))
                    out.append(I("s_nop", 0))
                    for i, r in enumerate(rs):
                        out.append(I("v_mul_f32", g_[r], T2[i], T[i]))
                out += cvt_inplace(g_, hh)
                off = (2 * nb + hh) * 1024
                out.append(I("buffer_store_dwordx4", g_.sub(8 * hh, 4), vl16, s(S_WS, 4), sHo[rb],
                             mods="offen offset:%d" % off))
        return out

    def qfrag(qb, sidx):
        b, t = sidx >> 1, sidx & 1
        return SET[2].sub((qb * 2 + (b & 1)) * 16 + 8 * t + (4 if b >= 2 else 0), 4)

    def q_epi(acc, b0):
        out = []
        for rb in range(2):
            for nb in range(2):
                d = acc(rb, nb)
                for r in range(16):
                    out.append(I("v_mul_f32", d[r], QSCALE, d[r]))
                for t in range(2):
                    f = qfrag(rb, 2 * (b0 + nb) + t)
                    for q in range(4):
                        out.append(I("v_cvt_pk_bf16_f32", f[q], d[8 * t + 2 * q], d[8 * t + 2 * q + 1]))
        return out

    def proj(with_gu, tagp):
        if with_gu:
            segs = [Seg(4, "WX", accA, srcGU), Seg(2, "WX", accB, srcQ0, gu_epi(0)),
                    Seg(2, "WX", accC, srcQ1, gu_epi(1) + q_epi(accB, 0))]
        else:
            segs = [Seg(2, "WX", accB, srcQ0), Seg(2, "WX", accC, srcQ1, q_epi(accB, 0))]
        G = Gemm(e, 4, vtr, pool, sM0, sTmp, segs)
        nst = len(G.stages)
        xs = 1 if with_gu else 2
        for p in range(xs):
            for k, ins in x_piece(p):
                emit_all(e, ins)
        emit_all(e, G.w_dma(0))
        for p in range(xs, 2 * xs):
            for k, ins in x_piece(p):
                emit_all(e, ins)
        emit_all(e, G.w_dma(1))
        rest_setup()
        queue = []
        for g in range(2, nst):
            for p in range(g * xs, (g + 1) * xs):
                if p < 8:
                    queue += x_piece(p)
            queue += G.w_jobs(g)
            if g == nst - 4:
                queue += kv_jobs("K", 0) + kv_jobs("K", 1) + kv_jobs("V", 0)
            if g == nst - 2:
                queue += kv_jobs("K", 2) + kv_jobs("V", 1)
        queue += kv_jobs("K", 3) + kv_jobs("V", 2)
        rel = {("W", 2), ("W", 3)} | {("X", p) for p in range(8)} | {("K", i) for i in range(3)} | {("V", 0), ("V", 1)}

        def on_barrier(g):
            if g == nst - 2:
                G.rel.add(("V", 2))
                G.rel.add(("K", 3))

        def hook(t):
            sg, sidx, g, sl = G.ks[t]
            if t < 32 and sidx % 4 == 0:
                p = sidx // 4
                return_list = []

                def f(em, p=p):
                    while any(k == ("X", p) for k, _ in G.q):
                        k, ins = G.q.pop(0)
                        emit_all(e, ins)
                f(e)
            tq = t - (len(G.ks) - 64)
            if gen.PF_W and tq >= 0 and tq % 8 == 1 and tq < 48:
                n = tq // 8
                out = []
                if n == 0:
                    out.append(I("s_lshl_b32", s(101), s(2), 2))
                    out.append(I("s_add_u32", s(101), s(101), sw))
                    out.append(I("s_lshl_b32", s(100), s(101), 12))
                    out.append(I("s_lshl_b32", s(101), s(101), 11))
                p_, nbytes, so, off = ((P_WO, 4096 * 1024, s(100), n * 1024) if n < 4 else
                                       (P_WD, 1792 * 1024, s(101), (n & 1) * 1024))
                if n in (0, 4):
                    out += [I("s_mov_b32", s(S_H), s(p_)), I("s_mov_b32", s(S_H + 1), s(p_ + 1)),
                            I("s_mov_b32", s(S_H + 2), nbytes), I("s_mov_b32", s(S_H + 3), 0x20000)]
                out.append(Untracked(I("buffer_load_dwordx4", PFD, vl16, s(S_H, 4), so, mods="offen offset:%d" % off)))
                return out
            return []
        cnt = [2]

        def seg_end(sg):
            if with_gu:
                stamp(e, cnt[0]); cnt[0] += 1
        if with_gu:
            stamp(e, 1)
        G.run(hook, seg_end, queue=queue, released=rel, on_barrier=on_barrier, pace=gen.PACE)
        while G.q:
            k, ins = G.q.pop(0)
            assert k in G.rel, k
            emit_all(e, ins)
        emit_all(e, q_epi(accC, 2))
        tags = [t for _, t in e.vm]
        assert all(t in (("K", 3), ("V", 2), None, "pf") for t in tags[-8:]), tags[-8:]
        assert all(t not in (("K", 0), ("K", 1), ("V", 0)) for t in tags[-16:]), tags[-16:]
        e.wait_vm_tag(lambda tg: tg == ("K", 0))
        e.wait_lgkm0()

    e.I("s_cmp_ge_u32", sh, 28)
    e.I("s_cbranch_scc1", "K2_NOGU")
    st0 = e.state()
    proj(True, "a")
    e.I("s_branch", "K2_ATT")
    e.label("K2_NOGU")
    e.set_state(st0)
    proj(False, "b")
    e.label("K2_ATT")
    e.vm = []
    e.lgkm = []
    e.I("s_nop", 1)
    stamp(e, 5)

    S = lambda par, qb: SET[0].sub((par * 2 + qb) * 16, 16)
    NM = lambda qb: SET[1].sub(qb * 16, 16)
    P = lambda par, qb: SET[1].sub(32 + (par * 2 + qb) * 8, 8)
    O = lambda qb, b: a((qb * 4 + b) * 16, 16)
    KF = lambda fs, si: a(128 + 64 * fs + 4 * si, 4)
    VF = lambda fs, t, b: a(128 + 64 * fs + 32 + 4 * (t * 4 + b), 4)
    vKr, vVr = v(6), v(7)
    vDq = [v(8), v(9)]
    vL = [[v(10), v(11)], [v(24), v(25)]]
    vTs = [v(12), v(13)]
    vTm, vDqT = v(14), [v(15), v(16)]
    vNinf = v(17)
    ET = [v(18 + i) for i in range(6)]
    vQx, vKx, vNx, vInvB, vPw = v(26), v(27), v(28), v(29), v(30)
    RT = [v(32 + i) for i in range(32)]
    QS = 131072
    sPw = sBact

    e.I("v_and_b32", t0, 31, vl)
    e.I("v_lshrrev_b32", t1, 5, vl)
    e.I("v_lshlrev_b32", t1, 2, t1)
    e.I("v_sub_u32", t0, t0, t1)
    e.I("s_lshl_b32", sT0, sQA, 5)
    e.I("s_lshl_b32", sT1, sQB, 5)
    e.I("v_add_u32", vDq[0], sT0, t0)
    e.I("v_add_u32", vDq[1], sT1, t0)
    e.I("v_mov_b32", vNinf, 0xff800000)
    e.I("v_mov_b32", vL[0][0], 0)
    e.I("v_mov_b32", vL[0][1], 0)
    e.I("v_add_u32", vKr, 16384, vl16)
    e.I("v_add_u32", vVr, 65536, vl16)
    e.I("s_lshl_b32", sRot, sw, 12)
    e.I("s_add_u32", sKg, sKg, 4 * 16384)
    e.I("s_add_u32", sVg, sVg, 3 * 16384)
    e.I("s_mov_b32", sKv, 0)
    e.I("s_and_b32", sPw, sw, 1)
    e.I("s_lshl_b32", sPw, sPw, 13)
    e.I("s_lshl_b32", sT0, sw, 13)
    e.I("s_add_u32", sT0, sT0, QS)
    e.I("v_add_u32", vQx, sT0, vl16)
    e.I("s_barrier")
    for si in range(8):
        e.I("ds_read_b128", KF(1, si), vl16, mods="offset:%d" % (si * 1024))
    for si in range(8):
        e.I("ds_read_b128", KF(0, si), vl16, mods="offset:%d" % (8192 + si * 1024))
    for si in range(8):
        for qb in range(2):
            e.I(MFMA, S(0, qb), KF(1, si), qfrag(qb, si), 0 if si == 0 else S(0, qb))
        e.I("ds_write_b128", vQx, qfrag(0, si), mods="offset:%d" % (si * 1024))
    e.I("v_xor_b32", vQx, 8192, vQx)

    def mask_S_inplace(em, Sx, dq):
        for r0 in range(0, 16, 4):
            for i in range(4):
                em.I("v_cmp_ge_i32", MASKS[i], dq, CR[r0 + i])
            for i in range(4):
                em.I("v_cndmask_b32", Sx[r0 + i], vNinf, Sx[r0 + i], MASKS[i])

    def rowmax(em, Sx, dst, tmp):
        em.I("v_max3_f32", dst, Sx[0], Sx[1], Sx[2])
        for r in range(3, 15, 2):
            em.I("v_max3_f32", dst, dst, Sx[r], Sx[r + 1])
        em.I("v_max_f32", dst, dst, Sx[15])
        em.I("v_mov_b32", tmp, dst)
        em.I("v_permlane32_swap_b32", dst, tmp)
        em.I("v_max_f32", dst, dst, tmp)

    for qb in range(2):
        Sx = S(0, qb)
        if qb == 1:
            mask_S_inplace(e, Sx, vDq[1])
        rowmax(e, Sx, RT[0], RT[1])
        for r in range(16):
            e.I("v_sub_f32", Sx[r], Sx[r], RT[0])
        for r in range(16):
            e.I("v_sub_f32", NM(qb)[r], 0, RT[0])
    e.wait_lgkm0()
    stamp(e, 6)

    ret_labels = []

    def sm_stream(par, qb, masked):
        Sx, Px = S(par, qb), P(par, qb)
        out = []
        if masked:
            out.append(I("v_subrev_u32", vDqT[qb], sKv, vDq[qb]))

        def front(k):
            o = []
            if masked:
                o.append(I("v_cmp_ge_i32", MASKS[(2 * k) & 3], vDqT[qb], CR[2 * k]))
                o.append(I("v_cmp_ge_i32", MASKS[(2 * k + 1) & 3], vDqT[qb], CR[2 * k + 1]))
            o.append(I("v_exp_f32", ET[(2 * k) % 6], Sx[2 * k]))
            o.append(I("v_exp_f32", ET[(2 * k + 1) % 6], Sx[2 * k + 1]))
            return o

        def back(k):
            ta, tb = ET[(2 * k) % 6], ET[(2 * k + 1) % 6]
            o = []
            if masked:
                o.append(I("v_cndmask_b32", ta, 0, ta, MASKS[(2 * k) & 3]))
                o.append(I("v_cndmask_b32", tb, 0, tb, MASKS[(2 * k + 1) & 3]))
            if k == 0:
                o.append(I("v_add_f32", vTs[qb], ta, tb))
            else:
                o.append(I("v_add_f32", vTs[qb], vTs[qb], ta))
                o.append(I("v_add_f32", vTs[qb], vTs[qb], tb))
            o.append(I("v_cvt_pk_bf16_f32", Px[k], ta, tb))
            return o
        out += front(0)
        for k in range(8):
            if k + 1 < 8:
                out += front(k + 1)
            out += back(k)
        return out

    def qk_mfmas(par):
        return [I(MFMA, S(1 - par, qb), KF(par, si), qfrag(qb, si), NM(qb) if si == 0 else S(1 - par, qb))
                for si in range(8) for qb in range(2)]

    def pv_mfmas(par, first=(), order=None):
        ms = []
        for t in range(2):
            for b in range(4):
                for qb in range(2):
                    c = 0 if (qb in first and t == 0) else O(qb, b)
                    ms.append(I(MFMA, O(qb, b), VF(par, t, b), P(1 - par, qb).sub(4 * t, 4), c))
        return ms

    def k_reads(par, vaddr, off):
        return [I("ds_read_b128", KF(1 - par, si), vaddr, mods="offset:%d" % (off + si * 1024)) for si in range(8)]

    def v_reads(par, vaddr, off):
        return [I("ds_read_b128", VF(1 - par, si >> 2, si & 3), vaddr, mods="offset:%d" % (off + si * 1024))
                for si in range(8)]

    def step(par, name, qk, masks, pv, rds, dma, kvinc, pv_first=(), extra=(), tail=(), late_rd=True):
        ms = (qk_mfmas(par) if qk else []) + (pv_mfmas(par, pv_first) if pv else [])
        val = sm_stream(par, 0, masks[0]) + sm_stream(par, 1, masks[1])
        if "nords" in EXP:
            rds = []
        if "nodma" in EXP:
            dma = None
        if "nosm" in EXP:
            val = val[:4]
        cut = (len(val) * (9 if late_rd else 7)) // 10
        fill = merge(val[:cut], rds) + val[cut:]
        if extra:
            fill = merge(fill, list(extra))
        if dma:
            fill = merge(fill, dma)
        fill.append(I("v_max_f32", vTm, vTs[0], vTs[1]))
        fill.append(I("v_cmp_nge_f32", VCC, sThr, vTm))
        rid = len(ret_labels)
        ret_labels.append(("K2_RET_%s" % name, par))
        fill.append(I("s_mov_b32", sRet, rid))
        for qb in range(2):
            fill.append(I("v_add_f32", vL[1 - par][qb], vL[par][qb], vTs[qb]))
        fill += list(tail)
        interleave(e, ms, fill, close=True)
        e.I("s_cbranch_vccnz", "K2_RARE%d" % par)
        e.label("K2_RET_%s" % name)
        e.I("s_add_u32", sKv, sKv, kvinc)
        for x in EXP:
            if x.startswith("pad"):
                for _ in range(int(x[3:])):
                    e.I("s_nop", 15)

    def dma_group(kind, vdelta=16384):
        srd = s(S_K if kind == "K" else S_V, 4)
        sg = sKg if kind == "K" else sVg
        out = []
        if kind == "K":
            out.append(I("s_mov_b32", M0, sRot))
        else:
            out.append(I("s_sub_u32", sSt, sRot, vdelta))
            out.append(I("s_and_b32", sSt, sSt, 0xffff))
            out.append(I("s_add_u32", M0, sSt, 65536))
        for i in range(4):
            x = I("buffer_load_dwordx4", vl16, srd, sg, mods="offen offset:%d lds" % (1024 * i))
            x.cost = 16
            out.append(x)
        out.append(I("s_add_u32", sg, sg, 16384))
        return out

    def top():
        e.I("s_waitcnt", "vmcnt(16) lgkmcnt(0)")
        e.lgkm = []
        e.vm = []
        if "nobar" not in EXP:
            e.I("s_barrier")

    ROT = [I("s_add_u32", sRot, sRot, 16384), I("s_and_b32", sRot, sRot, 0xffff)]

    def iter1(name, maskB, first=False, last=False):
        top()
        step(0, name + "a", True, (False, maskB), not first,
             merge([] if last else k_reads(0, vKr, 0), v_reads(0, vVr, 0)), dma_group("K"), 32)
        tail = [I("v_add_u32", vVr, 65536, vKr), I("v_add_u32", vKr, 16384, vKr), I("v_and_b32", vKr, 0xffff, vKr),
                I("s_sub_u32", sCnt, sCnt, 1)] + ROT
        if last:
            rq = [I("ds_read_b128", qfrag(1, si), vQx, mods="offset:%d" % (si * 1024)) for si in range(8)]
            rds = [I("v_add_u32", vKx, sPw, vKr)] + merge(k_reads(1, vKx, 0), v_reads(1, vVr, 8192)) + rq
        else:
            rds = merge(k_reads(1, vKr, 8192), v_reads(1, vVr, 8192))
        step(1, name + "b", not last, (False, maskB), True, rds, dma_group("V"), 32,
             pv_first=(0, 1) if first else (), tail=tail, late_rd=False)

    def step2(par, name, masked, qk=True, pv=True, pv_first=(), extra=()):
        top()
        tail = [I("v_add_u32", vKr, 16384, vKr), I("v_and_b32", vKr, 0xffff, vKr),
                I("v_add_u32", vVr, 16384, vVr), I("v_and_b32", vVr, 0xffff, vVr), I("v_or_b32", vVr, 0x10000, vVr)] + ROT
        step(par, name, qk, (masked, masked), pv, merge(k_reads(par, vKr, 0), v_reads(par, vVr, 0)),
             dma_group("K") + dma_group("V", 32768), 64, pv_first=pv_first, extra=extra, tail=tail, late_rd=False)

    def loop(name, body):
        e.I("s_cmp_eq_u32", sCnt, 0)
        e.I("s_cbranch_scc1", "K2_%s_X" % name)
        e.label("K2_%s_L" % name)
        body()
        e.I("s_cmp_lg_u32", sCnt, 0)
        e.I("s_cbranch_scc1", "K2_%s_L" % name)
        e.label("K2_%s_X" % name)

    def ctx_store(qb_o, scale_regs, sbase, src2=None):
        out = []
        n = 0
        for b in range(4):
            for t in range(2):
                T = [RT[(n % 3) * 8 + 8 + r] for r in range(8)]
                Tq = v(RT[(n % 3) * 8 + 8].i, 4)
                n += 1
                for r in range(8):
                    out.append(I("v_accvgpr_read_b32", T[r], O(qb_o, b)[8 * t + r]))
                for r in range(8):
                    out.append(I("v_mul_f32", T[r], T[r], scale_regs[0]))
                if src2 is not None:
                    for r in range(8):
                        out.append(I("v_fmac_f32", T[r], src2[b * 16 + 8 * t + r], scale_regs[1]))
                for q in range(4):
                    out.append(I("v_cvt_pk_bf16_f32", T[q], T[2 * q], T[2 * q + 1]))
                off = (2 * b + t) * 1024
                if off % 4096 == 0:
                    out.append(I("s_add_u32", sTmp, sbase, off))
                out.append(I("buffer_store_dwordx4", Tq, vl16, s(S_WS, 4), sTmp, mods="offen offset:%d" % (off & 4095)))
        return out

    iter1("V0", True, first=True)
    e.I("s_lshl_b32", sCnt, sj, 1)
    e.I("s_sub_u32", sCnt, sCnt, 1)
    e.I("s_max_i32", sCnt, sCnt, 0)
    loop("V1", lambda: iter1("V1", False))
    e.I("s_min_u32", sCnt, sj, 1)
    loop("V2", lambda: iter1("V2", True))
    iter1("V2L", True, last=True)
    stamp(e, 7)
    top()
    e.I("v_add_u32", vNx, 49152, vVr)
    e.I("v_and_b32", vNx, 0xc000, vNx)
    e.I("v_lshlrev_b32", t0, 2, vl)
    e.I("v_add_u32", vNx, vNx, t0)
    e.I("s_lshl_b32", sT0, sw, 8)
    e.I("s_add_u32", sT0, sT0, 65536)
    e.I("v_add_u32", vNx, sT0, vNx)
    e.I("ds_write_b32", vNx, NM(0)[0])
    e.I("v_xor_b32", vNx, 256, vNx)
    e.I("v_mov_b32", RT[0], vL[0][1])
    e.I("v_mov_b32", RT[1], vL[0][1])
    e.I("v_mov_b32", vL[1][0], vL[0][0])
    e.I("v_permlane32_swap_b32", RT[0], RT[1])
    e.I("v_mov_b32", vL[1][1], 0)
    e.I("v_add_f32", RT[0], RT[0], RT[1])
    e.I("v_rcp_f32", vInvB, RT[0])
    e.I("v_add_u32", vKr, sPw, vKr)
    e.I("v_add_u32", vVr, sPw, vVr)
    e.I("s_lshr_b32", sT0, sPw, 8)
    e.I("s_add_u32", sKv, sKv, sT0)
    e.I("s_lshl_b32", sT0, sT0, 1)
    e.I("v_add_u32", vDq[1], 32, vDq[0])
    e.I("v_subrev_u32", vDq[1], sT0, vDq[1])
    pvm = pv_mfmas(0)
    pvB = [m for m in pvm if m.ops[0].i >= 64]
    pvA = [m for m in pvm if m.ops[0].i < 64]
    interleave(e, pvB, k_reads(0, vKr, 0) + dma_group("K"))
    e.wait_lgkm0()
    e.I("s_barrier")
    e.I("ds_read_b32", RT[2], vNx)
    interleave(e, pvA[:4], ROT + [I("v_add_u32", vKr, 16384, vKr), I("v_and_b32", vKr, 0xffff, vKr)])
    interleave(e, pvA[4:], [I("v_mov_b32", NM(1)[r], RT[2]) for r in range(16)])
    bepi = ctx_store(1, [vInvB], sCo[1])
    nb1 = len(bepi) // 2
    qkm = qk_mfmas(0)
    interleave(e, [m for m in qkm if m.ops[0].i == S(1, 0).i] + [m for m in qkm if m.ops[0].i == S(1, 1).i], bepi[:nb1])
    step2(1, "P0", True, pv=False, extra=bepi[nb1:])
    step2(0, "P1", True, pv_first=(1,))
    e.I("s_cmp_eq_u32", sj, 7)
    e.I("s_cbranch_scc1", "K2_DRAIN")
    e.I("s_lshl_b32", sCnt, sj, 1)
    e.I("s_sub_u32", sCnt, 13, sCnt)

    def p2():
        step2(1, "P2a", False)
        step2(0, "P2b", False, extra=[I("s_sub_u32", sCnt, sCnt, 1)])
    loop("P2", p2)
    step2(1, "P3", True)
    step2(0, "P4", True, qk=False)
    e.label("K2_DRAIN")
    e.I("s_waitcnt", "lgkmcnt(0)")
    e.lgkm = []
    for m in pv_mfmas(1):
        e.emit(m)
    stamp(e, 8)
    MS = 17408
    e.I("s_mul_i32", sT0, sw, MS)
    e.I("v_add_u32", vQx, sT0, vl16)
    e.I("v_lshlrev_b32", t0, 2, vl)
    e.I("v_add_u32", vNx, sT0, t0)
    e.I("s_waitcnt", "vmcnt(0)")
    e.I("s_barrier")
    e.I("ds_write_b32", vNx, NM(1)[0], mods="offset:16384")
    e.I("ds_write_b32", vNx, vL[1][1], mods="offset:16640")
    for b in range(4):
        for i in range(4):
            e.I("ds_write_b128", vQx, O(1, b).sub(4 * i, 4), mods="offset:%d" % ((b * 4 + i) * 1024))
    e.I("s_xor_b32", sT1, sw, 1)
    e.I("s_mul_i32", sT0, sT1, MS)
    e.I("v_add_u32", vQx, sT0, vl16)
    e.I("v_add_u32", vNx, sT0, t0)
    e.wait_lgkm0()
    e.I("s_barrier")
    nm2, l2, nm, f1, f2, lt, tq = RT[0], RT[1], RT[2], RT[3], RT[4], RT[5], RT[6]
    e.I("ds_read_b32", nm2, vNx, mods="offset:16384")
    e.I("ds_read_b32", l2, vNx, mods="offset:16640")
    O2 = SET[0]
    for i in range(16):
        e.I("ds_read_b128", O2.sub(4 * i, 4), vQx, mods="offset:%d" % (i * 1024))
    e.I("v_min_f32", nm, NM(0)[0], nm2)
    e.I("v_sub_f32", f1, nm, NM(0)[0])
    e.I("v_sub_f32", f2, nm, nm2)
    e.I("v_exp_f32", f1, f1)
    e.I("v_exp_f32", f2, f2)
    e.I("v_mul_f32", lt, vL[1][0], f1)
    e.I("v_fmac_f32", lt, l2, f2)
    e.I("v_mov_b32", tq, lt)
    e.I("v_permlane32_swap_b32", lt, tq)
    e.I("v_add_f32", lt, lt, tq)
    e.I("v_rcp_f32", lt, lt)
    e.I("v_mul_f32", f1, f1, lt)
    e.I("v_mul_f32", f2, f2, lt)
    emit_all(e, ctx_store(0, [f1, f2], sCo[0], src2=O2))
    stamp(e, 9)
    stamp_flush(e, 1, s(S_WS, 4), sw, 10)
    e.I("s_endpgm")

    for par in range(2):
        e.label("K2_RARE%d" % par)
        e.vm, e.lgkm = [], []
        e.I("s_nop", 15)
        e.I("s_nop", 7)
        for qb in range(2):
            Sx, Sn, Px = S(par, qb), S(1 - par, qb), P(par, qb)
            dq, dl, f, tmp = RT[0], RT[1], RT[2], RT[3]
            e.I("v_subrev_u32", dq, sKv, vDq[qb])
            mask_S_inplace(e, Sx, dq)
            rowmax(e, Sx, dl, tmp)
            e.I("v_max_f32", dl, 0, dl)
            e.I("v_sub_f32", f, 0, dl)
            e.I("v_exp_f32", f, f)
            for r in range(16):
                e.I("v_sub_f32", Sx[r], Sx[r], dl)
            e.I("v_mul_f32", vL[1 - par][qb], vL[par][qb], f)
            for r in range(16):
                e.I("v_exp_f32", RT[8 + r], Sx[r])
            for r in range(16):
                e.I("v_sub_f32", Sn[r], Sn[r], dl)
            for r in range(16):
                e.I("v_add_f32", vL[1 - par][qb], vL[1 - par][qb], RT[8 + r])
            for k in range(8):
                e.I("v_cvt_pk_bf16_f32", Px[k], RT[8 + 2 * k], RT[9 + 2 * k])
            for r in range(16):
                e.I("v_sub_f32", NM(qb)[r], NM(qb)[r], dl)
            for b in range(4):
                for r0 in range(0, 16, 8):
                    for r in range(8):
                        e.I("v_accvgpr_read_b32", RT[8 + r], O(qb, b)[r0 + r])
                    for r in range(8):
                        e.I("v_mul_f32", RT[8 + r], RT[8 + r], f)
                    for r in range(8):
                        e.I("v_accvgpr_write_b32", O(qb, b)[r0 + r], RT[8 + r])
        e.I("s_nop", 3)
        mine = [(i, l) for i, (l, pp) in enumerate(ret_labels) if pp == par]
        for i, l in mine[:-1]:
            e.I("s_cmp_eq_u32", sRet, i)
            e.I("s_cbranch_scc1", l)
        e.I("s_branch", mine[-1][1])
    e.label(END)
    e.I("s_endpgm")
    return e.text(), dict(vgpr=512, sgpr=102, accum=256, grid=256, block=256, lds=163840)
```

```python
import sys, math
sys.path.insert(0, "dev")
from asmlib import *

NAME = "recurrent_scan__compressed_kv_cla__geglu_ffn__prompt"
WS_XN = 0x0000000
WS_K = 0x0200000
WS_V = 0x1200000
WS_A3 = 0x2200000
WS_BYTES = 0x10000000
MFMA = "v_mfma_f32_32x32x16_bf16"

P_X, P_CKV, P_WQ, P_WUK, P_WUV, P_WO, P_BX, P_WG, P_WU, P_WD, P_OUT, P_DBG, P_WS = [4 + 2 * i for i in range(13)]


def I(op, *ops, mods="", tag=None, comment=None):
    return Inst(op, ops, mods, tag, comment)


def emit_all(e, lst):
    for x in lst:
        if isinstance(x, tuple):
            x = x[1]
        if isinstance(x, Inst):
            e.emit(x)
        else:
            x(e)


PROFILE = False
PACE = 2
WS_PROF = 0x8000000


def stamp(e, idx):
    if not PROFILE:
        return
    e.wait_lgkm0()
    e.I("s_memtime", s(82, 2))
    e.I("s_waitcnt", "lgkmcnt(0)")
    e.I("s_mov_b32", s(84 + idx), s(82))
    if idx == 0:
        e.I("s_memrealtime", s(82, 2))
        e.I("s_waitcnt", "lgkmcnt(0)")
        e.I("s_mov_b32", s(98), s(82))


def stamp_flush(e, kidx, srd_ws, sw, n, vt=(v(2), v(3))):
    if not PROFILE:
        return
    e.wait_all()
    e.I("s_memrealtime", s(82, 2))
    e.I("s_waitcnt", "lgkmcnt(0)")
    e.I("s_mov_b32", s(99), s(82))
    e.I("s_lshl_b32", s(82), s(2), 2)
    e.I("s_add_u32", s(82), s(82), sw)
    e.I("s_lshl_b32", s(82), s(82), 6)
    e.I("s_add_u32", s(82), s(82), WS_PROF + kidx * 65536)
    e.I("v_mov_b32", vt[1], 0)
    for i in list(range(n)) + [14, 15]:
        e.I("v_mov_b32", vt[0], s(84 + i))
        e.I("buffer_store_dword", vt[0], vt[1], srd_ws, s(82), mods="offen offset:%d" % (4 * i))


def prologue(e, nwg, endlabel):
    e.I("s_cmp_ge_u32", s(2), nwg)
    e.I("s_cbranch_scc1", endlabel)
    e.I("s_load_dwordx16", s(4, 16), s(0, 2), 0)
    e.I("s_load_dwordx8", s(20, 8), s(0, 2), 64)
    e.I("s_load_dwordx2", s(28, 2), s(0, 2), 96)


PF_CODE = True
PF_W = True
PF_TLB = True


class Untracked:
    def __init__(self, inst):
        self.inst = inst
        self.cost = 8
        self.tag = "pf"

    def __call__(self, em):
        if len(em.vm) >= 63:
            em._emit_wait(vm=62)
        em.raw(self.inst)
        em.vm.append((set(), "pf"))


def code_prefetch(e, name, first, last, sbase, vtmp, vdst, nload):
    if not PF_CODE:
        return
    lab = "L_pc_" + name
    e.I("s_getpc_b64", sbase)
    e.label(lab)
    e.I("s_add_u32", sbase[0], sbase[0], "%s-%s" % (first, lab))
    e.I("s_addc_u32", sbase[1], sbase[1], -1)
    e.I("s_lshr_b32", s(3), s(2), 3)
    e.I("s_lshl_b32", s(3), s(3), 12)
    e.I("v_lshlrev_b32", vtmp, 4, v(0))
    e.I("v_add_u32", vtmp, s(3), vtmp)
    for i in range(nload):
        if i:
            e.I("v_add_u32", vtmp, 131072, vtmp)
        e.I("v_min_u32", vtmp, "%s-%s-16" % (last, first), vtmp)
        Untracked(I("global_load_dwordx4", vdst, vtmp, sbase))(e)


def make_srd(e, d, p, nbytes):
    e.I("s_mov_b32", s(d), s(p))
    e.I("s_mov_b32", s(d + 1), s(p + 1))
    e.I("s_mov_b32", s(d + 2), nbytes)
    e.I("s_mov_b32", s(d + 3), 0x20000)


def head_j(e, sh, sj, t0, t1):
    e.I("s_and_b32", t0, s(2), 7)
    e.I("s_lshl_b32", t0, t0, 2)
    e.I("s_bfe_u32", t1, s(2), (2 << 16) | 3)
    e.I("s_add_u32", sh, t0, t1)
    e.I("s_lshr_b32", sj, s(2), 5)


def tr_addr(e, dst0, dst1, vl, tmp, base, kperm):
    t0, t1, t2 = tmp
    e.I("v_lshrrev_b32", t0, 5, vl)
    e.I("v_lshlrev_b32", t0, (2 if kperm else 3) + 7, t0)
    e.I("v_bfe_u32", t1, vl, 2, 2)
    e.I("v_lshlrev_b32", t1, 7, t1)
    e.I("v_add_u32", t0, t0, t1)
    e.I("v_bfe_u32", t1, vl, 4, 1)
    e.I("v_lshlrev_b32", t1, 5, t1)
    e.I("v_add_u32", t0, t0, t1)
    e.I("v_and_b32", t1, 3, vl)
    e.I("v_lshlrev_b32", t1, 3, t1)
    e.I("v_add_u32", t0, t0, t1)
    if base is not None and not (isinstance(base, int) and base == 0):
        e.I("v_add_u32", t0, base, t0)
    e.I("v_bfe_u32", t2, vl, 3, 1)
    e.I("v_lshlrev_b32", t2, 6, t2)
    e.I("v_add_u32", dst0, t0, t2)
    e.I("v_xor_b32", t2, 64, t2)
    e.I("v_add_u32", dst1, t0, t2)


def wdma_voff(e, dsts, vl, tmp, rs):
    t0, t1 = tmp
    e.I("v_lshrrev_b32", t0, 3, vl)
    e.I("v_mul_u32_u24", t0, rs, t0)
    e.I("v_bfe_u32", t1, vl, 4, 1)
    e.I("v_lshlrev_b32", t1, 2, t1)
    e.I("v_xor_b32", t1, t1, vl)
    e.I("v_and_b32", t1, 7, t1)
    e.I("v_lshlrev_b32", t1, 4, t1)
    e.I("v_add_u32", dsts[0], t0, t1)
    for i in range(1, len(dsts)):
        e.I("v_add_u32", dsts[i], 8 * rs - 1024, dsts[i - 1])


class Seg:
    def __init__(self, nb, role, acc, src, fill=()):
        self.nb, self.role, self.acc, self.src, self.fill = nb, role, acc, src, list(fill)
        self.kps = 4 if nb == 4 else 8
        self.nst = 32 // self.kps


class Gemm:
    def __init__(self, e, ns, vtr, pool, s_m0, s_tmp, segs):
        self.e, self.ns, self.vtr, self.pool = e, ns, vtr, pool
        self.s_m0, self.s_tmp, self.segs = s_m0, s_tmp, segs
        self.ks = []
        self.stages = []
        for sg in segs:
            g0 = len(self.stages)
            for st in range(sg.nst):
                self.stages.append((sg, st))
            for sidx in range(32):
                self.ks.append((sg, sidx, g0 + sidx // sg.kps, sidx % sg.kps))

    def xfrag(self, rb, sidx):
        return a((rb * 32 + sidx) * 4, 4)

    def wfrag(self, t, nb):
        return self.pool.sub(((t & 1) * 4 + nb) * 4, 4)

    def w_reads(self, t):
        sg, sidx, g, sl = self.ks[t]
        out = []
        for nb in range(sg.nb):
            half, seg = nb >> 1, nb & 1
            f = self.wfrag(t, nb)
            for p in range(2):
                off = (g % self.ns) * 16384 + half * 8192 + (16 * sl + 4 * p) * 128
                out.append(I("ds_read_b64_tr_b16", f.sub(2 * p, 2), self.vtr[seg], mods="offset:%d" % off))
        return out

    def w_dma(self, g):
        sg, st = self.stages[g]
        src = sg.src
        out = [I("s_add_u32", M0, self.s_m0, (g % self.ns) * 16384),
               I("s_add_u32", self.s_tmp, src["s_base"], st * src["stage_stride"])]
        for i in range(4):
            out.append(I("buffer_load_dwordx4", src["voff"][i], src["srd"], self.s_tmp,
                         mods="offen offset:%d lds" % (1024 * i), tag=("W", g)))
        return out

    def mfmas(self, t):
        sg, sidx, g, sl = self.ks[t]
        out = []
        for nb in range(sg.nb):
            for rb in range(2):
                d = sg.acc(rb, nb)
                c = 0 if sidx == 0 else d
                w, x = self.wfrag(t, nb), self.xfrag(rb, sidx)
                out.append(I(MFMA, d, w, x, c) if sg.role == "WX" else I(MFMA, d, x, w, c))
        return out

    def run(self, hook=None, seg_end=None, queue=None, released=None, on_barrier=None, pace=2):
        e = self.e
        nt = len(self.ks)
        nstage = len(self.stages)
        q = self.q = list(queue or [])
        rel = self.rel = set(released or [])
        st = {"n": 0, "last": -99}

        def need(key):
            while any(k == key for k, _ in q):
                k, insts = q.pop(0)
                assert k in rel, ("job needed before its slot is released", k)
                emit_all(e, insts)
            e.wait_vm_tag(lambda tg: tg == key)
        self.need = need

        def tick(em):
            st["n"] += 1
            if q and q[0][0] in rel and st["n"] - st["last"] >= pace:
                k, insts = q.pop(0)
                emit_all(e, insts)
                st["last"] = st["n"]
        tick.cost = 0
        need(("W", 0))
        e.I("s_barrier")
        emit_all(e, self.w_reads(0))
        for t in range(nt):
            sg, sidx, g, sl = self.ks[t]
            last = sl == sg.kps - 1
            if last and t + 1 < nt:
                e.wait_lgkm0()
                need(("W", g + 1))
                e.I("s_barrier")
                rel.add(("W", g + self.ns))
                if on_barrier:
                    on_barrier(g)
            rd = self.w_reads(t + 1) if t + 1 < nt else []
            ex = hook(t) if hook else []
            n = len(sg.fill)
            ex = ex + sg.fill[(sidx * n) // 32: ((sidx + 1) * n) // 32]
            fill = merge(rd, ex)
            ms = []
            for m in self.mfmas(t):
                ms.append(Both(m, tick))
            interleave(e, ms, fill)
            if sidx == 31 and seg_end:
                seg_end(sg)

    def w_jobs(self, g):
        ins = self.w_dma(g)
        return [(("W", g), ins[0:3])] + [(("W", g), [x]) for x in ins[3:]]


class Both:
    def __init__(self, m, f):
        self.m, self.f = m, f
        self.cost = 8

    def __call__(self, em):
        em.emit(self.m)
        self.f(em)


def merge(x, y):
    out = []
    i = j = 0
    while i < len(x) or j < len(y):
        if j >= len(y) or (i < len(x) and i * len(y) <= j * len(x)):
            out.append(x[i]); i += 1
        else:
            out.append(y[j]); j += 1
    return out


def cvt_inplace(d, hh):
    return [I("v_cvt_pk_bf16_f32", d[8 * hh + q], d[8 * hh + 2 * q], d[8 * hh + 2 * q + 1]) for q in range(4)]


def gen_k1():
    e = Emitter()
    END = "K1_END"
    prologue(e, 256, END)
    S_X, S_CKV, S_WK, S_WV, S_WS = 32, 36, 40, 44, 48
    sw, sh, sj = s(52), s(53), s(54)
    vl, vl16 = v(1), v(2)
    t0, t1, t2 = v(3), v(4), v(5)
    SET = [v(64, 64), v(128, 64), v(192, 64)]
    pool = v(32, 32)
    PFD = v(28, 4)
    code_prefetch(e, "k1", "k1_kernel", "TEXT_END", s(30, 2), t0, PFD, 1)
    e.I("v_and_b32", vl, 63, v(0))
    e.I("v_lshrrev_b32", t0, 6, v(0))
    e.I("v_lshlrev_b32", vl16, 4, vl)
    e.I("v_readfirstlane_b32", sw, t0)
    head_j(e, sh, sj, s(55), s(56))
    XS_BASE, XS_W = 65536, 24576
    vXd = [v(8), v(9)]
    e.I("v_lshrrev_b32", t0, 3, vl)
    e.I("v_lshlrev_b32", t1, 10, t0)
    e.I("v_lshrrev_b32", t0, 1, t0)
    e.I("v_xor_b32", t0, t0, vl)
    e.I("v_and_b32", t0, 7, t0)
    e.I("v_lshlrev_b32", t2, 4, t0)
    e.I("v_add_u32", vXd[0], t1, t2)
    e.I("v_xor_b32", t2, 64, t2)
    e.I("v_add_u32", vXd[1], t1, t2)
    sXrow = [s(60 + i) for i in range(8)]
    e.I("s_lshl_b32", s(58), sj, 18)
    e.I("s_lshl_b32", s(59), sw, 16)
    e.I("s_add_u32", s(58), s(58), s(59))
    for i in range(8):
        e.I("s_add_u32", sXrow[i], s(58), i * 8192 - (i & 3) * 1024)
    sXlds = s(68)
    e.I("s_mul_i32", sXlds, sw, XS_W)
    e.I("s_add_u32", sXlds, sXlds, XS_BASE)
    vW = [v(24 + i) for i in range(4)]
    wdma_voff(e, vW, vl, (t0, t1), 8192)
    sWb, sM0, sTmp, sWb2, sWb3 = s(69), s(70), s(71), s(80), s(81)
    e.I("s_and_b32", s(72), sw, 1)
    e.I("s_lshl_b32", s(72), s(72), 18)
    e.I("s_lshr_b32", s(73), sw, 1)
    e.I("s_lshl_b32", s(73), s(73), 7)
    e.I("s_lshl_b32", s(74), sh, 8)
    e.I("s_add_u32", sWb, s(74), s(72))
    e.I("s_add_u32", sWb, sWb, s(73))
    e.I("s_lshl_b32", s(72), sw, 18)
    e.I("s_add_u32", sWb2, s(74), s(72))
    e.I("s_add_u32", sWb3, sWb2, 128)
    e.I("s_lshl_b32", sM0, sw, 12)
    e.I("s_waitcnt", "lgkmcnt(0)")
    make_srd(e, S_CKV, P_CKV, 2048 * 1024)
    make_srd(e, S_WK, P_WUK, 512 * 8192)
    stamp(e, 0)

    def x_dma(p):
        out = []
        for i in range(8):
            if i % 4 == 0:
                out.append(I("s_add_u32", M0, sXlds, (p % 3) * 8192 + (i >> 2) * 4096))
            out.append(I("buffer_load_dwordx4", vXd[i & 1], s(S_CKV, 4), sXrow[i],
                         mods="offen offset:%d lds" % (1024 * (i & 3)), tag=("X", p)))
        out.append(I("v_add_u32", vXd[0], 128, vXd[0]))
        out.append(I("v_add_u32", vXd[1], 128, vXd[1]))
        return out

    vXr = [v(10 + i) for i in range(4)]

    def x_reads(p):
        out = [(lambda em: G.need(("X", p))) if p else (lambda em: em.wait_vm_tag(lambda tg: tg == ("X", p)))]
        for sl in range(4):
            for rb in range(2):
                out.append(I("ds_read_b128", a((rb * 32 + 4 * p + sl) * 4, 4), vXr[sl],
                             mods="offset:%d" % ((p % 3) * 8192 + rb * 4096)))
        return out

    srcK = dict(srd=s(S_WK, 4), voff=vW, s_base=sWb, stage_stride=64 * 8192)
    srcV0 = dict(srd=s(S_WV, 4), voff=vW, s_base=sWb2, stage_stride=128 * 8192)
    srcV1 = dict(srd=s(S_WV, 4), voff=vW, s_base=sWb3, stage_stride=128 * 8192)
    vtr = [v(14), v(15)]
    accA = lambda rb, nb: SET[rb].sub(nb * 16, 16)
    accB = lambda rb, nb: SET[2].sub((rb * 2 + nb) * 16, 16)
    accC = lambda rb, nb: SET[0].sub((rb * 2 + nb) * 16, 16)
    sKo, sVo, sSt = s(76), s(77), s(79)

    def store_block(d, sbase, rb, idxs):
        out = []
        for hh in range(2):
            out += cvt_inplace(d, hh)
            off = rb * 8192 + idxs[hh] * 1024
            out.append(I("s_add_u32", sSt, sbase, off & ~4095))
            out.append(I("buffer_store_dwordx4", d.sub(8 * hh, 4), vl16, s(S_WS, 4), sSt,
                         mods="offen offset:%d" % (off & 4095)))
        return out
    epiA = []
    for rb in range(2):
        for nb in range(4):
            epiA += store_block(accA(rb, nb), sKo, rb, (2 * nb, 2 * nb + 1))
    epiB, epiC = [], []
    for rb in range(2):
        for nb in range(2):
            epiB += store_block(accB(rb, nb), sVo, rb, (nb, 4 + nb))
            epiC += store_block(accC(rb, nb), sVo, rb, (2 + nb, 6 + nb))

    Z = SET[2]
    vLNa, vLNs = v(6), v(7)
    LN0, LN1 = Z.sub(0, 4), Z.sub(4, 4)
    X = [Z[8 + i] for i in range(16)]
    D = [Z[24 + i] for i in range(16)]
    sm, sw2, mean, var, pk, mb, vb, sd, rc = [Z[40 + i] for i in range(9)]
    ln = []
    A_ = lambda *x, **k: ln.append(I(*x, **k))
    for i in range(4):
        A_("v_lshlrev_b32", X[2 * i], 16, LN0[i])
        A_("v_and_b32", X[2 * i + 1], 0xffff0000, LN0[i])
        A_("v_lshlrev_b32", X[8 + 2 * i], 16, LN1[i])
        A_("v_and_b32", X[8 + 2 * i + 1], 0xffff0000, LN1[i])

    def allreduce32(r):
        for off in (0x041F, 0x081F, 0x101F, 0x201F, 0x401F):
            A_("ds_swizzle_b32", sw2, r, mods="offset:0x%04x" % off)
            A_("v_nop"); A_("v_nop"); A_("v_nop")
            A_("v_add_f32", r, r, sw2)
    A_("v_add_f32", sm, X[0], X[1])
    for i in range(2, 16):
        A_("v_add_f32", sm, sm, X[i])
    allreduce32(sm)
    A_("v_mul_f32", mean, 1.0 / 512, sm)
    for i in range(16):
        A_("v_sub_f32", D[i], X[i], mean)
    A_("v_mul_f32", sm, D[0], D[0])
    for i in range(1, 16):
        A_("v_fmac_f32", sm, D[i], D[i])
    allreduce32(sm)
    A_("v_mul_f32", var, 1.0 / 512, sm)
    A_("v_cvt_pk_bf16_f32", pk, mean, var)
    A_("v_lshlrev_b32", mb, 16, pk)
    A_("v_and_b32", vb, 0xffff0000, pk)
    A_("v_add_f32", vb, 1e-5, vb)
    A_("v_cvt_pk_bf16_f32", pk, vb, vb)
    A_("v_lshlrev_b32", vb, 16, pk)
    A_("v_sqrt_f32", vb, vb)
    A_("v_cvt_pk_bf16_f32", pk, vb, vb)
    A_("v_lshlrev_b32", sd, 16, pk)
    A_("v_rcp_f32", rc, sd)
    for i in range(16):
        A_("v_sub_f32", D[i], X[i], mb)
    for i in range(8):
        A_("v_cvt_pk_bf16_f32", pk, D[2 * i], D[2 * i + 1])
        A_("v_lshlrev_b32", D[2 * i], 16, pk)
        A_("v_and_b32", D[2 * i + 1], 0xffff0000, pk)
    for i in range(16):
        A_("v_mul_f32", X[i], D[i], rc)
        A_("v_fma_f32", D[i], Neg(X[i]), sd, D[i])
        A_("v_fmac_f32", X[i], D[i], rc)
    for i in range(4):
        A_("v_cvt_pk_bf16_f32", LN0[i], X[2 * i], X[2 * i + 1])
        A_("v_cvt_pk_bf16_f32", LN1[i], X[8 + 2 * i], X[8 + 2 * i + 1])
    A_("buffer_store_dwordx4", LN0, vLNs, s(S_WS, 4), s(74), mods="offen")
    A_("buffer_store_dwordx4", LN1, vLNs, s(S_WS, 4), s(75), mods="offen")
    ln = [x for x in ln if x.op != "v_nop"]
    pad = [lambda em: None] * (len(ln) // 2)
    for p_ in pad:
        pass
    segs = [Seg(4, "WX", accA, srcK, pad + ln), Seg(2, "XW", accB, srcV0, epiA), Seg(2, "XW", accC, srcV1, epiB)]
    G = Gemm(e, 4, vtr, pool, sM0, sTmp, segs)
    emit_all(e, x_dma(0))
    emit_all(e, G.w_dma(0))
    emit_all(e, x_dma(1))
    emit_all(e, G.w_dma(1))

    def x_jobs(p):
        ins = x_dma(p)
        k = ("X", p)
        return [(k, ins[0:2]), (k, [ins[2]]), (k, [ins[3]]), (k, [ins[4]]), (k, ins[5:7]), (k, [ins[7]]), (k, [ins[8]]),
                (k, ins[9:12])]
    queue = []
    for g in range(2, 16):
        if g < 8:
            queue += x_jobs(g)
        queue += G.w_jobs(g)
    make_srd(e, S_X, P_X, 2048 * 1024)
    make_srd(e, S_WV, P_WUV, 512 * 8192)
    make_srd(e, S_WS, P_WS, WS_BYTES)
    e.I("v_lshrrev_b32", t0, 5, v(0))
    e.I("v_lshlrev_b32", t1, 10, t0)
    e.I("v_and_b32", t2, 31, vl)
    e.I("v_lshlrev_b32", vLNa, 4, t2)
    e.I("v_add_u32", vLNa, vLNa, t1)
    e.I("v_lshrrev_b32", t1, 1, t2)
    e.I("v_lshlrev_b32", t1, 10, t1)
    e.I("v_and_b32", t2, 1, t2)
    e.I("v_lshlrev_b32", t2, 9, t2)
    e.I("v_add_u32", t1, t1, t2)
    e.I("v_lshlrev_b32", t0, 4, t0)
    e.I("v_add_u32", vLNs, t1, t0)
    e.I("s_lshl_b32", s(57), s(2), 13)
    e.I("buffer_load_dwordx4", LN0, vLNa, s(S_X, 4), s(57), mods="offen")
    e.I("buffer_load_dwordx4", LN1, vLNa, s(S_X, 4), s(57), mods="offen offset:512")
    if PF_TLB:
        e.I("s_cmp_eq_u32", sw, 0)
        e.I("s_cselect_b32", s(74), 20, 4)
        e.I("v_lshlrev_b32", t0, s(74), vl)
        e.I("s_mov_b32", s(75), 64 << 20)
        Untracked(I("buffer_load_dword", PFD[0], t0, s(S_WS, 4), 0, mods="offen"))(e)
        Untracked(I("buffer_load_dword", PFD[0], t0, s(S_WS, 4), s(75), mods="offen"))(e)
    e.I("s_lshr_b32", s(74), s(2), 2)
    e.I("s_lshl_b32", s(74), s(74), 15)
    e.I("s_and_b32", s(75), s(2), 3)
    e.I("s_lshl_b32", s(75), s(75), 7)
    e.I("s_add_u32", s(74), s(74), s(75))
    if WS_XN:
        e.I("s_add_u32", s(74), s(74), WS_XN)
    e.I("s_add_u32", s(75), s(74), 16384)
    e.I("v_and_b32", t0, 31, vl)
    e.I("v_lshlrev_b32", t1, 7, t0)
    e.I("v_add_u32", t1, sXlds, t1)
    e.I("v_bfe_u32", t0, vl, 1, 3)
    e.I("v_lshrrev_b32", t2, 5, vl)
    e.I("v_xor_b32", t0, t0, t2)
    for sl in range(4):
        e.I("v_xor_b32", t2, 2 * sl, t0)
        e.I("v_lshlrev_b32", t2, 4, t2)
        e.I("v_add_u32", vXr[sl], t1, t2)
    tr_addr(e, vtr[0], vtr[1], vl, (t0, t1, t2), 0, False)
    e.I("s_lshl_b32", s(78), sh, 6)
    e.I("s_lshl_b32", s(79), sj, 3)
    e.I("s_add_u32", s(78), s(78), s(79))
    e.I("s_lshl_b32", s(79), sw, 1)
    e.I("s_add_u32", s(78), s(78), s(79))
    e.I("s_lshl_b32", s(78), s(78), 13)
    e.I("s_add_u32", sKo, s(78), WS_K)
    e.I("s_add_u32", sVo, s(78), WS_V)
    stamp(e, 1)
    emit_all(e, x_reads(0))
    stamp(e, 2)

    def hook(t):
        g, sl = t >> 2, t & 3
        out = []
        if t < 32:
            if g < 7 and sl == 2:
                out += x_reads(g + 1)
        elif PF_W and t % 8 == 1:
            n = (t - 32) // 8
            if n == 0:
                out.append(I("s_lshl_b32", s(31), s(2), 2))
                out.append(I("s_add_u32", s(31), s(31), sw))
                out.append(I("s_lshl_b32", s(30), s(31), 12))
                out.append(I("s_lshl_b32", s(31), s(31), 11))
            p_, nbytes, so, off = ((P_WQ, 512 * 8192, s(30), n * 1024) if n < 4 else
                                   (P_WG if n < 6 else P_WU, 512 * 3584, s(31), (n & 1) * 1024))
            if n in (0, 4, 6):
                out += [I("s_mov_b32", s(S_X), s(p_)), I("s_mov_b32", s(S_X + 1), s(p_ + 1)),
                        I("s_mov_b32", s(S_X + 2), nbytes)]
            out.append(Untracked(I("buffer_load_dwordx4", PFD, vl16, s(S_X, 4), so, mods="offen offset:%d" % off)))
        return out
    cnt = [3]

    def seg_end(sg):
        stamp(e, cnt[0]); cnt[0] += 1
    G.run(hook, seg_end, queue=queue, released={("W", 2), ("W", 3), ("X", 2)},
          on_barrier=lambda g: (G.rel.add(("X", g + 3)), G.rel.add(("X", g + 4))), pace=PACE)
    emit_all(e, epiC)
    stamp(e, 6)
    if PROFILE:
        e.wait_all()
    stamp(e, 7)
    stamp_flush(e, 0, s(S_WS, 4), sw, 8)
    e.label(END)
    e.I("s_endpgm")
    return e.text(), dict(vgpr=512, sgpr=102, accum=256, grid=256, block=256, lds=163840)


KERNELS = [("k1_kernel", gen_k1)]
try:
    from gen_k2 import gen_k2
    KERNELS.append(("k2_kernel", gen_k2))
    from gen_k3 import gen_k3, gen_k4
    KERNELS.append(("k3_kernel", gen_k3))

except ImportError as ex:
    print("note:", ex)


def build(kernels=None):
    ks = KERNELS if kernels is None else kernels
    hdr = open("cdna_kernels/%s.s.ref" % NAME).read().split("; Override")[0]
    out = [hdr]
    bodies, descs = [], []
    for name, fn in ks:
        txt, d = fn()
        out.append("; @launch kernel=%s grid=(%d,1,1) block=(%d,1,1) lds=%d\n" % (name, d["grid"], d["block"], d["lds"]))
        bodies.append(kernel_header(name) + txt)
        descs.append(".p2align 6" + kernel_desc(name, d["vgpr"], d["sgpr"], d["accum"]))
    out.append('.amdgcn_target "amdgcn-amd-amdhsa--gfx950"\n.text\n')
    out += bodies
    out.append("TEXT_END:\n")
    out.append('.section .rodata,"a"\n')
    out += descs
    return "".join(out)
```

```python
import sys, math
sys.path.insert(0, "dev")
from asmlib import *

NAME = "recurrent_scan__compressed_kv_cla__geglu_ffn__prompt"
WS_XN = 0x0000000
WS_K = 0x0200000
WS_V = 0x1200000
WS_A3 = 0x2200000
WS_BYTES = 0x10000000
MFMA = "v_mfma_f32_32x32x16_bf16"

P_X, P_CKV, P_WQ, P_WUK, P_WUV, P_WO, P_BX, P_WG, P_WU, P_WD, P_OUT, P_DBG, P_WS = [4 + 2 * i for i in range(13)]


def I(op, *ops, mods="", tag=None, comment=None):
    return Inst(op, ops, mods, tag, comment)


def emit_all(e, lst):
    for x in lst:
        if isinstance(x, tuple):
            x = x[1]
        if isinstance(x, Inst):
            e.emit(x)
        else:
            x(e)


PROFILE = False
STAMP_MAP = None
FUSE = True
S_DBG = 96
PACE = 2
WS_PROF = 0x8000000


def stamp(e, idx):
    if not PROFILE:
        return
    if STAMP_MAP is not None:
        if idx not in STAMP_MAP:
            return
        idx = STAMP_MAP[idx]
    assert idx < 10
    e.wait_lgkm0()
    e.I("s_memtime", s(82, 2))
    e.I("s_waitcnt", "lgkmcnt(0)")
    e.I("s_mov_b32", s(84 + idx), s(82))
    if idx == 0:
        e.I("s_memrealtime", s(82, 2))
        e.I("s_waitcnt", "lgkmcnt(0)")
        e.I("s_mov_b32", s(94), s(82))


def stamp_flush(e, kidx, srd_ws, sw, n, vt=(v(2), v(3))):
    if not PROFILE:
        return
    e.wait_all()
    e.I("s_memrealtime", s(82, 2))
    e.I("s_waitcnt", "lgkmcnt(0)")
    e.I("s_mov_b32", s(95), s(82))
    e.I("s_lshl_b32", s(82), s(2), 2)
    e.I("s_add_u32", s(82), s(82), sw)
    e.I("s_lshl_b32", s(82), s(82), 6)
    e.I("s_add_u32", s(82), s(82), WS_PROF + kidx * 65536)
    e.I("v_mov_b32", vt[1], 0)
    for i in list(range(n)) + [14, 15]:
        e.I("v_mov_b32", vt[0], s(84 + i if i < 10 else 80 + i))
        e.I("buffer_store_dword", vt[0], vt[1], srd_ws, s(82), mods="offen offset:%d" % (4 * i))


def prologue(e, nwg, endlabel):
    e.I("s_cmp_ge_u32", s(2), nwg)
    e.I("s_cbranch_scc1", endlabel)
    e.I("s_load_dwordx16", s(4, 16), s(0, 2), 0)
    e.I("s_load_dwordx8", s(20, 8), s(0, 2), 64)
    e.I("s_load_dwordx2", s(28, 2), s(0, 2), 96)


PF_CODE = True
PF_W = True
PF_TLB = False
PF_IN = True


class Untracked:
    def __init__(self, inst):
        self.inst = inst
        self.cost = 8
        self.tag = "pf"

    def __call__(self, em):
        if len(em.vm) >= 63:
            em._emit_wait(vm=62)
        em.raw(self.inst)
        em.vm.append((set(), "pf"))


def code_prefetch(e, name, first, last, sbase, vtmp, vdst, nload):
    if not PF_CODE:
        return
    lab = "L_pc_" + name
    e.I("s_getpc_b64", sbase)
    e.label(lab)
    e.I("s_add_u32", sbase[0], sbase[0], "%s-%s" % (first, lab))
    e.I("s_addc_u32", sbase[1], sbase[1], -1)
    e.I("s_lshr_b32", s(3), s(2), 3)
    e.I("s_lshl_b32", s(3), s(3), 12)
    e.I("v_lshlrev_b32", vtmp, 4, v(0))
    e.I("v_add_u32", vtmp, s(3), vtmp)
    for i in range(nload):
        if i:
            e.I("v_add_u32", vtmp, 131072, vtmp)
        e.I("v_min_u32", vtmp, "%s-%s-16" % (last, first), vtmp)
        Untracked(I("global_load_dwordx4", vdst, vtmp, sbase))(e)


def make_srd(e, d, p, nbytes):
    e.I("s_mov_b32", s(d), s(p))
    e.I("s_mov_b32", s(d + 1), s(p + 1))
    e.I("s_mov_b32", s(d + 2), nbytes)
    e.I("s_mov_b32", s(d + 3), 0x20000)


def head_j(e, sh, sj, t0, t1):
    e.I("s_and_b32", t0, s(2), 7)
    e.I("s_lshl_b32", t0, t0, 2)
    e.I("s_bfe_u32", t1, s(2), (2 << 16) | 3)
    e.I("s_add_u32", sh, t0, t1)
    e.I("s_lshr_b32", sj, s(2), 5)


def tr_addr(e, dst0, dst1, vl, tmp, base, kperm):
    t0, t1, t2 = tmp
    e.I("v_lshrrev_b32", t0, 5, vl)
    e.I("v_lshlrev_b32", t0, (2 if kperm else 3) + 7, t0)
    e.I("v_bfe_u32", t1, vl, 2, 2)
    e.I("v_lshlrev_b32", t1, 7, t1)
    e.I("v_add_u32", t0, t0, t1)
    e.I("v_bfe_u32", t1, vl, 4, 1)
    e.I("v_lshlrev_b32", t1, 5, t1)
    e.I("v_add_u32", t0, t0, t1)
    e.I("v_and_b32", t1, 3, vl)
    e.I("v_lshlrev_b32", t1, 3, t1)
    e.I("v_add_u32", t0, t0, t1)
    if base is not None and not (isinstance(base, int) and base == 0):
        e.I("v_add_u32", t0, base, t0)
    e.I("v_bfe_u32", t2, vl, 3, 1)
    e.I("v_lshlrev_b32", t2, 6, t2)
    e.I("v_add_u32", dst0, t0, t2)
    e.I("v_xor_b32", t2, 64, t2)
    e.I("v_add_u32", dst1, t0, t2)


def wdma_voff(e, dsts, vl, tmp, rs):
    t0, t1 = tmp
    e.I("v_lshrrev_b32", t0, 3, vl)
    e.I("v_mul_u32_u24", t0, rs, t0)
    e.I("v_bfe_u32", t1, vl, 4, 1)
    e.I("v_lshlrev_b32", t1, 2, t1)
    e.I("v_xor_b32", t1, t1, vl)
    e.I("v_and_b32", t1, 7, t1)
    e.I("v_lshlrev_b32", t1, 4, t1)
    e.I("v_add_u32", dsts[0], t0, t1)
    for i in range(1, len(dsts)):
        e.I("v_add_u32", dsts[i], 8 * rs - 1024, dsts[i - 1])


def signal(e, sw, soff, name, vone):
    e.I("s_cmp_lg_u32", sw, 0)
    e.I("s_cbranch_scc1", "L_sig_" + name)
    e.I("s_mov_b64", EXEC, 1)
    e.I("v_mov_b32", vone, 1)
    e.raw(I("buffer_atomic_add", vone, "off", s(S_DBG, 4), soff))
    e.I("s_mov_b64", EXEC, -1)
    e.label("L_sig_" + name)


def poll_issue(e, vp, soff):
    e.I("buffer_load_dword", vp, "off", s(S_DBG, 4), soff, mods="sc1")


def poll_check(e, vp, soff, target, name, st, sspin):
    e.I("v_readfirstlane_b32", st, vp)
    e.I("s_cmp_ge_u32", st, target)
    e.I("s_cbranch_scc1", "L_pollx_" + name)
    e.I("s_mov_b32", sspin, 1 << 16)
    e.label("L_poll_" + name)
    e.raw(I("buffer_load_dword", vp, "off", s(S_DBG, 4), soff, mods="sc1"))
    e.raw(I("s_waitcnt", "vmcnt(0)"))
    e.I("v_readfirstlane_b32", st, vp)
    e.I("s_sub_u32", sspin, sspin, 1)
    e.I("s_cmp_eq_u32", sspin, 0)
    e.I("s_cbranch_scc1", "L_pollx_" + name)
    e.I("s_cmp_ge_u32", st, target)
    e.I("s_cbranch_scc1", "L_pollx_" + name)
    e.I("s_sleep", 2)
    e.I("s_branch", "L_poll_" + name)
    e.label("L_pollx_" + name)


class Seg:
    def __init__(self, nb, role, acc, src, fill=()):
        self.nb, self.role, self.acc, self.src, self.fill = nb, role, acc, src, list(fill)
        self.kps = 4 if nb == 4 else 8
        self.nst = 32 // self.kps


class Gemm:
    def __init__(self, e, ns, vtr, pool, s_m0, s_tmp, segs):
        self.e, self.ns, self.vtr, self.pool = e, ns, vtr, pool
        self.s_m0, self.s_tmp, self.segs = s_m0, s_tmp, segs
        self.ks = []
        self.stages = []
        for sg in segs:
            g0 = len(self.stages)
            for st in range(sg.nst):
                self.stages.append((sg, st))
            for sidx in range(32):
                self.ks.append((sg, sidx, g0 + sidx // sg.kps, sidx % sg.kps))

    def xfrag(self, rb, sidx):
        return a((rb * 32 + sidx) * 4, 4)

    def wfrag(self, t, nb):
        return self.pool.sub(((t & 1) * 4 + nb) * 4, 4)

    def w_reads(self, t):
        sg, sidx, g, sl = self.ks[t]
        out = []
        for nb in range(sg.nb):
            half, seg = nb >> 1, nb & 1
            f = self.wfrag(t, nb)
            for p in range(2):
                off = (g % self.ns) * 16384 + half * 8192 + (16 * sl + 4 * p) * 128
                out.append(I("ds_read_b64_tr_b16", f.sub(2 * p, 2), self.vtr[seg], mods="offset:%d" % off))
        return out

    def w_dma(self, g):
        sg, st = self.stages[g]
        src = sg.src
        out = [I("s_add_u32", M0, self.s_m0, (g % self.ns) * 16384),
               I("s_add_u32", self.s_tmp, src["s_base"], st * src["stage_stride"])]
        for i in range(4):
            out.append(I("buffer_load_dwordx4", src["voff"][i], src["srd"], self.s_tmp,
                         mods="offen offset:%d lds" % (1024 * i), tag=("W", g)))
        return out

    def mfmas(self, t):
        sg, sidx, g, sl = self.ks[t]
        out = []
        for nb in range(sg.nb):
            for rb in range(2):
                d = sg.acc(rb, nb)
                c = 0 if sidx == 0 else d
                w, x = self.wfrag(t, nb), self.xfrag(rb, sidx)
                out.append(I(MFMA, d, w, x, c) if sg.role == "WX" else I(MFMA, d, x, w, c))
        return out

    def run(self, hook=None, seg_end=None, queue=None, released=None, on_barrier=None, pace=2, pre_barrier=None):
        e = self.e
        nt = len(self.ks)
        nstage = len(self.stages)
        q = self.q = list(queue or [])
        rel = self.rel = set(released or [])
        st = {"n": 0, "last": -99}

        def need(key):
            while any(k == key for k, _ in q):
                k, insts = q.pop(0)
                assert k in rel, ("job needed before its slot is released", k)
                emit_all(e, insts)
            e.wait_vm_tag(lambda tg: tg == key)
        self.need = need

        def tick(em):
            st["n"] += 1
            backlog = sum(1 for k, _ in q[:14] if k in rel)
            if q and q[0][0] in rel and st["n"] - st["last"] >= (pace if backlog < 14 else pace - 1):
                k, insts = q.pop(0)
                emit_all(e, insts)
                st["last"] = st["n"]
        tick.cost = 0
        need(("W", 0))
        e.I("s_barrier")
        emit_all(e, self.w_reads(0))
        for t in range(nt):
            sg, sidx, g, sl = self.ks[t]
            last = sl == sg.kps - 1
            if last and t + 1 < nt:
                e.wait_lgkm0()
                need(("W", g + 1))
                if pre_barrier:
                    pre_barrier(g)
                e.I("s_barrier")
                rel.add(("W", g + self.ns))
                if on_barrier:
                    on_barrier(g)
            rd = self.w_reads(t + 1) if t + 1 < nt else []
            ex = hook(t) if hook else []
            n = len(sg.fill)
            ex = ex + sg.fill[(sidx * n) // 32: ((sidx + 1) * n) // 32]
            fill = merge(rd, ex)
            ms = []
            for m in self.mfmas(t):
                ms.append(Both(m, tick))
            interleave(e, ms, fill)
            if sidx == 31 and seg_end:
                seg_end(sg)

    def w_jobs(self, g):
        ins = self.w_dma(g)
        return [(("W", g), ins[0:3])] + [(("W", g), [x]) for x in ins[3:]]


class Both:
    def __init__(self, m, f):
        self.m, self.f = m, f
        self.cost = 8

    def __call__(self, em):
        em.emit(self.m)
        self.f(em)


def merge(x, y):
    out = []
    i = j = 0
    while i < len(x) or j < len(y):
        if j >= len(y) or (i < len(x) and i * len(y) <= j * len(x)):
            out.append(x[i]); i += 1
        else:
            out.append(y[j]); j += 1
    return out


def cvt_inplace(d, hh):
    return [I("v_cvt_pk_bf16_f32", d[8 * hh + q], d[8 * hh + 2 * q], d[8 * hh + 2 * q + 1]) for q in range(4)]


def gen_k1(e=None):
    global STAMP_MAP
    fused = e is not None
    if not fused:
        e = Emitter()
    END = "K2_END" if fused else "K1_END"
    STAMP_MAP = {0: 0, 3: 1, 6: 2} if fused else None
    prologue(e, 256, END)
    S_X, S_CKV, S_WK, S_WV, S_WS = 32, 36, 40, 44, 48
    sw, sh, sj = s(52), s(53), s(54)
    vl, vl16 = v(1), v(2)
    t0, t1, t2 = v(3), v(4), v(5)
    SET = [v(64, 64), v(128, 64), v(192, 64)]
    pool = v(32, 32)
    PFD = v(28, 4)
    code_prefetch(e, "k1", "ka_kernel" if fused else "k1_kernel", "TEXT_END", s(30, 2), t0, PFD, 1)
    e.I("v_and_b32", vl, 63, v(0))
    e.I("v_lshrrev_b32", t0, 6, v(0))
    e.I("v_lshlrev_b32", vl16, 4, vl)
    e.I("v_readfirstlane_b32", sw, t0)
    head_j(e, sh, sj, s(55), s(56))
    XS_BASE, XS_W = 65536, 24576
    vXd = [v(8), v(9)]
    e.I("v_lshrrev_b32", t0, 3, vl)
    e.I("v_lshlrev_b32", t1, 10, t0)
    e.I("v_lshrrev_b32", t0, 1, t0)
    e.I("v_xor_b32", t0, t0, vl)
    e.I("v_and_b32", t0, 7, t0)
    e.I("v_lshlrev_b32", t2, 4, t0)
    e.I("v_add_u32", vXd[0], t1, t2)
    e.I("v_xor_b32", t2, 64, t2)
    e.I("v_add_u32", vXd[1], t1, t2)
    sXrow = [s(60 + i) for i in range(8)]
    e.I("s_lshl_b32", s(58), sj, 18)
    e.I("s_lshl_b32", s(59), sw, 16)
    e.I("s_add_u32", s(58), s(58), s(59))
    for i in range(8):
        e.I("s_add_u32", sXrow[i], s(58), i * 8192 - (i & 3) * 1024)
    sXlds = s(68)
    e.I("s_mul_i32", sXlds, sw, XS_W)
    e.I("s_add_u32", sXlds, sXlds, XS_BASE)
    vW = [v(24 + i) for i in range(4)]
    wdma_voff(e, vW, vl, (t0, t1), 8192)
    sWb, sM0, sTmp, sWb2, sWb3 = s(69), s(70), s(71), s(80), s(81)
    e.I("s_and_b32", s(72), sw, 1)
    e.I("s_lshl_b32", s(72), s(72), 18)
    e.I("s_lshr_b32", s(73), sw, 1)
    e.I("s_lshl_b32", s(73), s(73), 7)
    e.I("s_lshl_b32", s(74), sh, 8)
    e.I("s_add_u32", sWb, s(74), s(72))
    e.I("s_add_u32", sWb, sWb, s(73))
    e.I("s_lshl_b32", s(72), sw, 18)
    e.I("s_add_u32", sWb2, s(74), s(72))
    e.I("s_add_u32", sWb3, sWb2, 128)
    e.I("s_lshl_b32", sM0, sw, 12)
    e.I("s_waitcnt", "lgkmcnt(0)")
    make_srd(e, S_CKV, P_CKV, 2048 * 1024)
    make_srd(e, S_WK, P_WUK, 512 * 8192)
    stamp(e, 0)

    def x_dma(p):
        out = []
        for i in range(8):
            if i % 4 == 0:
                out.append(I("s_add_u32", M0, sXlds, (p % 3) * 8192 + (i >> 2) * 4096))
            out.append(I("buffer_load_dwordx4", vXd[i & 1], s(S_CKV, 4), sXrow[i],
                         mods="offen offset:%d lds" % (1024 * (i & 3)), tag=("X", p)))
        out.append(I("v_add_u32", vXd[0], 128, vXd[0]))
        out.append(I("v_add_u32", vXd[1], 128, vXd[1]))
        return out

    vXr = [v(10 + i) for i in range(4)]

    def x_reads(p):
        out = [(lambda em: G.need(("X", p))) if p else (lambda em: em.wait_vm_tag(lambda tg: tg == ("X", p)))]
        for sl in range(4):
            for rb in range(2):
                out.append(I("ds_read_b128", a((rb * 32 + 4 * p + sl) * 4, 4), vXr[sl],
                             mods="offset:%d" % ((p % 3) * 8192 + rb * 4096)))
        return out

    srcK = dict(srd=s(S_WK, 4), voff=vW, s_base=sWb, stage_stride=64 * 8192)
    srcV0 = dict(srd=s(S_WV, 4), voff=vW, s_base=sWb2, stage_stride=128 * 8192)
    srcV1 = dict(srd=s(S_WV, 4), voff=vW, s_base=sWb3, stage_stride=128 * 8192)
    vtr = [v(14), v(15)]
    accA = lambda rb, nb: SET[rb].sub(nb * 16, 16)
    accB = lambda rb, nb: SET[2].sub((rb * 2 + nb) * 16, 16)
    accC = lambda rb, nb: SET[0].sub((rb * 2 + nb) * 16, 16)
    sKo, sVo, sSt = s(76), s(77), s(79)

    def store_block(d, sbase, rb, idxs):
        out = []
        for hh in range(2):
            out += cvt_inplace(d, hh)
            off = rb * 8192 + idxs[hh] * 1024
            out.append(I("s_add_u32", sSt, sbase, off & ~4095))
            out.append(I("buffer_store_dwordx4", d.sub(8 * hh, 4), vl16, s(S_WS, 4), sSt,
                         mods="offen offset:%d" % (off & 4095), tag="kv"))
        return out
    epiA = []
    for rb in range(2):
        for nb in range(4):
            epiA += store_block(accA(rb, nb), sKo, rb, (2 * nb, 2 * nb + 1))
    epiB, epiC = [], []
    for rb in range(2):
        for nb in range(2):
            epiB += store_block(accB(rb, nb), sVo, rb, (nb, 4 + nb))
            epiC += store_block(accC(rb, nb), sVo, rb, (2 + nb, 6 + nb))

    Z = SET[2]
    vLNa, vLNs = v(6), v(7)
    LN0, LN1 = Z.sub(0, 4), Z.sub(4, 4)
    X = [Z[8 + i] for i in range(16)]
    D = [Z[24 + i] for i in range(16)]
    sm, sw2, mean, var, pk, mb, vb, sd, rc = [Z[40 + i] for i in range(9)]
    ln = []
    A_ = lambda *x, **k: ln.append(I(*x, **k))
    for i in range(4):
        A_("v_lshlrev_b32", X[2 * i], 16, LN0[i])
        A_("v_and_b32", X[2 * i + 1], 0xffff0000, LN0[i])
        A_("v_lshlrev_b32", X[8 + 2 * i], 16, LN1[i])
        A_("v_and_b32", X[8 + 2 * i + 1], 0xffff0000, LN1[i])

    def allreduce32(r):
        for off in (0x041F, 0x081F, 0x101F, 0x201F, 0x401F):
            A_("ds_swizzle_b32", sw2, r, mods="offset:0x%04x" % off)
            A_("v_nop"); A_("v_nop"); A_("v_nop")
            A_("v_add_f32", r, r, sw2)
    A_("v_add_f32", sm, X[0], X[1])
    for i in range(2, 16):
        A_("v_add_f32", sm, sm, X[i])
    allreduce32(sm)
    A_("v_mul_f32", mean, 1.0 / 512, sm)
    for i in range(16):
        A_("v_sub_f32", D[i], X[i], mean)
    A_("v_mul_f32", sm, D[0], D[0])
    for i in range(1, 16):
        A_("v_fmac_f32", sm, D[i], D[i])
    allreduce32(sm)
    A_("v_mul_f32", var, 1.0 / 512, sm)
    A_("v_cvt_pk_bf16_f32", pk, mean, var)
    A_("v_lshlrev_b32", mb, 16, pk)
    A_("v_and_b32", vb, 0xffff0000, pk)
    A_("v_add_f32", vb, 1e-5, vb)
    A_("v_cvt_pk_bf16_f32", pk, vb, vb)
    A_("v_lshlrev_b32", vb, 16, pk)
    A_("v_sqrt_f32", vb, vb)
    A_("v_cvt_pk_bf16_f32", pk, vb, vb)
    A_("v_lshlrev_b32", sd, 16, pk)
    A_("v_rcp_f32", rc, sd)
    for i in range(16):
        A_("v_sub_f32", D[i], X[i], mb)
    for i in range(8):
        A_("v_cvt_pk_bf16_f32", pk, D[2 * i], D[2 * i + 1])
        A_("v_lshlrev_b32", D[2 * i], 16, pk)
        A_("v_and_b32", D[2 * i + 1], 0xffff0000, pk)
    for i in range(16):
        A_("v_mul_f32", X[i], D[i], rc)
        A_("v_fma_f32", D[i], Neg(X[i]), sd, D[i])
        A_("v_fmac_f32", X[i], D[i], rc)
    for i in range(4):
        A_("v_cvt_pk_bf16_f32", LN0[i], X[2 * i], X[2 * i + 1])
        A_("v_cvt_pk_bf16_f32", LN1[i], X[8 + 2 * i], X[8 + 2 * i + 1])
    A_("buffer_store_dwordx4", LN0, vLNs, s(S_WS, 4), s(74), mods="offen", tag="ln")
    A_("buffer_store_dwordx4", LN1, vLNs, s(S_WS, 4), s(75), mods="offen", tag="ln")
    ln = [x for x in ln if x.op != "v_nop"]
    pad = [lambda em: None] * (len(ln) // 2)
    for p_ in pad:
        pass
    segs = [Seg(4, "WX", accA, srcK, pad + ln), Seg(2, "XW", accB, srcV0, epiA), Seg(2, "XW", accC, srcV1, epiB)]
    G = Gemm(e, 4, vtr, pool, sM0, sTmp, segs)
    emit_all(e, x_dma(0))
    emit_all(e, G.w_dma(0))
    emit_all(e, x_dma(1))
    emit_all(e, G.w_dma(1))

    def x_jobs(p):
        ins = x_dma(p)
        k = ("X", p)
        return [(k, ins[0:2]), (k, [ins[2]]), (k, [ins[3]]), (k, [ins[4]]), (k, ins[5:7]), (k, [ins[7]]), (k, [ins[8]]),
                (k, ins[9:12])]
    queue = []
    for g in range(2, 16):
        if g < 8:
            queue += x_jobs(g)
        queue += G.w_jobs(g)
    make_srd(e, S_X, P_X, 2048 * 1024)
    make_srd(e, S_WV, P_WUV, 512 * 8192)
    make_srd(e, S_WS, P_WS, WS_BYTES)
    if fused:
        make_srd(e, S_DBG, P_DBG, 256)
    e.I("v_lshrrev_b32", t0, 5, v(0))
    e.I("v_lshlrev_b32", t1, 10, t0)
    e.I("v_and_b32", t2, 31, vl)
    e.I("v_lshlrev_b32", vLNa, 4, t2)
    e.I("v_add_u32", vLNa, vLNa, t1)
    e.I("v_lshrrev_b32", t1, 1, t2)
    e.I("v_lshlrev_b32", t1, 10, t1)
    e.I("v_and_b32", t2, 1, t2)
    e.I("v_lshlrev_b32", t2, 9, t2)
    e.I("v_add_u32", t1, t1, t2)
    e.I("v_lshlrev_b32", t0, 4, t0)
    e.I("v_add_u32", vLNs, t1, t0)
    e.I("s_lshl_b32", s(57), s(2), 13)
    e.I("buffer_load_dwordx4", LN0, vLNa, s(S_X, 4), s(57), mods="offen")
    e.I("buffer_load_dwordx4", LN1, vLNa, s(S_X, 4), s(57), mods="offen offset:512")
    if PF_TLB:
        e.I("s_cmp_eq_u32", sw, 0)
        e.I("s_cselect_b32", s(74), 20, 4)
        e.I("v_lshlrev_b32", t0, s(74), vl)
        e.I("s_mov_b32", s(75), 64 << 20)
        Untracked(I("buffer_load_dword", PFD[0], t0, s(S_WS, 4), 0, mods="offen"))(e)
        Untracked(I("buffer_load_dword", PFD[0], t0, s(S_WS, 4), s(75), mods="offen"))(e)
    e.I("s_lshr_b32", s(74), s(2), 2)
    e.I("s_lshl_b32", s(74), s(74), 15)
    e.I("s_and_b32", s(75), s(2), 3)
    e.I("s_lshl_b32", s(75), s(75), 7)
    e.I("s_add_u32", s(74), s(74), s(75))
    if WS_XN:
        e.I("s_add_u32", s(74), s(74), WS_XN)
    e.I("s_add_u32", s(75), s(74), 16384)
    e.I("v_and_b32", t0, 31, vl)
    e.I("v_lshlrev_b32", t1, 7, t0)
    e.I("v_add_u32", t1, sXlds, t1)
    e.I("v_bfe_u32", t0, vl, 1, 3)
    e.I("v_lshrrev_b32", t2, 5, vl)
    e.I("v_xor_b32", t0, t0, t2)
    for sl in range(4):
        e.I("v_xor_b32", t2, 2 * sl, t0)
        e.I("v_lshlrev_b32", t2, 4, t2)
        e.I("v_add_u32", vXr[sl], t1, t2)
    tr_addr(e, vtr[0], vtr[1], vl, (t0, t1, t2), 0, False)
    e.I("s_lshl_b32", s(78), sh, 6)
    e.I("s_lshl_b32", s(79), sj, 3)
    e.I("s_add_u32", s(78), s(78), s(79))
    e.I("s_lshl_b32", s(79), sw, 1)
    e.I("s_add_u32", s(78), s(78), s(79))
    e.I("s_lshl_b32", s(78), s(78), 13)
    e.I("s_add_u32", sKo, s(78), WS_K)
    e.I("s_add_u32", sVo, s(78), WS_V)
    stamp(e, 1)
    emit_all(e, x_reads(0))
    stamp(e, 2)

    def hook(t):
        g, sl = t >> 2, t & 3
        out = []
        if t < 32:
            if g < 7 and sl == 2:
                out += x_reads(g + 1)
        elif PF_W and t % 8 == 1:
            n = (t - 32) // 8
            if n == 0:
                out.append(I("s_lshl_b32", s(31), s(2), 2))
                out.append(I("s_add_u32", s(31), s(31), sw))
                out.append(I("s_lshl_b32", s(30), s(31), 12))
                out.append(I("s_lshl_b32", s(31), s(31), 11))
            p_, nbytes, so, off = ((P_WQ, 512 * 8192, s(30), n * 1024) if n < 4 else
                                   (P_WG if n < 6 else P_WU, 512 * 3584, s(31), (n & 1) * 1024))
            if n in (0, 4, 6):
                out += [I("s_mov_b32", s(S_X), s(p_)), I("s_mov_b32", s(S_X + 1), s(p_ + 1)),
                        I("s_mov_b32", s(S_X + 2), nbytes)]
            out.append(Untracked(I("buffer_load_dwordx4", PFD, vl16, s(S_X, 4), so, mods="offen offset:%d" % off)))
        return out
    cnt = [3]

    def seg_end(sg):
        stamp(e, cnt[0]); cnt[0] += 1
    def on_barrier(g):
        G.rel.add(("X", g + 3))
        G.rel.add(("X", g + 4))
        if fused and g == 10:
            signal(e, sw, 0, "ln", v(22))
        if fused and g == 13:
            poll_issue(e, v(23), 0)

    def pre_barrier(g):
        if fused and g == 10:
            e.wait_vm_tag(lambda tg: tg == "ln")
    G.run(hook, seg_end, queue=queue, released={("W", 2), ("W", 3), ("X", 2)},
          on_barrier=on_barrier, pace=PACE, pre_barrier=pre_barrier)
    emit_all(e, epiC)
    stamp(e, 6)
    if fused:
        return
    if PROFILE:
        e.wait_all()
    stamp(e, 7)
    stamp_flush(e, 0, s(S_WS, 4), sw, 8)
    e.label(END)
    e.I("s_endpgm")
    return e.text(), dict(vgpr=512, sgpr=102, accum=256, grid=256, block=256, lds=163840)


def gen_ka():
    import gen_ka as m
    return m.gen_ka()


KERNELS = [("k1_kernel", gen_k1)]
try:
    from gen_k2 import gen_k2
    KERNELS.append(("k2_kernel", gen_k2))
    from gen_k3 import gen_k3, gen_k4
    KERNELS.append(("k3_kernel", gen_k3))

except ImportError as ex:
    print("note:", ex)


def build(kernels=None):
    ks = KERNELS if kernels is None else kernels
    if FUSE:
        ks = [("ka_kernel", gen_ka)] + ks[2:]
    hdr = open("cdna_kernels/%s.s.ref" % NAME).read().split("; Override")[0]
    out = [hdr]
    bodies, descs = [], []
    for name, fn in ks:
        txt, d = fn()
        out.append("; @launch kernel=%s grid=(%d,1,1) block=(%d,1,1) lds=%d\n" % (name, d["grid"], d["block"], d["lds"]))
        bodies.append(kernel_header(name) + txt)
        descs.append(".p2align 6" + kernel_desc(name, d["vgpr"], d["sgpr"], d["accum"]))
    out.append('.amdgcn_target "amdgcn-amd-amdhsa--gfx950"\n.text\n')
    out += bodies
    out.append("TEXT_END:\n")
    out.append('.section .rodata,"a"\n')
    out += descs
    return "".join(out)
```

```python
import sys
sys.path.insert(0, "dev")
from asmlib import *
import gen
from gen import *

LOG2E = 1.4426950408889634
QSCALE = LOG2E / (128 ** 0.5)
GC1 = -2.0 * (2.0 / math.pi) ** 0.5 * LOG2E
GC2 = GC1 * 0.044715
THRESH = float(2 ** 24)
CR = [(r & 3) + 8 * (r >> 2) for r in range(16)]


EXP = set()


def gen_k2(e=None):
    fused = e is not None
    END = "K2_END"
    KVS = " sc1" if fused else ""
    if not fused:
        e = Emitter()
        prologue(e, 256, END)
    gen.STAMP_MAP = {1: 3, 2: 4, 5: 5, 6: 6, 7: 7, 8: 8, 9: 9} if fused else None
    S_WS, S_WGU, S_WQ, S_H, S_K, S_V = 32, 36, 40, 44, 48, 52
    sw, sh, sj = s(56), s(57), s(58)
    sM0, sTmp, sSt = s(59), s(60), s(61)
    sXA, sXB = s(62), s(63)
    sWgu, sWq0, sWq1 = s(64), s(65), s(66)
    sHo = [s(67), s(68)]
    sCo = [s(69), s(70)]
    sKg, sVg, sRot = s(71), s(72), s(73)
    sCnt, sKv, sRet, sBact, sThr = s(74), s(75), s(76), s(77), s(78)
    sT0, sT1 = s(79), s(80)
    MASKS = [s(40, 2), s(42, 2), s(44, 2), s(46, 2)]
    vl, vl16 = v(1), v(2)
    t0, t1, t2 = v(3), v(4), v(5)
    vtr = [v(6), v(7)]
    vWg = [v(8 + i) for i in range(4)]
    vWq = [v(12 + i) for i in range(4)]
    vC2 = v(16)
    GT = [v(17 + i) for i in range(8)]
    SET = [v(64, 64), v(128, 64), v(192, 64)]
    pool = v(32, 32)
    WR = 98304

    PFD = v(28, 4)
    if not fused:
        code_prefetch(e, "k2", "k2_kernel", "TEXT_END", s(100, 2), t0, PFD, 1)
    e.I("v_and_b32", vl, 63, v(0))
    e.I("v_lshrrev_b32", t0, 6, v(0))
    e.I("v_lshlrev_b32", vl16, 4, vl)
    e.I("v_readfirstlane_b32", sw, t0)
    head_j(e, sh, sj, sT0, sT1)
    sQA, sQB = s(81), s(30)
    e.I("s_lshl_b32", sT0, sj, 2)
    e.I("s_add_u32", sQB, sT0, sw)
    e.I("s_sub_u32", sQA, 60, sT0)
    e.I("s_add_u32", sQA, sQA, sw)
    e.I("s_lshl_b32", sXA, sQA, 15)
    e.I("s_lshl_b32", sXB, sQB, 15)
    if WS_XN:
        e.I("s_add_u32", sXA, sXA, WS_XN)
        e.I("s_add_u32", sXB, sXB, WS_XN)
    wdma_voff(e, vWg, vl, (t0, t1), 3584)
    wdma_voff(e, vWq, vl, (t0, t1), 8192)
    e.I("s_and_b32", sT0, sw, 1)
    e.I("s_mul_i32", sT0, sT0, 32 * 3584)
    e.I("s_lshl_b32", sT1, sh, 7)
    e.I("s_add_u32", sWgu, sT0, sT1)
    e.I("s_lshl_b32", sT0, sw, 18)
    e.I("s_lshl_b32", sT1, sh, 8)
    e.I("s_add_u32", sWq0, sT0, sT1)
    e.I("s_add_u32", sWq1, sWq0, 128)
    e.I("s_lshl_b32", sM0, sw, 12)
    e.I("s_add_u32", sM0, sM0, WR)
    if not fused:
        e.I("s_waitcnt", "lgkmcnt(0)")
    sHc = s(31)
    e.I("s_lshl_b32", sHc, sh, 2)
    e.I("s_add_u32", sHc, sHc, 4)
    make_srd(e, S_WS, P_WS, WS_BYTES)
    if fused:
        poll_check(e, v(23), 0, 256, "ln", sT0, sT1)
    e.I("s_cmp_lt_u32", sw, 2)
    e.I("s_cselect_b32", s(S_WGU), s(P_WG), s(P_WU))
    e.I("s_cselect_b32", s(S_WGU + 1), s(P_WG + 1), s(P_WU + 1))
    e.I("s_mov_b32", s(S_WGU + 2), 512 * 3584)
    e.I("s_mov_b32", s(S_WGU + 3), 0x20000)
    make_srd(e, S_WQ, P_WQ, 512 * 8192)
    stamp(e, 0)

    def x_piece(p):
        out = []
        k = ("X", p)
        for rb in range(2):
            sb = sXA if rb == 0 else sXB
            for i in range(4):
                ins = []
                if i == 0:
                    ins.append(I("s_add_u32", sT0 if rb == 0 else sT1, sb, p * 4096))
                ins.append(I("buffer_load_dwordx4", a((rb * 32 + 4 * p + i) * 4, 4), vl16, s(S_WS, 4),
                             sT0 if rb == 0 else sT1,
                             mods="offen offset:%d%s" % (1024 * i, " sc1" if fused else ""), tag=k))
                out.append((k, ins))
        return out

    def rest_setup():
        tr_addr(e, vtr[0], vtr[1], vl, (t0, t1, t2), WR, False)
        e.I("v_mov_b32", vC2, GC2)
        for qb, sq in ((0, sQA), (1, sQB)):
            e.I("s_mul_i32", sT0, sq, 368 * 1024)
            e.I("s_add_u32", sT0, sT0, WS_A3)
            e.I("s_lshl_b32", sT1, sh, 13)
            e.I("s_add_u32", sCo[qb], sT0, sT1)
            e.I("s_lshl_b32", sT1, sh, 12)
            e.I("s_add_u32", sHo[qb], sT0, sT1)
            e.I("s_add_u32", sHo[qb], sHo[qb], 256 * 1024)
        e.I("s_lshl_b32", sT0, sh, 19)
        for srd, off in ((S_K, WS_K), (S_V, WS_V)):
            e.I("s_add_u32", sT1, sT0, off)
            e.I("s_add_u32", s(srd), s(P_WS), sT1)
            e.I("s_addc_u32", s(srd + 1), s(P_WS + 1), 0)
            e.I("s_lshl_b32", sT1, sj, 15)
            e.I("s_sub_u32", s(srd + 2), 64 * 8192, sT1)
            e.I("s_mov_b32", s(srd + 3), 0x20000)
        e.I("s_lshl_b32", sKg, sw, 12)
        e.I("s_mov_b32", sVg, sKg)
        e.I("s_mov_b32", sThr, THRESH)

    def kv_jobs(kind, st):
        k = (kind, st)
        srd = s(S_K if kind == "K" else S_V, 4)
        base = (0 if kind == "K" else 65536) + (st & 3) * 16384
        out = []
        for i in range(4):
            ins = []
            if i == 0:
                ins.append(I("s_lshl_b32", sSt, sw, 12))
                ins.append(I("s_add_u32", M0, sSt, base))
                ins.append(I("s_add_u32", sSt, sSt, st * 16384))
            ins.append(I("buffer_load_dwordx4", vl16, srd, sSt, mods="offen offset:%d%s lds" % (1024 * i, KVS), tag=k))
            out.append((k, ins))
        return out

    srcGU = dict(srd=s(S_WGU, 4), voff=vWg, s_base=sWgu, stage_stride=64 * 3584)
    srcQ0 = dict(srd=s(S_WQ, 4), voff=vWq, s_base=sWq0, stage_stride=128 * 8192)
    srcQ1 = dict(srd=s(S_WQ, 4), voff=vWq, s_base=sWq1, stage_stride=128 * 8192)
    accA = lambda rb, nb: SET[rb].sub(nb * 16, 16)
    accB = lambda rb, nb: SET[2].sub((rb * 2 + nb) * 16, 16)
    accC = lambda rb, nb: SET[0].sub((rb * 2 + nb) * 16, 16)
    sHs = s(54)

    def gu_epi(rb):
        out = []
        for nb in range(2):
            g_, u_ = accA(rb, nb), accA(rb, nb + 2)
            for hh in range(2):
                for half4 in range(2):
                    rs = [8 * hh + 4 * half4 + i for i in range(4)]
                    T = GT[0:4]
                    T2 = GT[4:8]
                    for i, r in enumerate(rs):
                        out.append(I("v_mul_f32", T[i], g_[r], g_[r]))
                    for i, r in enumerate(rs):
                        out.append(I("v_fmaak_f32", T[i], T[i], vC2, GC1))
                    for i, r in enumerate(rs):
                        out.append(I("v_mul_f32", T[i], T[i], g_[r]))
                    for i, r in enumerate(rs):
                        out.append(I("v_exp_f32", T[i], T[i]))
                    for i, r in enumerate(rs):
                        out.append(I("v_mul_f32", T2[i], g_[r], u_[r]))
                    for i, r in enumerate(rs):
                        out.append(I("v_add_f32", T[i], 1.0, T[i]))
                    for i, r in enumerate(rs):
                        out.append(I("v_rcp_f32", T[i], T[i]))
                    out.append(I("s_nop", 0))
                    for i, r in enumerate(rs):
                        out.append(I("v_mul_f32", g_[r], T2[i], T[i]))
                out += cvt_inplace(g_, hh)
                off = (2 * nb + hh) * 1024
                out.append(I("buffer_store_dwordx4", g_.sub(8 * hh, 4), vl16, s(S_WS, 4), sHo[rb],
                             mods="offen offset:%d" % off))
        return out

    def qfrag(qb, sidx):
        b, t = sidx >> 1, sidx & 1
        return SET[2].sub((qb * 2 + (b & 1)) * 16 + 8 * t + (4 if b >= 2 else 0), 4)

    def q_epi(acc, b0):
        out = []
        for rb in range(2):
            for nb in range(2):
                d = acc(rb, nb)
                for r in range(16):
                    out.append(I("v_mul_f32", d[r], QSCALE, d[r]))
                for t in range(2):
                    f = qfrag(rb, 2 * (b0 + nb) + t)
                    for q in range(4):
                        out.append(I("v_cvt_pk_bf16_f32", f[q], d[8 * t + 2 * q], d[8 * t + 2 * q + 1]))
        return out

    def proj(with_gu, tagp):
        if with_gu:
            segs = [Seg(4, "WX", accA, srcGU), Seg(2, "WX", accB, srcQ0, gu_epi(0)),
                    Seg(2, "WX", accC, srcQ1, gu_epi(1) + q_epi(accB, 0))]
        else:
            segs = [Seg(2, "WX", accB, srcQ0), Seg(2, "WX", accC, srcQ1, q_epi(accB, 0))]
        G = Gemm(e, 4, vtr, pool, sM0, sTmp, segs)
        nst = len(G.stages)
        xs = 1 if with_gu else 2
        for p in range(xs):
            for k, ins in x_piece(p):
                emit_all(e, ins)
        emit_all(e, G.w_dma(0))
        for p in range(xs, 2 * xs):
            for k, ins in x_piece(p):
                emit_all(e, ins)
        emit_all(e, G.w_dma(1))
        rest_setup()
        queue = []
        for g in range(2, nst):
            for p in range(g * xs, (g + 1) * xs):
                if p < 8:
                    queue += x_piece(p)
            queue += G.w_jobs(g)
            if g == (nst - 1 if fused else nst - 4):
                queue += kv_jobs("K", 0) + kv_jobs("K", 1) + kv_jobs("V", 0)
            if g == (nst - 1 if fused else nst - 2):
                queue += kv_jobs("K", 2) + kv_jobs("V", 1)
        queue += kv_jobs("K", 3) + kv_jobs("V", 2)
        pub = 3 if with_gu else 1
        kv_first = {("K", i) for i in range(3)} | {("V", 0), ("V", 1)}
        rel = {("W", 2), ("W", 3)} | {("X", p) for p in range(8)} | (set() if fused else kv_first)

        def pre_barrier(g):
            if fused and g == pub:
                e.wait_vm_tag(lambda tg: tg == "kv")

        def on_barrier(g):
            if fused and g == pub:
                signal(e, sw, sHc, "kv" + tagp, v(26))
            if fused and g == nst - 6:
                poll_issue(e, v(27), sHc)
            if fused and g == nst - 5:
                poll_check(e, v(27), sHc, 8, "kv" + tagp, sCnt, sRet)
                G.rel |= kv_first
            if g == nst - 2:
                G.rel.add(("V", 2))
                G.rel.add(("K", 3))

        def hook(t):
            sg, sidx, g, sl = G.ks[t]
            if t < 32 and sidx % 4 == 0:
                p = sidx // 4
                return_list = []

                def f(em, p=p):
                    while any(k == ("X", p) for k, _ in G.q):
                        k, ins = G.q.pop(0)
                        emit_all(e, ins)
                f(e)
            tq = t - (len(G.ks) - 64)
            if gen.PF_W and tq >= 0 and tq % 8 == 1 and tq < 48:
                n = tq // 8
                out = []
                if n == 0:
                    out.append(I("s_lshl_b32", s(101), s(2), 2))
                    out.append(I("s_add_u32", s(101), s(101), sw))
                    out.append(I("s_lshl_b32", s(100), s(101), 12))
                    out.append(I("s_lshl_b32", s(101), s(101), 11))
                p_, nbytes, so, off = ((P_WO, 4096 * 1024, s(100), n * 1024) if n < 4 else
                                       (P_WD, 1792 * 1024, s(101), (n & 1) * 1024))
                if n in (0, 4):
                    out += [I("s_mov_b32", s(S_H), s(p_)), I("s_mov_b32", s(S_H + 1), s(p_ + 1)),
                            I("s_mov_b32", s(S_H + 2), nbytes), I("s_mov_b32", s(S_H + 3), 0x20000)]
                out.append(Untracked(I("buffer_load_dwordx4", PFD, vl16, s(S_H, 4), so, mods="offen offset:%d" % off)))
                return out
            return []
        cnt = [2]

        def seg_end(sg):
            if with_gu:
                stamp(e, cnt[0]); cnt[0] += 1
        if with_gu:
            stamp(e, 1)
        G.run(hook, seg_end, queue=queue, released=rel, on_barrier=on_barrier, pace=gen.PACE, pre_barrier=pre_barrier)
        while G.q:
            k, ins = G.q.pop(0)
            assert k in G.rel, k
            emit_all(e, ins)
        emit_all(e, q_epi(accC, 2))
        tags = [t for _, t in e.vm]
        assert all(t in (("K", 3), ("V", 2), None, "pf") for t in tags[-8:]), tags[-8:]
        assert all(t not in (("K", 0), ("K", 1), ("V", 0)) for t in tags[-16:]), tags[-16:]
        e.wait_vm_tag(lambda tg: tg == ("K", 0))
        e.wait_lgkm0()

    e.I("s_cmp_ge_u32", sh, 28)
    e.I("s_cbranch_scc1", "K2_NOGU")
    st0 = e.state()
    proj(True, "a")
    e.I("s_branch", "K2_ATT")
    e.label("K2_NOGU")
    e.set_state(st0)
    proj(False, "b")
    e.label("K2_ATT")
    e.vm = []
    e.lgkm = []
    e.I("s_nop", 1)
    stamp(e, 5)

    S = lambda par, qb: SET[0].sub((par * 2 + qb) * 16, 16)
    NM = lambda qb: SET[1].sub(qb * 16, 16)
    P = lambda par, qb: SET[1].sub(32 + (par * 2 + qb) * 8, 8)
    O = lambda qb, b: a((qb * 4 + b) * 16, 16)
    KF = lambda fs, si: a(128 + 64 * fs + 4 * si, 4)
    VF = lambda fs, t, b: a(128 + 64 * fs + 32 + 4 * (t * 4 + b), 4)
    vKr, vVr = v(6), v(7)
    vDq = [v(8), v(9)]
    vL = [[v(10), v(11)], [v(24), v(25)]]
    vTs = [v(12), v(13)]
    vTm, vDqT = v(14), [v(15), v(16)]
    vNinf = v(17)
    ET = [v(18 + i) for i in range(6)]
    vQx, vKx, vNx, vInvB, vPw = v(26), v(27), v(28), v(29), v(30)
    RT = [v(32 + i) for i in range(32)]
    QS = 131072
    sPw = sBact

    e.I("v_and_b32", t0, 31, vl)
    e.I("v_lshrrev_b32", t1, 5, vl)
    e.I("v_lshlrev_b32", t1, 2, t1)
    e.I("v_sub_u32", t0, t0, t1)
    e.I("s_lshl_b32", sT0, sQA, 5)
    e.I("s_lshl_b32", sT1, sQB, 5)
    e.I("v_add_u32", vDq[0], sT0, t0)
    e.I("v_add_u32", vDq[1], sT1, t0)
    e.I("v_mov_b32", vNinf, 0xff800000)
    e.I("v_mov_b32", vL[0][0], 0)
    e.I("v_mov_b32", vL[0][1], 0)
    e.I("v_add_u32", vKr, 16384, vl16)
    e.I("v_add_u32", vVr, 65536, vl16)
    e.I("s_lshl_b32", sRot, sw, 12)
    e.I("s_add_u32", sKg, sKg, 4 * 16384)
    e.I("s_add_u32", sVg, sVg, 3 * 16384)
    e.I("s_mov_b32", sKv, 0)
    e.I("s_and_b32", sPw, sw, 1)
    e.I("s_lshl_b32", sPw, sPw, 13)
    e.I("s_lshl_b32", sT0, sw, 13)
    e.I("s_add_u32", sT0, sT0, QS)
    e.I("v_add_u32", vQx, sT0, vl16)
    e.I("s_barrier")
    for si in range(8):
        e.I("ds_read_b128", KF(1, si), vl16, mods="offset:%d" % (si * 1024))
    for si in range(8):
        e.I("ds_read_b128", KF(0, si), vl16, mods="offset:%d" % (8192 + si * 1024))
    for si in range(8):
        for qb in range(2):
            e.I(MFMA, S(0, qb), KF(1, si), qfrag(qb, si), 0 if si == 0 else S(0, qb))
        e.I("ds_write_b128", vQx, qfrag(0, si), mods="offset:%d" % (si * 1024))
    e.I("v_xor_b32", vQx, 8192, vQx)

    def mask_S_inplace(em, Sx, dq):
        for r0 in range(0, 16, 4):
            for i in range(4):
                em.I("v_cmp_ge_i32", MASKS[i], dq, CR[r0 + i])
            for i in range(4):
                em.I("v_cndmask_b32", Sx[r0 + i], vNinf, Sx[r0 + i], MASKS[i])

    def rowmax(em, Sx, dst, tmp):
        em.I("v_max3_f32", dst, Sx[0], Sx[1], Sx[2])
        for r in range(3, 15, 2):
            em.I("v_max3_f32", dst, dst, Sx[r], Sx[r + 1])
        em.I("v_max_f32", dst, dst, Sx[15])
        em.I("v_mov_b32", tmp, dst)
        em.I("v_permlane32_swap_b32", dst, tmp)
        em.I("v_max_f32", dst, dst, tmp)

    for qb in range(2):
        Sx = S(0, qb)
        if qb == 1:
            mask_S_inplace(e, Sx, vDq[1])
        rowmax(e, Sx, RT[0], RT[1])
        for r in range(16):
            e.I("v_sub_f32", Sx[r], Sx[r], RT[0])
        for r in range(16):
            e.I("v_sub_f32", NM(qb)[r], 0, RT[0])
    e.wait_lgkm0()
    stamp(e, 6)

    ret_labels = []

    def sm_stream(par, qb, masked):
        Sx, Px = S(par, qb), P(par, qb)
        out = []
        if masked:
            out.append(I("v_subrev_u32", vDqT[qb], sKv, vDq[qb]))

        def front(k):
            o = []
            if masked:
                o.append(I("v_cmp_ge_i32", MASKS[(2 * k) & 3], vDqT[qb], CR[2 * k]))
                o.append(I("v_cmp_ge_i32", MASKS[(2 * k + 1) & 3], vDqT[qb], CR[2 * k + 1]))
            o.append(I("v_exp_f32", ET[(2 * k) % 6], Sx[2 * k]))
            o.append(I("v_exp_f32", ET[(2 * k + 1) % 6], Sx[2 * k + 1]))
            return o

        def back(k):
            ta, tb = ET[(2 * k) % 6], ET[(2 * k + 1) % 6]
            o = []
            if masked:
                o.append(I("v_cndmask_b32", ta, 0, ta, MASKS[(2 * k) & 3]))
                o.append(I("v_cndmask_b32", tb, 0, tb, MASKS[(2 * k + 1) & 3]))
            if k == 0:
                o.append(I("v_add_f32", vTs[qb], ta, tb))
            else:
                o.append(I("v_add_f32", vTs[qb], vTs[qb], ta))
                o.append(I("v_add_f32", vTs[qb], vTs[qb], tb))
            o.append(I("v_cvt_pk_bf16_f32", Px[k], ta, tb))
            return o
        out += front(0)
        for k in range(8):
            if k + 1 < 8:
                out += front(k + 1)
            out += back(k)
        return out

    def qk_mfmas(par):
        return [I(MFMA, S(1 - par, qb), KF(par, si), qfrag(qb, si), NM(qb) if si == 0 else S(1 - par, qb))
                for si in range(8) for qb in range(2)]

    def pv_mfmas(par, first=(), order=None):
        ms = []
        for t in range(2):
            for b in range(4):
                for qb in range(2):
                    c = 0 if (qb in first and t == 0) else O(qb, b)
                    ms.append(I(MFMA, O(qb, b), VF(par, t, b), P(1 - par, qb).sub(4 * t, 4), c))
        return ms

    def k_reads(par, vaddr, off):
        return [I("ds_read_b128", KF(1 - par, si), vaddr, mods="offset:%d" % (off + si * 1024)) for si in range(8)]

    def v_reads(par, vaddr, off):
        return [I("ds_read_b128", VF(1 - par, si >> 2, si & 3), vaddr, mods="offset:%d" % (off + si * 1024))
                for si in range(8)]

    def step(par, name, qk, masks, pv, rds, dma, kvinc, pv_first=(), extra=(), tail=(), late_rd=True):
        ms = (qk_mfmas(par) if qk else []) + (pv_mfmas(par, pv_first) if pv else [])
        val = sm_stream(par, 0, masks[0]) + sm_stream(par, 1, masks[1])
        if "nords" in EXP:
            rds = []
        if "nodma" in EXP:
            dma = None
        if "nosm" in EXP:
            val = val[:4]
        cut = (len(val) * (9 if late_rd else 7)) // 10
        fill = merge(val[:cut], rds) + val[cut:]
        if extra:
            fill = merge(fill, list(extra))
        if dma:
            fill = merge(fill, dma)
        fill.append(I("v_max_f32", vTm, vTs[0], vTs[1]))
        fill.append(I("v_cmp_nge_f32", VCC, sThr, vTm))
        rid = len(ret_labels)
        ret_labels.append(("K2_RET_%s" % name, par))
        fill.append(I("s_mov_b32", sRet, rid))
        for qb in range(2):
            fill.append(I("v_add_f32", vL[1 - par][qb], vL[par][qb], vTs[qb]))
        fill += list(tail)
        interleave(e, ms, fill, close=True)
        e.I("s_cbranch_vccnz", "K2_RARE%d" % par)
        e.label("K2_RET_%s" % name)
        e.I("s_add_u32", sKv, sKv, kvinc)
        for x in EXP:
            if x.startswith("pad"):
                for _ in range(int(x[3:])):
                    e.I("s_nop", 15)

    def dma_group(kind, vdelta=16384):
        srd = s(S_K if kind == "K" else S_V, 4)
        sg = sKg if kind == "K" else sVg
        out = []
        if kind == "K":
            out.append(I("s_mov_b32", M0, sRot))
        else:
            out.append(I("s_sub_u32", sSt, sRot, vdelta))
            out.append(I("s_and_b32", sSt, sSt, 0xffff))
            out.append(I("s_add_u32", M0, sSt, 65536))
        for i in range(4):
            x = I("buffer_load_dwordx4", vl16, srd, sg, mods="offen offset:%d%s lds" % (1024 * i, KVS))
            x.cost = 16
            out.append(x)
        out.append(I("s_add_u32", sg, sg, 16384))
        return out

    def top():
        e.I("s_waitcnt", "vmcnt(16) lgkmcnt(0)")
        e.lgkm = []
        e.vm = []
        if "nobar" not in EXP:
            e.I("s_barrier")

    ROT = [I("s_add_u32", sRot, sRot, 16384), I("s_and_b32", sRot, sRot, 0xffff)]

    def iter1(name, maskB, first=False, last=False):
        top()
        step(0, name + "a", True, (False, maskB), not first,
             merge([] if last else k_reads(0, vKr, 0), v_reads(0, vVr, 0)), dma_group("K"), 32)
        tail = [I("v_add_u32", vVr, 65536, vKr), I("v_add_u32", vKr, 16384, vKr), I("v_and_b32", vKr, 0xffff, vKr),
                I("s_sub_u32", sCnt, sCnt, 1)] + ROT
        if last:
            rq = [I("ds_read_b128", qfrag(1, si), vQx, mods="offset:%d" % (si * 1024)) for si in range(8)]
            rds = [I("v_add_u32", vKx, sPw, vKr)] + merge(k_reads(1, vKx, 0), v_reads(1, vVr, 8192)) + rq
        else:
            rds = merge(k_reads(1, vKr, 8192), v_reads(1, vVr, 8192))
        step(1, name + "b", not last, (False, maskB), True, rds, dma_group("V"), 32,
             pv_first=(0, 1) if first else (), tail=tail, late_rd=False)

    def step2(par, name, masked, qk=True, pv=True, pv_first=(), extra=()):
        top()
        tail = [I("v_add_u32", vKr, 16384, vKr), I("v_and_b32", vKr, 0xffff, vKr),
                I("v_add_u32", vVr, 16384, vVr), I("v_and_b32", vVr, 0xffff, vVr), I("v_or_b32", vVr, 0x10000, vVr)] + ROT
        step(par, name, qk, (masked, masked), pv, merge(k_reads(par, vKr, 0), v_reads(par, vVr, 0)),
             dma_group("K") + dma_group("V", 32768), 64, pv_first=pv_first, extra=extra, tail=tail, late_rd=False)

    def loop(name, body):
        e.I("s_cmp_eq_u32", sCnt, 0)
        e.I("s_cbranch_scc1", "K2_%s_X" % name)
        e.label("K2_%s_L" % name)
        body()
        e.I("s_cmp_lg_u32", sCnt, 0)
        e.I("s_cbranch_scc1", "K2_%s_L" % name)
        e.label("K2_%s_X" % name)

    def ctx_store(qb_o, scale_regs, sbase, src2=None):
        out = []
        n = 0
        for b in range(4):
            for t in range(2):
                T = [RT[(n % 3) * 8 + 8 + r] for r in range(8)]
                Tq = v(RT[(n % 3) * 8 + 8].i, 4)
                n += 1
                for r in range(8):
                    out.append(I("v_accvgpr_read_b32", T[r], O(qb_o, b)[8 * t + r]))
                for r in range(8):
                    out.append(I("v_mul_f32", T[r], T[r], scale_regs[0]))
                if src2 is not None:
                    for r in range(8):
                        out.append(I("v_fmac_f32", T[r], src2[b * 16 + 8 * t + r], scale_regs[1]))
                for q in range(4):
                    out.append(I("v_cvt_pk_bf16_f32", T[q], T[2 * q], T[2 * q + 1]))
                off = (2 * b + t) * 1024
                if off % 4096 == 0:
                    out.append(I("s_add_u32", sTmp, sbase, off))
                out.append(I("buffer_store_dwordx4", Tq, vl16, s(S_WS, 4), sTmp, mods="offen offset:%d" % (off & 4095)))
        return out

    iter1("V0", True, first=True)
    e.I("s_lshl_b32", sCnt, sj, 1)
    e.I("s_sub_u32", sCnt, sCnt, 1)
    e.I("s_max_i32", sCnt, sCnt, 0)
    loop("V1", lambda: iter1("V1", False))
    e.I("s_min_u32", sCnt, sj, 1)
    loop("V2", lambda: iter1("V2", True))
    iter1("V2L", True, last=True)
    stamp(e, 7)
    top()
    e.I("v_add_u32", vNx, 49152, vVr)
    e.I("v_and_b32", vNx, 0xc000, vNx)
    e.I("v_lshlrev_b32", t0, 2, vl)
    e.I("v_add_u32", vNx, vNx, t0)
    e.I("s_lshl_b32", sT0, sw, 8)
    e.I("s_add_u32", sT0, sT0, 65536)
    e.I("v_add_u32", vNx, sT0, vNx)
    e.I("ds_write_b32", vNx, NM(0)[0])
    e.I("v_xor_b32", vNx, 256, vNx)
    e.I("v_mov_b32", RT[0], vL[0][1])
    e.I("v_mov_b32", RT[1], vL[0][1])
    e.I("v_mov_b32", vL[1][0], vL[0][0])
    e.I("v_permlane32_swap_b32", RT[0], RT[1])
    e.I("v_mov_b32", vL[1][1], 0)
    e.I("v_add_f32", RT[0], RT[0], RT[1])
    e.I("v_rcp_f32", vInvB, RT[0])
    e.I("v_add_u32", vKr, sPw, vKr)
    e.I("v_add_u32", vVr, sPw, vVr)
    e.I("s_lshr_b32", sT0, sPw, 8)
    e.I("s_add_u32", sKv, sKv, sT0)
    e.I("s_lshl_b32", sT0, sT0, 1)
    e.I("v_add_u32", vDq[1], 32, vDq[0])
    e.I("v_subrev_u32", vDq[1], sT0, vDq[1])
    pvm = pv_mfmas(0)
    pvB = [m for m in pvm if m.ops[0].i >= 64]
    pvA = [m for m in pvm if m.ops[0].i < 64]
    interleave(e, pvB, k_reads(0, vKr, 0) + dma_group("K"))
    e.wait_lgkm0()
    e.I("s_barrier")
    e.I("ds_read_b32", RT[2], vNx)
    interleave(e, pvA[:4], ROT + [I("v_add_u32", vKr, 16384, vKr), I("v_and_b32", vKr, 0xffff, vKr)])
    interleave(e, pvA[4:], [I("v_mov_b32", NM(1)[r], RT[2]) for r in range(16)])
    bepi = ctx_store(1, [vInvB], sCo[1])
    nb1 = len(bepi) // 2
    qkm = qk_mfmas(0)
    interleave(e, [m for m in qkm if m.ops[0].i == S(1, 0).i] + [m for m in qkm if m.ops[0].i == S(1, 1).i], bepi[:nb1])
    step2(1, "P0", True, pv=False, extra=bepi[nb1:])
    step2(0, "P1", True, pv_first=(1,))
    e.I("s_cmp_eq_u32", sj, 7)
    e.I("s_cbranch_scc1", "K2_DRAIN")
    e.I("s_lshl_b32", sCnt, sj, 1)
    e.I("s_sub_u32", sCnt, 13, sCnt)

    def p2():
        step2(1, "P2a", False)
        step2(0, "P2b", False, extra=[I("s_sub_u32", sCnt, sCnt, 1)])
    loop("P2", p2)
    step2(1, "P3", True)
    step2(0, "P4", True, qk=False)
    e.label("K2_DRAIN")
    e.I("s_waitcnt", "lgkmcnt(0)")
    e.lgkm = []
    for m in pv_mfmas(1):
        e.emit(m)
    stamp(e, 8)
    MS = 17408
    e.I("s_mul_i32", sT0, sw, MS)
    e.I("v_add_u32", vQx, sT0, vl16)
    e.I("v_lshlrev_b32", t0, 2, vl)
    e.I("v_add_u32", vNx, sT0, t0)
    e.I("s_waitcnt", "vmcnt(0)")
    e.I("s_barrier")
    e.I("ds_write_b32", vNx, NM(1)[0], mods="offset:16384")
    e.I("ds_write_b32", vNx, vL[1][1], mods="offset:16640")
    for b in range(4):
        for i in range(4):
            e.I("ds_write_b128", vQx, O(1, b).sub(4 * i, 4), mods="offset:%d" % ((b * 4 + i) * 1024))
    e.I("s_xor_b32", sT1, sw, 1)
    e.I("s_mul_i32", sT0, sT1, MS)
    e.I("v_add_u32", vQx, sT0, vl16)
    e.I("v_add_u32", vNx, sT0, t0)
    e.wait_lgkm0()
    e.I("s_barrier")
    nm2, l2, nm, f1, f2, lt, tq = RT[0], RT[1], RT[2], RT[3], RT[4], RT[5], RT[6]
    e.I("ds_read_b32", nm2, vNx, mods="offset:16384")
    e.I("ds_read_b32", l2, vNx, mods="offset:16640")
    O2 = SET[0]
    for i in range(16):
        e.I("ds_read_b128", O2.sub(4 * i, 4), vQx, mods="offset:%d" % (i * 1024))
    e.I("v_min_f32", nm, NM(0)[0], nm2)
    e.I("v_sub_f32", f1, nm, NM(0)[0])
    e.I("v_sub_f32", f2, nm, nm2)
    e.I("v_exp_f32", f1, f1)
    e.I("v_exp_f32", f2, f2)
    e.I("v_mul_f32", lt, vL[1][0], f1)
    e.I("v_fmac_f32", lt, l2, f2)
    e.I("v_mov_b32", tq, lt)
    e.I("v_permlane32_swap_b32", lt, tq)
    e.I("v_add_f32", lt, lt, tq)
    e.I("v_rcp_f32", lt, lt)
    e.I("v_mul_f32", f1, f1, lt)
    e.I("v_mul_f32", f2, f2, lt)
    emit_all(e, ctx_store(0, [f1, f2], sCo[0], src2=O2))
    stamp(e, 9)
    stamp_flush(e, 0 if fused else 1, s(S_WS, 4), sw, 10)
    e.I("s_endpgm")

    for par in range(2):
        e.label("K2_RARE%d" % par)
        e.vm, e.lgkm = [], []
        e.I("s_nop", 15)
        e.I("s_nop", 7)
        for qb in range(2):
            Sx, Sn, Px = S(par, qb), S(1 - par, qb), P(par, qb)
            dq, dl, f, tmp = RT[0], RT[1], RT[2], RT[3]
            e.I("v_subrev_u32", dq, sKv, vDq[qb])
            mask_S_inplace(e, Sx, dq)
            rowmax(e, Sx, dl, tmp)
            e.I("v_max_f32", dl, 0, dl)
            e.I("v_sub_f32", f, 0, dl)
            e.I("v_exp_f32", f, f)
            for r in range(16):
                e.I("v_sub_f32", Sx[r], Sx[r], dl)
            e.I("v_mul_f32", vL[1 - par][qb], vL[par][qb], f)
            for r in range(16):
                e.I("v_exp_f32", RT[8 + r], Sx[r])
            for r in range(16):
                e.I("v_sub_f32", Sn[r], Sn[r], dl)
            for r in range(16):
                e.I("v_add_f32", vL[1 - par][qb], vL[1 - par][qb], RT[8 + r])
            for k in range(8):
                e.I("v_cvt_pk_bf16_f32", Px[k], RT[8 + 2 * k], RT[9 + 2 * k])
            for r in range(16):
                e.I("v_sub_f32", NM(qb)[r], NM(qb)[r], dl)
            for b in range(4):
                for r0 in range(0, 16, 8):
                    for r in range(8):
                        e.I("v_accvgpr_read_b32", RT[8 + r], O(qb, b)[r0 + r])
                    for r in range(8):
                        e.I("v_mul_f32", RT[8 + r], RT[8 + r], f)
                    for r in range(8):
                        e.I("v_accvgpr_write_b32", O(qb, b)[r0 + r], RT[8 + r])
        e.I("s_nop", 3)
        mine = [(i, l) for i, (l, pp) in enumerate(ret_labels) if pp == par]
        for i, l in mine[:-1]:
            e.I("s_cmp_eq_u32", sRet, i)
            e.I("s_cbranch_scc1", l)
        e.I("s_branch", mine[-1][1])
    e.label(END)
    e.I("s_endpgm")
    return e.text(), dict(vgpr=512, sgpr=102, accum=256, grid=256, block=256, lds=163840)
```

```python
import sys
sys.path.insert(0, "dev")
from asmlib import *
import gen
from gen import *

LOG2E = 1.4426950408889634
QSCALE = LOG2E / (128 ** 0.5)
GC1 = -2.0 * (2.0 / math.pi) ** 0.5 * LOG2E
GC2 = GC1 * 0.044715
THRESH = float(2 ** 24)
CR = [(r & 3) + 8 * (r >> 2) for r in range(16)]
EXP = set()


def gen_ka():
    e = Emitter()
    fused = True
    END = "K2_END"
    KVS = " sc1"
    gen.STAMP_MAP = None
    prologue(e, 256, END)
    S_WS, S_A, S_B, S_C, S_K, S_V = 32, 36, 40, 44, 48, 52
    sw, sh, sj = s(56), s(57), s(58)
    sM0, sTmp, sSt = s(59), s(60), s(61)
    sXA, sXB = s(62), s(63)
    sWgu, sWq0, sWq1 = s(64), s(65), s(66)
    sHo = [s(67), s(68)]
    sCo = [s(69), s(70)]
    sKg, sVg, sRot = s(71), s(72), s(73)
    sCnt, sKv, sRet, sBact, sThr = s(74), s(75), s(76), s(77), s(78)
    sT0, sT1 = s(79), s(80)
    sQA, sQB, sHc = s(81), s(30), s(31)
    MASKS = [s(40, 2), s(42, 2), s(44, 2), s(46, 2)]
    sXrow = [s(71 + i) for i in range(8)]
    sXlds, sWb = s(67), s(68)
    sWb2, sWb3 = s(69), s(70)
    sKo, sVo = s(100), s(101)
    sLN0, sLN1 = s(64), s(65)
    vl, vl16 = v(1), v(2)
    t0, t1, t2 = v(3), v(4), v(5)
    vtr = [v(6), v(7)]
    vWg = [v(8 + i) for i in range(4)]
    vWq = [v(12 + i) for i in range(4)]
    vC2 = v(16)
    GT = [v(17 + i) for i in range(8)]
    vXd = [v(17), v(18)]
    vXr = [v(19 + i) for i in range(4)]
    vLNa, vLNs = v(23), v(24)
    vPl, vOne, vPk = v(25), v(26), v(27)
    PFD = v(28, 4)
    X_, Y_, Z_ = v(64, 64), v(128, 64), v(192, 64)
    SET = [Y_, Z_, X_]
    pool = v(32, 32)
    WR = 98304
    XS_W = 24576

    code_prefetch(e, "ka", "ka_kernel", "TEXT_END", s(30, 2), t0, PFD, 1)
    e.I("v_and_b32", vl, 63, v(0))
    e.I("v_lshrrev_b32", t0, 6, v(0))
    e.I("v_lshlrev_b32", vl16, 4, vl)
    e.I("v_readfirstlane_b32", sw, t0)
    head_j(e, sh, sj, sT0, sT1)
    e.I("v_lshrrev_b32", t0, 3, vl)
    e.I("v_lshlrev_b32", t1, 10, t0)
    e.I("v_lshrrev_b32", t0, 1, t0)
    e.I("v_xor_b32", t0, t0, vl)
    e.I("v_and_b32", t0, 7, t0)
    e.I("v_lshlrev_b32", t2, 4, t0)
    e.I("v_add_u32", vXd[0], t1, t2)
    e.I("v_xor_b32", t2, 64, t2)
    e.I("v_add_u32", vXd[1], t1, t2)
    e.I("s_lshl_b32", sT0, sj, 18)
    e.I("s_lshl_b32", sT1, sw, 16)
    e.I("s_add_u32", sT0, sT0, sT1)
    for i in range(8):
        e.I("s_add_u32", sXrow[i], sT0, i * 8192 - (i & 3) * 1024)
    e.I("s_mul_i32", sXlds, sw, XS_W)
    wdma_voff(e, vWq, vl, (t0, t1), 8192)
    e.I("s_and_b32", sT0, sw, 1)
    e.I("s_lshl_b32", sT0, sT0, 18)
    e.I("s_lshr_b32", sT1, sw, 1)
    e.I("s_lshl_b32", sT1, sT1, 7)
    e.I("s_lshl_b32", s(3), sh, 8)
    e.I("s_add_u32", sWb, s(3), sT0)
    e.I("s_add_u32", sWb, sWb, sT1)
    e.I("s_lshl_b32", sT0, sw, 18)
    e.I("s_add_u32", sWb2, s(3), sT0)
    e.I("s_add_u32", sWb3, sWb2, 128)
    e.I("s_lshl_b32", sM0, sw, 12)
    e.I("s_add_u32", sM0, sM0, WR)
    e.I("s_waitcnt", "lgkmcnt(0)")
    make_srd(e, S_A, P_CKV, 2048 * 1024)
    make_srd(e, S_B, P_WUK, 512 * 8192)
    stamp(e, 0)

    def c_dma(p):
        out = []
        for i in range(8):
            if i % 4 == 0:
                out.append(I("s_add_u32", M0, sXlds, (p % 3) * 8192 + (i >> 2) * 4096))
            out.append(I("buffer_load_dwordx4", vXd[i & 1], s(S_A, 4), sXrow[i],
                         mods="offen offset:%d lds" % (1024 * (i & 3)), tag=("C", p)))
        out.append(I("v_add_u32", vXd[0], 128, vXd[0]))
        out.append(I("v_add_u32", vXd[1], 128, vXd[1]))
        return out

    def c_jobs(p):
        ins = c_dma(p)
        k = ("C", p)
        return [(k, ins[0:2]), (k, [ins[2]]), (k, [ins[3]]), (k, [ins[4]]), (k, ins[5:7]), (k, [ins[7]]), (k, [ins[8]]),
                (k, ins[9:12])]

    def x_piece(p):
        out = []
        k = ("X", p)
        for rb in range(2):
            sb = sXA if rb == 0 else sXB
            for i in range(4):
                ins = []
                if i == 0:
                    ins.append(I("s_add_u32", sT0 if rb == 0 else sT1, sb, p * 4096))
                ins.append(I("buffer_load_dwordx4", a((rb * 32 + 4 * p + i) * 4, 4), vl16, s(S_WS, 4),
                             sT0 if rb == 0 else sT1, mods="offen offset:%d sc1" % (1024 * i), tag=k))
                out.append((k, ins))
        return out

    def kv_jobs(kind, st):
        k = (kind, st)
        srd = s(S_K if kind == "K" else S_V, 4)
        base = (0 if kind == "K" else 65536) + (st & 3) * 16384
        out = []
        for i in range(4):
            ins = []
            if i == 0:
                ins.append(I("s_lshl_b32", sSt, sw, 12))
                ins.append(I("s_add_u32", M0, sSt, base))
                ins.append(I("s_add_u32", sSt, sSt, st * 16384))
            ins.append(I("buffer_load_dwordx4", vl16, srd, sSt, mods="offen offset:%d sc1 lds" % (1024 * i), tag=k))
            out.append((k, ins))
        return out

    srcK = dict(srd=s(S_B, 4), voff=vWq, s_base=sWb, stage_stride=64 * 8192)
    srcV0 = dict(srd=s(S_C, 4), voff=vWq, s_base=sWb2, stage_stride=128 * 8192)
    srcV1 = dict(srd=s(S_C, 4), voff=vWq, s_base=sWb3, stage_stride=128 * 8192)
    srcGU = dict(srd=s(S_A, 4), voff=vWg, s_base=sWgu, stage_stride=64 * 3584)
    srcQ0 = dict(srd=s(S_B, 4), voff=vWq, s_base=sWq0, stage_stride=128 * 8192)
    srcQ1 = dict(srd=s(S_B, 4), voff=vWq, s_base=sWq1, stage_stride=128 * 8192)
    acc4 = lambda s0, s1: (lambda rb, nb: (s0, s1)[rb].sub(nb * 16, 16))
    acc2 = lambda s0: (lambda rb, nb: s0.sub((rb * 2 + nb) * 16, 16))
    accK, accV0, accV1, accGU = acc4(X_, Y_), acc2(Z_), acc2(X_), acc4(Y_, Z_)

    def store_block(d, sbase, rb, idxs):
        out = []
        for hh in range(2):
            out += cvt_inplace(d, hh)
            off = rb * 8192 + idxs[hh] * 1024
            out.append(I("s_add_u32", s(3), sbase, off & ~4095))
            out.append(I("buffer_store_dwordx4", d.sub(8 * hh, 4), vl16, s(S_WS, 4), s(3),
                         mods="offen offset:%d" % (off & 4095), tag="kv"))
        return out

    def epiK():
        return [x for rb in range(2) for nb in range(4) for x in store_block(accK(rb, nb), sKo, rb, (2 * nb, 2 * nb + 1))]

    def epiV(acc, o):
        return [x for rb in range(2) for nb in range(2) for x in store_block(acc(rb, nb), sVo, rb, (o + nb, o + 4 + nb))]

    def ln_stream():
        Z = Z_
        LN0, LN1 = Z.sub(0, 4), Z.sub(4, 4)
        X = [Z[8 + i] for i in range(16)]
        D = [Z[24 + i] for i in range(16)]
        sm, sw2, mean, var, pk, mb, vb, sd, rc = [Z[40 + i] for i in range(9)]
        ln = []
        A_ = lambda *x, **k: ln.append(I(*x, **k))
        for i in range(4):
            A_("v_lshlrev_b32", X[2 * i], 16, LN0[i])
            A_("v_and_b32", X[2 * i + 1], 0xffff0000, LN0[i])
            A_("v_lshlrev_b32", X[8 + 2 * i], 16, LN1[i])
            A_("v_and_b32", X[8 + 2 * i + 1], 0xffff0000, LN1[i])

        def allreduce32(r):
            for off in (0x041F, 0x081F, 0x101F, 0x201F, 0x401F):
                A_("ds_swizzle_b32", sw2, r, mods="offset:0x%04x" % off)
                A_("v_add_f32", r, r, sw2)
        A_("v_add_f32", sm, X[0], X[1])
        for i in range(2, 16):
            A_("v_add_f32", sm, sm, X[i])
        allreduce32(sm)
        A_("v_mul_f32", mean, 1.0 / 512, sm)
        for i in range(16):
            A_("v_sub_f32", D[i], X[i], mean)
        A_("v_mul_f32", sm, D[0], D[0])
        for i in range(1, 16):
            A_("v_fmac_f32", sm, D[i], D[i])
        allreduce32(sm)
        A_("v_mul_f32", var, 1.0 / 512, sm)
        A_("v_cvt_pk_bf16_f32", pk, mean, var)
        A_("v_lshlrev_b32", mb, 16, pk)
        A_("v_and_b32", vb, 0xffff0000, pk)
        A_("v_add_f32", vb, 1e-5, vb)
        A_("v_cvt_pk_bf16_f32", pk, vb, vb)
        A_("v_lshlrev_b32", vb, 16, pk)
        A_("v_sqrt_f32", vb, vb)
        A_("v_cvt_pk_bf16_f32", pk, vb, vb)
        A_("v_lshlrev_b32", sd, 16, pk)
        A_("v_rcp_f32", rc, sd)
        for i in range(16):
            A_("v_sub_f32", D[i], X[i], mb)
        for i in range(8):
            A_("v_cvt_pk_bf16_f32", pk, D[2 * i], D[2 * i + 1])
            A_("v_lshlrev_b32", D[2 * i], 16, pk)
            A_("v_and_b32", D[2 * i + 1], 0xffff0000, pk)
        for i in range(16):
            A_("v_mul_f32", X[i], D[i], rc)
            A_("v_fma_f32", D[i], Neg(X[i]), sd, D[i])
            A_("v_fmac_f32", X[i], D[i], rc)
        for i in range(4):
            A_("v_cvt_pk_bf16_f32", LN0[i], X[2 * i], X[2 * i + 1])
            A_("v_cvt_pk_bf16_f32", LN1[i], X[8 + 2 * i], X[8 + 2 * i + 1])
        A_("buffer_store_dwordx4", LN0, vLNs, s(S_WS, 4), sLN0, mods="offen", tag="ln")
        A_("buffer_store_dwordx4", LN1, vLNs, s(S_WS, 4), sLN1, mods="offen", tag="ln")
        return ln

    NOP = lambda em: None

    def gu_epi(rb):
        out = []
        for nb in range(2):
            g_, u_ = accGU(rb, nb), accGU(rb, nb + 2)
            for hh in range(2):
                for half4 in range(2):
                    rs = [8 * hh + 4 * half4 + i for i in range(4)]
                    T = GT[0:4]
                    T2 = GT[4:8]
                    for i, r in enumerate(rs):
                        out.append(I("v_mul_f32", T[i], g_[r], g_[r]))
                    for i, r in enumerate(rs):
                        out.append(I("v_fmaak_f32", T[i], T[i], vC2, GC1))
                    for i, r in enumerate(rs):
                        out.append(I("v_mul_f32", T[i], T[i], g_[r]))
                    for i, r in enumerate(rs):
                        out.append(I("v_exp_f32", T[i], T[i]))
                    for i, r in enumerate(rs):
                        out.append(I("v_mul_f32", T2[i], g_[r], u_[r]))
                    for i, r in enumerate(rs):
                        out.append(I("v_add_f32", T[i], 1.0, T[i]))
                    for i, r in enumerate(rs):
                        out.append(I("v_rcp_f32", T[i], T[i]))
                    out.append(I("s_nop", 0))
                    for i, r in enumerate(rs):
                        out.append(I("v_mul_f32", g_[r], T2[i], T[i]))
                out += cvt_inplace(g_, hh)
                off = (2 * nb + hh) * 1024
                out.append(I("buffer_store_dwordx4", g_.sub(8 * hh, 4), vl16, s(S_WS, 4), sHo[rb],
                             mods="offen offset:%d" % off))
        return out

    def qfrag(qb, sidx):
        b, t = sidx >> 1, sidx & 1
        return X_.sub((qb * 2 + (b & 1)) * 16 + 8 * t + (4 if b >= 2 else 0), 4)

    def q_epi(acc, b0):
        out = []
        for rb in range(2):
            for nb in range(2):
                d = acc(rb, nb)
                for r in range(16):
                    out.append(I("v_mul_f32", d[r], QSCALE, d[r]))
                for t in range(2):
                    f = qfrag(rb, 2 * (b0 + nb) + t)
                    for q in range(4):
                        out.append(I("v_cvt_pk_bf16_f32", f[q], d[8 * t + 2 * q], d[8 * t + 2 * q + 1]))
        return out

    class L(list):
        def I(self, op, *ops, **k):
            self.append(I(op, *ops, **k))

    def setup_b():
        o = L()
        o.I("s_lshl_b32", sT0, sj, 2)
        o.I("s_add_u32", sQB, sT0, sw)
        o.I("s_sub_u32", sQA, 60, sT0)
        o.I("s_add_u32", sQA, sQA, sw)
        o.I("s_lshl_b32", sXA, sQA, 15)
        o.I("s_lshl_b32", sXB, sQB, 15)
        if WS_XN:
            o.I("s_add_u32", sXA, sXA, WS_XN)
            o.I("s_add_u32", sXB, sXB, WS_XN)
        wdma_voff(o, vWg, vl, (t0, t1), 3584)
        o.I("s_and_b32", sT0, sw, 1)
        o.I("s_mul_i32", sT0, sT0, 32 * 3584)
        o.I("s_lshl_b32", sT1, sh, 7)
        o.I("s_add_u32", sWgu, sT0, sT1)
        o.I("s_mov_b32", sWq0, sWb2)
        o.I("s_mov_b32", sWq1, sWb3)
        o.I("s_lshl_b32", sHc, sh, 2)
        o.I("s_add_u32", sHc, sHc, 4)
        o.I("s_cmp_lt_u32", sw, 2)
        g = [I("s_cmp_lt_u32", sw, 2), I("s_cselect_b32", s(S_A), s(P_WG), s(P_WU)),
             I("s_cselect_b32", s(S_A + 1), s(P_WG + 1), s(P_WU + 1))]
        o.append(lambda em: emit_all(em, g))
        o.I("s_mov_b32", s(S_A + 2), 512 * 3584)
        make_srd(o, S_B, P_WQ, 512 * 8192)
        o.I("v_mov_b32", vC2, GC2)
        for qb, sq in ((0, sQA), (1, sQB)):
            o.I("s_mul_i32", sT0, sq, 368 * 1024)
            o.I("s_lshl_b32", sT1, sh, 12)
            o.I("s_add_u32", sHo[qb], sT0, sT1)
            o.I("s_add_u32", sHo[qb], sHo[qb], WS_A3 + 256 * 1024)
        return o

    def setup_c():
        o = L()
        for qb in range(2):
            o.I("s_lshl_b32", sSt, sh, 12)
            o.I("s_add_u32", sCo[qb], sHo[qb], sSt)
            o.I("s_sub_u32", sCo[qb], sCo[qb], 256 * 1024)
        for srd, off in ((S_K, WS_K), (S_V, WS_V)):
            g = [I("s_lshl_b32", sSt, sh, 19), I("s_add_u32", sSt, sSt, off), I("s_add_u32", s(srd), s(P_WS), sSt),
                 I("s_addc_u32", s(srd + 1), s(P_WS + 1), 0)]
            o.append(lambda em, g=g: emit_all(em, g))
            o.I("s_lshl_b32", sSt, sj, 15)
            o.I("s_sub_u32", s(srd + 2), 64 * 8192, sSt)
            o.I("s_mov_b32", s(srd + 3), 0x20000)
        o.I("s_lshl_b32", sKg, sw, 12)
        o.I("s_mov_b32", sVg, sKg)
        o.I("s_mov_b32", sThr, THRESH)
        return o

    def touch(srd, bufs):
        g = [I("s_lshl_b32", sCnt, s(2), 2), I("s_add_u32", sCnt, sCnt, sw), I("s_lshl_b32", sCnt, sCnt, 13)]
        p0, n0 = bufs[0]
        g += [I("s_mov_b32", s(srd), s(p0)), I("s_mov_b32", s(srd + 1), s(p0 + 1)), I("s_mov_b32", s(srd + 2), n0),
              I("s_mov_b32", s(srd + 3), 0x20000)]
        for (pp, nn), (_, nprev) in zip(bufs[1:], bufs[:-1]):
            g += [I("s_cmp_ge_u32", sCnt, s(srd + 2)),
                  I("s_cselect_b32", sRet, s(srd + 2), 0),
                  I("s_cselect_b32", s(srd), s(pp), s(srd)), I("s_cselect_b32", s(srd + 1), s(pp + 1), s(srd + 1)),
                  I("s_cselect_b32", s(srd + 2), nn, s(srd + 2)),
                  I("s_sub_u32", sCnt, sCnt, sRet)]
        g += [I("v_lshlrev_b32", t2, 7, vl),
              Untracked(I("buffer_load_dword", PFD[0], t2, s(srd, 4), sCnt, mods="offen"))]
        return [lambda em: emit_all(em, g)]

    def proj(with_gu, tagp):
        ln = ln_stream()
        eV1 = epiV(accV1, 2)
        segs = [Seg(4, "WX", accK, srcK, [NOP] * (len(ln) // 4) + ln + [NOP] * (2 * len(ln))),
                Seg(2, "XW", accV0, srcV0, merge(epiK(), setup_b())),
                Seg(2, "XW", accV1, srcV1, epiV(accV0, 0) + [NOP] * 12)]
        if with_gu:
            aQ0, aQ1 = acc2(X_), acc2(Y_)
            segs += [Seg(4, "WX", accGU, srcGU, eV1 + setup_c() + [NOP] * 70), Seg(2, "WX", aQ0, srcQ0, gu_epi(0)),
                     Seg(2, "WX", aQ1, srcQ1, gu_epi(1) + q_epi(aQ0, 0))]
        else:
            aQ0, aQ1 = acc2(Y_), acc2(Z_)
            segs += [Seg(2, "WX", aQ0, srcQ0, eV1 + setup_c() + [NOP] * 70), Seg(2, "WX", aQ1, srcQ1, q_epi(aQ0, 0))]
        G = Gemm(e, 4, vtr, pool, sM0, sTmp, segs)
        nst = len(G.stages)

        def c_reads(p):
            out = [(lambda em: G.need(("C", p))) if p else (lambda em: em.wait_vm_tag(lambda tg: tg == ("C", p)))]
            for sl in range(4):
                for rb in range(2):
                    out.append(I("ds_read_b128", a((rb * 32 + 4 * p + sl) * 4, 4), vXr[sl],
                                 mods="offset:%d" % ((p % 3) * 8192 + rb * 4096)))
            return out
        emit_all(e, c_dma(0))
        emit_all(e, G.w_dma(0))
        make_srd(e, S_K, P_X, 2048 * 1024)
        make_srd(e, S_C, P_WUV, 512 * 8192)
        make_srd(e, S_WS, P_WS, WS_BYTES)
        make_srd(e, S_DBG, P_DBG, 256)
        e.I("v_lshrrev_b32", t0, 5, v(0))
        e.I("v_lshlrev_b32", t1, 10, t0)
        e.I("v_and_b32", t2, 31, vl)
        e.I("v_lshlrev_b32", vLNa, 4, t2)
        e.I("v_add_u32", vLNa, vLNa, t1)
        e.I("v_lshrrev_b32", t1, 1, t2)
        e.I("v_lshlrev_b32", t1, 10, t1)
        e.I("v_and_b32", t2, 1, t2)
        e.I("v_lshlrev_b32", t2, 9, t2)
        e.I("v_add_u32", t1, t1, t2)
        e.I("v_lshlrev_b32", t0, 4, t0)
        e.I("v_add_u32", vLNs, t1, t0)
        e.I("s_lshl_b32", sT0, s(2), 13)
        e.I("buffer_load_dwordx4", Z_.sub(0, 4), vLNa, s(S_K, 4), sT0, mods="offen")
        e.I("buffer_load_dwordx4", Z_.sub(4, 4), vLNa, s(S_K, 4), sT0, mods="offen offset:512")
        emit_all(e, c_dma(1))
        emit_all(e, G.w_dma(1))
        e.I("s_lshr_b32", sLN0, s(2), 2)
        e.I("s_lshl_b32", sLN0, sLN0, 15)
        e.I("s_and_b32", sLN1, s(2), 3)
        e.I("s_lshl_b32", sLN1, sLN1, 7)
        e.I("s_add_u32", sLN0, sLN0, sLN1)
        if WS_XN:
            e.I("s_add_u32", sLN0, sLN0, WS_XN)
        e.I("s_add_u32", sLN1, sLN0, 16384)
        e.I("v_and_b32", t0, 31, vl)
        e.I("v_lshlrev_b32", t1, 7, t0)
        e.I("v_add_u32", t1, sXlds, t1)
        e.I("v_bfe_u32", t0, vl, 1, 3)
        e.I("v_lshrrev_b32", t2, 5, vl)
        e.I("v_xor_b32", t0, t0, t2)
        for sl in range(4):
            e.I("v_xor_b32", t2, 2 * sl, t0)
            e.I("v_lshlrev_b32", t2, 4, t2)
            e.I("v_add_u32", vXr[sl], t1, t2)
        tr_addr(e, vtr[0], vtr[1], vl, (t0, t1, t2), WR, False)
        e.I("s_lshl_b32", sT0, sh, 6)
        e.I("s_lshl_b32", sT1, sj, 3)
        e.I("s_add_u32", sT0, sT0, sT1)
        e.I("s_lshl_b32", sT1, sw, 1)
        e.I("s_add_u32", sT0, sT0, sT1)
        e.I("s_lshl_b32", sT0, sT0, 13)
        e.I("s_add_u32", sKo, sT0, WS_K)
        e.I("s_add_u32", sVo, sT0, WS_V)
        emit_all(e, c_reads(0))
        queue = []
        for g in range(2, nst):
            if g < 8:
                queue += c_jobs(g)
            if 16 <= g < 20 and not with_gu:
                queue += x_piece(2 * (g - 16)) + x_piece(2 * (g - 16) + 1)
            queue += G.w_jobs(g)
            if with_gu:
                for p in {16: [0], 17: [1], 18: [2], 19: [3], 20: [4], 21: [5], 22: [6], 23: [7]}.get(g, []):
                    queue += x_piece(p)
        queue += kv_jobs("K", 0) + kv_jobs("K", 1) + kv_jobs("V", 0) + kv_jobs("K", 2) + kv_jobs("V", 1)
        queue += kv_jobs("K", 3) + kv_jobs("V", 2)
        LNSIG = 4
        XREL = {76: 0, 82: 1, 88: 2, 98: 3, 102: 4, 106: 5, 110: 6, 114: 7}
        pub = 20 if with_gu else 17
        kv_first = {("K", i) for i in range(3)} | {("V", 0), ("V", 1)}

        def pre_barrier(g):
            if g == LNSIG:
                e.wait_vm_tag(lambda tg: tg == "ln")
            if g == pub:
                e.wait_vm_tag(lambda tg: tg == "kv")

        def on_barrier(g):
            G.rel.add(("C", g + 3))
            G.rel.add(("C", g + 4))
            if g == LNSIG:
                signal(e, sw, 0, "ln" + tagp, vOne)
            if g == 11:
                poll_issue(e, vPl, 0)
            if g == 12:
                poll_check(e, vPl, 0, 256, "ln" + tagp, sCnt, sRet)
                if not with_gu:
                    G.rel.add(("X", 0))
            if g == pub:
                signal(e, sw, sHc, "kv" + tagp, vOne)
            if g == nst - 6:
                poll_issue(e, vPk, sHc)
            if g == nst - 5:
                poll_check(e, vPk, sHc, 8, "kv" + tagp, sCnt, sRet)
                G.rel |= kv_first
            if g == nst - 2:
                G.rel.add(("V", 2))
                G.rel.add(("K", 3))

        def hook(t):
            sg, sidx, g, sl = G.ks[t]
            out = []
            if t < 32 and g < 7 and sl == 2:
                out += c_reads(g + 1)
            if t == 33 and gen.PF_W:
                out += touch(S_K, [(P_WQ, 512 * 8192), (P_WG, 512 * 3584), (P_WU, 512 * 3584)])
            if t == 100 and gen.PF_W:
                out += touch(S_C, [(P_WO, 4096 * 1024), (P_WD, 1792 * 1024)])
            if not with_gu and 72 <= t <= 96 and t % 4 == 0:
                G.rel.add(("X", (t - 68) // 4))
            if with_gu and t in XREL:
                G.rel.add(("X", XREL[t]))
            if 96 <= t < 128 and sidx % 4 == 0:
                p = sidx // 4
                while any(k == ("X", p) for k, _ in G.q):
                    k, ins = G.q.pop(0)
                    assert k in G.rel, k
                    emit_all(e, ins)
            return out
        cnt = [1]

        def seg_end(sg):
            if cnt[0] in (1, 3, 4) or not with_gu and False:
                pass
            if with_gu:
                m = {1: 1, 2: 2, 3: 3, 4: 4}.get(cnt[0])
                if m:
                    stamp(e, m)
            cnt[0] += 1
        G.run(hook, seg_end, queue=queue, released={("W", 2), ("W", 3), ("C", 2)}, on_barrier=on_barrier,
              pace=gen.PACE, pre_barrier=pre_barrier)
        while G.q:
            k, ins = G.q.pop(0)
            assert k in G.rel, k
            emit_all(e, ins)
        emit_all(e, q_epi(aQ1, 2))
        tags = [t for _, t in e.vm]
        assert all(t in (("K", 3), ("V", 2), None, "pf") for t in tags[-8:]), tags[-8:]
        assert all(t not in (("K", 0), ("K", 1), ("V", 0)) for t in tags[-16:]), tags[-16:]
        e.wait_vm_tag(lambda tg: tg == ("K", 0))
        e.wait_lgkm0()

    e.I("s_cmp_ge_u32", sh, 28)
    e.I("s_cbranch_scc1", "K2_NOGU")
    st0 = e.state()
    proj(True, "a")
    e.I("s_branch", "K2_ATT")
    e.label("K2_NOGU")
    e.set_state(st0)
    proj(False, "b")
    e.label("K2_ATT")
    e.vm = []
    e.lgkm = []
    e.I("s_nop", 1)
    stamp(e, 5)

    S = lambda par, qb: SET[0].sub((par * 2 + qb) * 16, 16)
    NM = lambda qb: SET[1].sub(qb * 16, 16)
    P = lambda par, qb: SET[1].sub(32 + (par * 2 + qb) * 8, 8)
    O = lambda qb, b: a((qb * 4 + b) * 16, 16)
    KF = lambda fs, si: a(128 + 64 * fs + 4 * si, 4)
    VF = lambda fs, t, b: a(128 + 64 * fs + 32 + 4 * (t * 4 + b), 4)
    vKr, vVr = v(6), v(7)
    vDq = [v(8), v(9)]
    vL = [[v(10), v(11)], [v(24), v(25)]]
    vTs = [v(12), v(13)]
    vTm, vDqT = v(14), [v(15), v(16)]
    vNinf = v(17)
    ET = [v(18 + i) for i in range(6)]
    vQx, vKx, vNx, vInvB, vPw = v(26), v(27), v(28), v(29), v(30)
    RT = [v(32 + i) for i in range(32)]
    QS = 131072
    sPw = sBact

    e.I("v_and_b32", t0, 31, vl)
    e.I("v_lshrrev_b32", t1, 5, vl)
    e.I("v_lshlrev_b32", t1, 2, t1)
    e.I("v_sub_u32", t0, t0, t1)
    e.I("s_lshl_b32", sT0, sQA, 5)
    e.I("s_lshl_b32", sT1, sQB, 5)
    e.I("v_add_u32", vDq[0], sT0, t0)
    e.I("v_add_u32", vDq[1], sT1, t0)
    e.I("v_mov_b32", vNinf, 0xff800000)
    e.I("v_mov_b32", vL[0][0], 0)
    e.I("v_mov_b32", vL[0][1], 0)
    e.I("v_add_u32", vKr, 16384, vl16)
    e.I("v_add_u32", vVr, 65536, vl16)
    e.I("s_lshl_b32", sRot, sw, 12)
    e.I("s_add_u32", sKg, sKg, 4 * 16384)
    e.I("s_add_u32", sVg, sVg, 3 * 16384)
    e.I("s_mov_b32", sKv, 0)
    e.I("s_and_b32", sPw, sw, 1)
    e.I("s_lshl_b32", sPw, sPw, 13)
    e.I("s_lshl_b32", sT0, sw, 13)
    e.I("s_add_u32", sT0, sT0, QS)
    e.I("v_add_u32", vQx, sT0, vl16)
    e.I("s_barrier")
    for si in range(8):
        e.I("ds_read_b128", KF(1, si), vl16, mods="offset:%d" % (si * 1024))
    for si in range(8):
        e.I("ds_read_b128", KF(0, si), vl16, mods="offset:%d" % (8192 + si * 1024))
    for si in range(8):
        for qb in range(2):
            e.I(MFMA, S(0, qb), KF(1, si), qfrag(qb, si), 0 if si == 0 else S(0, qb))
        e.I("ds_write_b128", vQx, qfrag(0, si), mods="offset:%d" % (si * 1024))
    e.I("v_xor_b32", vQx, 8192, vQx)

    def mask_S_inplace(em, Sx, dq):
        for r0 in range(0, 16, 4):
            for i in range(4):
                em.I("v_cmp_ge_i32", MASKS[i], dq, CR[r0 + i])
            for i in range(4):
                em.I("v_cndmask_b32", Sx[r0 + i], vNinf, Sx[r0 + i], MASKS[i])

    def rowmax(em, Sx, dst, tmp):
        em.I("v_max3_f32", dst, Sx[0], Sx[1], Sx[2])
        for r in range(3, 15, 2):
            em.I("v_max3_f32", dst, dst, Sx[r], Sx[r + 1])
        em.I("v_max_f32", dst, dst, Sx[15])
        em.I("v_mov_b32", tmp, dst)
        em.I("v_permlane32_swap_b32", dst, tmp)
        em.I("v_max_f32", dst, dst, tmp)

    for qb in range(2):
        Sx = S(0, qb)
        if qb == 1:
            mask_S_inplace(e, Sx, vDq[1])
        rowmax(e, Sx, RT[0], RT[1])
        for r in range(16):
            e.I("v_sub_f32", Sx[r], Sx[r], RT[0])
        for r in range(16):
            e.I("v_sub_f32", NM(qb)[r], 0, RT[0])
    e.wait_lgkm0()
    stamp(e, 6)

    ret_labels = []

    def sm_stream(par, qb, masked):
        Sx, Px = S(par, qb), P(par, qb)
        out = []
        if masked:
            out.append(I("v_subrev_u32", vDqT[qb], sKv, vDq[qb]))

        def front(k):
            o = []
            if masked:
                o.append(I("v_cmp_ge_i32", MASKS[(2 * k) & 3], vDqT[qb], CR[2 * k]))
                o.append(I("v_cmp_ge_i32", MASKS[(2 * k + 1) & 3], vDqT[qb], CR[2 * k + 1]))
            o.append(I("v_exp_f32", ET[(2 * k) % 6], Sx[2 * k]))
            o.append(I("v_exp_f32", ET[(2 * k + 1) % 6], Sx[2 * k + 1]))
            return o

        def back(k):
            ta, tb = ET[(2 * k) % 6], ET[(2 * k + 1) % 6]
            o = []
            if masked:
                o.append(I("v_cndmask_b32", ta, 0, ta, MASKS[(2 * k) & 3]))
                o.append(I("v_cndmask_b32", tb, 0, tb, MASKS[(2 * k + 1) & 3]))
            if k == 0:
                o.append(I("v_add_f32", vTs[qb], ta, tb))
            else:
                o.append(I("v_add_f32", vTs[qb], vTs[qb], ta))
                o.append(I("v_add_f32", vTs[qb], vTs[qb], tb))
            o.append(I("v_cvt_pk_bf16_f32", Px[k], ta, tb))
            return o
        out += front(0)
        for k in range(8):
            if k + 1 < 8:
                out += front(k + 1)
            out += back(k)
        return out

    def qk_mfmas(par):
        return [I(MFMA, S(1 - par, qb), KF(par, si), qfrag(qb, si), NM(qb) if si == 0 else S(1 - par, qb))
                for si in range(8) for qb in range(2)]

    def pv_mfmas(par, first=(), order=None):
        ms = []
        for t in range(2):
            for b in range(4):
                for qb in range(2):
                    c = 0 if (qb in first and t == 0) else O(qb, b)
                    ms.append(I(MFMA, O(qb, b), VF(par, t, b), P(1 - par, qb).sub(4 * t, 4), c))
        return ms

    def k_reads(par, vaddr, off):
        return [I("ds_read_b128", KF(1 - par, si), vaddr, mods="offset:%d" % (off + si * 1024)) for si in range(8)]

    def v_reads(par, vaddr, off):
        return [I("ds_read_b128", VF(1 - par, si >> 2, si & 3), vaddr, mods="offset:%d" % (off + si * 1024))
                for si in range(8)]

    def step(par, name, qk, masks, pv, rds, dma, kvinc, pv_first=(), extra=(), tail=(), late_rd=True):
        ms = (qk_mfmas(par) if qk else []) + (pv_mfmas(par, pv_first) if pv else [])
        val = sm_stream(par, 0, masks[0]) + sm_stream(par, 1, masks[1])
        if "nords" in EXP:
            rds = []
        if "nodma" in EXP:
            dma = None
        if "nosm" in EXP:
            val = val[:4]
        cut = (len(val) * (9 if late_rd else 7)) // 10
        fill = merge(val[:cut], rds) + val[cut:]
        if extra:
            fill = merge(fill, list(extra))
        if dma:
            fill = merge(fill, dma)
        fill.append(I("v_max_f32", vTm, vTs[0], vTs[1]))
        fill.append(I("v_cmp_nge_f32", VCC, sThr, vTm))
        rid = len(ret_labels)
        ret_labels.append(("K2_RET_%s" % name, par))
        fill.append(I("s_mov_b32", sRet, rid))
        for qb in range(2):
            fill.append(I("v_add_f32", vL[1 - par][qb], vL[par][qb], vTs[qb]))
        fill += list(tail)
        interleave(e, ms, fill, close=True)
        e.I("s_cbranch_vccnz", "K2_RARE%d" % par)
        e.label("K2_RET_%s" % name)
        e.I("s_add_u32", sKv, sKv, kvinc)
        for x in EXP:
            if x.startswith("pad"):
                for _ in range(int(x[3:])):
                    e.I("s_nop", 15)

    def dma_group(kind, vdelta=16384):
        srd = s(S_K if kind == "K" else S_V, 4)
        sg = sKg if kind == "K" else sVg
        out = []
        if kind == "K":
            out.append(I("s_mov_b32", M0, sRot))
        else:
            out.append(I("s_sub_u32", sSt, sRot, vdelta))
            out.append(I("s_and_b32", sSt, sSt, 0xffff))
            out.append(I("s_add_u32", M0, sSt, 65536))
        for i in range(4):
            x = I("buffer_load_dwordx4", vl16, srd, sg, mods="offen offset:%d%s lds" % (1024 * i, KVS))
            x.cost = 16
            out.append(x)
        out.append(I("s_add_u32", sg, sg, 16384))
        return out

    def top():
        e.I("s_waitcnt", "vmcnt(16) lgkmcnt(0)")
        e.lgkm = []
        e.vm = []
        if "nobar" not in EXP:
            e.I("s_barrier")

    ROT = [I("s_add_u32", sRot, sRot, 16384), I("s_and_b32", sRot, sRot, 0xffff)]

    def iter1(name, maskB, first=False, last=False):
        top()
        step(0, name + "a", True, (False, maskB), not first,
             merge([] if last else k_reads(0, vKr, 0), v_reads(0, vVr, 0)), dma_group("K"), 32)
        tail = [I("v_add_u32", vVr, 65536, vKr), I("v_add_u32", vKr, 16384, vKr), I("v_and_b32", vKr, 0xffff, vKr),
                I("s_sub_u32", sCnt, sCnt, 1)] + ROT
        if last:
            rq = [I("ds_read_b128", qfrag(1, si), vQx, mods="offset:%d" % (si * 1024)) for si in range(8)]
            rds = [I("v_add_u32", vKx, sPw, vKr)] + merge(k_reads(1, vKx, 0), v_reads(1, vVr, 8192)) + rq
        else:
            rds = merge(k_reads(1, vKr, 8192), v_reads(1, vVr, 8192))
        step(1, name + "b", not last, (False, maskB), True, rds, dma_group("V"), 32,
             pv_first=(0, 1) if first else (), tail=tail, late_rd=False)

    def step2(par, name, masked, qk=True, pv=True, pv_first=(), extra=()):
        top()
        tail = [I("v_add_u32", vKr, 16384, vKr), I("v_and_b32", vKr, 0xffff, vKr),
                I("v_add_u32", vVr, 16384, vVr), I("v_and_b32", vVr, 0xffff, vVr), I("v_or_b32", vVr, 0x10000, vVr)] + ROT
        step(par, name, qk, (masked, masked), pv, merge(k_reads(par, vKr, 0), v_reads(par, vVr, 0)),
             dma_group("K") + dma_group("V", 32768), 64, pv_first=pv_first, extra=extra, tail=tail, late_rd=False)

    def loop(name, body):
        e.I("s_cmp_eq_u32", sCnt, 0)
        e.I("s_cbranch_scc1", "K2_%s_X" % name)
        e.label("K2_%s_L" % name)
        body()
        e.I("s_cmp_lg_u32", sCnt, 0)
        e.I("s_cbranch_scc1", "K2_%s_L" % name)
        e.label("K2_%s_X" % name)

    def ctx_store(qb_o, scale_regs, sbase, src2=None):
        out = []
        n = 0
        for b in range(4):
            for t in range(2):
                T = [RT[(n % 3) * 8 + 8 + r] for r in range(8)]
                Tq = v(RT[(n % 3) * 8 + 8].i, 4)
                n += 1
                for r in range(8):
                    out.append(I("v_accvgpr_read_b32", T[r], O(qb_o, b)[8 * t + r]))
                for r in range(8):
                    out.append(I("v_mul_f32", T[r], T[r], scale_regs[0]))
                if src2 is not None:
                    for r in range(8):
                        out.append(I("v_fmac_f32", T[r], src2[b * 16 + 8 * t + r], scale_regs[1]))
                for q in range(4):
                    out.append(I("v_cvt_pk_bf16_f32", T[q], T[2 * q], T[2 * q + 1]))
                off = (2 * b + t) * 1024
                if off % 4096 == 0:
                    out.append(I("s_add_u32", sTmp, sbase, off))
                out.append(I("buffer_store_dwordx4", Tq, vl16, s(S_WS, 4), sTmp, mods="offen offset:%d" % (off & 4095)))
        return out

    iter1("V0", True, first=True)
    e.I("s_lshl_b32", sCnt, sj, 1)
    e.I("s_sub_u32", sCnt, sCnt, 1)
    e.I("s_max_i32", sCnt, sCnt, 0)
    loop("V1", lambda: iter1("V1", False))
    e.I("s_min_u32", sCnt, sj, 1)
    loop("V2", lambda: iter1("V2", True))
    iter1("V2L", True, last=True)
    stamp(e, 7)
    top()
    e.I("v_add_u32", vNx, 49152, vVr)
    e.I("v_and_b32", vNx, 0xc000, vNx)
    e.I("v_lshlrev_b32", t0, 2, vl)
    e.I("v_add_u32", vNx, vNx, t0)
    e.I("s_lshl_b32", sT0, sw, 8)
    e.I("s_add_u32", sT0, sT0, 65536)
    e.I("v_add_u32", vNx, sT0, vNx)
    e.I("ds_write_b32", vNx, NM(0)[0])
    e.I("v_xor_b32", vNx, 256, vNx)
    e.I("v_mov_b32", RT[0], vL[0][1])
    e.I("v_mov_b32", RT[1], vL[0][1])
    e.I("v_mov_b32", vL[1][0], vL[0][0])
    e.I("v_permlane32_swap_b32", RT[0], RT[1])
    e.I("v_mov_b32", vL[1][1], 0)
    e.I("v_add_f32", RT[0], RT[0], RT[1])
    e.I("v_rcp_f32", vInvB, RT[0])
    e.I("v_add_u32", vKr, sPw, vKr)
    e.I("v_add_u32", vVr, sPw, vVr)
    e.I("s_lshr_b32", sT0, sPw, 8)
    e.I("s_add_u32", sKv, sKv, sT0)
    e.I("s_lshl_b32", sT0, sT0, 1)
    e.I("v_add_u32", vDq[1], 32, vDq[0])
    e.I("v_subrev_u32", vDq[1], sT0, vDq[1])
    pvm = pv_mfmas(0)
    pvB = [m for m in pvm if m.ops[0].i >= 64]
    pvA = [m for m in pvm if m.ops[0].i < 64]
    interleave(e, pvB, k_reads(0, vKr, 0) + dma_group("K"))
    e.wait_lgkm0()
    e.I("s_barrier")
    e.I("ds_read_b32", RT[2], vNx)
    interleave(e, pvA[:4], ROT + [I("v_add_u32", vKr, 16384, vKr), I("v_and_b32", vKr, 0xffff, vKr)])
    interleave(e, pvA[4:], [I("v_mov_b32", NM(1)[r], RT[2]) for r in range(16)])
    bepi = ctx_store(1, [vInvB], sCo[1])
    nb1 = len(bepi) // 2
    qkm = qk_mfmas(0)
    interleave(e, [m for m in qkm if m.ops[0].i == S(1, 0).i] + [m for m in qkm if m.ops[0].i == S(1, 1).i], bepi[:nb1])
    step2(1, "P0", True, pv=False, extra=bepi[nb1:])
    step2(0, "P1", True, pv_first=(1,))
    e.I("s_cmp_eq_u32", sj, 7)
    e.I("s_cbranch_scc1", "K2_DRAIN")
    e.I("s_lshl_b32", sCnt, sj, 1)
    e.I("s_sub_u32", sCnt, 13, sCnt)

    def p2():
        step2(1, "P2a", False)
        step2(0, "P2b", False, extra=[I("s_sub_u32", sCnt, sCnt, 1)])
    loop("P2", p2)
    step2(1, "P3", True)
    step2(0, "P4", True, qk=False)
    e.label("K2_DRAIN")
    e.I("s_waitcnt", "lgkmcnt(0)")
    e.lgkm = []
    for m in pv_mfmas(1):
        e.emit(m)
    stamp(e, 8)
    MS = 17408
    e.I("s_mul_i32", sT0, sw, MS)
    e.I("v_add_u32", vQx, sT0, vl16)
    e.I("v_lshlrev_b32", t0, 2, vl)
    e.I("v_add_u32", vNx, sT0, t0)
    e.I("s_waitcnt", "vmcnt(0)")
    e.I("s_barrier")
    e.I("ds_write_b32", vNx, NM(1)[0], mods="offset:16384")
    e.I("ds_write_b32", vNx, vL[1][1], mods="offset:16640")
    for b in range(4):
        for i in range(4):
            e.I("ds_write_b128", vQx, O(1, b).sub(4 * i, 4), mods="offset:%d" % ((b * 4 + i) * 1024))
    e.I("s_xor_b32", sT1, sw, 1)
    e.I("s_mul_i32", sT0, sT1, MS)
    e.I("v_add_u32", vQx, sT0, vl16)
    e.I("v_add_u32", vNx, sT0, t0)
    e.wait_lgkm0()
    e.I("s_barrier")
    nm2, l2, nm, f1, f2, lt, tq = RT[0], RT[1], RT[2], RT[3], RT[4], RT[5], RT[6]
    e.I("ds_read_b32", nm2, vNx, mods="offset:16384")
    e.I("ds_read_b32", l2, vNx, mods="offset:16640")
    O2 = SET[0]
    for i in range(16):
        e.I("ds_read_b128", O2.sub(4 * i, 4), vQx, mods="offset:%d" % (i * 1024))
    e.I("v_min_f32", nm, NM(0)[0], nm2)
    e.I("v_sub_f32", f1, nm, NM(0)[0])
    e.I("v_sub_f32", f2, nm, nm2)
    e.I("v_exp_f32", f1, f1)
    e.I("v_exp_f32", f2, f2)
    e.I("v_mul_f32", lt, vL[1][0], f1)
    e.I("v_fmac_f32", lt, l2, f2)
    e.I("v_mov_b32", tq, lt)
    e.I("v_permlane32_swap_b32", lt, tq)
    e.I("v_add_f32", lt, lt, tq)
    e.I("v_rcp_f32", lt, lt)
    e.I("v_mul_f32", f1, f1, lt)
    e.I("v_mul_f32", f2, f2, lt)
    emit_all(e, ctx_store(0, [f1, f2], sCo[0], src2=O2))
    stamp(e, 9)
    stamp_flush(e, 0 if fused else 1, s(S_WS, 4), sw, 10)
    e.I("s_endpgm")

    for par in range(2):
        e.label("K2_RARE%d" % par)
        e.vm, e.lgkm = [], []
        e.I("s_nop", 15)
        e.I("s_nop", 7)
        for qb in range(2):
            Sx, Sn, Px = S(par, qb), S(1 - par, qb), P(par, qb)
            dq, dl, f, tmp = RT[0], RT[1], RT[2], RT[3]
            e.I("v_subrev_u32", dq, sKv, vDq[qb])
            mask_S_inplace(e, Sx, dq)
            rowmax(e, Sx, dl, tmp)
            e.I("v_max_f32", dl, 0, dl)
            e.I("v_sub_f32", f, 0, dl)
            e.I("v_exp_f32", f, f)
            for r in range(16):
                e.I("v_sub_f32", Sx[r], Sx[r], dl)
            e.I("v_mul_f32", vL[1 - par][qb], vL[par][qb], f)
            for r in range(16):
                e.I("v_exp_f32", RT[8 + r], Sx[r])
            for r in range(16):
                e.I("v_sub_f32", Sn[r], Sn[r], dl)
            for r in range(16):
                e.I("v_add_f32", vL[1 - par][qb], vL[1 - par][qb], RT[8 + r])
            for k in range(8):
                e.I("v_cvt_pk_bf16_f32", Px[k], RT[8 + 2 * k], RT[9 + 2 * k])
            for r in range(16):
                e.I("v_sub_f32", NM(qb)[r], NM(qb)[r], dl)
            for b in range(4):
                for r0 in range(0, 16, 8):
                    for r in range(8):
                        e.I("v_accvgpr_read_b32", RT[8 + r], O(qb, b)[r0 + r])
                    for r in range(8):
                        e.I("v_mul_f32", RT[8 + r], RT[8 + r], f)
                    for r in range(8):
                        e.I("v_accvgpr_write_b32", O(qb, b)[r0 + r], RT[8 + r])
        e.I("s_nop", 3)
        mine = [(i, l) for i, (l, pp) in enumerate(ret_labels) if pp == par]
        for i, l in mine[:-1]:
            e.I("s_cmp_eq_u32", sRet, i)
            e.I("s_cbranch_scc1", l)
        e.I("s_branch", mine[-1][1])
    e.label(END)
    e.I("s_endpgm")
    return e.text(), dict(vgpr=512, sgpr=102, accum=256, grid=256, block=256, lds=163840)
```

```python
import sys
sys.path.insert(0, "dev")
import gen
path = sys.argv[1] if len(sys.argv) > 1 else "cdna_kernels/%s.s" % gen.NAME
gen.PROFILE = len(sys.argv) > 2 and sys.argv[2] == "prof"
import os, gen_k2
gen_k2.EXP = set(os.environ.get("EXP", "").split(","))
import gen_ka
gen_ka.EXP = gen_k2.EXP
gen.GEXP = gen_k2.EXP
import asmlib
asmlib.STORE_MODS = os.environ.get("STM", "sc1")
gen.PF_CODE = os.environ.get("PFC", "1") == "1"
gen.PF_TLB = os.environ.get("PFT", "0") == "1"
gen.FUSE = os.environ.get("FUSE", "1") == "1"
gen.PF_IN = os.environ.get("PFI", "0") == "1"
gen.STAMP_RT = os.environ.get("SRT", "0") == "1"
gen.FUSE3 = os.environ.get("FUSE3", "1") == "1"
gen.SINGLE = os.environ.get("SINGLE", "1") == "1"
gen.PF_W = os.environ.get("PFW", "1") == "1"
import gen_k3
for kv in os.environ.get("K3P", "").split(","):
    if kv:
        k_, v_ = kv.split("="); setattr(gen_k3, k_, int(v_))
open(path, "w").write(gen.build())
print("wrote", path)
```

```python
import sys
sys.path.insert(0, "dev")
from asmlib import *
import gen
from gen import *

LOG2E = 1.4426950408889634
QSCALE = LOG2E / (128 ** 0.5)
GC1 = -2.0 * (2.0 / math.pi) ** 0.5 * LOG2E
GC2 = GC1 * 0.044715
THRESH = float(2 ** 24)
CR = [(r & 3) + 8 * (r >> 2) for r in range(16)]
EXP = set()


def gen_ka():
    e = Emitter()
    fused = True
    END = "K2_END"
    KVS = " sc1"
    gen.STAMP_MAP = None
    prologue(e, 256, END)
    S_WS, S_A, S_B, S_C, S_K, S_V = 32, 36, 40, 44, 48, 52
    sw, sh, sj = s(56), s(57), s(58)
    sM0, sTmp, sSt = s(59), s(60), s(61)
    sXA, sXB = s(62), s(63)
    sWgu, sWq0, sWq1 = s(64), s(65), s(66)
    sHo = [s(67), s(68)]
    sCo = [s(69), s(70)]
    sKg, sVg, sRot = s(71), s(72), s(73)
    sCnt, sKv, sRet, sBact, sThr = s(74), s(75), s(76), s(77), s(78)
    sT0, sT1 = s(79), s(80)
    sQA, sQB, sHc = s(81), s(30), s(31)
    MASKS = [s(40, 2), s(42, 2), s(44, 2), s(46, 2)]
    sXrow = [s(71 + i) for i in range(8)]
    sXlds, sWb = s(67), s(68)
    sWb2, sWb3 = s(69), s(70)
    sKo, sVo = s(100), s(101)
    sLN0, sLN1 = s(64), s(65)
    vl, vl16 = v(1), v(2)
    t0, t1, t2 = v(3), v(4), v(5)
    vtr = [v(6), v(7)]
    vWg = [v(8 + i) for i in range(4)]
    vWq = [v(12 + i) for i in range(4)]
    vC2 = v(16)
    GT = [v(17 + i) for i in range(8)]
    vXd = [v(17), v(18)]
    vXr = [v(19 + i) for i in range(4)]
    vLNa, vLNs = v(23), v(24)
    vPl, vOne, vPk = v(25), v(26), v(27)
    PFD = v(28, 4)
    X_, Y_, Z_ = v(64, 64), v(128, 64), v(192, 64)
    SET = [Y_, Z_, X_]
    pool = v(32, 32)
    WR = 98304
    XS_W = 24576

    code_prefetch(e, "ka", "ka_kernel", "TEXT_END", s(30, 2), t0, PFD, 1)
    e.I("v_and_b32", vl, 63, v(0))
    e.I("v_lshrrev_b32", t0, 6, v(0))
    e.I("v_lshlrev_b32", vl16, 4, vl)
    e.I("v_readfirstlane_b32", sw, t0)
    head_j(e, sh, sj, sT0, sT1)
    e.I("v_lshrrev_b32", t0, 3, vl)
    e.I("v_lshlrev_b32", t1, 10, t0)
    e.I("v_lshrrev_b32", t0, 1, t0)
    e.I("v_xor_b32", t0, t0, vl)
    e.I("v_and_b32", t0, 7, t0)
    e.I("v_lshlrev_b32", t2, 4, t0)
    e.I("v_add_u32", vXd[0], t1, t2)
    e.I("v_xor_b32", t2, 64, t2)
    e.I("v_add_u32", vXd[1], t1, t2)
    e.I("s_lshl_b32", sT0, sj, 18)
    e.I("s_lshl_b32", sT1, sw, 16)
    e.I("s_add_u32", sT0, sT0, sT1)
    for i in range(8):
        e.I("s_add_u32", sXrow[i], sT0, i * 8192 - (i & 3) * 1024)
    e.I("s_mul_i32", sXlds, sw, XS_W)
    wdma_voff(e, vWq, vl, (t0, t1), 8192)
    e.I("s_and_b32", sT0, sw, 1)
    e.I("s_lshl_b32", sT0, sT0, 18)
    e.I("s_lshr_b32", sT1, sw, 1)
    e.I("s_lshl_b32", sT1, sT1, 7)
    e.I("s_lshl_b32", s(3), sh, 8)
    e.I("s_add_u32", sWb, s(3), sT0)
    e.I("s_add_u32", sWb, sWb, sT1)
    e.I("s_lshl_b32", sT0, sw, 18)
    e.I("s_add_u32", sWb2, s(3), sT0)
    e.I("s_add_u32", sWb3, sWb2, 128)
    e.I("s_lshl_b32", sM0, sw, 12)
    e.I("s_add_u32", sM0, sM0, WR)
    e.I("s_waitcnt", "lgkmcnt(0)")
    make_srd(e, S_A, P_CKV, 2048 * 1024)
    make_srd(e, S_B, P_WUK, 512 * 8192)
    stamp(e, 0)

    def c_dma(p):
        out = []
        for i in range(8):
            if i % 4 == 0:
                out.append(I("s_add_u32", M0, sXlds, (p % 3) * 8192 + (i >> 2) * 4096))
            out.append(I("buffer_load_dwordx4", vXd[i & 1], s(S_A, 4), sXrow[i],
                         mods="offen offset:%d lds" % (1024 * (i & 3)), tag=("C", p)))
        out.append(I("v_add_u32", vXd[0], 128, vXd[0]))
        out.append(I("v_add_u32", vXd[1], 128, vXd[1]))
        return out

    def c_jobs(p):
        ins = c_dma(p)
        k = ("C", p)
        return [(k, ins[0:2]), (k, [ins[2]]), (k, [ins[3]]), (k, [ins[4]]), (k, ins[5:7]), (k, [ins[7]]), (k, [ins[8]]),
                (k, ins[9:12])]

    def x_piece(p):
        out = []
        k = ("X", p)
        for rb in range(2):
            sb = sXA if rb == 0 else sXB
            for i in range(4):
                ins = []
                if i == 0:
                    ins.append(I("s_add_u32", sT0 if rb == 0 else sT1, sb, p * 4096))
                ins.append(I("buffer_load_dwordx4", a((rb * 32 + 4 * p + i) * 4, 4), vl16, s(S_WS, 4),
                             sT0 if rb == 0 else sT1, mods="offen offset:%d sc1" % (1024 * i), tag=k))
                out.append((k, ins))
        return out

    def kv_jobs(kind, st):
        k = (kind, st)
        srd = s(S_K if kind == "K" else S_V, 4)
        base = (0 if kind == "K" else 65536) + (st & 3) * 16384
        out = []
        for i in range(4):
            ins = []
            if i == 0:
                ins.append(I("s_lshl_b32", sSt, sw, 12))
                ins.append(I("s_add_u32", M0, sSt, base))
                ins.append(I("s_add_u32", sSt, sSt, st * 16384))
            ins.append(I("buffer_load_dwordx4", vl16, srd, sSt, mods="offen offset:%d sc1 lds" % (1024 * i), tag=k))
            out.append((k, ins))
        return out

    srcK = dict(srd=s(S_B, 4), voff=vWq, s_base=sWb, stage_stride=64 * 8192)
    srcV0 = dict(srd=s(S_C, 4), voff=vWq, s_base=sWb2, stage_stride=128 * 8192)
    srcV1 = dict(srd=s(S_C, 4), voff=vWq, s_base=sWb3, stage_stride=128 * 8192)
    srcGU = dict(srd=s(S_A, 4), voff=vWg, s_base=sWgu, stage_stride=64 * 3584)
    srcQ0 = dict(srd=s(S_B, 4), voff=vWq, s_base=sWq0, stage_stride=128 * 8192)
    srcQ1 = dict(srd=s(S_B, 4), voff=vWq, s_base=sWq1, stage_stride=128 * 8192)
    acc4 = lambda s0, s1: (lambda rb, nb: (s0, s1)[rb].sub(nb * 16, 16))
    acc2 = lambda s0: (lambda rb, nb: s0.sub((rb * 2 + nb) * 16, 16))
    accK, accV0, accV1, accGU = acc4(X_, Y_), acc2(Z_), acc2(X_), acc4(Y_, Z_)

    def store_block(d, sbase, rb, idxs):
        out = []
        for hh in range(2):
            out += cvt_inplace(d, hh)
            off = rb * 8192 + idxs[hh] * 1024
            out.append(I("s_add_u32", s(3), sbase, off & ~4095))
            out.append(I("buffer_store_dwordx4", d.sub(8 * hh, 4), vl16, s(S_WS, 4), s(3),
                         mods="offen offset:%d" % (off & 4095), tag="kv"))
        return out

    def epiK():
        return [x for rb in range(2) for nb in range(4) for x in store_block(accK(rb, nb), sKo, rb, (2 * nb, 2 * nb + 1))]

    def epiV(acc, o):
        return [x for rb in range(2) for nb in range(2) for x in store_block(acc(rb, nb), sVo, rb, (o + nb, o + 4 + nb))]

    def ln_stream():
        Z = Z_
        LN0, LN1 = Z.sub(0, 4), Z.sub(4, 4)
        X = [Z[8 + i] for i in range(16)]
        D = [Z[24 + i] for i in range(16)]
        sm, sw2, mean, var, pk, mb, vb, sd, rc = [Z[40 + i] for i in range(9)]
        ln = []
        A_ = lambda *x, **k: ln.append(I(*x, **k))
        for i in range(4):
            A_("v_lshlrev_b32", X[2 * i], 16, LN0[i])
            A_("v_and_b32", X[2 * i + 1], 0xffff0000, LN0[i])
            A_("v_lshlrev_b32", X[8 + 2 * i], 16, LN1[i])
            A_("v_and_b32", X[8 + 2 * i + 1], 0xffff0000, LN1[i])

        def allreduce32(r):
            for off in (0x041F, 0x081F, 0x101F, 0x201F, 0x401F):
                A_("ds_swizzle_b32", sw2, r, mods="offset:0x%04x" % off)
                A_("v_add_f32", r, r, sw2)
        A_("v_add_f32", sm, X[0], X[1])
        for i in range(2, 16):
            A_("v_add_f32", sm, sm, X[i])
        allreduce32(sm)
        A_("v_mul_f32", mean, 1.0 / 512, sm)
        for i in range(16):
            A_("v_sub_f32", D[i], X[i], mean)
        A_("v_mul_f32", sm, D[0], D[0])
        for i in range(1, 16):
            A_("v_fmac_f32", sm, D[i], D[i])
        allreduce32(sm)
        A_("v_mul_f32", var, 1.0 / 512, sm)
        A_("v_cvt_pk_bf16_f32", pk, mean, var)
        A_("v_lshlrev_b32", mb, 16, pk)
        A_("v_and_b32", vb, 0xffff0000, pk)
        A_("v_add_f32", vb, 1e-5, vb)
        A_("v_cvt_pk_bf16_f32", pk, vb, vb)
        A_("v_lshlrev_b32", vb, 16, pk)
        A_("v_sqrt_f32", vb, vb)
        A_("v_cvt_pk_bf16_f32", pk, vb, vb)
        A_("v_lshlrev_b32", sd, 16, pk)
        A_("v_rcp_f32", rc, sd)
        for i in range(16):
            A_("v_sub_f32", D[i], X[i], mb)
        for i in range(8):
            A_("v_cvt_pk_bf16_f32", pk, D[2 * i], D[2 * i + 1])
            A_("v_lshlrev_b32", D[2 * i], 16, pk)
            A_("v_and_b32", D[2 * i + 1], 0xffff0000, pk)
        for i in range(16):
            A_("v_mul_f32", X[i], D[i], rc)
            A_("v_fma_f32", D[i], Neg(X[i]), sd, D[i])
            A_("v_fmac_f32", X[i], D[i], rc)
        for i in range(4):
            A_("v_cvt_pk_bf16_f32", LN0[i], X[2 * i], X[2 * i + 1])
            A_("v_cvt_pk_bf16_f32", LN1[i], X[8 + 2 * i], X[8 + 2 * i + 1])
        A_("buffer_store_dwordx4", LN0, vLNs, s(S_WS, 4), sLN0, mods="offen", tag="ln")
        A_("buffer_store_dwordx4", LN1, vLNs, s(S_WS, 4), sLN1, mods="offen", tag="ln")
        return ln

    NOP = lambda em: None

    def gu_epi(rb):
        out = []
        for nb in range(2):
            g_, u_ = accGU(rb, nb), accGU(rb, nb + 2)
            for hh in range(2):
                for half4 in range(2):
                    rs = [8 * hh + 4 * half4 + i for i in range(4)]
                    T = GT[0:4]
                    T2 = GT[4:8]
                    for i, r in enumerate(rs):
                        out.append(I("v_mul_f32", T[i], g_[r], g_[r]))
                    for i, r in enumerate(rs):
                        out.append(I("v_fmaak_f32", T[i], T[i], vC2, GC1))
                    for i, r in enumerate(rs):
                        out.append(I("v_mul_f32", T[i], T[i], g_[r]))
                    for i, r in enumerate(rs):
                        out.append(I("v_exp_f32", T[i], T[i]))
                    for i, r in enumerate(rs):
                        out.append(I("v_mul_f32", T2[i], g_[r], u_[r]))
                    for i, r in enumerate(rs):
                        out.append(I("v_add_f32", T[i], 1.0, T[i]))
                    for i, r in enumerate(rs):
                        out.append(I("v_rcp_f32", T[i], T[i]))
                    out.append(I("s_nop", 0))
                    for i, r in enumerate(rs):
                        out.append(I("v_mul_f32", g_[r], T2[i], T[i]))
                out += cvt_inplace(g_, hh)
                off = (2 * nb + hh) * 1024
                out.append(I("buffer_store_dwordx4", g_.sub(8 * hh, 4), vl16, s(S_WS, 4), sHo[rb],
                             mods="offen offset:%d" % off))
        return out

    def qfrag(qb, sidx):
        b, t = sidx >> 1, sidx & 1
        return X_.sub((qb * 2 + (b & 1)) * 16 + 8 * t + (4 if b >= 2 else 0), 4)

    def q_epi(acc, b0):
        out = []
        for rb in range(2):
            for nb in range(2):
                d = acc(rb, nb)
                for r in range(16):
                    out.append(I("v_mul_f32", d[r], QSCALE, d[r]))
                for t in range(2):
                    f = qfrag(rb, 2 * (b0 + nb) + t)
                    for q in range(4):
                        out.append(I("v_cvt_pk_bf16_f32", f[q], d[8 * t + 2 * q], d[8 * t + 2 * q + 1]))
        return out

    class L(list):
        def I(self, op, *ops, **k):
            self.append(I(op, *ops, **k))

    def setup_b():
        o = L()
        o.I("s_lshl_b32", sT0, sj, 2)
        o.I("s_add_u32", sQB, sT0, sw)
        o.I("s_sub_u32", sQA, 60, sT0)
        o.I("s_add_u32", sQA, sQA, sw)
        o.I("s_lshl_b32", sXA, sQA, 15)
        o.I("s_lshl_b32", sXB, sQB, 15)
        if WS_XN:
            o.I("s_add_u32", sXA, sXA, WS_XN)
            o.I("s_add_u32", sXB, sXB, WS_XN)
        wdma_voff(o, vWg, vl, (t0, t1), 3584)
        o.I("s_and_b32", sT0, sw, 1)
        o.I("s_mul_i32", sT0, sT0, 32 * 3584)
        o.I("s_lshl_b32", sT1, sh, 7)
        o.I("s_add_u32", sWgu, sT0, sT1)
        o.I("s_mov_b32", sWq0, sWb2)
        o.I("s_mov_b32", sWq1, sWb3)
        o.I("s_lshl_b32", sHc, sh, 2)
        o.I("s_add_u32", sHc, sHc, 4)
        o.I("s_cmp_lt_u32", sw, 2)
        g = [I("s_cmp_lt_u32", sw, 2), I("s_cselect_b32", s(S_A), s(P_WG), s(P_WU)),
             I("s_cselect_b32", s(S_A + 1), s(P_WG + 1), s(P_WU + 1))]
        o.append(lambda em: emit_all(em, g))
        o.I("s_mov_b32", s(S_A + 2), 512 * 3584)
        make_srd(o, S_B, P_WQ, 512 * 8192)
        o.I("v_mov_b32", vC2, GC2)
        for qb, sq in ((0, sQA), (1, sQB)):
            o.I("s_mul_i32", sT0, sq, 368 * 1024)
            o.I("s_lshl_b32", sT1, sh, 12)
            o.I("s_add_u32", sHo[qb], sT0, sT1)
            o.I("s_add_u32", sHo[qb], sHo[qb], WS_A3 + 256 * 1024)
        return o

    def setup_c():
        o = L()
        for qb in range(2):
            o.I("s_lshl_b32", sSt, sh, 12)
            o.I("s_add_u32", sCo[qb], sHo[qb], sSt)
            o.I("s_sub_u32", sCo[qb], sCo[qb], 256 * 1024)
        for srd, off in ((S_K, WS_K), (S_V, WS_V)):
            g = [I("s_lshl_b32", sSt, sh, 19), I("s_add_u32", sSt, sSt, off), I("s_add_u32", s(srd), s(P_WS), sSt),
                 I("s_addc_u32", s(srd + 1), s(P_WS + 1), 0)]
            o.append(lambda em, g=g: emit_all(em, g))
            o.I("s_lshl_b32", sSt, sj, 15)
            o.I("s_sub_u32", s(srd + 2), 64 * 8192, sSt)
            o.I("s_mov_b32", s(srd + 3), 0x20000)
        o.I("s_lshl_b32", sKg, sw, 12)
        o.I("s_mov_b32", sVg, sKg)
        o.I("s_mov_b32", sThr, THRESH)
        return o

    def touch(srd, bufs):
        g = [I("s_lshl_b32", sCnt, s(2), 2), I("s_add_u32", sCnt, sCnt, sw), I("s_lshl_b32", sCnt, sCnt, 13)]
        p0, n0 = bufs[0]
        g += [I("s_mov_b32", s(srd), s(p0)), I("s_mov_b32", s(srd + 1), s(p0 + 1)), I("s_mov_b32", s(srd + 2), n0),
              I("s_mov_b32", s(srd + 3), 0x20000)]
        for (pp, nn), (_, nprev) in zip(bufs[1:], bufs[:-1]):
            g += [I("s_cmp_ge_u32", sCnt, s(srd + 2)),
                  I("s_cselect_b32", sRet, s(srd + 2), 0),
                  I("s_cselect_b32", s(srd), s(pp), s(srd)), I("s_cselect_b32", s(srd + 1), s(pp + 1), s(srd + 1)),
                  I("s_cselect_b32", s(srd + 2), nn, s(srd + 2)),
                  I("s_sub_u32", sCnt, sCnt, sRet)]
        g += [I("v_lshlrev_b32", t2, 7, vl),
              Untracked(I("buffer_load_dword", PFD[0], t2, s(srd, 4), sCnt, mods="offen"))]
        return [lambda em: emit_all(em, g)]

    def proj(with_gu, tagp):
        ln = ln_stream()
        eV1 = epiV(accV1, 2)
        segs = [Seg(4, "WX", accK, srcK, [NOP] * (len(ln) // 4) + ln + [NOP] * (2 * len(ln))),
                Seg(2, "XW", accV0, srcV0, merge(epiK(), setup_b())),
                Seg(2, "XW", accV1, srcV1, epiV(accV0, 0) + [NOP] * 12)]
        if with_gu:
            aQ0, aQ1 = acc2(X_), acc2(Y_)
            segs += [Seg(4, "WX", accGU, srcGU, eV1 + setup_c() + [NOP] * 70), Seg(2, "WX", aQ0, srcQ0, gu_epi(0)),
                     Seg(2, "WX", aQ1, srcQ1, gu_epi(1) + q_epi(aQ0, 0))]
        else:
            aQ0, aQ1 = acc2(Y_), acc2(Z_)
            segs += [Seg(2, "WX", aQ0, srcQ0, eV1 + setup_c() + [NOP] * 70), Seg(2, "WX", aQ1, srcQ1, q_epi(aQ0, 0))]
        G = Gemm(e, 4, vtr, pool, sM0, sTmp, segs)
        nst = len(G.stages)

        def c_reads(p):
            out = [(lambda em: G.need(("C", p))) if p else (lambda em: em.wait_vm_tag(lambda tg: tg == ("C", p)))]
            for sl in range(4):
                for rb in range(2):
                    out.append(I("ds_read_b128", a((rb * 32 + 4 * p + sl) * 4, 4), vXr[sl],
                                 mods="offset:%d" % ((p % 3) * 8192 + rb * 4096)))
            return out
        emit_all(e, c_dma(0))
        emit_all(e, G.w_dma(0))
        make_srd(e, S_K, P_X, 2048 * 1024)
        make_srd(e, S_C, P_WUV, 512 * 8192)
        make_srd(e, S_WS, P_WS, WS_BYTES)
        make_srd(e, S_DBG, P_DBG, 256)
        e.I("v_lshrrev_b32", t0, 5, v(0))
        e.I("v_lshlrev_b32", t1, 10, t0)
        e.I("v_and_b32", t2, 31, vl)
        e.I("v_lshlrev_b32", vLNa, 4, t2)
        e.I("v_add_u32", vLNa, vLNa, t1)
        e.I("v_lshrrev_b32", t1, 1, t2)
        e.I("v_lshlrev_b32", t1, 10, t1)
        e.I("v_and_b32", t2, 1, t2)
        e.I("v_lshlrev_b32", t2, 9, t2)
        e.I("v_add_u32", t1, t1, t2)
        e.I("v_lshlrev_b32", t0, 4, t0)
        e.I("v_add_u32", vLNs, t1, t0)
        e.I("s_lshl_b32", sT0, s(2), 13)
        e.I("buffer_load_dwordx4", Z_.sub(0, 4), vLNa, s(S_K, 4), sT0, mods="offen")
        e.I("buffer_load_dwordx4", Z_.sub(4, 4), vLNa, s(S_K, 4), sT0, mods="offen offset:512")
        if gen.PF_IN:
            e.I("s_lshr_b32", sT0, s(2), 3)
            e.I("s_lshl_b32", sT0, sT0, 2)
            e.I("s_add_u32", sT0, sT0, sw)
            e.I("v_lshrrev_b32", t0, 3, vl)
            e.I("v_lshlrev_b32", t0, 13, t0)
            e.I("v_and_b32", t1, 7, vl)
            e.I("v_lshlrev_b32", t1, 7, t1)
            e.I("v_add_u32", t0, t0, t1)
            e.I("s_and_b32", sT1, sT0, 63)
            e.I("s_lshl_b32", sT1, sT1, 16)
            e.I("s_and_b32", s(3), s(2), 7)
            e.I("s_lshl_b32", s(3), s(3), 10)
            e.I("s_add_u32", sT1, sT1, s(3))
            e.I("s_cmp_ge_u32", sT0, 64)
            e.I("s_cselect_b32", s(S_V), s(P_WUV), s(P_WUK))
            e.I("s_cselect_b32", s(S_V + 1), s(P_WUV + 1), s(P_WUK + 1))
            e.I("s_mov_b32", s(S_V + 2), 512 * 8192)
            e.I("s_mov_b32", s(S_V + 3), 0x20000)
            e.I("v_lshlrev_b32", t1, 7, vl)
            e.I("s_lshl_b32", sT0, sT0, 14)
            Untracked(I("buffer_load_dword", PFD[1], t1, s(S_A, 4), sT0, mods="offen"))(e)
            e.I("s_add_u32", sT0, sT0, 8192)
            Untracked(I("buffer_load_dword", PFD[2], t1, s(S_A, 4), sT0, mods="offen"))(e)
            Untracked(I("buffer_load_dword", PFD[3], t0, s(S_V, 4), sT1, mods="offen"))(e)
        emit_all(e, c_dma(1))
        emit_all(e, G.w_dma(1))
        e.I("s_lshr_b32", sLN0, s(2), 2)
        e.I("s_lshl_b32", sLN0, sLN0, 15)
        e.I("s_and_b32", sLN1, s(2), 3)
        e.I("s_lshl_b32", sLN1, sLN1, 7)
        e.I("s_add_u32", sLN0, sLN0, sLN1)
        if WS_XN:
            e.I("s_add_u32", sLN0, sLN0, WS_XN)
        e.I("s_add_u32", sLN1, sLN0, 16384)
        e.I("v_and_b32", t0, 31, vl)
        e.I("v_lshlrev_b32", t1, 7, t0)
        e.I("v_add_u32", t1, sXlds, t1)
        e.I("v_bfe_u32", t0, vl, 1, 3)
        e.I("v_lshrrev_b32", t2, 5, vl)
        e.I("v_xor_b32", t0, t0, t2)
        for sl in range(4):
            e.I("v_xor_b32", t2, 2 * sl, t0)
            e.I("v_lshlrev_b32", t2, 4, t2)
            e.I("v_add_u32", vXr[sl], t1, t2)
        tr_addr(e, vtr[0], vtr[1], vl, (t0, t1, t2), WR, False)
        e.I("s_lshl_b32", sT0, sh, 6)
        e.I("s_lshl_b32", sT1, sj, 3)
        e.I("s_add_u32", sT0, sT0, sT1)
        e.I("s_lshl_b32", sT1, sw, 1)
        e.I("s_add_u32", sT0, sT0, sT1)
        e.I("s_lshl_b32", sT0, sT0, 13)
        e.I("s_add_u32", sKo, sT0, WS_K)
        e.I("s_add_u32", sVo, sT0, WS_V)
        emit_all(e, c_reads(0))
        queue = []
        for g in range(2, nst):
            if g < 8:
                queue += c_jobs(g)
            if 16 <= g < 20 and not with_gu:
                queue += x_piece(2 * (g - 16)) + x_piece(2 * (g - 16) + 1)
            queue += G.w_jobs(g)
            if with_gu:
                for p in {16: [0], 17: [1], 18: [2], 19: [3], 20: [4], 21: [5], 22: [6], 23: [7]}.get(g, []):
                    queue += x_piece(p)
        queue += kv_jobs("K", 0) + kv_jobs("K", 1) + kv_jobs("V", 0) + kv_jobs("K", 2) + kv_jobs("V", 1)
        queue += kv_jobs("K", 3) + kv_jobs("V", 2)
        LNSIG = 4
        XREL = {76: 0, 82: 1, 88: 2, 98: 3, 102: 4, 106: 5, 110: 6, 114: 7}
        pub = 20 if with_gu else 17
        kv_first = {("K", i) for i in range(3)} | {("V", 0), ("V", 1)}

        def pre_barrier(g):
            if g == LNSIG:
                e.wait_vm_tag(lambda tg: tg == "ln")
            if g == pub:
                e.wait_vm_tag(lambda tg: tg == "kv")

        def on_barrier(g):
            G.rel.add(("C", g + 3))
            G.rel.add(("C", g + 4))
            if g == LNSIG:
                signal(e, sw, 0, "ln" + tagp, vOne)
            if g == 11:
                poll_issue(e, vPl, 0)
            if g == 12:
                poll_check(e, vPl, 0, 256, "ln" + tagp, sCnt, sRet)
                if not with_gu:
                    G.rel.add(("X", 0))
            if g == pub:
                signal(e, sw, sHc, "kv" + tagp, vOne)
            if g == nst - 6:
                poll_issue(e, vPk, sHc)
            if g == nst - 5:
                poll_check(e, vPk, sHc, 8, "kv" + tagp, sCnt, sRet)
                G.rel |= kv_first
            if g == nst - 2:
                G.rel.add(("V", 2))
                G.rel.add(("K", 3))

        def hook(t):
            sg, sidx, g, sl = G.ks[t]
            out = []
            if t < 32 and g < 7 and sl == 2:
                out += c_reads(g + 1)
            if t == 33 and gen.PF_W:
                out += touch(S_K, [(P_WQ, 512 * 8192), (P_WG, 512 * 3584), (P_WU, 512 * 3584)])
            if t == 100 and gen.PF_W:
                out += touch(S_C, [(P_WO, 4096 * 1024), (P_WD, 1792 * 1024)])
            if not with_gu and 72 <= t <= 96 and t % 4 == 0:
                G.rel.add(("X", (t - 68) // 4))
            if with_gu and t in XREL:
                G.rel.add(("X", XREL[t]))
            if 96 <= t < 128 and sidx % 4 == 0:
                p = sidx // 4
                while any(k == ("X", p) for k, _ in G.q):
                    k, ins = G.q.pop(0)
                    assert k in G.rel, k
                    emit_all(e, ins)
            return out
        cnt = [1]

        def seg_end(sg):
            if cnt[0] in (1, 3, 4) or not with_gu and False:
                pass
            if with_gu:
                m = {1: 1, 2: 2, 3: 3, 4: 4}.get(cnt[0])
                if m:
                    stamp(e, m)
            cnt[0] += 1
        G.run(hook, seg_end, queue=queue, released={("W", 2), ("W", 3), ("C", 2)}, on_barrier=on_barrier,
              pace=gen.PACE, pre_barrier=pre_barrier)
        while G.q:
            k, ins = G.q.pop(0)
            assert k in G.rel, k
            emit_all(e, ins)
        emit_all(e, q_epi(aQ1, 2))
        tags = [t for _, t in e.vm]
        assert all(t in (("K", 3), ("V", 2), None, "pf") for t in tags[-8:]), tags[-8:]
        assert all(t not in (("K", 0), ("K", 1), ("V", 0)) for t in tags[-16:]), tags[-16:]
        e.wait_vm_tag(lambda tg: tg == ("K", 0))
        e.wait_lgkm0()

    e.I("s_cmp_ge_u32", sh, 28)
    e.I("s_cbranch_scc1", "K2_NOGU")
    st0 = e.state()
    proj(True, "a")
    e.I("s_branch", "K2_ATT")
    e.label("K2_NOGU")
    e.set_state(st0)
    proj(False, "b")
    e.label("K2_ATT")
    e.vm = []
    e.lgkm = []
    e.I("s_nop", 1)
    stamp(e, 5)

    S = lambda par, qb: SET[0].sub((par * 2 + qb) * 16, 16)
    NM = lambda qb: SET[1].sub(qb * 16, 16)
    P = lambda par, qb: SET[1].sub(32 + (par * 2 + qb) * 8, 8)
    O = lambda qb, b: a((qb * 4 + b) * 16, 16)
    KF = lambda fs, si: a(128 + 64 * fs + 4 * si, 4)
    VF = lambda fs, t, b: a(128 + 64 * fs + 32 + 4 * (t * 4 + b), 4)
    vKr, vVr = v(6), v(7)
    vDq = [v(8), v(9)]
    vL = [[v(10), v(11)], [v(24), v(25)]]
    vTs = [v(12), v(13)]
    vTm, vDqT = v(14), [v(15), v(16)]
    vNinf = v(17)
    ET = [v(18 + i) for i in range(6)]
    vQx, vKx, vNx, vInvB, vPw = v(26), v(27), v(28), v(29), v(30)
    RT = [v(32 + i) for i in range(32)]
    QS = 131072
    sPw = sBact

    e.I("v_and_b32", t0, 31, vl)
    e.I("v_lshrrev_b32", t1, 5, vl)
    e.I("v_lshlrev_b32", t1, 2, t1)
    e.I("v_sub_u32", t0, t0, t1)
    e.I("s_lshl_b32", sT0, sQA, 5)
    e.I("s_lshl_b32", sT1, sQB, 5)
    e.I("v_add_u32", vDq[0], sT0, t0)
    e.I("v_add_u32", vDq[1], sT1, t0)
    e.I("v_mov_b32", vNinf, 0xff800000)
    e.I("v_mov_b32", vL[0][0], 0)
    e.I("v_mov_b32", vL[0][1], 0)
    e.I("v_add_u32", vKr, 16384, vl16)
    e.I("v_add_u32", vVr, 65536, vl16)
    e.I("s_lshl_b32", sRot, sw, 12)
    e.I("s_add_u32", sKg, sKg, 4 * 16384)
    e.I("s_add_u32", sVg, sVg, 3 * 16384)
    e.I("s_mov_b32", sKv, 0)
    e.I("s_and_b32", sPw, sw, 1)
    e.I("s_lshl_b32", sPw, sPw, 13)
    e.I("s_lshl_b32", sT0, sw, 13)
    e.I("s_add_u32", sT0, sT0, QS)
    e.I("v_add_u32", vQx, sT0, vl16)
    e.I("s_barrier")
    for si in range(8):
        e.I("ds_read_b128", KF(1, si), vl16, mods="offset:%d" % (si * 1024))
    for si in range(8):
        e.I("ds_read_b128", KF(0, si), vl16, mods="offset:%d" % (8192 + si * 1024))
    for si in range(8):
        for qb in range(2):
            e.I(MFMA, S(0, qb), KF(1, si), qfrag(qb, si), 0 if si == 0 else S(0, qb))
        e.I("ds_write_b128", vQx, qfrag(0, si), mods="offset:%d" % (si * 1024))
    e.I("v_xor_b32", vQx, 8192, vQx)

    def mask_S_inplace(em, Sx, dq):
        for r0 in range(0, 16, 4):
            for i in range(4):
                em.I("v_cmp_ge_i32", MASKS[i], dq, CR[r0 + i])
            for i in range(4):
                em.I("v_cndmask_b32", Sx[r0 + i], vNinf, Sx[r0 + i], MASKS[i])

    def rowmax(em, Sx, dst, tmp):
        em.I("v_max3_f32", dst, Sx[0], Sx[1], Sx[2])
        for r in range(3, 15, 2):
            em.I("v_max3_f32", dst, dst, Sx[r], Sx[r + 1])
        em.I("v_max_f32", dst, dst, Sx[15])
        em.I("v_mov_b32", tmp, dst)
        em.I("v_permlane32_swap_b32", dst, tmp)
        em.I("v_max_f32", dst, dst, tmp)

    for qb in range(2):
        Sx = S(0, qb)
        if qb == 1:
            mask_S_inplace(e, Sx, vDq[1])
        rowmax(e, Sx, RT[0], RT[1])
        for r in range(16):
            e.I("v_sub_f32", Sx[r], Sx[r], RT[0])
        for r in range(16):
            e.I("v_sub_f32", NM(qb)[r], 0, RT[0])
    e.wait_lgkm0()
    stamp(e, 6)

    ret_labels = []

    def sm_stream(par, qb, masked):
        Sx, Px = S(par, qb), P(par, qb)
        out = []
        if masked:
            out.append(I("v_subrev_u32", vDqT[qb], sKv, vDq[qb]))

        def front(k):
            o = []
            if masked:
                o.append(I("v_cmp_ge_i32", MASKS[(2 * k) & 3], vDqT[qb], CR[2 * k]))
                o.append(I("v_cmp_ge_i32", MASKS[(2 * k + 1) & 3], vDqT[qb], CR[2 * k + 1]))
            o.append(I("v_exp_f32", ET[(2 * k) % 6], Sx[2 * k]))
            o.append(I("v_exp_f32", ET[(2 * k + 1) % 6], Sx[2 * k + 1]))
            return o

        def back(k):
            ta, tb = ET[(2 * k) % 6], ET[(2 * k + 1) % 6]
            o = []
            if masked:
                o.append(I("v_cndmask_b32", ta, 0, ta, MASKS[(2 * k) & 3]))
                o.append(I("v_cndmask_b32", tb, 0, tb, MASKS[(2 * k + 1) & 3]))
            if k == 0:
                o.append(I("v_add_f32", vTs[qb], ta, tb))
            else:
                o.append(I("v_add_f32", vTs[qb], vTs[qb], ta))
                o.append(I("v_add_f32", vTs[qb], vTs[qb], tb))
            o.append(I("v_cvt_pk_bf16_f32", Px[k], ta, tb))
            return o
        out += front(0)
        for k in range(8):
            if k + 1 < 8:
                out += front(k + 1)
            out += back(k)
        return out

    def qk_mfmas(par):
        return [I(MFMA, S(1 - par, qb), KF(par, si), qfrag(qb, si), NM(qb) if si == 0 else S(1 - par, qb))
                for si in range(8) for qb in range(2)]

    def pv_mfmas(par, first=(), order=None):
        ms = []
        for t in range(2):
            for b in range(4):
                for qb in range(2):
                    c = 0 if (qb in first and t == 0) else O(qb, b)
                    ms.append(I(MFMA, O(qb, b), VF(par, t, b), P(1 - par, qb).sub(4 * t, 4), c))
        return ms

    def k_reads(par, vaddr, off):
        return [I("ds_read_b128", KF(1 - par, si), vaddr, mods="offset:%d" % (off + si * 1024)) for si in range(8)]

    def v_reads(par, vaddr, off):
        return [I("ds_read_b128", VF(1 - par, si >> 2, si & 3), vaddr, mods="offset:%d" % (off + si * 1024))
                for si in range(8)]

    def step(par, name, qk, masks, pv, rds, dma, kvinc, pv_first=(), extra=(), tail=(), late_rd=True):
        ms = (qk_mfmas(par) if qk else []) + (pv_mfmas(par, pv_first) if pv else [])
        val = sm_stream(par, 0, masks[0]) + sm_stream(par, 1, masks[1])
        if "nords" in EXP:
            rds = []
        if "nodma" in EXP:
            dma = None
        if "nosm" in EXP:
            val = val[:4]
        cut = (len(val) * (9 if late_rd else 7)) // 10
        fill = merge(val[:cut], rds) + val[cut:]
        if extra:
            fill = merge(fill, list(extra))
        if dma:
            fill = merge(fill, dma)
        fill.append(I("v_max_f32", vTm, vTs[0], vTs[1]))
        fill.append(I("v_cmp_nge_f32", VCC, sThr, vTm))
        rid = len(ret_labels)
        ret_labels.append(("K2_RET_%s" % name, par))
        fill.append(I("s_mov_b32", sRet, rid))
        for qb in range(2):
            fill.append(I("v_add_f32", vL[1 - par][qb], vL[par][qb], vTs[qb]))
        fill += list(tail)
        interleave(e, ms, fill, close=True)
        e.I("s_cbranch_vccnz", "K2_RARE%d" % par)
        e.label("K2_RET_%s" % name)
        e.I("s_add_u32", sKv, sKv, kvinc)
        for x in EXP:
            if x.startswith("pad"):
                for _ in range(int(x[3:])):
                    e.I("s_nop", 15)

    def dma_group(kind, vdelta=16384):
        srd = s(S_K if kind == "K" else S_V, 4)
        sg = sKg if kind == "K" else sVg
        out = []
        if kind == "K":
            out.append(I("s_mov_b32", M0, sRot))
        else:
            out.append(I("s_sub_u32", sSt, sRot, vdelta))
            out.append(I("s_and_b32", sSt, sSt, 0xffff))
            out.append(I("s_add_u32", M0, sSt, 65536))
        for i in range(4):
            x = I("buffer_load_dwordx4", vl16, srd, sg, mods="offen offset:%d%s lds" % (1024 * i, KVS))
            x.cost = 16
            out.append(x)
        out.append(I("s_add_u32", sg, sg, 16384))
        return out

    def top():
        e.I("s_waitcnt", "vmcnt(16) lgkmcnt(0)")
        e.lgkm = []
        e.vm = []
        if "nobar" not in EXP:
            e.I("s_barrier")

    ROT = [I("s_add_u32", sRot, sRot, 16384), I("s_and_b32", sRot, sRot, 0xffff)]

    def iter1(name, maskB, first=False, last=False):
        top()
        step(0, name + "a", True, (False, maskB), not first,
             merge([] if last else k_reads(0, vKr, 0), v_reads(0, vVr, 0)), dma_group("K"), 32)
        tail = [I("v_add_u32", vVr, 65536, vKr), I("v_add_u32", vKr, 16384, vKr), I("v_and_b32", vKr, 0xffff, vKr),
                I("s_sub_u32", sCnt, sCnt, 1)] + ROT
        if last:
            rq = [I("ds_read_b128", qfrag(1, si), vQx, mods="offset:%d" % (si * 1024)) for si in range(8)]
            rds = [I("v_add_u32", vKx, sPw, vKr)] + merge(k_reads(1, vKx, 0), v_reads(1, vVr, 8192)) + rq
        else:
            rds = merge(k_reads(1, vKr, 8192), v_reads(1, vVr, 8192))
        step(1, name + "b", not last, (False, maskB), True, rds, dma_group("V"), 32,
             pv_first=(0, 1) if first else (), tail=tail, late_rd=False)

    def step2(par, name, masked, qk=True, pv=True, pv_first=(), extra=()):
        top()
        tail = [I("v_add_u32", vKr, 16384, vKr), I("v_and_b32", vKr, 0xffff, vKr),
                I("v_add_u32", vVr, 16384, vVr), I("v_and_b32", vVr, 0xffff, vVr), I("v_or_b32", vVr, 0x10000, vVr)] + ROT
        step(par, name, qk, (masked, masked), pv, merge(k_reads(par, vKr, 0), v_reads(par, vVr, 0)),
             dma_group("K") + dma_group("V", 32768), 64, pv_first=pv_first, extra=extra, tail=tail, late_rd=False)

    def loop(name, body):
        e.I("s_cmp_eq_u32", sCnt, 0)
        e.I("s_cbranch_scc1", "K2_%s_X" % name)
        e.label("K2_%s_L" % name)
        body()
        e.I("s_cmp_lg_u32", sCnt, 0)
        e.I("s_cbranch_scc1", "K2_%s_L" % name)
        e.label("K2_%s_X" % name)

    def ctx_store(qb_o, scale_regs, sbase, src2=None):
        out = []
        n = 0
        for b in range(4):
            for t in range(2):
                T = [RT[(n % 3) * 8 + 8 + r] for r in range(8)]
                Tq = v(RT[(n % 3) * 8 + 8].i, 4)
                n += 1
                for r in range(8):
                    out.append(I("v_accvgpr_read_b32", T[r], O(qb_o, b)[8 * t + r]))
                for r in range(8):
                    out.append(I("v_mul_f32", T[r], T[r], scale_regs[0]))
                if src2 is not None:
                    for r in range(8):
                        out.append(I("v_fmac_f32", T[r], src2[b * 16 + 8 * t + r], scale_regs[1]))
                for q in range(4):
                    out.append(I("v_cvt_pk_bf16_f32", T[q], T[2 * q], T[2 * q + 1]))
                off = (2 * b + t) * 1024
                if off % 4096 == 0:
                    out.append(I("s_add_u32", sTmp, sbase, off))
                out.append(I("buffer_store_dwordx4", Tq, vl16, s(S_WS, 4), sTmp, mods="offen offset:%d" % (off & 4095)))
        return out

    iter1("V0", True, first=True)
    e.I("s_lshl_b32", sCnt, sj, 1)
    e.I("s_sub_u32", sCnt, sCnt, 1)
    e.I("s_max_i32", sCnt, sCnt, 0)
    loop("V1", lambda: iter1("V1", False))
    e.I("s_min_u32", sCnt, sj, 1)
    loop("V2", lambda: iter1("V2", True))
    iter1("V2L", True, last=True)
    stamp(e, 7)
    top()
    e.I("v_add_u32", vNx, 49152, vVr)
    e.I("v_and_b32", vNx, 0xc000, vNx)
    e.I("v_lshlrev_b32", t0, 2, vl)
    e.I("v_add_u32", vNx, vNx, t0)
    e.I("s_lshl_b32", sT0, sw, 8)
    e.I("s_add_u32", sT0, sT0, 65536)
    e.I("v_add_u32", vNx, sT0, vNx)
    e.I("ds_write_b32", vNx, NM(0)[0])
    e.I("v_xor_b32", vNx, 256, vNx)
    e.I("v_mov_b32", RT[0], vL[0][1])
    e.I("v_mov_b32", RT[1], vL[0][1])
    e.I("v_mov_b32", vL[1][0], vL[0][0])
    e.I("v_permlane32_swap_b32", RT[0], RT[1])
    e.I("v_mov_b32", vL[1][1], 0)
    e.I("v_add_f32", RT[0], RT[0], RT[1])
    e.I("v_rcp_f32", vInvB, RT[0])
    e.I("v_add_u32", vKr, sPw, vKr)
    e.I("v_add_u32", vVr, sPw, vVr)
    e.I("s_lshr_b32", sT0, sPw, 8)
    e.I("s_add_u32", sKv, sKv, sT0)
    e.I("s_lshl_b32", sT0, sT0, 1)
    e.I("v_add_u32", vDq[1], 32, vDq[0])
    e.I("v_subrev_u32", vDq[1], sT0, vDq[1])
    pvm = pv_mfmas(0)
    pvB = [m for m in pvm if m.ops[0].i >= 64]
    pvA = [m for m in pvm if m.ops[0].i < 64]
    interleave(e, pvB, k_reads(0, vKr, 0) + dma_group("K"))
    e.wait_lgkm0()
    e.I("s_barrier")
    e.I("ds_read_b32", RT[2], vNx)
    interleave(e, pvA[:4], ROT + [I("v_add_u32", vKr, 16384, vKr), I("v_and_b32", vKr, 0xffff, vKr)])
    interleave(e, pvA[4:], [I("v_mov_b32", NM(1)[r], RT[2]) for r in range(16)])
    bepi = ctx_store(1, [vInvB], sCo[1])
    nb1 = len(bepi) // 2
    qkm = qk_mfmas(0)
    interleave(e, [m for m in qkm if m.ops[0].i == S(1, 0).i] + [m for m in qkm if m.ops[0].i == S(1, 1).i], bepi[:nb1])
    step2(1, "P0", True, pv=False, extra=bepi[nb1:])
    step2(0, "P1", True, pv_first=(1,))
    e.I("s_cmp_eq_u32", sj, 7)
    e.I("s_cbranch_scc1", "K2_DRAIN")
    e.I("s_lshl_b32", sCnt, sj, 1)
    e.I("s_sub_u32", sCnt, 13, sCnt)

    def p2():
        step2(1, "P2a", False)
        step2(0, "P2b", False, extra=[I("s_sub_u32", sCnt, sCnt, 1)])
    loop("P2", p2)
    step2(1, "P3", True)
    step2(0, "P4", True, qk=False)
    e.label("K2_DRAIN")
    e.I("s_waitcnt", "lgkmcnt(0)")
    e.lgkm = []
    for m in pv_mfmas(1):
        e.emit(m)
    stamp(e, 8)
    MS = 17408
    e.I("s_mul_i32", sT0, sw, MS)
    e.I("v_add_u32", vQx, sT0, vl16)
    e.I("v_lshlrev_b32", t0, 2, vl)
    e.I("v_add_u32", vNx, sT0, t0)
    e.I("s_waitcnt", "vmcnt(0)")
    e.I("s_barrier")
    e.I("ds_write_b32", vNx, NM(1)[0], mods="offset:16384")
    e.I("ds_write_b32", vNx, vL[1][1], mods="offset:16640")
    for b in range(4):
        for i in range(4):
            e.I("ds_write_b128", vQx, O(1, b).sub(4 * i, 4), mods="offset:%d" % ((b * 4 + i) * 1024))
    e.I("s_xor_b32", sT1, sw, 1)
    e.I("s_mul_i32", sT0, sT1, MS)
    e.I("v_add_u32", vQx, sT0, vl16)
    e.I("v_add_u32", vNx, sT0, t0)
    e.wait_lgkm0()
    e.I("s_barrier")
    nm2, l2, nm, f1, f2, lt, tq = RT[0], RT[1], RT[2], RT[3], RT[4], RT[5], RT[6]
    e.I("ds_read_b32", nm2, vNx, mods="offset:16384")
    e.I("ds_read_b32", l2, vNx, mods="offset:16640")
    O2 = SET[0]
    for i in range(16):
        e.I("ds_read_b128", O2.sub(4 * i, 4), vQx, mods="offset:%d" % (i * 1024))
    e.I("v_min_f32", nm, NM(0)[0], nm2)
    e.I("v_sub_f32", f1, nm, NM(0)[0])
    e.I("v_sub_f32", f2, nm, nm2)
    e.I("v_exp_f32", f1, f1)
    e.I("v_exp_f32", f2, f2)
    e.I("v_mul_f32", lt, vL[1][0], f1)
    e.I("v_fmac_f32", lt, l2, f2)
    e.I("v_mov_b32", tq, lt)
    e.I("v_permlane32_swap_b32", lt, tq)
    e.I("v_add_f32", lt, lt, tq)
    e.I("v_rcp_f32", lt, lt)
    e.I("v_mul_f32", f1, f1, lt)
    e.I("v_mul_f32", f2, f2, lt)
    emit_all(e, ctx_store(0, [f1, f2], sCo[0], src2=O2))
    stamp(e, 9)
    stamp_flush(e, 0 if fused else 1, s(S_WS, 4), sw, 10)
    e.I("s_endpgm")

    for par in range(2):
        e.label("K2_RARE%d" % par)
        e.vm, e.lgkm = [], []
        e.I("s_nop", 15)
        e.I("s_nop", 7)
        for qb in range(2):
            Sx, Sn, Px = S(par, qb), S(1 - par, qb), P(par, qb)
            dq, dl, f, tmp = RT[0], RT[1], RT[2], RT[3]
            e.I("v_subrev_u32", dq, sKv, vDq[qb])
            mask_S_inplace(e, Sx, dq)
            rowmax(e, Sx, dl, tmp)
            e.I("v_max_f32", dl, 0, dl)
            e.I("v_sub_f32", f, 0, dl)
            e.I("v_exp_f32", f, f)
            for r in range(16):
                e.I("v_sub_f32", Sx[r], Sx[r], dl)
            e.I("v_mul_f32", vL[1 - par][qb], vL[par][qb], f)
            for r in range(16):
                e.I("v_exp_f32", RT[8 + r], Sx[r])
            for r in range(16):
                e.I("v_sub_f32", Sn[r], Sn[r], dl)
            for r in range(16):
                e.I("v_add_f32", vL[1 - par][qb], vL[1 - par][qb], RT[8 + r])
            for k in range(8):
                e.I("v_cvt_pk_bf16_f32", Px[k], RT[8 + 2 * k], RT[9 + 2 * k])
            for r in range(16):
                e.I("v_sub_f32", NM(qb)[r], NM(qb)[r], dl)
            for b in range(4):
                for r0 in range(0, 16, 8):
                    for r in range(8):
                        e.I("v_accvgpr_read_b32", RT[8 + r], O(qb, b)[r0 + r])
                    for r in range(8):
                        e.I("v_mul_f32", RT[8 + r], RT[8 + r], f)
                    for r in range(8):
                        e.I("v_accvgpr_write_b32", O(qb, b)[r0 + r], RT[8 + r])
        e.I("s_nop", 3)
        mine = [(i, l) for i, (l, pp) in enumerate(ret_labels) if pp == par]
        for i, l in mine[:-1]:
            e.I("s_cmp_eq_u32", sRet, i)
            e.I("s_cbranch_scc1", l)
        e.I("s_branch", mine[-1][1])
    e.label(END)
    e.I("s_endpgm")
    return e.text(), dict(vgpr=512, sgpr=102, accum=256, grid=256, block=256, lds=163840)
```

```python
import sys, math
sys.path.insert(0, "dev")
from asmlib import *

NAME = "recurrent_scan__compressed_kv_cla__geglu_ffn__prompt"
WS_XN = 0x0000000
WS_K = 0x0200000
WS_V = 0x1200000
WS_A3 = 0x2200000
WS_BYTES = 0x10000000
MFMA = "v_mfma_f32_32x32x16_bf16"

P_X, P_CKV, P_WQ, P_WUK, P_WUV, P_WO, P_BX, P_WG, P_WU, P_WD, P_OUT, P_DBG, P_WS = [4 + 2 * i for i in range(13)]


def I(op, *ops, mods="", tag=None, comment=None):
    return Inst(op, ops, mods, tag, comment)


def emit_all(e, lst):
    for x in lst:
        if isinstance(x, tuple):
            x = x[1]
        if isinstance(x, Inst):
            e.emit(x)
        else:
            x(e)


PROFILE = False
STAMP_MAP = None
STAMP_RT = False
GEXP = set()
FUSE = True
S_DBG = 96
PACE = 2
FAST0 = 96
WS_PROF = 0x8000000


def stamp(e, idx):
    if not PROFILE:
        return
    if STAMP_MAP is not None:
        if idx not in STAMP_MAP:
            return
        idx = STAMP_MAP[idx]
    assert idx < 10
    e.wait_lgkm0()
    e.I("s_memrealtime" if STAMP_RT else "s_memtime", s(82, 2))
    e.I("s_waitcnt", "lgkmcnt(0)")
    e.I("s_mov_b32", s(84 + idx), s(82))
    if idx == 0:
        e.I("s_memrealtime", s(82, 2))
        e.I("s_waitcnt", "lgkmcnt(0)")
        e.I("s_mov_b32", s(94), s(82))


def stamp_flush(e, kidx, srd_ws, sw, n, vt=(v(2), v(3))):
    if not PROFILE:
        return
    e.wait_all()
    e.I("s_memrealtime", s(82, 2))
    e.I("s_waitcnt", "lgkmcnt(0)")
    e.I("s_mov_b32", s(95), s(82))
    e.I("s_lshl_b32", s(82), s(2), 2)
    e.I("s_add_u32", s(82), s(82), sw)
    e.I("s_lshl_b32", s(82), s(82), 6)
    e.I("s_add_u32", s(82), s(82), WS_PROF + kidx * 65536)
    e.I("v_mov_b32", vt[1], 0)
    for i in list(range(n)) + [14, 15]:
        e.I("v_mov_b32", vt[0], s(84 + i if i < 10 else 80 + i))
        e.I("buffer_store_dword", vt[0], vt[1], srd_ws, s(82), mods="offen offset:%d" % (4 * i))


def prologue(e, nwg, endlabel):
    e.I("s_cmp_ge_u32", s(2), nwg)
    e.I("s_cbranch_scc1", endlabel)
    e.I("s_load_dwordx16", s(4, 16), s(0, 2), 0)
    e.I("s_load_dwordx8", s(20, 8), s(0, 2), 64)
    e.I("s_load_dwordx2", s(28, 2), s(0, 2), 96)


PF_CODE = True
PF_W = True
PF_TLB = False
PF_IN = False


class Untracked:
    def __init__(self, inst):
        self.inst = inst
        self.cost = 8
        self.tag = "pf"

    def __call__(self, em):
        if len(em.vm) >= 63:
            em._emit_wait(vm=62)
        em.raw(self.inst)
        em.vm.append((set(), "pf"))


def code_prefetch(e, name, first, last, sbase, vtmp, vdst, nload):
    if not PF_CODE:
        return
    lab = "L_pc_" + name
    e.I("s_getpc_b64", sbase)
    e.label(lab)
    e.I("s_add_u32", sbase[0], sbase[0], "%s-%s" % (first, lab))
    e.I("s_addc_u32", sbase[1], sbase[1], -1)
    e.I("s_lshr_b32", s(3), s(2), 3)
    e.I("s_lshl_b32", s(3), s(3), 12)
    e.I("v_lshlrev_b32", vtmp, 4, v(0))
    e.I("v_add_u32", vtmp, s(3), vtmp)
    for i in range(nload):
        if i:
            e.I("v_add_u32", vtmp, 131072, vtmp)
        e.I("v_min_u32", vtmp, "%s-%s-16" % (last, first), vtmp)
        Untracked(I("global_load_dwordx4", vdst, vtmp, sbase))(e)


def make_srd(e, d, p, nbytes):
    e.I("s_mov_b32", s(d), s(p))
    e.I("s_mov_b32", s(d + 1), s(p + 1))
    e.I("s_mov_b32", s(d + 2), nbytes)
    e.I("s_mov_b32", s(d + 3), 0x20000)


def head_j(e, sh, sj, t0, t1):
    e.I("s_and_b32", t0, s(2), 7)
    e.I("s_lshl_b32", t0, t0, 2)
    e.I("s_bfe_u32", t1, s(2), (2 << 16) | 3)
    e.I("s_add_u32", sh, t0, t1)
    e.I("s_lshr_b32", sj, s(2), 5)


def tr_addr(e, dst0, dst1, vl, tmp, base, kperm):
    t0, t1, t2 = tmp
    e.I("v_lshrrev_b32", t0, 5, vl)
    e.I("v_lshlrev_b32", t0, (2 if kperm else 3) + 7, t0)
    e.I("v_bfe_u32", t1, vl, 2, 2)
    e.I("v_lshlrev_b32", t1, 7, t1)
    e.I("v_add_u32", t0, t0, t1)
    e.I("v_bfe_u32", t1, vl, 4, 1)
    e.I("v_lshlrev_b32", t1, 5, t1)
    e.I("v_add_u32", t0, t0, t1)
    e.I("v_and_b32", t1, 3, vl)
    e.I("v_lshlrev_b32", t1, 3, t1)
    e.I("v_add_u32", t0, t0, t1)
    if base is not None and not (isinstance(base, int) and base == 0):
        e.I("v_add_u32", t0, base, t0)
    e.I("v_bfe_u32", t2, vl, 3, 1)
    e.I("v_lshlrev_b32", t2, 6, t2)
    e.I("v_add_u32", dst0, t0, t2)
    e.I("v_xor_b32", t2, 64, t2)
    e.I("v_add_u32", dst1, t0, t2)


def wdma_voff(e, dsts, vl, tmp, rs):
    t0, t1 = tmp
    e.I("v_lshrrev_b32", t0, 3, vl)
    e.I("v_mul_u32_u24", t0, rs, t0)
    e.I("v_bfe_u32", t1, vl, 4, 1)
    e.I("v_lshlrev_b32", t1, 2, t1)
    e.I("v_xor_b32", t1, t1, vl)
    e.I("v_and_b32", t1, 7, t1)
    e.I("v_lshlrev_b32", t1, 4, t1)
    e.I("v_add_u32", dsts[0], t0, t1)
    for i in range(1, len(dsts)):
        e.I("v_add_u32", dsts[i], 8 * rs - 1024, dsts[i - 1])


def signal(e, sw, soff, name, vone):
    e.I("s_cmp_lg_u32", sw, 0)
    e.I("s_cbranch_scc1", "L_sig_" + name)
    e.I("s_mov_b64", EXEC, 1)
    e.I("v_mov_b32", vone, 1)
    e.raw(I("buffer_atomic_add", vone, "off", s(S_DBG, 4), soff))
    e.I("s_mov_b64", EXEC, -1)
    e.label("L_sig_" + name)


def poll_issue(e, vp, soff):
    e.I("buffer_load_dword", vp, "off", s(S_DBG, 4), soff, mods="sc1")


def poll_check(e, vp, soff, target, name, st, sspin):
    e.I("v_readfirstlane_b32", st, vp)
    e.I("s_cmp_ge_u32", st, target)
    e.I("s_cbranch_scc1", "L_pollx_" + name)
    e.I("s_mov_b32", sspin, 1 << 16)
    e.label("L_poll_" + name)
    e.raw(I("buffer_load_dword", vp, "off", s(S_DBG, 4), soff, mods="sc1"))
    e.raw(I("s_waitcnt", "vmcnt(0)"))
    e.I("v_readfirstlane_b32", st, vp)
    e.I("s_sub_u32", sspin, sspin, 1)
    e.I("s_cmp_eq_u32", sspin, 0)
    e.I("s_cbranch_scc1", "L_pollx_" + name)
    e.I("s_cmp_ge_u32", st, target)
    e.I("s_cbranch_scc1", "L_pollx_" + name)
    e.I("s_sleep", 2)
    e.I("s_branch", "L_poll_" + name)
    e.label("L_pollx_" + name)


class Seg:
    def __init__(self, nb, role, acc, src, fill=()):
        self.nb, self.role, self.acc, self.src, self.fill = nb, role, acc, src, list(fill)
        self.kps = 4 if nb == 4 else 8
        self.nst = 32 // self.kps


class Gemm:
    def __init__(self, e, ns, vtr, pool, s_m0, s_tmp, segs):
        self.e, self.ns, self.vtr, self.pool = e, ns, vtr, pool
        self.s_m0, self.s_tmp, self.segs = s_m0, s_tmp, segs
        self.ks = []
        self.stages = []
        for sg in segs:
            g0 = len(self.stages)
            for st in range(sg.nst):
                self.stages.append((sg, st))
            for sidx in range(32):
                self.ks.append((sg, sidx, g0 + sidx // sg.kps, sidx % sg.kps))

    def xfrag(self, rb, sidx):
        return a((rb * 32 + sidx) * 4, 4)

    def wfrag(self, t, nb):
        return self.pool.sub(((t & 1) * 4 + nb) * 4, 4)

    def w_reads(self, t):
        sg, sidx, g, sl = self.ks[t]
        out = []
        for nb in range(sg.nb):
            half, seg = nb >> 1, nb & 1
            f = self.wfrag(t, nb)
            for p in range(2):
                off = (g % self.ns) * 16384 + half * 8192 + (16 * sl + 4 * p) * 128
                out.append(I("ds_read_b64_tr_b16", f.sub(2 * p, 2), self.vtr[seg], mods="offset:%d" % off))
        return out

    def w_dma(self, g):
        sg, st = self.stages[g]
        src = sg.src
        out = [I("s_add_u32", M0, self.s_m0, (g % self.ns) * 16384),
               I("s_add_u32", self.s_tmp, src["s_base"], st * src["stage_stride"])]
        for i in range(4):
            out.append(I("buffer_load_dwordx4", src["voff"][i], src["srd"], self.s_tmp,
                         mods="offen offset:%d lds" % (1024 * i), tag=("W", g)))
        return out

    def mfmas(self, t):
        sg, sidx, g, sl = self.ks[t]
        out = []
        for nb in range(sg.nb):
            for rb in range(2):
                d = sg.acc(rb, nb)
                c = 0 if sidx == 0 else d
                w, x = self.wfrag(t, nb), self.xfrag(rb, sidx)
                out.append(I(MFMA, d, w, x, c) if sg.role == "WX" else I(MFMA, d, x, w, c))
        return out

    def run(self, hook=None, seg_end=None, queue=None, released=None, on_barrier=None, pace=2, pre_barrier=None):
        e = self.e
        nt = len(self.ks)
        nstage = len(self.stages)
        q = self.q = list(queue or [])
        rel = self.rel = set(released or [])
        st = {"n": 0, "last": -99}

        def need(key):
            while any(k == key for k, _ in q):
                k, insts = q.pop(0)
                assert k in rel, ("job needed before its slot is released", k)
                emit_all(e, insts)
            e.wait_vm_tag(lambda tg: tg == key)
        self.need = need

        def tick(em):
            st["n"] += 1
            backlog = sum(1 for k, _ in q[:14] if k in rel)
            if q and q[0][0] in rel and st["n"] - st["last"] >= (pace if (backlog < 14 and st["n"] > FAST0) else pace - 1):
                k, insts = q.pop(0)
                emit_all(e, insts)
                st["last"] = st["n"]
        tick.cost = 0
        need(("W", 0))
        e.I("s_barrier")
        emit_all(e, self.w_reads(0))
        for t in range(nt):
            sg, sidx, g, sl = self.ks[t]
            last = sl == sg.kps - 1
            if last and t + 1 < nt:
                if "g_nolgkm" not in GEXP:
                    e.wait_lgkm0()
                need(("W", g + 1))
                if pre_barrier:
                    pre_barrier(g)
                if "g_nobar" not in GEXP:
                    e.I("s_barrier")
                rel.add(("W", g + self.ns))
                if on_barrier:
                    on_barrier(g)
            rd = self.w_reads(t + 1) if t + 1 < nt else []
            ex = hook(t) if hook else []
            n = len(sg.fill)
            sf = sg.fill[(sidx * n) // 32: ((sidx + 1) * n) // 32]
            if "g_novalu" in GEXP:
                sf = [x for x in sf if not (isinstance(x, Inst) and x.kind in ("valu", "trans") and x.ops[0].i >= 17 and t >= 32)]
            if "g_nostore" in GEXP:
                sf = [x for x in sf if not (isinstance(x, Inst) and x.op.startswith("buffer_store") and t >= 32)]
            if "g_nord" in GEXP and t >= 32:
                rd = rd[:1]
            ex = ex + sf
            fill = merge(rd, ex)
            ms = []
            for m in self.mfmas(t):
                ms.append(Both(m, tick))
            interleave(e, ms, fill)
            if sidx == 31 and seg_end:
                seg_end(sg)

    def w_jobs(self, g):
        ins = self.w_dma(g)
        return [(("W", g), ins[0:3])] + [(("W", g), [x]) for x in ins[3:]]


class Both:
    def __init__(self, m, f):
        self.m, self.f = m, f
        self.cost = 8

    def __call__(self, em):
        em.emit(self.m)
        self.f(em)


def merge(x, y):
    out = []
    i = j = 0
    while i < len(x) or j < len(y):
        if j >= len(y) or (i < len(x) and i * len(y) <= j * len(x)):
            out.append(x[i]); i += 1
        else:
            out.append(y[j]); j += 1
    return out


def cvt_inplace(d, hh):
    return [I("v_cvt_pk_bf16_f32", d[8 * hh + q], d[8 * hh + 2 * q], d[8 * hh + 2 * q + 1]) for q in range(4)]


def gen_k1(e=None):
    global STAMP_MAP
    fused = e is not None
    if not fused:
        e = Emitter()
    END = "K2_END" if fused else "K1_END"
    STAMP_MAP = {0: 0, 3: 1, 6: 2} if fused else None
    prologue(e, 256, END)
    S_X, S_CKV, S_WK, S_WV, S_WS = 32, 36, 40, 44, 48
    sw, sh, sj = s(52), s(53), s(54)
    vl, vl16 = v(1), v(2)
    t0, t1, t2 = v(3), v(4), v(5)
    SET = [v(64, 64), v(128, 64), v(192, 64)]
    pool = v(32, 32)
    PFD = v(28, 4)
    code_prefetch(e, "k1", "ka_kernel" if fused else "k1_kernel", "TEXT_END", s(30, 2), t0, PFD, 1)
    e.I("v_and_b32", vl, 63, v(0))
    e.I("v_lshrrev_b32", t0, 6, v(0))
    e.I("v_lshlrev_b32", vl16, 4, vl)
    e.I("v_readfirstlane_b32", sw, t0)
    head_j(e, sh, sj, s(55), s(56))
    XS_BASE, XS_W = 65536, 24576
    vXd = [v(8), v(9)]
    e.I("v_lshrrev_b32", t0, 3, vl)
    e.I("v_lshlrev_b32", t1, 10, t0)
    e.I("v_lshrrev_b32", t0, 1, t0)
    e.I("v_xor_b32", t0, t0, vl)
    e.I("v_and_b32", t0, 7, t0)
    e.I("v_lshlrev_b32", t2, 4, t0)
    e.I("v_add_u32", vXd[0], t1, t2)
    e.I("v_xor_b32", t2, 64, t2)
    e.I("v_add_u32", vXd[1], t1, t2)
    sXrow = [s(60 + i) for i in range(8)]
    e.I("s_lshl_b32", s(58), sj, 18)
    e.I("s_lshl_b32", s(59), sw, 16)
    e.I("s_add_u32", s(58), s(58), s(59))
    for i in range(8):
        e.I("s_add_u32", sXrow[i], s(58), i * 8192 - (i & 3) * 1024)
    sXlds = s(68)
    e.I("s_mul_i32", sXlds, sw, XS_W)
    e.I("s_add_u32", sXlds, sXlds, XS_BASE)
    vW = [v(24 + i) for i in range(4)]
    wdma_voff(e, vW, vl, (t0, t1), 8192)
    sWb, sM0, sTmp, sWb2, sWb3 = s(69), s(70), s(71), s(80), s(81)
    e.I("s_and_b32", s(72), sw, 1)
    e.I("s_lshl_b32", s(72), s(72), 18)
    e.I("s_lshr_b32", s(73), sw, 1)
    e.I("s_lshl_b32", s(73), s(73), 7)
    e.I("s_lshl_b32", s(74), sh, 8)
    e.I("s_add_u32", sWb, s(74), s(72))
    e.I("s_add_u32", sWb, sWb, s(73))
    e.I("s_lshl_b32", s(72), sw, 18)
    e.I("s_add_u32", sWb2, s(74), s(72))
    e.I("s_add_u32", sWb3, sWb2, 128)
    e.I("s_lshl_b32", sM0, sw, 12)
    e.I("s_waitcnt", "lgkmcnt(0)")
    make_srd(e, S_CKV, P_CKV, 2048 * 1024)
    make_srd(e, S_WK, P_WUK, 512 * 8192)
    stamp(e, 0)

    def x_dma(p):
        out = []
        for i in range(8):
            if i % 4 == 0:
                out.append(I("s_add_u32", M0, sXlds, (p % 3) * 8192 + (i >> 2) * 4096))
            out.append(I("buffer_load_dwordx4", vXd[i & 1], s(S_CKV, 4), sXrow[i],
                         mods="offen offset:%d lds" % (1024 * (i & 3)), tag=("X", p)))
        out.append(I("v_add_u32", vXd[0], 128, vXd[0]))
        out.append(I("v_add_u32", vXd[1], 128, vXd[1]))
        return out

    vXr = [v(10 + i) for i in range(4)]

    def x_reads(p):
        out = [(lambda em: G.need(("X", p))) if p else (lambda em: em.wait_vm_tag(lambda tg: tg == ("X", p)))]
        for sl in range(4):
            for rb in range(2):
                out.append(I("ds_read_b128", a((rb * 32 + 4 * p + sl) * 4, 4), vXr[sl],
                             mods="offset:%d" % ((p % 3) * 8192 + rb * 4096)))
        return out

    srcK = dict(srd=s(S_WK, 4), voff=vW, s_base=sWb, stage_stride=64 * 8192)
    srcV0 = dict(srd=s(S_WV, 4), voff=vW, s_base=sWb2, stage_stride=128 * 8192)
    srcV1 = dict(srd=s(S_WV, 4), voff=vW, s_base=sWb3, stage_stride=128 * 8192)
    vtr = [v(14), v(15)]
    accA = lambda rb, nb: SET[rb].sub(nb * 16, 16)
    accB = lambda rb, nb: SET[2].sub((rb * 2 + nb) * 16, 16)
    accC = lambda rb, nb: SET[0].sub((rb * 2 + nb) * 16, 16)
    sKo, sVo, sSt = s(76), s(77), s(79)

    def store_block(d, sbase, rb, idxs):
        out = []
        for hh in range(2):
            out += cvt_inplace(d, hh)
            off = rb * 8192 + idxs[hh] * 1024
            out.append(I("s_add_u32", sSt, sbase, off & ~4095))
            out.append(I("buffer_store_dwordx4", d.sub(8 * hh, 4), vl16, s(S_WS, 4), sSt,
                         mods="offen offset:%d" % (off & 4095), tag="kv"))
        return out
    epiA = []
    for rb in range(2):
        for nb in range(4):
            epiA += store_block(accA(rb, nb), sKo, rb, (2 * nb, 2 * nb + 1))
    epiB, epiC = [], []
    for rb in range(2):
        for nb in range(2):
            epiB += store_block(accB(rb, nb), sVo, rb, (nb, 4 + nb))
            epiC += store_block(accC(rb, nb), sVo, rb, (2 + nb, 6 + nb))

    Z = SET[2]
    vLNa, vLNs = v(6), v(7)
    LN0, LN1 = Z.sub(0, 4), Z.sub(4, 4)
    X = [Z[8 + i] for i in range(16)]
    D = [Z[24 + i] for i in range(16)]
    sm, sw2, mean, var, pk, mb, vb, sd, rc = [Z[40 + i] for i in range(9)]
    ln = []
    A_ = lambda *x, **k: ln.append(I(*x, **k))
    for i in range(4):
        A_("v_lshlrev_b32", X[2 * i], 16, LN0[i])
        A_("v_and_b32", X[2 * i + 1], 0xffff0000, LN0[i])
        A_("v_lshlrev_b32", X[8 + 2 * i], 16, LN1[i])
        A_("v_and_b32", X[8 + 2 * i + 1], 0xffff0000, LN1[i])

    def allreduce32(r):
        for off in (0x041F, 0x081F, 0x101F, 0x201F, 0x401F):
            A_("ds_swizzle_b32", sw2, r, mods="offset:0x%04x" % off)
            A_("v_nop"); A_("v_nop"); A_("v_nop")
            A_("v_add_f32", r, r, sw2)
    A_("v_add_f32", sm, X[0], X[1])
    for i in range(2, 16):
        A_("v_add_f32", sm, sm, X[i])
    allreduce32(sm)
    A_("v_mul_f32", mean, 1.0 / 512, sm)
    for i in range(16):
        A_("v_sub_f32", D[i], X[i], mean)
    A_("v_mul_f32", sm, D[0], D[0])
    for i in range(1, 16):
        A_("v_fmac_f32", sm, D[i], D[i])
    allreduce32(sm)
    A_("v_mul_f32", var, 1.0 / 512, sm)
    A_("v_cvt_pk_bf16_f32", pk, mean, var)
    A_("v_lshlrev_b32", mb, 16, pk)
    A_("v_and_b32", vb, 0xffff0000, pk)
    A_("v_add_f32", vb, 1e-5, vb)
    A_("v_cvt_pk_bf16_f32", pk, vb, vb)
    A_("v_lshlrev_b32", vb, 16, pk)
    A_("v_sqrt_f32", vb, vb)
    A_("v_cvt_pk_bf16_f32", pk, vb, vb)
    A_("v_lshlrev_b32", sd, 16, pk)
    A_("v_rcp_f32", rc, sd)
    for i in range(16):
        A_("v_sub_f32", D[i], X[i], mb)
    for i in range(8):
        A_("v_cvt_pk_bf16_f32", pk, D[2 * i], D[2 * i + 1])
        A_("v_lshlrev_b32", D[2 * i], 16, pk)
        A_("v_and_b32", D[2 * i + 1], 0xffff0000, pk)
    for i in range(16):
        A_("v_mul_f32", X[i], D[i], rc)
        A_("v_fma_f32", D[i], Neg(X[i]), sd, D[i])
        A_("v_fmac_f32", X[i], D[i], rc)
    for i in range(4):
        A_("v_cvt_pk_bf16_f32", LN0[i], X[2 * i], X[2 * i + 1])
        A_("v_cvt_pk_bf16_f32", LN1[i], X[8 + 2 * i], X[8 + 2 * i + 1])
    A_("buffer_store_dwordx4", LN0, vLNs, s(S_WS, 4), s(74), mods="offen", tag="ln")
    A_("buffer_store_dwordx4", LN1, vLNs, s(S_WS, 4), s(75), mods="offen", tag="ln")
    ln = [x for x in ln if x.op != "v_nop"]
    pad = [lambda em: None] * (len(ln) // 2)
    for p_ in pad:
        pass
    segs = [Seg(4, "WX", accA, srcK, pad + ln), Seg(2, "XW", accB, srcV0, epiA), Seg(2, "XW", accC, srcV1, epiB)]
    G = Gemm(e, 4, vtr, pool, sM0, sTmp, segs)
    emit_all(e, x_dma(0))
    emit_all(e, G.w_dma(0))
    emit_all(e, x_dma(1))
    emit_all(e, G.w_dma(1))

    def x_jobs(p):
        ins = x_dma(p)
        k = ("X", p)
        return [(k, ins[0:2]), (k, [ins[2]]), (k, [ins[3]]), (k, [ins[4]]), (k, ins[5:7]), (k, [ins[7]]), (k, [ins[8]]),
                (k, ins[9:12])]
    queue = []
    for g in range(2, 16):
        if g < 8:
            queue += x_jobs(g)
        queue += G.w_jobs(g)
    make_srd(e, S_X, P_X, 2048 * 1024)
    make_srd(e, S_WV, P_WUV, 512 * 8192)
    make_srd(e, S_WS, P_WS, WS_BYTES)
    if fused:
        make_srd(e, S_DBG, P_DBG, 256)
    e.I("v_lshrrev_b32", t0, 5, v(0))
    e.I("v_lshlrev_b32", t1, 10, t0)
    e.I("v_and_b32", t2, 31, vl)
    e.I("v_lshlrev_b32", vLNa, 4, t2)
    e.I("v_add_u32", vLNa, vLNa, t1)
    e.I("v_lshrrev_b32", t1, 1, t2)
    e.I("v_lshlrev_b32", t1, 10, t1)
    e.I("v_and_b32", t2, 1, t2)
    e.I("v_lshlrev_b32", t2, 9, t2)
    e.I("v_add_u32", t1, t1, t2)
    e.I("v_lshlrev_b32", t0, 4, t0)
    e.I("v_add_u32", vLNs, t1, t0)
    e.I("s_lshl_b32", s(57), s(2), 13)
    e.I("buffer_load_dwordx4", LN0, vLNa, s(S_X, 4), s(57), mods="offen")
    e.I("buffer_load_dwordx4", LN1, vLNa, s(S_X, 4), s(57), mods="offen offset:512")
    if PF_TLB:
        e.I("s_cmp_eq_u32", sw, 0)
        e.I("s_cselect_b32", s(74), 20, 4)
        e.I("v_lshlrev_b32", t0, s(74), vl)
        e.I("s_mov_b32", s(75), 64 << 20)
        Untracked(I("buffer_load_dword", PFD[0], t0, s(S_WS, 4), 0, mods="offen"))(e)
        Untracked(I("buffer_load_dword", PFD[0], t0, s(S_WS, 4), s(75), mods="offen"))(e)
    e.I("s_lshr_b32", s(74), s(2), 2)
    e.I("s_lshl_b32", s(74), s(74), 15)
    e.I("s_and_b32", s(75), s(2), 3)
    e.I("s_lshl_b32", s(75), s(75), 7)
    e.I("s_add_u32", s(74), s(74), s(75))
    if WS_XN:
        e.I("s_add_u32", s(74), s(74), WS_XN)
    e.I("s_add_u32", s(75), s(74), 16384)
    e.I("v_and_b32", t0, 31, vl)
    e.I("v_lshlrev_b32", t1, 7, t0)
    e.I("v_add_u32", t1, sXlds, t1)
    e.I("v_bfe_u32", t0, vl, 1, 3)
    e.I("v_lshrrev_b32", t2, 5, vl)
    e.I("v_xor_b32", t0, t0, t2)
    for sl in range(4):
        e.I("v_xor_b32", t2, 2 * sl, t0)
        e.I("v_lshlrev_b32", t2, 4, t2)
        e.I("v_add_u32", vXr[sl], t1, t2)
    tr_addr(e, vtr[0], vtr[1], vl, (t0, t1, t2), 0, False)
    e.I("s_lshl_b32", s(78), sh, 6)
    e.I("s_lshl_b32", s(79), sj, 3)
    e.I("s_add_u32", s(78), s(78), s(79))
    e.I("s_lshl_b32", s(79), sw, 1)
    e.I("s_add_u32", s(78), s(78), s(79))
    e.I("s_lshl_b32", s(78), s(78), 13)
    e.I("s_add_u32", sKo, s(78), WS_K)
    e.I("s_add_u32", sVo, s(78), WS_V)
    stamp(e, 1)
    emit_all(e, x_reads(0))
    stamp(e, 2)

    def hook(t):
        g, sl = t >> 2, t & 3
        out = []
        if t < 32:
            if g < 7 and sl == 2:
                out += x_reads(g + 1)
        elif PF_W and t % 8 == 1:
            n = (t - 32) // 8
            if n == 0:
                out.append(I("s_lshl_b32", s(31), s(2), 2))
                out.append(I("s_add_u32", s(31), s(31), sw))
                out.append(I("s_lshl_b32", s(30), s(31), 12))
                out.append(I("s_lshl_b32", s(31), s(31), 11))
            p_, nbytes, so, off = ((P_WQ, 512 * 8192, s(30), n * 1024) if n < 4 else
                                   (P_WG if n < 6 else P_WU, 512 * 3584, s(31), (n & 1) * 1024))
            if n in (0, 4, 6):
                out += [I("s_mov_b32", s(S_X), s(p_)), I("s_mov_b32", s(S_X + 1), s(p_ + 1)),
                        I("s_mov_b32", s(S_X + 2), nbytes)]
            out.append(Untracked(I("buffer_load_dwordx4", PFD, vl16, s(S_X, 4), so, mods="offen offset:%d" % off)))
        return out
    cnt = [3]

    def seg_end(sg):
        stamp(e, cnt[0]); cnt[0] += 1
    def on_barrier(g):
        G.rel.add(("X", g + 3))
        G.rel.add(("X", g + 4))
        if fused and g == 10:
            signal(e, sw, 0, "ln", v(22))
        if fused and g == 13:
            poll_issue(e, v(23), 0)

    def pre_barrier(g):
        if fused and g == 10:
            e.wait_vm_tag(lambda tg: tg == "ln")
    G.run(hook, seg_end, queue=queue, released={("W", 2), ("W", 3), ("X", 2)},
          on_barrier=on_barrier, pace=PACE, pre_barrier=pre_barrier)
    emit_all(e, epiC)
    stamp(e, 6)
    if fused:
        return
    if PROFILE:
        e.wait_all()
    stamp(e, 7)
    stamp_flush(e, 0, s(S_WS, 4), sw, 8)
    e.label(END)
    e.I("s_endpgm")
    return e.text(), dict(vgpr=512, sgpr=102, accum=256, grid=256, block=256, lds=163840)


def gen_ka():
    import gen_ka as m
    return m.gen_ka()


KERNELS = [("k1_kernel", gen_k1)]
try:
    from gen_k2 import gen_k2
    KERNELS.append(("k2_kernel", gen_k2))
    from gen_k3 import gen_k3, gen_k4
    KERNELS.append(("k3_kernel", gen_k3))

except ImportError as ex:
    print("note:", ex)


def build(kernels=None):
    ks = KERNELS if kernels is None else kernels
    if FUSE:
        ks = [("ka_kernel", gen_ka)] + ks[2:]
    hdr = open("cdna_kernels/%s.s.ref" % NAME).read().split("; Override")[0]
    out = [hdr]
    bodies, descs = [], []
    for name, fn in ks:
        txt, d = fn()
        out.append("; @launch kernel=%s grid=(%d,1,1) block=(%d,1,1) lds=%d\n" % (name, d["grid"], d["block"], d["lds"]))
        bodies.append(kernel_header(name) + txt)
        descs.append(".p2align 6" + kernel_desc(name, d["vgpr"], d["sgpr"], d["accum"]))
    out.append('.amdgcn_target "amdgcn-amd-amdhsa--gfx950"\n.text\n')
    out += bodies
    out.append("TEXT_END:\n")
    out.append('.section .rodata,"a"\n')
    out += descs
    return "".join(out)
```

```python
import sys
sys.path.insert(0, "dev")
from asmlib import *
import gen
from gen import *

LOG2E = 1.4426950408889634
QSCALE = LOG2E / (128 ** 0.5)
GC1 = -2.0 * (2.0 / math.pi) ** 0.5 * LOG2E
GC2 = GC1 * 0.044715
THRESH = float(2 ** 24)
CR = [(r & 3) + 8 * (r >> 2) for r in range(16)]
EXP = set()


def gen_ka():
    e = Emitter()
    fused = True
    END = "K2_END"
    KVS = " sc1"
    gen.STAMP_MAP = None
    prologue(e, 256, END)
    S_WS, S_A, S_B, S_C, S_K, S_V = 32, 36, 40, 44, 48, 52
    sw, sh, sj = s(56), s(57), s(58)
    sM0, sTmp, sSt = s(59), s(60), s(61)
    sXA, sXB = s(62), s(63)
    sWgu, sWq0, sWq1 = s(64), s(65), s(66)
    sHo = [s(67), s(68)]
    sCo = [s(69), s(70)]
    sKg, sVg, sRot = s(71), s(72), s(73)
    sCnt, sKv, sRet, sBact, sThr = s(74), s(75), s(76), s(77), s(78)
    sT0, sT1 = s(79), s(80)
    sQA, sQB, sHc = s(81), s(30), s(31)
    MASKS = [s(40, 2), s(42, 2), s(44, 2), s(46, 2)]
    sXrow = [s(71 + i) for i in range(8)]
    sXlds, sWb = s(67), s(68)
    sWb2, sWb3 = s(69), s(70)
    sKo, sVo = s(100), s(101)
    sLN0, sLN1 = s(64), s(65)
    vl, vl16 = v(1), v(2)
    t0, t1, t2 = v(3), v(4), v(5)
    vtr = [v(6), v(7)]
    vWg = [v(8 + i) for i in range(4)]
    vWq = [v(12 + i) for i in range(4)]
    vC2 = v(16)
    GT = [v(17 + i) for i in range(8)]
    vXd = [v(17), v(18)]
    vXr = [v(19 + i) for i in range(4)]
    vLNa, vLNs = v(23), v(24)
    vPl, vOne, vPk = v(25), v(26), v(27)
    PFD = v(28, 4)
    X_, Y_, Z_ = v(64, 64), v(128, 64), v(192, 64)
    SET = [Y_, Z_, X_]
    pool = v(32, 32)
    WR = 98304
    XS_W = 24576

    code_prefetch(e, "ka", "ka_kernel", "TEXT_END", s(30, 2), t0, PFD, 1)
    e.I("v_and_b32", vl, 63, v(0))
    e.I("v_lshrrev_b32", t0, 6, v(0))
    e.I("v_lshlrev_b32", vl16, 4, vl)
    e.I("v_readfirstlane_b32", sw, t0)
    head_j(e, sh, sj, sT0, sT1)
    e.I("v_lshrrev_b32", t0, 3, vl)
    e.I("v_lshlrev_b32", t1, 10, t0)
    e.I("v_lshrrev_b32", t0, 1, t0)
    e.I("v_xor_b32", t0, t0, vl)
    e.I("v_and_b32", t0, 7, t0)
    e.I("v_lshlrev_b32", t2, 4, t0)
    e.I("v_add_u32", vXd[0], t1, t2)
    e.I("v_xor_b32", t2, 64, t2)
    e.I("v_add_u32", vXd[1], t1, t2)
    e.I("s_lshl_b32", sT0, sj, 18)
    e.I("s_lshl_b32", sT1, sw, 16)
    e.I("s_add_u32", sT0, sT0, sT1)
    for i in range(8):
        e.I("s_add_u32", sXrow[i], sT0, i * 8192 - (i & 3) * 1024)
    e.I("s_mul_i32", sXlds, sw, XS_W)
    wdma_voff(e, vWq, vl, (t0, t1), 8192)
    e.I("s_and_b32", sT0, sw, 1)
    e.I("s_lshl_b32", sT0, sT0, 18)
    e.I("s_lshr_b32", sT1, sw, 1)
    e.I("s_lshl_b32", sT1, sT1, 7)
    e.I("s_lshl_b32", s(3), sh, 8)
    e.I("s_add_u32", sWb, s(3), sT0)
    e.I("s_add_u32", sWb, sWb, sT1)
    e.I("s_lshl_b32", sT0, sw, 18)
    e.I("s_add_u32", sWb2, s(3), sT0)
    e.I("s_add_u32", sWb3, sWb2, 128)
    e.I("s_lshl_b32", sM0, sw, 12)
    e.I("s_add_u32", sM0, sM0, WR)
    e.I("s_waitcnt", "lgkmcnt(0)")
    make_srd(e, S_A, P_CKV, 2048 * 1024)
    make_srd(e, S_B, P_WUK, 512 * 8192)
    stamp(e, 0)

    def c_dma(p):
        out = []
        for i in range(8):
            if i % 4 == 0:
                out.append(I("s_add_u32", M0, sXlds, (p % 3) * 8192 + (i >> 2) * 4096))
            out.append(I("buffer_load_dwordx4", vXd[i & 1], s(S_A, 4), sXrow[i],
                         mods="offen offset:%d lds" % (1024 * (i & 3)), tag=("C", p)))
        out.append(I("v_add_u32", vXd[0], 128, vXd[0]))
        out.append(I("v_add_u32", vXd[1], 128, vXd[1]))
        return out

    def c_jobs(p):
        ins = c_dma(p)
        k = ("C", p)
        return [(k, ins[0:2]), (k, [ins[2]]), (k, [ins[3]]), (k, [ins[4]]), (k, ins[5:7]), (k, [ins[7]]), (k, [ins[8]]),
                (k, ins[9:12])]

    def x_piece(p):
        out = []
        k = ("X", p)
        for rb in range(2):
            sb = sXA if rb == 0 else sXB
            for i in range(4):
                ins = []
                if i == 0:
                    ins.append(I("s_add_u32", sT0 if rb == 0 else sT1, sb, p * 4096))
                ins.append(I("buffer_load_dwordx4", a((rb * 32 + 4 * p + i) * 4, 4), vl16, s(S_WS, 4),
                             sT0 if rb == 0 else sT1, mods="offen offset:%d sc1" % (1024 * i), tag=k))
                out.append((k, ins))
        return out

    def kv_jobs(kind, st):
        k = (kind, st)
        srd = s(S_K if kind == "K" else S_V, 4)
        base = (0 if kind == "K" else 65536) + (st & 3) * 16384
        out = []
        for i in range(4):
            ins = []
            if i == 0:
                ins.append(I("s_lshl_b32", sSt, sw, 12))
                ins.append(I("s_add_u32", M0, sSt, base))
                ins.append(I("s_add_u32", sSt, sSt, st * 16384))
            ins.append(I("buffer_load_dwordx4", vl16, srd, sSt, mods="offen offset:%d sc1 lds" % (1024 * i), tag=k))
            out.append((k, ins))
        return out

    srcK = dict(srd=s(S_B, 4), voff=vWq, s_base=sWb, stage_stride=64 * 8192)
    srcV0 = dict(srd=s(S_C, 4), voff=vWq, s_base=sWb2, stage_stride=128 * 8192)
    srcV1 = dict(srd=s(S_C, 4), voff=vWq, s_base=sWb3, stage_stride=128 * 8192)
    srcGU = dict(srd=s(S_A, 4), voff=vWg, s_base=sWgu, stage_stride=64 * 3584)
    srcQ0 = dict(srd=s(S_B, 4), voff=vWq, s_base=sWq0, stage_stride=128 * 8192)
    srcQ1 = dict(srd=s(S_B, 4), voff=vWq, s_base=sWq1, stage_stride=128 * 8192)
    acc4 = lambda s0, s1: (lambda rb, nb: (s0, s1)[rb].sub(nb * 16, 16))
    acc2 = lambda s0: (lambda rb, nb: s0.sub((rb * 2 + nb) * 16, 16))
    accK, accV0, accV1, accGU = acc4(X_, Y_), acc2(Z_), acc2(X_), acc4(Y_, Z_)

    def store_block(d, sbase, rb, idxs):
        out = []
        for hh in range(2):
            out += cvt_inplace(d, hh)
            off = rb * 8192 + idxs[hh] * 1024
            out.append(I("s_add_u32", s(3), sbase, off & ~4095))
            out.append(I("buffer_store_dwordx4", d.sub(8 * hh, 4), vl16, s(S_WS, 4), s(3),
                         mods="offen offset:%d" % (off & 4095), tag="kv"))
        return out

    def epiK():
        return [x for rb in range(2) for nb in range(4) for x in store_block(accK(rb, nb), sKo, rb, (2 * nb, 2 * nb + 1))]

    def epiV(acc, o):
        return [x for rb in range(2) for nb in range(2) for x in store_block(acc(rb, nb), sVo, rb, (o + nb, o + 4 + nb))]

    def ln_stream():
        Z = Z_
        LN0, LN1 = Z.sub(0, 4), Z.sub(4, 4)
        X = [Z[8 + i] for i in range(16)]
        D = [Z[24 + i] for i in range(16)]
        sm, sw2, mean, var, pk, mb, vb, sd, rc = [Z[40 + i] for i in range(9)]
        ln = []
        A_ = lambda *x, **k: ln.append(I(*x, **k))
        for i in range(4):
            A_("v_lshlrev_b32", X[2 * i], 16, LN0[i])
            A_("v_and_b32", X[2 * i + 1], 0xffff0000, LN0[i])
            A_("v_lshlrev_b32", X[8 + 2 * i], 16, LN1[i])
            A_("v_and_b32", X[8 + 2 * i + 1], 0xffff0000, LN1[i])

        def allreduce32(r):
            for off in (0x041F, 0x081F, 0x101F, 0x201F, 0x401F):
                A_("ds_swizzle_b32", sw2, r, mods="offset:0x%04x" % off)
                A_("v_add_f32", r, r, sw2)
        A_("v_add_f32", sm, X[0], X[1])
        for i in range(2, 16):
            A_("v_add_f32", sm, sm, X[i])
        allreduce32(sm)
        A_("v_mul_f32", mean, 1.0 / 512, sm)
        for i in range(16):
            A_("v_sub_f32", D[i], X[i], mean)
        A_("v_mul_f32", sm, D[0], D[0])
        for i in range(1, 16):
            A_("v_fmac_f32", sm, D[i], D[i])
        allreduce32(sm)
        A_("v_mul_f32", var, 1.0 / 512, sm)
        A_("v_cvt_pk_bf16_f32", pk, mean, var)
        A_("v_lshlrev_b32", mb, 16, pk)
        A_("v_and_b32", vb, 0xffff0000, pk)
        A_("v_add_f32", vb, 1e-5, vb)
        A_("v_cvt_pk_bf16_f32", pk, vb, vb)
        A_("v_lshlrev_b32", vb, 16, pk)
        A_("v_sqrt_f32", vb, vb)
        A_("v_cvt_pk_bf16_f32", pk, vb, vb)
        A_("v_lshlrev_b32", sd, 16, pk)
        A_("v_rcp_f32", rc, sd)
        for i in range(16):
            A_("v_sub_f32", D[i], X[i], mb)
        for i in range(8):
            A_("v_cvt_pk_bf16_f32", pk, D[2 * i], D[2 * i + 1])
            A_("v_lshlrev_b32", D[2 * i], 16, pk)
            A_("v_and_b32", D[2 * i + 1], 0xffff0000, pk)
        for i in range(16):
            A_("v_mul_f32", X[i], D[i], rc)
            A_("v_fma_f32", D[i], Neg(X[i]), sd, D[i])
            A_("v_fmac_f32", X[i], D[i], rc)
        for i in range(4):
            A_("v_cvt_pk_bf16_f32", LN0[i], X[2 * i], X[2 * i + 1])
            A_("v_cvt_pk_bf16_f32", LN1[i], X[8 + 2 * i], X[8 + 2 * i + 1])
        A_("buffer_store_dwordx4", LN0, vLNs, s(S_WS, 4), sLN0, mods="offen", tag="ln")
        A_("buffer_store_dwordx4", LN1, vLNs, s(S_WS, 4), sLN1, mods="offen", tag="ln")
        return ln

    NOP = lambda em: None

    def gu_epi(rb):
        out = []
        for nb in range(2):
            g_, u_ = accGU(rb, nb), accGU(rb, nb + 2)
            for hh in range(2):
                for half4 in range(2):
                    rs = [8 * hh + 4 * half4 + i for i in range(4)]
                    T = GT[0:4]
                    T2 = GT[4:8]
                    for i, r in enumerate(rs):
                        out.append(I("v_mul_f32", T[i], g_[r], g_[r]))
                    for i, r in enumerate(rs):
                        out.append(I("v_fmaak_f32", T[i], T[i], vC2, GC1))
                    for i, r in enumerate(rs):
                        out.append(I("v_mul_f32", T[i], T[i], g_[r]))
                    for i, r in enumerate(rs):
                        out.append(I("v_exp_f32", T[i], T[i]))
                    for i, r in enumerate(rs):
                        out.append(I("v_mul_f32", T2[i], g_[r], u_[r]))
                    for i, r in enumerate(rs):
                        out.append(I("v_add_f32", T[i], 1.0, T[i]))
                    for i, r in enumerate(rs):
                        out.append(I("v_rcp_f32", T[i], T[i]))
                    out.append(I("s_nop", 0))
                    for i, r in enumerate(rs):
                        out.append(I("v_mul_f32", g_[r], T2[i], T[i]))
                out += cvt_inplace(g_, hh)
                off = (2 * nb + hh) * 1024
                out.append(I("buffer_store_dwordx4", g_.sub(8 * hh, 4), vl16, s(S_WS, 4), sHo[rb],
                             mods="offen offset:%d" % off))
        return out

    def qfrag(qb, sidx):
        b, t = sidx >> 1, sidx & 1
        return X_.sub((qb * 2 + (b & 1)) * 16 + 8 * t + (4 if b >= 2 else 0), 4)

    def q_epi(acc, b0):
        out = []
        for rb in range(2):
            for nb in range(2):
                d = acc(rb, nb)
                for r in range(16):
                    out.append(I("v_mul_f32", d[r], QSCALE, d[r]))
                for t in range(2):
                    f = qfrag(rb, 2 * (b0 + nb) + t)
                    for q in range(4):
                        out.append(I("v_cvt_pk_bf16_f32", f[q], d[8 * t + 2 * q], d[8 * t + 2 * q + 1]))
        return out

    class L(list):
        def I(self, op, *ops, **k):
            self.append(I(op, *ops, **k))

    def setup_b():
        o = L()
        o.I("s_lshl_b32", sT0, sj, 2)
        o.I("s_add_u32", sQB, sT0, sw)
        o.I("s_sub_u32", sQA, 60, sT0)
        o.I("s_add_u32", sQA, sQA, sw)
        o.I("s_lshl_b32", sXA, sQA, 15)
        o.I("s_lshl_b32", sXB, sQB, 15)
        if WS_XN:
            o.I("s_add_u32", sXA, sXA, WS_XN)
            o.I("s_add_u32", sXB, sXB, WS_XN)
        wdma_voff(o, vWg, vl, (t0, t1), 3584)
        o.I("s_and_b32", sT0, sw, 1)
        o.I("s_mul_i32", sT0, sT0, 32 * 3584)
        o.I("s_lshl_b32", sT1, sh, 7)
        o.I("s_add_u32", sWgu, sT0, sT1)
        o.I("s_mov_b32", sWq0, sWb2)
        o.I("s_mov_b32", sWq1, sWb3)
        o.I("s_lshl_b32", sHc, sh, 2)
        o.I("s_add_u32", sHc, sHc, 4)
        o.I("s_cmp_lt_u32", sw, 2)
        g = [I("s_cmp_lt_u32", sw, 2), I("s_cselect_b32", s(S_A), s(P_WG), s(P_WU)),
             I("s_cselect_b32", s(S_A + 1), s(P_WG + 1), s(P_WU + 1))]
        o.append(lambda em: emit_all(em, g))
        o.I("s_mov_b32", s(S_A + 2), 512 * 3584)
        make_srd(o, S_B, P_WQ, 512 * 8192)
        o.I("v_mov_b32", vC2, GC2)
        for qb, sq in ((0, sQA), (1, sQB)):
            o.I("s_mul_i32", sT0, sq, 368 * 1024)
            o.I("s_lshl_b32", sT1, sh, 12)
            o.I("s_add_u32", sHo[qb], sT0, sT1)
            o.I("s_add_u32", sHo[qb], sHo[qb], WS_A3 + 256 * 1024)
        return o

    def setup_c():
        o = L()
        for qb in range(2):
            o.I("s_lshl_b32", sSt, sh, 12)
            o.I("s_add_u32", sCo[qb], sHo[qb], sSt)
            o.I("s_sub_u32", sCo[qb], sCo[qb], 256 * 1024)
        for srd, off in ((S_K, WS_K), (S_V, WS_V)):
            g = [I("s_lshl_b32", sSt, sh, 19), I("s_add_u32", sSt, sSt, off), I("s_add_u32", s(srd), s(P_WS), sSt),
                 I("s_addc_u32", s(srd + 1), s(P_WS + 1), 0)]
            o.append(lambda em, g=g: emit_all(em, g))
            o.I("s_lshl_b32", sSt, sj, 15)
            o.I("s_sub_u32", s(srd + 2), 64 * 8192, sSt)
            o.I("s_mov_b32", s(srd + 3), 0x20000)
        o.I("s_lshl_b32", sKg, sw, 12)
        o.I("s_mov_b32", sVg, sKg)
        o.I("s_mov_b32", sThr, THRESH)
        return o

    def touch(srd, bufs):
        g = [I("s_lshl_b32", sCnt, s(2), 2), I("s_add_u32", sCnt, sCnt, sw), I("s_lshl_b32", sCnt, sCnt, 13)]
        p0, n0 = bufs[0]
        g += [I("s_mov_b32", s(srd), s(p0)), I("s_mov_b32", s(srd + 1), s(p0 + 1)), I("s_mov_b32", s(srd + 2), n0),
              I("s_mov_b32", s(srd + 3), 0x20000)]
        for (pp, nn), (_, nprev) in zip(bufs[1:], bufs[:-1]):
            g += [I("s_cmp_ge_u32", sCnt, s(srd + 2)),
                  I("s_cselect_b32", sRet, s(srd + 2), 0),
                  I("s_cselect_b32", s(srd), s(pp), s(srd)), I("s_cselect_b32", s(srd + 1), s(pp + 1), s(srd + 1)),
                  I("s_cselect_b32", s(srd + 2), nn, s(srd + 2)),
                  I("s_sub_u32", sCnt, sCnt, sRet)]
        g += [I("v_lshlrev_b32", t2, 7, vl),
              Untracked(I("buffer_load_dword", PFD[0], t2, s(srd, 4), sCnt, mods="offen"))]
        return [lambda em: emit_all(em, g)]

    def proj(with_gu, tagp):
        ln = ln_stream()
        eV1 = epiV(accV1, 2)
        segs = [Seg(4, "WX", accK, srcK, [NOP] * (len(ln) // 4) + ln + [NOP] * (2 * len(ln))),
                Seg(2, "XW", accV0, srcV0, merge(epiK(), setup_b())),
                Seg(2, "XW", accV1, srcV1, epiV(accV0, 0) + [NOP] * 12)]
        if with_gu:
            aQ0, aQ1 = acc2(X_), acc2(Y_)
            segs += [Seg(4, "WX", accGU, srcGU, eV1 + setup_c() + [NOP] * 70), Seg(2, "WX", aQ0, srcQ0, gu_epi(0)),
                     Seg(2, "WX", aQ1, srcQ1, gu_epi(1) + q_epi(aQ0, 0))]
        else:
            aQ0, aQ1 = acc2(Y_), acc2(Z_)
            segs += [Seg(2, "WX", aQ0, srcQ0, eV1 + setup_c() + [NOP] * 70), Seg(2, "WX", aQ1, srcQ1, q_epi(aQ0, 0))]
        G = Gemm(e, 4, vtr, pool, sM0, sTmp, segs)
        nst = len(G.stages)

        def c_reads(p):
            out = [(lambda em: G.need(("C", p))) if p else (lambda em: em.wait_vm_tag(lambda tg: tg == ("C", p)))]
            for sl in range(4):
                for rb in range(2):
                    out.append(I("ds_read_b128", a((rb * 32 + 4 * p + sl) * 4, 4), vXr[sl],
                                 mods="offset:%d" % ((p % 3) * 8192 + rb * 4096)))
            return out
        emit_all(e, c_dma(0))
        emit_all(e, G.w_dma(0))
        make_srd(e, S_K, P_X, 2048 * 1024)
        make_srd(e, S_C, P_WUV, 512 * 8192)
        make_srd(e, S_WS, P_WS, WS_BYTES)
        make_srd(e, S_DBG, P_DBG, 256)
        e.I("v_lshrrev_b32", t0, 5, v(0))
        e.I("v_lshlrev_b32", t1, 10, t0)
        e.I("v_and_b32", t2, 31, vl)
        e.I("v_lshlrev_b32", vLNa, 4, t2)
        e.I("v_add_u32", vLNa, vLNa, t1)
        e.I("v_lshrrev_b32", t1, 1, t2)
        e.I("v_lshlrev_b32", t1, 10, t1)
        e.I("v_and_b32", t2, 1, t2)
        e.I("v_lshlrev_b32", t2, 9, t2)
        e.I("v_add_u32", t1, t1, t2)
        e.I("v_lshlrev_b32", t0, 4, t0)
        e.I("v_add_u32", vLNs, t1, t0)
        e.I("s_lshl_b32", sT0, s(2), 13)
        e.I("buffer_load_dwordx4", Z_.sub(0, 4), vLNa, s(S_K, 4), sT0, mods="offen")
        e.I("buffer_load_dwordx4", Z_.sub(4, 4), vLNa, s(S_K, 4), sT0, mods="offen offset:512")
        if gen.PF_IN:
            e.I("s_lshr_b32", sT0, s(2), 3)
            e.I("s_lshl_b32", sT0, sT0, 2)
            e.I("s_add_u32", sT0, sT0, sw)
            e.I("v_lshrrev_b32", t0, 3, vl)
            e.I("v_lshlrev_b32", t0, 13, t0)
            e.I("v_and_b32", t1, 7, vl)
            e.I("v_lshlrev_b32", t1, 7, t1)
            e.I("v_add_u32", t0, t0, t1)
            e.I("s_and_b32", sT1, sT0, 63)
            e.I("s_lshl_b32", sT1, sT1, 16)
            e.I("s_and_b32", s(3), s(2), 7)
            e.I("s_lshl_b32", s(3), s(3), 10)
            e.I("s_add_u32", sT1, sT1, s(3))
            e.I("s_cmp_ge_u32", sT0, 64)
            e.I("s_cselect_b32", s(S_V), s(P_WUV), s(P_WUK))
            e.I("s_cselect_b32", s(S_V + 1), s(P_WUV + 1), s(P_WUK + 1))
            e.I("s_mov_b32", s(S_V + 2), 512 * 8192)
            e.I("s_mov_b32", s(S_V + 3), 0x20000)
            e.I("v_lshlrev_b32", t1, 7, vl)
            e.I("s_lshl_b32", sT0, sT0, 14)
            Untracked(I("buffer_load_dword", PFD[1], t1, s(S_A, 4), sT0, mods="offen"))(e)
            e.I("s_add_u32", sT0, sT0, 8192)
            Untracked(I("buffer_load_dword", PFD[2], t1, s(S_A, 4), sT0, mods="offen"))(e)
            Untracked(I("buffer_load_dword", PFD[3], t0, s(S_V, 4), sT1, mods="offen"))(e)
        emit_all(e, c_dma(1))
        emit_all(e, G.w_dma(1))
        emit_all(e, c_dma(2))
        e.I("s_lshr_b32", sLN0, s(2), 2)
        e.I("s_lshl_b32", sLN0, sLN0, 15)
        e.I("s_and_b32", sLN1, s(2), 3)
        e.I("s_lshl_b32", sLN1, sLN1, 7)
        e.I("s_add_u32", sLN0, sLN0, sLN1)
        if WS_XN:
            e.I("s_add_u32", sLN0, sLN0, WS_XN)
        e.I("s_add_u32", sLN1, sLN0, 16384)
        e.I("v_and_b32", t0, 31, vl)
        e.I("v_lshlrev_b32", t1, 7, t0)
        e.I("v_add_u32", t1, sXlds, t1)
        e.I("v_bfe_u32", t0, vl, 1, 3)
        e.I("v_lshrrev_b32", t2, 5, vl)
        e.I("v_xor_b32", t0, t0, t2)
        for sl in range(4):
            e.I("v_xor_b32", t2, 2 * sl, t0)
            e.I("v_lshlrev_b32", t2, 4, t2)
            e.I("v_add_u32", vXr[sl], t1, t2)
        tr_addr(e, vtr[0], vtr[1], vl, (t0, t1, t2), WR, False)
        e.I("s_lshl_b32", sT0, sh, 6)
        e.I("s_lshl_b32", sT1, sj, 3)
        e.I("s_add_u32", sT0, sT0, sT1)
        e.I("s_lshl_b32", sT1, sw, 1)
        e.I("s_add_u32", sT0, sT0, sT1)
        e.I("s_lshl_b32", sT0, sT0, 13)
        e.I("s_add_u32", sKo, sT0, WS_K)
        e.I("s_add_u32", sVo, sT0, WS_V)
        emit_all(e, c_reads(0))
        if "early" in EXP and with_gu:
            stamp(e, 1)
        queue = []
        for g in range(2, nst):
            for p in {3: [3, 4], 4: [5, 6], 5: [7]}.get(g, []):
                queue += c_jobs(p)
            if 16 <= g < 20 and not with_gu:
                queue += x_piece(2 * (g - 16)) + x_piece(2 * (g - 16) + 1)
            queue += G.w_jobs(g)
            if with_gu:
                for p in {16: [0], 17: [1], 18: [2], 19: [3], 20: [4], 21: [5], 22: [6], 23: [7]}.get(g, []):
                    queue += x_piece(p)
        queue += kv_jobs("K", 0) + kv_jobs("K", 1) + kv_jobs("V", 0) + kv_jobs("K", 2) + kv_jobs("V", 1)
        queue += kv_jobs("K", 3) + kv_jobs("V", 2)
        LNSIG = 4
        CRD = {1: 1, 3: 2, 6: 3, 9: 4, 12: 5, 16: 6, 20: 7}
        XREL = {76: 0, 82: 1, 88: 2, 98: 3, 102: 4, 106: 5, 110: 6, 114: 7}
        pub = 20 if with_gu else 17
        kv_first = {("K", i) for i in range(3)} | {("V", 0), ("V", 1)}

        def pre_barrier(g):
            if g == LNSIG:
                e.wait_vm_tag(lambda tg: tg == "ln")
            if g == pub:
                e.wait_vm_tag(lambda tg: tg == "kv")

        def on_barrier(g):
            if "early" in EXP and with_gu and g in (0, 2, 4, 6):
                stamp(e, 2 + g // 2 if g < 6 else 4) if g < 6 else None
            if g == LNSIG:
                signal(e, sw, 0, "ln" + tagp, vOne)
            if g == 11:
                poll_issue(e, vPl, 0)
            if g == 12:
                poll_check(e, vPl, 0, 256, "ln" + tagp, sCnt, sRet)
                if not with_gu:
                    G.rel.add(("X", 0))
            if g == pub:
                signal(e, sw, sHc, "kv" + tagp, vOne)
            if g == nst - 6:
                poll_issue(e, vPk, sHc)
            if g == nst - 5:
                poll_check(e, vPk, sHc, 8, "kv" + tagp, sCnt, sRet)
                G.rel |= kv_first
            if g == nst - 2:
                G.rel.add(("V", 2))
                G.rel.add(("K", 3))

        def hook(t):
            sg, sidx, g, sl = G.ks[t]
            out = []
            if t in CRD:
                out += c_reads(CRD[t])
            if t == 0 or (t - 1) in CRD:
                pr = 0 if t == 0 else CRD[t - 1]

                def rel_c(em, pr=pr):
                    em.wait_lgkm0()
                    G.rel.add(("C", pr + 3))
                if t == 0:
                    out.append(rel_c)
                else:
                    rel_c(e)
            if t == 33 and gen.PF_W:
                out += touch(S_K, [(P_WQ, 512 * 8192), (P_WG, 512 * 3584), (P_WU, 512 * 3584)])
            if t == 100 and gen.PF_W:
                out += touch(S_C, [(P_WO, 4096 * 1024), (P_WD, 1792 * 1024)])
            if not with_gu and 72 <= t <= 96 and t % 4 == 0:
                G.rel.add(("X", (t - 68) // 4))
            if with_gu and t in XREL:
                G.rel.add(("X", XREL[t]))
            if 96 <= t < 128 and sidx % 4 == 0:
                p = sidx // 4
                while any(k == ("X", p) for k, _ in G.q):
                    k, ins = G.q.pop(0)
                    assert k in G.rel, k
                    emit_all(e, ins)
            return out
        cnt = [1]

        def seg_end(sg):
            if cnt[0] in (1, 3, 4) or not with_gu and False:
                pass
            if with_gu:
                m = {1: 1, 2: 2, 3: 3, 4: 4}.get(cnt[0])
                if m and "early" not in EXP:
                    stamp(e, m)
            cnt[0] += 1
        G.run(hook, seg_end, queue=queue, released={("W", 2), ("W", 3)}, on_barrier=on_barrier,
              pace=gen.PACE, pre_barrier=pre_barrier)
        while G.q:
            k, ins = G.q.pop(0)
            assert k in G.rel, k
            emit_all(e, ins)
        emit_all(e, q_epi(aQ1, 2))
        tags = [t for _, t in e.vm]
        assert all(t in (("K", 3), ("V", 2), None, "pf") for t in tags[-8:]), tags[-8:]
        assert all(t not in (("K", 0), ("K", 1), ("V", 0)) for t in tags[-16:]), tags[-16:]
        e.wait_vm_tag(lambda tg: tg == ("K", 0))
        e.wait_lgkm0()

    e.I("s_cmp_ge_u32", sh, 28)
    e.I("s_cbranch_scc1", "K2_NOGU")
    st0 = e.state()
    proj(True, "a")
    e.I("s_branch", "K2_ATT")
    e.label("K2_NOGU")
    e.set_state(st0)
    proj(False, "b")
    e.label("K2_ATT")
    e.vm = []
    e.lgkm = []
    e.I("s_nop", 1)
    stamp(e, 5)

    S = lambda par, qb: SET[0].sub((par * 2 + qb) * 16, 16)
    NM = lambda qb: SET[1].sub(qb * 16, 16)
    P = lambda par, qb: SET[1].sub(32 + (par * 2 + qb) * 8, 8)
    O = lambda qb, b: a((qb * 4 + b) * 16, 16)
    KF = lambda fs, si: a(128 + 64 * fs + 4 * si, 4)
    VF = lambda fs, t, b: a(128 + 64 * fs + 32 + 4 * (t * 4 + b), 4)
    vKr, vVr = v(6), v(7)
    vDq = [v(8), v(9)]
    vL = [[v(10), v(11)], [v(24), v(25)]]
    vTs = [v(12), v(13)]
    vTs2 = [v(4, 2), v(4, 2)]
    vTm, vDqT = v(14), [v(15), v(16)]
    vNinf = v(17)
    ET = [v(18 + i) for i in range(6)]
    vQx, vKx, vNx, vInvB, vPw = v(26), v(27), v(28), v(29), v(30)
    RT = [v(32 + i) for i in range(32)]
    QS = 131072
    sPw = sBact

    e.I("v_and_b32", t0, 31, vl)
    e.I("v_lshrrev_b32", t1, 5, vl)
    e.I("v_lshlrev_b32", t1, 2, t1)
    e.I("v_sub_u32", t0, t0, t1)
    e.I("s_lshl_b32", sT0, sQA, 5)
    e.I("s_lshl_b32", sT1, sQB, 5)
    e.I("v_add_u32", vDq[0], sT0, t0)
    e.I("v_add_u32", vDq[1], sT1, t0)
    e.I("v_mov_b32", vNinf, 0xff800000)
    e.I("v_mov_b32", vL[0][0], 0)
    e.I("v_mov_b32", vL[0][1], 0)
    e.I("v_add_u32", vKr, 16384, vl16)
    e.I("v_add_u32", vVr, 65536, vl16)
    e.I("s_lshl_b32", sRot, sw, 12)
    e.I("s_add_u32", sKg, sKg, 4 * 16384)
    e.I("s_add_u32", sVg, sVg, 3 * 16384)
    e.I("s_mov_b32", sKv, 0)
    e.I("s_and_b32", sPw, sw, 1)
    e.I("s_lshl_b32", sPw, sPw, 13)
    e.I("s_lshl_b32", sT0, sw, 13)
    e.I("s_add_u32", sT0, sT0, QS)
    e.I("v_add_u32", vQx, sT0, vl16)
    e.I("s_barrier")
    for si in range(8):
        e.I("ds_read_b128", KF(1, si), vl16, mods="offset:%d" % (si * 1024))
    for si in range(8):
        e.I("ds_read_b128", KF(0, si), vl16, mods="offset:%d" % (8192 + si * 1024))
    for si in range(8):
        for qb in range(2):
            e.I(MFMA, S(0, qb), KF(1, si), qfrag(qb, si), 0 if si == 0 else S(0, qb))
        e.I("ds_write_b128", vQx, qfrag(0, si), mods="offset:%d" % (si * 1024))
    e.I("v_xor_b32", vQx, 8192, vQx)

    def mask_S_inplace(em, Sx, dq):
        for r0 in range(0, 16, 4):
            for i in range(4):
                em.I("v_cmp_ge_i32", MASKS[i], dq, CR[r0 + i])
            for i in range(4):
                em.I("v_cndmask_b32", Sx[r0 + i], vNinf, Sx[r0 + i], MASKS[i])

    def rowmax(em, Sx, dst, tmp):
        em.I("v_max3_f32", dst, Sx[0], Sx[1], Sx[2])
        for r in range(3, 15, 2):
            em.I("v_max3_f32", dst, dst, Sx[r], Sx[r + 1])
        em.I("v_max_f32", dst, dst, Sx[15])
        em.I("v_mov_b32", tmp, dst)
        em.I("v_permlane32_swap_b32", dst, tmp)
        em.I("v_max_f32", dst, dst, tmp)

    for qb in range(2):
        Sx = S(0, qb)
        if qb == 1:
            mask_S_inplace(e, Sx, vDq[1])
        rowmax(e, Sx, RT[0], RT[1])
        for r in range(16):
            e.I("v_sub_f32", Sx[r], Sx[r], RT[0])
        for r in range(16):
            e.I("v_sub_f32", NM(qb)[r], 0, RT[0])
    e.wait_lgkm0()
    stamp(e, 6)

    ret_labels = []

    def sm_stream(par, qb, masked):
        Sx, Px = S(par, qb), P(par, qb)
        out = []
        if masked:
            out.append(I("v_subrev_u32", vDqT[qb], sKv, vDq[qb]))

        def front(k):
            o = []
            if masked:
                o.append(I("v_cmp_ge_i32", MASKS[(2 * k) & 3], vDqT[qb], CR[2 * k]))
                o.append(I("v_cmp_ge_i32", MASKS[(2 * k + 1) & 3], vDqT[qb], CR[2 * k + 1]))
            o.append(I("v_exp_f32", ET[(2 * k) % 6], Sx[2 * k]))
            o.append(I("v_exp_f32", ET[(2 * k + 1) % 6], Sx[2 * k + 1]))
            return o

        def back(k):
            ta, tb = ET[(2 * k) % 6], ET[(2 * k + 1) % 6]
            o = []
            if masked:
                o.append(I("v_cndmask_b32", ta, 0, ta, MASKS[(2 * k) & 3]))
                o.append(I("v_cndmask_b32", tb, 0, tb, MASKS[(2 * k + 1) & 3]))
            if "pk" in EXP:
                pr = v(ta.i, 2)
                if k == 1:
                    o.append(I("v_pk_add_f32", vTs2[qb], v(ET[0].i, 2), pr))
                elif k > 1:
                    o.append(I("v_pk_add_f32", vTs2[qb], vTs2[qb], pr))
                if k == 7:
                    o.append(I("v_add_f32", vTs[qb], vTs2[qb][0], vTs2[qb][1]))
            elif k == 0:
                o.append(I("v_add_f32", vTs[qb], ta, tb))
            else:
                o.append(I("v_add_f32", vTs[qb], vTs[qb], ta))
                o.append(I("v_add_f32", vTs[qb], vTs[qb], tb))
            o.append(I("v_cvt_pk_bf16_f32", Px[k], ta, tb))
            return o
        out += front(0)
        for k in range(8):
            if k + 1 < 8:
                out += front(k + 1)
            out += back(k)
        return out

    def qk_mfmas(par):
        return [I(MFMA, S(1 - par, qb), KF(par, si), qfrag(qb, si), NM(qb) if si == 0 else S(1 - par, qb))
                for si in range(8) for qb in range(2)]

    def pv_mfmas(par, first=(), order=None):
        ms = []
        for t in range(2):
            for b in range(4):
                for qb in range(2):
                    c = 0 if (qb in first and t == 0) else O(qb, b)
                    ms.append(I(MFMA, O(qb, b), VF(par, t, b), P(1 - par, qb).sub(4 * t, 4), c))
        return ms

    def k_reads(par, vaddr, off):
        return [I("ds_read_b128", KF(1 - par, si), vaddr, mods="offset:%d" % (off + si * 1024)) for si in range(8)]

    def v_reads(par, vaddr, off):
        return [I("ds_read_b128", VF(1 - par, si >> 2, si & 3), vaddr, mods="offset:%d" % (off + si * 1024))
                for si in range(8)]

    def step(par, name, qk, masks, pv, rds, dma, kvinc, pv_first=(), extra=(), tail=(), late_rd=True):
        ms = (qk_mfmas(par) if qk else []) + (pv_mfmas(par, pv_first) if pv else [])
        val = sm_stream(par, 0, masks[0]) + sm_stream(par, 1, masks[1])
        if "nords" in EXP:
            rds = []
        if "nodma" in EXP:
            dma = None
        if "nosm" in EXP:
            val = val[:4]
        cut = (len(val) * (9 if late_rd else 7)) // 10
        fill = merge(val[:cut], rds) + val[cut:]
        if extra:
            fill = merge(fill, list(extra))
        if dma:
            fill = merge(fill, dma)
        fill.append(I("v_max_f32", vTm, vTs[0], vTs[1]))
        fill.append(I("v_cmp_nge_f32", VCC, sThr, vTm))
        rid = len(ret_labels)
        ret_labels.append(("K2_RET_%s" % name, par))
        fill.append(I("s_mov_b32", sRet, rid))
        for qb in range(2):
            fill.append(I("v_add_f32", vL[1 - par][qb], vL[par][qb], vTs[qb]))
        fill += list(tail)
        interleave(e, ms, fill, close=True)
        e.I("s_cbranch_vccnz", "K2_RARE%d" % par)
        e.label("K2_RET_%s" % name)
        e.I("s_add_u32", sKv, sKv, kvinc)
        for x in EXP:
            if x.startswith("pad"):
                for _ in range(int(x[3:])):
                    e.I("s_nop", 15)

    def dma_group(kind, vdelta=16384):
        srd = s(S_K if kind == "K" else S_V, 4)
        sg = sKg if kind == "K" else sVg
        out = []
        if kind == "K":
            out.append(I("s_mov_b32", M0, sRot))
        else:
            out.append(I("s_sub_u32", sSt, sRot, vdelta))
            out.append(I("s_and_b32", sSt, sSt, 0xffff))
            out.append(I("s_add_u32", M0, sSt, 65536))
        for i in range(4):
            x = I("buffer_load_dwordx4", vl16, srd, sg, mods="offen offset:%d%s lds" % (1024 * i, KVS))
            x.cost = 16
            out.append(x)
        out.append(I("s_add_u32", sg, sg, 16384))
        return out

    def top():
        e.I("s_waitcnt", "vmcnt(16) lgkmcnt(0)")
        e.lgkm = []
        e.vm = []
        if "nobar" not in EXP:
            e.I("s_barrier")

    ROT = [I("s_add_u32", sRot, sRot, 16384), I("s_and_b32", sRot, sRot, 0xffff)]

    def iter1(name, maskB, first=False, last=False):
        top()
        step(0, name + "a", True, (False, maskB), not first,
             merge([] if last else k_reads(0, vKr, 0), v_reads(0, vVr, 0)), dma_group("K"), 32)
        tail = [I("v_add_u32", vVr, 65536, vKr), I("v_add_u32", vKr, 16384, vKr), I("v_and_b32", vKr, 0xffff, vKr),
                I("s_sub_u32", sCnt, sCnt, 1)] + ROT
        if last:
            rq = [I("ds_read_b128", qfrag(1, si), vQx, mods="offset:%d" % (si * 1024)) for si in range(8)]
            rds = [I("v_add_u32", vKx, sPw, vKr)] + merge(k_reads(1, vKx, 0), v_reads(1, vVr, 8192)) + rq
        else:
            rds = merge(k_reads(1, vKr, 8192), v_reads(1, vVr, 8192))
        step(1, name + "b", not last, (False, maskB), True, rds, dma_group("V"), 32,
             pv_first=(0, 1) if first else (), tail=tail, late_rd=False)

    def step2(par, name, masked, qk=True, pv=True, pv_first=(), extra=()):
        top()
        tail = [I("v_add_u32", vKr, 16384, vKr), I("v_and_b32", vKr, 0xffff, vKr),
                I("v_add_u32", vVr, 16384, vVr), I("v_and_b32", vVr, 0xffff, vVr), I("v_or_b32", vVr, 0x10000, vVr)] + ROT
        step(par, name, qk, (masked, masked), pv, merge(k_reads(par, vKr, 0), v_reads(par, vVr, 0)),
             dma_group("K") + dma_group("V", 32768), 64, pv_first=pv_first, extra=extra, tail=tail, late_rd=False)

    def loop(name, body):
        e.I("s_cmp_eq_u32", sCnt, 0)
        e.I("s_cbranch_scc1", "K2_%s_X" % name)
        e.label("K2_%s_L" % name)
        body()
        e.I("s_cmp_lg_u32", sCnt, 0)
        e.I("s_cbranch_scc1", "K2_%s_L" % name)
        e.label("K2_%s_X" % name)

    def ctx_store(qb_o, scale_regs, sbase, src2=None):
        out = []
        n = 0
        for b in range(4):
            for t in range(2):
                T = [RT[(n % 3) * 8 + 8 + r] for r in range(8)]
                Tq = v(RT[(n % 3) * 8 + 8].i, 4)
                n += 1
                for r in range(8):
                    out.append(I("v_accvgpr_read_b32", T[r], O(qb_o, b)[8 * t + r]))
                for r in range(8):
                    out.append(I("v_mul_f32", T[r], T[r], scale_regs[0]))
                if src2 is not None:
                    for r in range(8):
                        out.append(I("v_fmac_f32", T[r], src2[b * 16 + 8 * t + r], scale_regs[1]))
                for q in range(4):
                    out.append(I("v_cvt_pk_bf16_f32", T[q], T[2 * q], T[2 * q + 1]))
                off = (2 * b + t) * 1024
                if off % 4096 == 0:
                    out.append(I("s_add_u32", sTmp, sbase, off))
                out.append(I("buffer_store_dwordx4", Tq, vl16, s(S_WS, 4), sTmp, mods="offen offset:%d" % (off & 4095)))
        return out

    iter1("V0", True, first=True)
    e.I("s_lshl_b32", sCnt, sj, 1)
    e.I("s_sub_u32", sCnt, sCnt, 1)
    e.I("s_max_i32", sCnt, sCnt, 0)
    loop("V1", lambda: iter1("V1", False))
    e.I("s_min_u32", sCnt, sj, 1)
    loop("V2", lambda: iter1("V2", True))
    iter1("V2L", True, last=True)
    stamp(e, 7)
    top()
    e.I("v_add_u32", vNx, 49152, vVr)
    e.I("v_and_b32", vNx, 0xc000, vNx)
    e.I("v_lshlrev_b32", t0, 2, vl)
    e.I("v_add_u32", vNx, vNx, t0)
    e.I("s_lshl_b32", sT0, sw, 8)
    e.I("s_add_u32", sT0, sT0, 65536)
    e.I("v_add_u32", vNx, sT0, vNx)
    e.I("ds_write_b32", vNx, NM(0)[0])
    e.I("v_xor_b32", vNx, 256, vNx)
    e.I("v_mov_b32", RT[0], vL[0][1])
    e.I("v_mov_b32", RT[1], vL[0][1])
    e.I("v_mov_b32", vL[1][0], vL[0][0])
    e.I("v_permlane32_swap_b32", RT[0], RT[1])
    e.I("v_mov_b32", vL[1][1], 0)
    e.I("v_add_f32", RT[0], RT[0], RT[1])
    e.I("v_rcp_f32", vInvB, RT[0])
    e.I("v_add_u32", vKr, sPw, vKr)
    e.I("v_add_u32", vVr, sPw, vVr)
    e.I("s_lshr_b32", sT0, sPw, 8)
    e.I("s_add_u32", sKv, sKv, sT0)
    e.I("s_lshl_b32", sT0, sT0, 1)
    e.I("v_add_u32", vDq[1], 32, vDq[0])
    e.I("v_subrev_u32", vDq[1], sT0, vDq[1])
    pvm = pv_mfmas(0)
    pvB = [m for m in pvm if m.ops[0].i >= 64]
    pvA = [m for m in pvm if m.ops[0].i < 64]
    interleave(e, pvB, k_reads(0, vKr, 0) + dma_group("K"))
    e.wait_lgkm0()
    e.I("s_barrier")
    e.I("ds_read_b32", RT[2], vNx)
    interleave(e, pvA[:4], ROT + [I("v_add_u32", vKr, 16384, vKr), I("v_and_b32", vKr, 0xffff, vKr)])
    interleave(e, pvA[4:], [I("v_mov_b32", NM(1)[r], RT[2]) for r in range(16)])
    bepi = ctx_store(1, [vInvB], sCo[1])
    nb1 = len(bepi) // 2
    qkm = qk_mfmas(0)
    interleave(e, [m for m in qkm if m.ops[0].i == S(1, 0).i] + [m for m in qkm if m.ops[0].i == S(1, 1).i], bepi[:nb1])
    step2(1, "P0", True, pv=False, extra=bepi[nb1:])
    step2(0, "P1", True, pv_first=(1,))
    e.I("s_cmp_eq_u32", sj, 7)
    e.I("s_cbranch_scc1", "K2_DRAIN")
    e.I("s_lshl_b32", sCnt, sj, 1)
    e.I("s_sub_u32", sCnt, 13, sCnt)

    def p2():
        step2(1, "P2a", False)
        step2(0, "P2b", False, extra=[I("s_sub_u32", sCnt, sCnt, 1)])
    loop("P2", p2)
    step2(1, "P3", True)
    step2(0, "P4", True, qk=False)
    e.label("K2_DRAIN")
    e.I("s_waitcnt", "lgkmcnt(0)")
    e.lgkm = []
    for m in pv_mfmas(1):
        e.emit(m)
    stamp(e, 8)
    MS = 17408
    e.I("s_mul_i32", sT0, sw, MS)
    e.I("v_add_u32", vQx, sT0, vl16)
    e.I("v_lshlrev_b32", t0, 2, vl)
    e.I("v_add_u32", vNx, sT0, t0)
    e.I("s_waitcnt", "vmcnt(0)")
    e.I("s_barrier")
    e.I("ds_write_b32", vNx, NM(1)[0], mods="offset:16384")
    e.I("ds_write_b32", vNx, vL[1][1], mods="offset:16640")
    for b in range(4):
        for i in range(4):
            e.I("ds_write_b128", vQx, O(1, b).sub(4 * i, 4), mods="offset:%d" % ((b * 4 + i) * 1024))
    e.I("s_xor_b32", sT1, sw, 1)
    e.I("s_mul_i32", sT0, sT1, MS)
    e.I("v_add_u32", vQx, sT0, vl16)
    e.I("v_add_u32", vNx, sT0, t0)
    e.wait_lgkm0()
    e.I("s_barrier")
    nm2, l2, nm, f1, f2, lt, tq = RT[0], RT[1], RT[2], RT[3], RT[4], RT[5], RT[6]
    e.I("ds_read_b32", nm2, vNx, mods="offset:16384")
    e.I("ds_read_b32", l2, vNx, mods="offset:16640")
    O2 = SET[0]
    for i in range(16):
        e.I("ds_read_b128", O2.sub(4 * i, 4), vQx, mods="offset:%d" % (i * 1024))
    e.I("v_min_f32", nm, NM(0)[0], nm2)
    e.I("v_sub_f32", f1, nm, NM(0)[0])
    e.I("v_sub_f32", f2, nm, nm2)
    e.I("v_exp_f32", f1, f1)
    e.I("v_exp_f32", f2, f2)
    e.I("v_mul_f32", lt, vL[1][0], f1)
    e.I("v_fmac_f32", lt, l2, f2)
    e.I("v_mov_b32", tq, lt)
    e.I("v_permlane32_swap_b32", lt, tq)
    e.I("v_add_f32", lt, lt, tq)
    e.I("v_rcp_f32", lt, lt)
    e.I("v_mul_f32", f1, f1, lt)
    e.I("v_mul_f32", f2, f2, lt)
    emit_all(e, ctx_store(0, [f1, f2], sCo[0], src2=O2))
    stamp(e, 9)
    stamp_flush(e, 0 if fused else 1, s(S_WS, 4), sw, 10)
    e.I("s_endpgm")

    for par in range(2):
        e.label("K2_RARE%d" % par)
        e.vm, e.lgkm = [], []
        e.I("s_nop", 15)
        e.I("s_nop", 7)
        for qb in range(2):
            Sx, Sn, Px = S(par, qb), S(1 - par, qb), P(par, qb)
            dq, dl, f, tmp = RT[0], RT[1], RT[2], RT[3]
            e.I("v_subrev_u32", dq, sKv, vDq[qb])
            mask_S_inplace(e, Sx, dq)
            rowmax(e, Sx, dl, tmp)
            e.I("v_max_f32", dl, 0, dl)
            e.I("v_sub_f32", f, 0, dl)
            e.I("v_exp_f32", f, f)
            for r in range(16):
                e.I("v_sub_f32", Sx[r], Sx[r], dl)
            e.I("v_mul_f32", vL[1 - par][qb], vL[par][qb], f)
            for r in range(16):
                e.I("v_exp_f32", RT[8 + r], Sx[r])
            for r in range(16):
                e.I("v_sub_f32", Sn[r], Sn[r], dl)
            for r in range(16):
                e.I("v_add_f32", vL[1 - par][qb], vL[1 - par][qb], RT[8 + r])
            for k in range(8):
                e.I("v_cvt_pk_bf16_f32", Px[k], RT[8 + 2 * k], RT[9 + 2 * k])
            for r in range(16):
                e.I("v_sub_f32", NM(qb)[r], NM(qb)[r], dl)
            for b in range(4):
                for r0 in range(0, 16, 8):
                    for r in range(8):
                        e.I("v_accvgpr_read_b32", RT[8 + r], O(qb, b)[r0 + r])
                    for r in range(8):
                        e.I("v_mul_f32", RT[8 + r], RT[8 + r], f)
                    for r in range(8):
                        e.I("v_accvgpr_write_b32", O(qb, b)[r0 + r], RT[8 + r])
        e.I("s_nop", 3)
        mine = [(i, l) for i, (l, pp) in enumerate(ret_labels) if pp == par]
        for i, l in mine[:-1]:
            e.I("s_cmp_eq_u32", sRet, i)
            e.I("s_cbranch_scc1", l)
        e.I("s_branch", mine[-1][1])
    e.label(END)
    e.I("s_endpgm")
    return e.text(), dict(vgpr=512, sgpr=102, accum=256, grid=256, block=256, lds=163840)
```

```python
import sys
sys.path.insert(0, "dev")
from asmlib import *
import gen
from gen import *

LOG2E = 1.4426950408889634
WS_P = 0x4000000
NS0 = 21
AD = 20
NSL = 6
POLL_AT = 2


def gen_k3():
    e = Emitter()
    gen.STAMP_MAP = None
    END = "K3_END"
    prologue(e, 256, END)
    S_WS, S_WO, S_WD, S_X, S_OUT, S_DBG = 32, 36, 40, 44, 48, 52
    sw, ssp, str_, stc = s(56), s(57), s(58), s(59)
    sA, sWo, sWd, sM0, sT0, sT1, sTa, sTw = s(60), s(61), s(62), s(63), s(64), s(65), s(66), s(67)
    sX, sP, sSpin, sFl = s(68), s(69), s(70), s(71)
    vl, vl16 = v(1), v(2)
    t0, t1, t2 = v(3), v(4), v(5)
    vtr = [v(6), v(7)]
    vtr2 = [v(12), v(13)]
    vW = [v(8 + i) for i in range(4)]
    vX, vFo, vOne, vPoll = v(14), v(15), v(16), v(17)
    WP = v(20, 16)
    XR = v(36, 16)
    ACC = [v(64, 32), v(96, 32)]
    PS = v(128, 32)
    AR = a(0, 4 * AD)
    code_prefetch(e, "k3", "k3_kernel", "TEXT_END", s(100, 2), t0, v(156, 4) if False else v(52, 4), 1)
    e.I("v_and_b32", vl, 63, v(0))
    e.I("v_lshrrev_b32", t0, 6, v(0))
    e.I("v_lshlrev_b32", vl16, 4, vl)
    e.I("v_readfirstlane_b32", sw, t0)
    e.I("s_and_b32", ssp, s(2), 1)
    e.I("s_bfe_u32", sT0, s(2), (2 << 16) | 1)
    e.I("s_lshl_b32", sT0, sT0, 2)
    e.I("s_bfe_u32", sT1, s(2), (2 << 16) | 3)
    e.I("s_add_u32", str_, sT0, sT1)
    e.I("s_lshr_b32", stc, s(2), 5)
    wdma_voff(e, vW, vl, (t0, t1), 1024)
    e.I("s_lshl_b32", sT0, str_, 2)
    e.I("s_add_u32", sT0, sT0, sw)
    e.I("s_mul_i32", sA, sT0, 368 * 1024)
    e.I("s_add_u32", sA, sA, WS_A3)
    e.I("s_lshl_b32", sT0, sw, 15)
    e.I("s_lshl_b32", sT1, stc, 7)
    e.I("s_add_u32", sWo, sT0, sT1)
    e.I("s_lshl_b32", sM0, sw, 12)
    e.I("s_waitcnt", "lgkmcnt(0)")
    make_srd(e, S_WS, P_WS, WS_BYTES)
    make_srd(e, S_WO, P_WO, 4096 * 1024)
    make_srd(e, S_WD, P_WD, 1792 * 1024)
    stamp(e, 0)

    def setup2():
        tr_addr(e, vtr[0], vtr[1], vl, (t0, t1, t2), 0, True)
        e.I("v_add_u32", vtr2[0], 65536, vtr[0])
        e.I("v_add_u32", vtr2[1], 65536, vtr[1])
        make_srd(e, S_X, P_X, 2048 * 1024)
        make_srd(e, S_OUT, P_OUT, 2048 * 1024)
        make_srd(e, S_DBG, P_DBG, 256)
        e.I("s_lshl_b32", sT0, str_, 3)
        e.I("s_add_u32", sT0, sT0, stc)
        e.I("s_lshl_b32", sP, sT0, 2)
        e.I("s_add_u32", sP, sP, sw)
        e.I("s_lshl_b32", sP, sP, 13)
        e.I("s_add_u32", sP, sP, WS_P)
        e.I("s_lshr_b32", sT1, sT0, 1)
        e.I("s_lshl_b32", sT1, sT1, 2)
        e.I("v_mov_b32", vFo, sT1)
        e.I("s_and_b32", sT0, sT0, 1)
        e.I("s_lshl_b32", sFl, sT0, 4)
        e.I("s_lshl_b32", sT0, 1, sFl)
        e.I("v_mov_b32", vOne, sT0)
        e.I("s_lshl_b32", sX, str_, 2)
        e.I("s_add_u32", sX, sX, sw)
        e.I("s_lshl_b32", sX, sX, 15)
        e.I("s_lshl_b32", sT0, stc, 7)
        e.I("s_add_u32", sX, sX, sT0)
        e.I("v_and_b32", t0, 31, vl)
        e.I("v_lshlrev_b32", t0, 10, t0)
        e.I("v_lshrrev_b32", t1, 5, vl)
        e.I("v_lshlrev_b32", t1, 3, t1)
        e.I("v_add_u32", vX, t0, t1)
        if gen.PF_TLB:
            e.I("v_lshlrev_b32", t0, 20, vl)
            Untracked(I("buffer_load_dword", v(52), t0, s(S_OUT, 4), 0, mods="offen"))(e)

    def program(split):
        stages = list(range(NS0)) if split == 0 else list(range(32, 46)) + list(range(NS0, 32))
        ns = len(stages)
        nk = ns * 8
        k0 = stages[0] * 8

        def afrag(t):
            return AR.sub((t % AD) * 4, 4)

        def wfrag(t, mb):
            return WP.sub(((t & 1) * 2 + mb) * 4, 4)

        def a_load(t):
            out = []
            if t % 4 == 0:
                out.append(I("s_add_u32", sTa, sA, (stages[t // 8] * 8 + t % 8) * 1024))
            out.append(I("buffer_load_dwordx4", afrag(t), vl16, s(S_WS, 4), sTa, mods="offen offset:%d" % (1024 * (t % 4))))
            return out

        def w_dma(i):
            g = stages[i]
            srd, row = (S_WO, g * 128) if g < 32 else (S_WD, (g - 32) * 128)
            out = [[I("s_add_u32", M0, sM0, (i % NSL) * 16384), I("s_add_u32", sTw, sWo, row * 1024)]]
            for q in range(4):
                x = I("buffer_load_dwordx4", vW[q], s(srd, 4), sTw, mods="offen offset:%d lds" % (1024 * q), tag=("W", i))
                if q == 0:
                    out[0].append(x)
                else:
                    out.append([x])
            return out

        def reads(t):
            i, sl = t // 8, t % 8
            off = (i % NSL) * 16384 + 16 * sl * 128
            at = vtr if off < 65536 else vtr2
            if at is vtr2:
                off -= 65536
            return [I("ds_read_b64_tr_b16", wfrag(t, mb).sub(2 * p, 2), at[mb], mods="offset:%d" % (off + p * 1024))
                    for mb in range(2) for p in range(2)]

        def mf(t):
            g = stages[t // 8]
            acc = ACC[0 if g < 32 else 1]
            first = t == 0 or (split == 1 and g == NS0 and t % 8 == 0)
            return [I(MFMA, acc.sub(mb * 16, 16), wfrag(t, mb), afrag(t), 0 if first else acc.sub(mb * 16, 16))
                    for mb in range(2)]

        dfill = d_side() if split == 1 else []
        for x in w_dma(0):
            emit_all(e, x)
        for t in range(8):
            emit_all(e, a_load(t))
        for x in w_dma(1):
            emit_all(e, x)
        setup2()
        for t in range(8, AD):
            emit_all(e, a_load(t))
        wq = []
        for i in range(2, NSL - 1):
            wq += w_dma(i)
        if split == 1:
            stamp(e, 1)
        e.wait_vm_tag(lambda tg: tg == ("W", 0))
        e.I("s_barrier")
        emit_all(e, reads(0))
        nxt = NSL - 1
        if nxt < ns:
            wq += w_dma(nxt)
            nxt += 1
        for t in range(nk):
            i, sl = t // 8, t % 8
            if sl == 7 and t + 1 < nk:
                e.wait_lgkm0()
                while any(x[-1].tag == ("W", i + 1) for x in wq):
                    emit_all(e, wq.pop(0))
                e.wait_vm_tag(lambda tg: tg == ("W", i + 1))
                if split == 1 and i == ns - 2 - POLL_AT:
                    e.I("buffer_load_dword", vPoll, vFo, s(S_DBG, 4), 0, mods="offen sc1")
                if split == 1 and i == ns - 1 - POLL_AT:
                    poll()
                e.I("s_barrier")
                if nxt < ns:
                    wq += w_dma(nxt)
                    nxt += 1
                if split == 1 and i == ns - 1 - POLL_AT:
                    wq += fin_loads()
            ms = mf(t)
            rd = reads(t + 1) if t + 1 < nk else []
            e.emit(ms[0])
            emit_all(e, rd[:2])
            if split == 1 and t >= 14 * 8 + 2 and dfill:
                for _ in range(5):
                    if dfill:
                        e.emit(dfill.pop(0))
            if wq and (t % 2 == 0 or len(wq) > 6):
                emit_all(e, wq.pop(0))
            e.emit(ms[1])
            emit_all(e, rd[2:])
            if t + AD < nk:
                emit_all(e, a_load(t + AD))
            elif wq:
                emit_all(e, wq.pop(0))
        while wq:
            emit_all(e, wq.pop(0))
        emit_all(e, dfill)

    PK = [v(52), v(53)]

    def rnd(out, vals):
        for k in range(2):
            out.append(I("v_cvt_pk_bf16_f32", PK[k], vals[2 * k], vals[2 * k + 1]))
        for k in range(2):
            out.append(I("v_lshlrev_b32", vals[2 * k], 16, PK[k]))
            out.append(I("v_and_b32", vals[2 * k + 1], 0xffff0000, PK[k]))

    def d_side():
        out = []
        for n in range(8):
            DD = [ACC[1][4 * n + i] for i in range(4)]
            G_ = [v(56 + i) for i in range(4)]
            rnd(out, DD)
            for i in range(4):
                out.append(I("v_mul_f32", G_[i], -LOG2E, DD[i]))
            for i in range(4):
                out.append(I("v_exp_f32", G_[i], G_[i]))
            for i in range(4):
                out.append(I("v_add_f32", G_[i], 1.0, G_[i]))
            for i in range(4):
                out.append(I("v_rcp_f32", G_[i], G_[i]))
            for i in range(4):
                out.append(I("v_mul_f32", DD[i], G_[i], DD[i]))
            rnd(out, DD)
        return out

    def poll():
        e.I("v_readfirstlane_b32", sT0, vPoll)
        e.I("s_lshr_b32", sT0, sT0, sFl)
        e.I("s_and_b32", sT0, sT0, 0xffff)
        e.I("s_cmp_lg_u32", sT0, 0)
        e.I("s_cbranch_scc1", "K3_POLLX")
        e.I("s_mov_b32", sSpin, 1 << 16)
        e.label("K3_POLL")
        e.raw(I("buffer_load_dword", vPoll, vFo, s(S_DBG, 4), 0, mods="offen sc1"))
        e.raw(I("s_waitcnt", "vmcnt(0)"))
        e.I("v_readfirstlane_b32", sT0, vPoll)
        e.I("s_lshr_b32", sT0, sT0, sFl)
        e.I("s_and_b32", sT0, sT0, 0xffff)
        e.I("s_sub_u32", sSpin, sSpin, 1)
        e.I("s_cmp_eq_u32", sSpin, 0)
        e.I("s_cbranch_scc1", "K3_POLLX")
        e.I("s_cmp_lg_u32", sT0, 0)
        e.I("s_cbranch_scc1", "K3_POLLX")
        e.I("s_sleep", 2)
        e.I("s_branch", "K3_POLL")
        e.label("K3_POLLX")

    def fin_loads():
        out = []
        for n in range(8):
            ins = []
            if n % 4 == 0:
                ins.append(I("s_add_u32", sT1, sP, n * 1024))
            ins.append(I("buffer_load_dwordx4", PS.sub(4 * n, 4), vl16, s(S_WS, 4), sT1,
                         mods="offen offset:%d sc1" % ((n % 4) * 1024)))
            out.append(ins)
        for n in range(8):
            out.append([I("buffer_load_dwordx2", XR.sub(2 * n, 2), vX, s(S_X, 4), sX,
                          mods="offen offset:%d" % ((n >> 2) * 64 + (n & 3) * 16))])
        return out

    e.I("s_cmp_eq_u32", ssp, 1)
    e.I("s_cbranch_scc1", "K3_CONS")
    st0 = e.state()
    program(0)
    for n in range(8):
        if n % 4 == 0:
            e.I("s_add_u32", sT1, sP, n * 1024)
        e.I("buffer_store_dwordx4", ACC[0].sub(4 * n, 4), vl16, s(S_WS, 4), sT1,
            mods="offen offset:%d sc1" % ((n % 4) * 1024), tag="final")
    e.wait_all()
    e.I("s_barrier")
    e.I("s_cmp_lg_u32", sw, 0)
    e.I("s_cbranch_scc1", END)
    e.I("s_mov_b64", EXEC, 1)
    e.I("buffer_atomic_add", vOne, vFo, s(S_DBG, 4), 0, mods="offen")
    e.I("s_endpgm")
    e.label("K3_CONS")
    e.set_state(st0)
    program(1)
    stamp(e, 2)
    for n in range(8):
        SS = [ACC[0][4 * n + i] for i in range(4)]
        G_ = [ACC[1][4 * n + i] for i in range(4)]
        XX = [v(60 + i) for i in range(4)]
        o = []
        for i in range(4):
            o.append(I("v_add_f32", SS[i], SS[i], PS[4 * n + i]))
        rnd(o, SS)
        for i in range(4):
            o.append(I("v_mul_f32", SS[i], SS[i], G_[i]))
        rnd(o, SS)
        for k in range(2):
            o.append(I("v_lshlrev_b32", XX[2 * k], 16, XR[2 * n + k]))
            o.append(I("v_and_b32", XX[2 * k + 1], 0xffff0000, XR[2 * n + k]))
        for i in range(4):
            o.append(I("v_add_f32", SS[i], SS[i], XX[i]))
        OR = PS.sub(4 * n, 2)
        for k in range(2):
            o.append(I("v_cvt_pk_bf16_f32", OR[k], SS[2 * k], SS[2 * k + 1]))
        o.append(I("buffer_store_dwordx2", OR, vX, s(S_OUT, 4), sX,
                   mods="offen offset:%d" % ((n >> 2) * 64 + (n & 3) * 16), tag="final"))
        emit_all(e, o)
    stamp(e, 3)
    stamp_flush(e, 1 if gen.FUSE else 2, s(S_WS, 4), sw, 4)
    e.label(END)
    e.I("s_endpgm")
    return e.text(), dict(vgpr=160 + 4 * AD, sgpr=102, accum=160, grid=256, block=256, lds=NSL * 16384)


gen_k4 = None
```

```python
import sys, math
sys.path.insert(0, "dev")
from asmlib import *

NAME = "recurrent_scan__compressed_kv_cla__geglu_ffn__prompt"
WS_XN = 0x0000000
WS_K = 0x0200000
WS_V = 0x1200000
WS_A3 = 0x2200000
WS_BYTES = 0x10000000
MFMA = "v_mfma_f32_32x32x16_bf16"

P_X, P_CKV, P_WQ, P_WUK, P_WUV, P_WO, P_BX, P_WG, P_WU, P_WD, P_OUT, P_DBG, P_WS = [4 + 2 * i for i in range(13)]


def I(op, *ops, mods="", tag=None, comment=None):
    return Inst(op, ops, mods, tag, comment)


def emit_all(e, lst):
    for x in lst:
        if isinstance(x, tuple):
            x = x[1]
        if isinstance(x, Inst):
            e.emit(x)
        else:
            x(e)


PROFILE = False
STAMP_MAP = None
STAMP_RT = False
GEXP = set()
FUSE = True
FUSE3 = True
LD_SC1 = False
S_DBG = 96
PACE = 2
FAST0 = 96
WS_PROF = 0x8000000


def stamp(e, idx):
    if not PROFILE:
        return
    if STAMP_MAP is not None:
        if idx not in STAMP_MAP:
            return
        idx = STAMP_MAP[idx]
    assert idx < 10
    e.wait_lgkm0()
    e.I("s_memrealtime" if STAMP_RT else "s_memtime", s(82, 2))
    e.I("s_waitcnt", "lgkmcnt(0)")
    e.I("s_mov_b32", s(84 + idx), s(82))
    if idx == 0:
        e.I("s_memrealtime", s(82, 2))
        e.I("s_waitcnt", "lgkmcnt(0)")
        e.I("s_mov_b32", s(94), s(82))


def stamp_flush(e, kidx, srd_ws, sw, n, vt=(v(2), v(3))):
    if not PROFILE:
        return
    e.wait_all()
    e.I("s_memrealtime", s(82, 2))
    e.I("s_waitcnt", "lgkmcnt(0)")
    e.I("s_mov_b32", s(95), s(82))
    e.I("s_lshl_b32", s(82), s(2), 2)
    e.I("s_add_u32", s(82), s(82), sw)
    e.I("s_lshl_b32", s(82), s(82), 6)
    e.I("s_add_u32", s(82), s(82), WS_PROF + kidx * 65536)
    e.I("v_mov_b32", vt[1], 0)
    for i in list(range(n)) + [14, 15]:
        e.I("v_mov_b32", vt[0], s(84 + i if i < 10 else 80 + i))
        e.I("buffer_store_dword", vt[0], vt[1], srd_ws, s(82), mods="offen offset:%d" % (4 * i))


def prologue(e, nwg, endlabel):
    e.I("s_cmp_lt_u32", s(2), nwg)
    e.I("s_cbranch_scc1", "GO_" + endlabel)
    e.I("s_endpgm")
    e.label("GO_" + endlabel)
    e.I("s_load_dwordx16", s(4, 16), s(0, 2), 0)
    e.I("s_load_dwordx8", s(20, 8), s(0, 2), 64)
    e.I("s_load_dwordx2", s(28, 2), s(0, 2), 96)


PF_CODE = True
PF_W = True
PF_TLB = False
PF_IN = False


class Untracked:
    def __init__(self, inst):
        self.inst = inst
        self.cost = 8
        self.tag = "pf"

    def __call__(self, em):
        if len(em.vm) >= 63:
            em._emit_wait(vm=62)
        em.raw(self.inst)
        em.vm.append((set(), "pf"))


def code_prefetch(e, name, first, last, sbase, vtmp, vdst, nload):
    if not PF_CODE:
        return
    lab = "L_pc_" + name
    e.I("s_getpc_b64", sbase)
    e.label(lab)
    e.I("s_add_u32", sbase[0], sbase[0], "%s-%s" % (first, lab))
    e.I("s_addc_u32", sbase[1], sbase[1], -1)
    e.I("s_lshr_b32", s(3), s(2), 3)
    e.I("s_lshl_b32", s(3), s(3), 12)
    e.I("v_lshlrev_b32", vtmp, 4, v(0))
    e.I("v_add_u32", vtmp, s(3), vtmp)
    for i in range(nload):
        if i:
            e.I("v_add_u32", vtmp, 131072, vtmp)
        e.I("v_min_u32", vtmp, "%s-%s-16" % (last, first), vtmp)
        Untracked(I("global_load_dwordx4", vdst, vtmp, sbase))(e)


def make_srd(e, d, p, nbytes):
    e.I("s_mov_b32", s(d), s(p))
    e.I("s_mov_b32", s(d + 1), s(p + 1))
    e.I("s_mov_b32", s(d + 2), nbytes)
    e.I("s_mov_b32", s(d + 3), 0x20000)


def head_j(e, sh, sj, t0, t1):
    e.I("s_and_b32", t0, s(2), 7)
    e.I("s_lshl_b32", t0, t0, 2)
    e.I("s_bfe_u32", t1, s(2), (2 << 16) | 3)
    e.I("s_add_u32", sh, t0, t1)
    e.I("s_lshr_b32", sj, s(2), 5)


def tr_addr(e, dst0, dst1, vl, tmp, base, kperm):
    t0, t1, t2 = tmp
    e.I("v_lshrrev_b32", t0, 5, vl)
    e.I("v_lshlrev_b32", t0, (2 if kperm else 3) + 7, t0)
    e.I("v_bfe_u32", t1, vl, 2, 2)
    e.I("v_lshlrev_b32", t1, 7, t1)
    e.I("v_add_u32", t0, t0, t1)
    e.I("v_bfe_u32", t1, vl, 4, 1)
    e.I("v_lshlrev_b32", t1, 5, t1)
    e.I("v_add_u32", t0, t0, t1)
    e.I("v_and_b32", t1, 3, vl)
    e.I("v_lshlrev_b32", t1, 3, t1)
    e.I("v_add_u32", t0, t0, t1)
    if base is not None and not (isinstance(base, int) and base == 0):
        e.I("v_add_u32", t0, base, t0)
    e.I("v_bfe_u32", t2, vl, 3, 1)
    e.I("v_lshlrev_b32", t2, 6, t2)
    e.I("v_add_u32", dst0, t0, t2)
    e.I("v_xor_b32", t2, 64, t2)
    e.I("v_add_u32", dst1, t0, t2)


def wdma_voff(e, dsts, vl, tmp, rs):
    t0, t1 = tmp
    e.I("v_lshrrev_b32", t0, 3, vl)
    e.I("v_mul_u32_u24", t0, rs, t0)
    e.I("v_bfe_u32", t1, vl, 4, 1)
    e.I("v_lshlrev_b32", t1, 2, t1)
    e.I("v_xor_b32", t1, t1, vl)
    e.I("v_and_b32", t1, 7, t1)
    e.I("v_lshlrev_b32", t1, 4, t1)
    e.I("v_add_u32", dsts[0], t0, t1)
    for i in range(1, len(dsts)):
        e.I("v_add_u32", dsts[i], 8 * rs - 1024, dsts[i - 1])


def signal(e, sw, soff, name, vone):
    e.I("s_cmp_lg_u32", sw, 0)
    e.I("s_cbranch_scc1", "L_sig_" + name)
    e.I("s_mov_b64", EXEC, 1)
    e.I("v_mov_b32", vone, 1)
    so, md = (0, "offset:%d" % soff) if isinstance(soff, int) else (soff, "")
    e.raw(I("buffer_atomic_add", vone, "off", s(S_DBG, 4), so, mods=md))
    e.I("s_mov_b64", EXEC, -1)
    e.label("L_sig_" + name)


def poll_issue(e, vp, soff):
    so, md = (0, "offset:%d " % soff) if isinstance(soff, int) else (soff, "")
    e.I("buffer_load_dword", vp, "off", s(S_DBG, 4), so, mods=md + "sc1")


def poll_check(e, vp, soff, target, name, st, sspin, sleep=2):
    e.I("v_readfirstlane_b32", st, vp)
    e.I("s_cmp_ge_u32", st, target)
    e.I("s_cbranch_scc1", "L_pollx_" + name)
    e.I("s_mov_b32", sspin, 1 << 16)
    e.label("L_poll_" + name)
    so, md = (0, "offset:%d " % soff) if isinstance(soff, int) else (soff, "")
    e.raw(I("buffer_load_dword", vp, "off", s(S_DBG, 4), so, mods=md + "sc1"))
    e.raw(I("s_waitcnt", "vmcnt(0)"))
    e.I("v_readfirstlane_b32", st, vp)
    e.I("s_sub_u32", sspin, sspin, 1)
    e.I("s_cmp_eq_u32", sspin, 0)
    e.I("s_cbranch_scc1", "L_pollx_" + name)
    e.I("s_cmp_ge_u32", st, target)
    e.I("s_cbranch_scc1", "L_pollx_" + name)
    e.I("s_sleep", sleep)
    e.I("s_branch", "L_poll_" + name)
    e.label("L_pollx_" + name)


class Seg:
    def __init__(self, nb, role, acc, src, fill=()):
        self.nb, self.role, self.acc, self.src, self.fill = nb, role, acc, src, list(fill)
        self.kps = 4 if nb == 4 else 8
        self.nst = 32 // self.kps


class Gemm:
    def __init__(self, e, ns, vtr, pool, s_m0, s_tmp, segs):
        self.e, self.ns, self.vtr, self.pool = e, ns, vtr, pool
        self.s_m0, self.s_tmp, self.segs = s_m0, s_tmp, segs
        self.ks = []
        self.stages = []
        for sg in segs:
            g0 = len(self.stages)
            for st in range(sg.nst):
                self.stages.append((sg, st))
            for sidx in range(32):
                self.ks.append((sg, sidx, g0 + sidx // sg.kps, sidx % sg.kps))

    def xfrag(self, rb, sidx):
        return a((rb * 32 + sidx) * 4, 4)

    def wfrag(self, t, nb):
        return self.pool.sub(((t & 1) * 4 + nb) * 4, 4)

    def w_reads(self, t):
        sg, sidx, g, sl = self.ks[t]
        out = []
        for nb in range(sg.nb):
            half, seg = nb >> 1, nb & 1
            f = self.wfrag(t, nb)
            for p in range(2):
                off = (g % self.ns) * 16384 + half * 8192 + (16 * sl + 4 * p) * 128
                out.append(I("ds_read_b64_tr_b16", f.sub(2 * p, 2), self.vtr[seg], mods="offset:%d" % off))
        return out

    def w_dma(self, g):
        sg, st = self.stages[g]
        src = sg.src
        out = [I("s_add_u32", M0, self.s_m0, (g % self.ns) * 16384),
               I("s_add_u32", self.s_tmp, src["s_base"], st * src["stage_stride"])]
        for i in range(4):
            out.append(I("buffer_load_dwordx4", src["voff"][i], src["srd"], self.s_tmp,
                         mods="offen offset:%d lds" % (1024 * i), tag=("W", g)))
        return out

    def mfmas(self, t):
        sg, sidx, g, sl = self.ks[t]
        out = []
        for nb in range(sg.nb):
            for rb in range(2):
                d = sg.acc(rb, nb)
                c = 0 if sidx == 0 else d
                w, x = self.wfrag(t, nb), self.xfrag(rb, sidx)
                out.append(I(MFMA, d, w, x, c) if sg.role == "WX" else I(MFMA, d, x, w, c))
        return out

    def run(self, hook=None, seg_end=None, queue=None, released=None, on_barrier=None, pace=2, pre_barrier=None):
        e = self.e
        nt = len(self.ks)
        nstage = len(self.stages)
        q = self.q = list(queue or [])
        rel = self.rel = set(released or [])
        st = {"n": 0, "last": -99}

        def need(key):
            while any(k == key for k, _ in q):
                k, insts = q.pop(0)
                assert k in rel, ("job needed before its slot is released", k)
                emit_all(e, insts)
            e.wait_vm_tag(lambda tg: tg == key)
        self.need = need

        def tick(em):
            st["n"] += 1
            backlog = sum(1 for k, _ in q[:14] if k in rel)
            if q and q[0][0] in rel and st["n"] - st["last"] >= (pace if (backlog < 14 and st["n"] > FAST0) else pace - 1):
                k, insts = q.pop(0)
                emit_all(e, insts)
                st["last"] = st["n"]
        tick.cost = 0
        need(("W", 0))
        e.I("s_barrier")
        emit_all(e, self.w_reads(0))
        for t in range(nt):
            sg, sidx, g, sl = self.ks[t]
            last = sl == sg.kps - 1
            if last and t + 1 < nt:
                if "g_nolgkm" not in GEXP:
                    e.wait_lgkm0()
                need(("W", g + 1))
                if pre_barrier:
                    pre_barrier(g)
                if "g_nobar" not in GEXP:
                    e.I("s_barrier")
                rel.add(("W", g + self.ns))
                if on_barrier:
                    on_barrier(g)
            rd = self.w_reads(t + 1) if t + 1 < nt else []
            ex = hook(t) if hook else []
            n = len(sg.fill)
            sf = sg.fill[(sidx * n) // 32: ((sidx + 1) * n) // 32]
            if "g_novalu" in GEXP:
                sf = [x for x in sf if not (isinstance(x, Inst) and x.kind in ("valu", "trans") and x.ops[0].i >= 17 and t >= 32)]
            if "g_nostore" in GEXP:
                sf = [x for x in sf if not (isinstance(x, Inst) and x.op.startswith("buffer_store") and t >= 32)]
            if "g_nord" in GEXP and t >= 32:
                rd = rd[:1]
            ex = ex + sf
            fill = merge(rd, ex)
            ms = []
            for m in self.mfmas(t):
                ms.append(Both(m, tick))
            interleave(e, ms, fill)
            if sidx == 31 and seg_end:
                seg_end(sg)

    def w_jobs(self, g):
        ins = self.w_dma(g)
        return [(("W", g), ins[0:3])] + [(("W", g), [x]) for x in ins[3:]]


class Both:
    def __init__(self, m, f):
        self.m, self.f = m, f
        self.cost = 8

    def __call__(self, em):
        em.emit(self.m)
        self.f(em)


def merge(x, y):
    out = []
    i = j = 0
    while i < len(x) or j < len(y):
        if j >= len(y) or (i < len(x) and i * len(y) <= j * len(x)):
            out.append(x[i]); i += 1
        else:
            out.append(y[j]); j += 1
    return out


def cvt_inplace(d, hh):
    return [I("v_cvt_pk_bf16_f32", d[8 * hh + q], d[8 * hh + 2 * q], d[8 * hh + 2 * q + 1]) for q in range(4)]


def gen_k1(e=None):
    global STAMP_MAP
    fused = e is not None
    if not fused:
        e = Emitter()
    END = "K2_END" if fused else "K1_END"
    STAMP_MAP = {0: 0, 3: 1, 6: 2} if fused else None
    prologue(e, 256, END)
    S_X, S_CKV, S_WK, S_WV, S_WS = 32, 36, 40, 44, 48
    sw, sh, sj = s(52), s(53), s(54)
    vl, vl16 = v(1), v(2)
    t0, t1, t2 = v(3), v(4), v(5)
    SET = [v(64, 64), v(128, 64), v(192, 64)]
    pool = v(32, 32)
    PFD = v(28, 4)
    code_prefetch(e, "k1", "ka_kernel" if fused else "k1_kernel", "TEXT_END", s(30, 2), t0, PFD, 1)
    e.I("v_and_b32", vl, 63, v(0))
    e.I("v_lshrrev_b32", t0, 6, v(0))
    e.I("v_lshlrev_b32", vl16, 4, vl)
    e.I("v_readfirstlane_b32", sw, t0)
    head_j(e, sh, sj, s(55), s(56))
    XS_BASE, XS_W = 65536, 24576
    vXd = [v(8), v(9)]
    e.I("v_lshrrev_b32", t0, 3, vl)
    e.I("v_lshlrev_b32", t1, 10, t0)
    e.I("v_lshrrev_b32", t0, 1, t0)
    e.I("v_xor_b32", t0, t0, vl)
    e.I("v_and_b32", t0, 7, t0)
    e.I("v_lshlrev_b32", t2, 4, t0)
    e.I("v_add_u32", vXd[0], t1, t2)
    e.I("v_xor_b32", t2, 64, t2)
    e.I("v_add_u32", vXd[1], t1, t2)
    sXrow = [s(60 + i) for i in range(8)]
    e.I("s_lshl_b32", s(58), sj, 18)
    e.I("s_lshl_b32", s(59), sw, 16)
    e.I("s_add_u32", s(58), s(58), s(59))
    for i in range(8):
        e.I("s_add_u32", sXrow[i], s(58), i * 8192 - (i & 3) * 1024)
    sXlds = s(68)
    e.I("s_mul_i32", sXlds, sw, XS_W)
    e.I("s_add_u32", sXlds, sXlds, XS_BASE)
    vW = [v(24 + i) for i in range(4)]
    wdma_voff(e, vW, vl, (t0, t1), 8192)
    sWb, sM0, sTmp, sWb2, sWb3 = s(69), s(70), s(71), s(80), s(81)
    e.I("s_and_b32", s(72), sw, 1)
    e.I("s_lshl_b32", s(72), s(72), 18)
    e.I("s_lshr_b32", s(73), sw, 1)
    e.I("s_lshl_b32", s(73), s(73), 7)
    e.I("s_lshl_b32", s(74), sh, 8)
    e.I("s_add_u32", sWb, s(74), s(72))
    e.I("s_add_u32", sWb, sWb, s(73))
    e.I("s_lshl_b32", s(72), sw, 18)
    e.I("s_add_u32", sWb2, s(74), s(72))
    e.I("s_add_u32", sWb3, sWb2, 128)
    e.I("s_lshl_b32", sM0, sw, 12)
    e.I("s_waitcnt", "lgkmcnt(0)")
    make_srd(e, S_CKV, P_CKV, 2048 * 1024)
    make_srd(e, S_WK, P_WUK, 512 * 8192)
    stamp(e, 0)

    def x_dma(p):
        out = []
        for i in range(8):
            if i % 4 == 0:
                out.append(I("s_add_u32", M0, sXlds, (p % 3) * 8192 + (i >> 2) * 4096))
            out.append(I("buffer_load_dwordx4", vXd[i & 1], s(S_CKV, 4), sXrow[i],
                         mods="offen offset:%d lds" % (1024 * (i & 3)), tag=("X", p)))
        out.append(I("v_add_u32", vXd[0], 128, vXd[0]))
        out.append(I("v_add_u32", vXd[1], 128, vXd[1]))
        return out

    vXr = [v(10 + i) for i in range(4)]

    def x_reads(p):
        out = [(lambda em: G.need(("X", p))) if p else (lambda em: em.wait_vm_tag(lambda tg: tg == ("X", p)))]
        for sl in range(4):
            for rb in range(2):
                out.append(I("ds_read_b128", a((rb * 32 + 4 * p + sl) * 4, 4), vXr[sl],
                             mods="offset:%d" % ((p % 3) * 8192 + rb * 4096)))
        return out

    srcK = dict(srd=s(S_WK, 4), voff=vW, s_base=sWb, stage_stride=64 * 8192)
    srcV0 = dict(srd=s(S_WV, 4), voff=vW, s_base=sWb2, stage_stride=128 * 8192)
    srcV1 = dict(srd=s(S_WV, 4), voff=vW, s_base=sWb3, stage_stride=128 * 8192)
    vtr = [v(14), v(15)]
    accA = lambda rb, nb: SET[rb].sub(nb * 16, 16)
    accB = lambda rb, nb: SET[2].sub((rb * 2 + nb) * 16, 16)
    accC = lambda rb, nb: SET[0].sub((rb * 2 + nb) * 16, 16)
    sKo, sVo, sSt = s(76), s(77), s(79)

    def store_block(d, sbase, rb, idxs):
        out = []
        for hh in range(2):
            out += cvt_inplace(d, hh)
            off = rb * 8192 + idxs[hh] * 1024
            out.append(I("s_add_u32", sSt, sbase, off & ~4095))
            out.append(I("buffer_store_dwordx4", d.sub(8 * hh, 4), vl16, s(S_WS, 4), sSt,
                         mods="offen offset:%d" % (off & 4095), tag="kv"))
        return out
    epiA = []
    for rb in range(2):
        for nb in range(4):
            epiA += store_block(accA(rb, nb), sKo, rb, (2 * nb, 2 * nb + 1))
    epiB, epiC = [], []
    for rb in range(2):
        for nb in range(2):
            epiB += store_block(accB(rb, nb), sVo, rb, (nb, 4 + nb))
            epiC += store_block(accC(rb, nb), sVo, rb, (2 + nb, 6 + nb))

    Z = SET[2]
    vLNa, vLNs = v(6), v(7)
    LN0, LN1 = Z.sub(0, 4), Z.sub(4, 4)
    X = [Z[8 + i] for i in range(16)]
    D = [Z[24 + i] for i in range(16)]
    sm, sw2, mean, var, pk, mb, vb, sd, rc = [Z[40 + i] for i in range(9)]
    ln = []
    A_ = lambda *x, **k: ln.append(I(*x, **k))
    for i in range(4):
        A_("v_lshlrev_b32", X[2 * i], 16, LN0[i])
        A_("v_and_b32", X[2 * i + 1], 0xffff0000, LN0[i])
        A_("v_lshlrev_b32", X[8 + 2 * i], 16, LN1[i])
        A_("v_and_b32", X[8 + 2 * i + 1], 0xffff0000, LN1[i])

    def allreduce32(r):
        for off in (0x041F, 0x081F, 0x101F, 0x201F, 0x401F):
            A_("ds_swizzle_b32", sw2, r, mods="offset:0x%04x" % off)
            A_("v_nop"); A_("v_nop"); A_("v_nop")
            A_("v_add_f32", r, r, sw2)
    A_("v_add_f32", sm, X[0], X[1])
    for i in range(2, 16):
        A_("v_add_f32", sm, sm, X[i])
    allreduce32(sm)
    A_("v_mul_f32", mean, 1.0 / 512, sm)
    for i in range(16):
        A_("v_sub_f32", D[i], X[i], mean)
    A_("v_mul_f32", sm, D[0], D[0])
    for i in range(1, 16):
        A_("v_fmac_f32", sm, D[i], D[i])
    allreduce32(sm)
    A_("v_mul_f32", var, 1.0 / 512, sm)
    A_("v_cvt_pk_bf16_f32", pk, mean, var)
    A_("v_lshlrev_b32", mb, 16, pk)
    A_("v_and_b32", vb, 0xffff0000, pk)
    A_("v_add_f32", vb, 1e-5, vb)
    A_("v_cvt_pk_bf16_f32", pk, vb, vb)
    A_("v_lshlrev_b32", vb, 16, pk)
    A_("v_sqrt_f32", vb, vb)
    A_("v_cvt_pk_bf16_f32", pk, vb, vb)
    A_("v_lshlrev_b32", sd, 16, pk)
    A_("v_rcp_f32", rc, sd)
    for i in range(16):
        A_("v_sub_f32", D[i], X[i], mb)
    for i in range(8):
        A_("v_cvt_pk_bf16_f32", pk, D[2 * i], D[2 * i + 1])
        A_("v_lshlrev_b32", D[2 * i], 16, pk)
        A_("v_and_b32", D[2 * i + 1], 0xffff0000, pk)
    for i in range(16):
        A_("v_mul_f32", X[i], D[i], rc)
        A_("v_fma_f32", D[i], Neg(X[i]), sd, D[i])
        A_("v_fmac_f32", X[i], D[i], rc)
    for i in range(4):
        A_("v_cvt_pk_bf16_f32", LN0[i], X[2 * i], X[2 * i + 1])
        A_("v_cvt_pk_bf16_f32", LN1[i], X[8 + 2 * i], X[8 + 2 * i + 1])
    A_("buffer_store_dwordx4", LN0, vLNs, s(S_WS, 4), s(74), mods="offen", tag="ln")
    A_("buffer_store_dwordx4", LN1, vLNs, s(S_WS, 4), s(75), mods="offen", tag="ln")
    ln = [x for x in ln if x.op != "v_nop"]
    pad = [lambda em: None] * (len(ln) // 2)
    for p_ in pad:
        pass
    segs = [Seg(4, "WX", accA, srcK, pad + ln), Seg(2, "XW", accB, srcV0, epiA), Seg(2, "XW", accC, srcV1, epiB)]
    G = Gemm(e, 4, vtr, pool, sM0, sTmp, segs)
    emit_all(e, x_dma(0))
    emit_all(e, G.w_dma(0))
    emit_all(e, x_dma(1))
    emit_all(e, G.w_dma(1))

    def x_jobs(p):
        ins = x_dma(p)
        k = ("X", p)
        return [(k, ins[0:2]), (k, [ins[2]]), (k, [ins[3]]), (k, [ins[4]]), (k, ins[5:7]), (k, [ins[7]]), (k, [ins[8]]),
                (k, ins[9:12])]
    queue = []
    for g in range(2, 16):
        if g < 8:
            queue += x_jobs(g)
        queue += G.w_jobs(g)
    make_srd(e, S_X, P_X, 2048 * 1024)
    make_srd(e, S_WV, P_WUV, 512 * 8192)
    make_srd(e, S_WS, P_WS, WS_BYTES)
    if fused:
        make_srd(e, S_DBG, P_DBG, 256)
    e.I("v_lshrrev_b32", t0, 5, v(0))
    e.I("v_lshlrev_b32", t1, 10, t0)
    e.I("v_and_b32", t2, 31, vl)
    e.I("v_lshlrev_b32", vLNa, 4, t2)
    e.I("v_add_u32", vLNa, vLNa, t1)
    e.I("v_lshrrev_b32", t1, 1, t2)
    e.I("v_lshlrev_b32", t1, 10, t1)
    e.I("v_and_b32", t2, 1, t2)
    e.I("v_lshlrev_b32", t2, 9, t2)
    e.I("v_add_u32", t1, t1, t2)
    e.I("v_lshlrev_b32", t0, 4, t0)
    e.I("v_add_u32", vLNs, t1, t0)
    e.I("s_lshl_b32", s(57), s(2), 13)
    e.I("buffer_load_dwordx4", LN0, vLNa, s(S_X, 4), s(57), mods="offen")
    e.I("buffer_load_dwordx4", LN1, vLNa, s(S_X, 4), s(57), mods="offen offset:512")
    if PF_TLB:
        e.I("s_cmp_eq_u32", sw, 0)
        e.I("s_cselect_b32", s(74), 20, 4)
        e.I("v_lshlrev_b32", t0, s(74), vl)
        e.I("s_mov_b32", s(75), 64 << 20)
        Untracked(I("buffer_load_dword", PFD[0], t0, s(S_WS, 4), 0, mods="offen"))(e)
        Untracked(I("buffer_load_dword", PFD[0], t0, s(S_WS, 4), s(75), mods="offen"))(e)
    e.I("s_lshr_b32", s(74), s(2), 2)
    e.I("s_lshl_b32", s(74), s(74), 15)
    e.I("s_and_b32", s(75), s(2), 3)
    e.I("s_lshl_b32", s(75), s(75), 7)
    e.I("s_add_u32", s(74), s(74), s(75))
    if WS_XN:
        e.I("s_add_u32", s(74), s(74), WS_XN)
    e.I("s_add_u32", s(75), s(74), 16384)
    e.I("v_and_b32", t0, 31, vl)
    e.I("v_lshlrev_b32", t1, 7, t0)
    e.I("v_add_u32", t1, sXlds, t1)
    e.I("v_bfe_u32", t0, vl, 1, 3)
    e.I("v_lshrrev_b32", t2, 5, vl)
    e.I("v_xor_b32", t0, t0, t2)
    for sl in range(4):
        e.I("v_xor_b32", t2, 2 * sl, t0)
        e.I("v_lshlrev_b32", t2, 4, t2)
        e.I("v_add_u32", vXr[sl], t1, t2)
    tr_addr(e, vtr[0], vtr[1], vl, (t0, t1, t2), 0, False)
    e.I("s_lshl_b32", s(78), sh, 6)
    e.I("s_lshl_b32", s(79), sj, 3)
    e.I("s_add_u32", s(78), s(78), s(79))
    e.I("s_lshl_b32", s(79), sw, 1)
    e.I("s_add_u32", s(78), s(78), s(79))
    e.I("s_lshl_b32", s(78), s(78), 13)
    e.I("s_add_u32", sKo, s(78), WS_K)
    e.I("s_add_u32", sVo, s(78), WS_V)
    stamp(e, 1)
    emit_all(e, x_reads(0))
    stamp(e, 2)

    def hook(t):
        g, sl = t >> 2, t & 3
        out = []
        if t < 32:
            if g < 7 and sl == 2:
                out += x_reads(g + 1)
        elif PF_W and t % 8 == 1:
            n = (t - 32) // 8
            if n == 0:
                out.append(I("s_lshl_b32", s(31), s(2), 2))
                out.append(I("s_add_u32", s(31), s(31), sw))
                out.append(I("s_lshl_b32", s(30), s(31), 12))
                out.append(I("s_lshl_b32", s(31), s(31), 11))
            p_, nbytes, so, off = ((P_WQ, 512 * 8192, s(30), n * 1024) if n < 4 else
                                   (P_WG if n < 6 else P_WU, 512 * 3584, s(31), (n & 1) * 1024))
            if n in (0, 4, 6):
                out += [I("s_mov_b32", s(S_X), s(p_)), I("s_mov_b32", s(S_X + 1), s(p_ + 1)),
                        I("s_mov_b32", s(S_X + 2), nbytes)]
            out.append(Untracked(I("buffer_load_dwordx4", PFD, vl16, s(S_X, 4), so, mods="offen offset:%d" % off)))
        return out
    cnt = [3]

    def seg_end(sg):
        stamp(e, cnt[0]); cnt[0] += 1
    def on_barrier(g):
        G.rel.add(("X", g + 3))
        G.rel.add(("X", g + 4))
        if fused and g == 10:
            signal(e, sw, 0, "ln", v(22))
        if fused and g == 13:
            poll_issue(e, v(23), 0)

    def pre_barrier(g):
        if fused and g == 10:
            e.wait_vm_tag(lambda tg: tg == "ln")
    G.run(hook, seg_end, queue=queue, released={("W", 2), ("W", 3), ("X", 2)},
          on_barrier=on_barrier, pace=PACE, pre_barrier=pre_barrier)
    emit_all(e, epiC)
    stamp(e, 6)
    if fused:
        return
    if PROFILE:
        e.wait_all()
    stamp(e, 7)
    stamp_flush(e, 0, s(S_WS, 4), sw, 8)
    e.label(END)
    e.I("s_endpgm")
    return e.text(), dict(vgpr=512, sgpr=102, accum=256, grid=256, block=256, lds=163840)


def gen_ka():
    import gen_ka as m
    return m.gen_ka()


KERNELS = [("k1_kernel", gen_k1)]
try:
    from gen_k2 import gen_k2
    KERNELS.append(("k2_kernel", gen_k2))
    from gen_k3 import gen_k3, gen_k4
    KERNELS.append(("k3_kernel", gen_k3))

except ImportError as ex:
    print("note:", ex)


def build(kernels=None):
    ks = KERNELS if kernels is None else kernels
    if FUSE:
        ks = [("ka_kernel", gen_ka)] + ([] if FUSE3 else ks[2:])
    hdr = open("cdna_kernels/%s.s.ref" % NAME).read().split("; Override")[0]
    out = [hdr]
    bodies, descs = [], []
    for name, fn in ks:
        txt, d = fn()
        out.append("; @launch kernel=%s grid=(%d,1,1) block=(%d,1,1) lds=%d\n" % (name, d["grid"], d["block"], d["lds"]))
        bodies.append(kernel_header(name) + txt)
        descs.append(".p2align 6" + kernel_desc(name, d["vgpr"], d["sgpr"], d["accum"]))
    out.append('.amdgcn_target "amdgcn-amd-amdhsa--gfx950"\n.text\n')
    out += bodies
    out.append("TEXT_END:\n")
    out.append('.section .rodata,"a"\n')
    out += descs
    return "".join(out)
```

```python
import sys
sys.path.insert(0, "dev")
from asmlib import *
import gen
from gen import *

LOG2E = 1.4426950408889634
WS_P = 0x4000000
NS0 = 21
AD = 20
NSL = 6
POLL_AT = 2


D_CTX, D_PAIR, D_H = 33, 49, 53


def gen_k3(e=None):
    fused = e is not None
    END = "K3_END"
    if not fused:
        e = Emitter()
        gen.STAMP_MAP = None
        prologue(e, 256, END)
    else:
        gen.STAMP_MAP = {}
    AS = " sc1" if (fused and gen.LD_SC1) else ""
    S_WS, S_WO, S_WD, S_X, S_OUT, S_DBG = 32, 36, 40, 44, 48, (gen.S_DBG if fused else 52)
    sCA, sCB, sCT = s(72), s(73), s(74)
    if fused:
        e.I("s_lshl_b32", sCB, s(58), 2)
        e.I("s_sub_u32", sCA, 4 * (D_CTX + 15), sCB)
        e.I("s_add_u32", sCB, sCB, 4 * D_CTX)
        poll_issue(e, v(18), 4 * D_H)
        e.wait_lgkm0()
        e.I("s_barrier")
    sw, ssp, str_, stc = s(56), s(57), s(58), s(59)
    sA, sWo, sWd, sM0, sT0, sT1, sTa, sTw = s(60), s(61), s(62), s(63), s(64), s(65), s(66), s(67)
    sX, sP, sSpin, sFl = s(68), s(69), s(70), s(71)
    vl, vl16 = v(1), v(2)
    t0, t1, t2 = v(3), v(4), v(5)
    vtr = [v(6), v(7)]
    vtr2 = [v(12), v(13)]
    vW = [v(8 + i) for i in range(4)]
    vX, vFo, vOne, vPoll = v(14), v(15), v(16), v(17)
    WP = v(20, 16)
    XR = v(36, 16)
    ACC = [v(64, 32), v(96, 32)]
    PS = v(128, 32)
    AR = a(0, 4 * AD)
    if not fused:
        code_prefetch(e, "k3", "k3_kernel", "TEXT_END", s(100, 2), t0, v(52, 4), 1)
    e.I("v_and_b32", vl, 63, v(0))
    e.I("v_lshrrev_b32", t0, 6, v(0))
    e.I("v_lshlrev_b32", vl16, 4, vl)
    e.I("v_readfirstlane_b32", sw, t0)
    e.I("s_and_b32", ssp, s(2), 1)
    e.I("s_bfe_u32", sT0, s(2), (2 << 16) | 1)
    e.I("s_lshl_b32", sT0, sT0, 2)
    e.I("s_bfe_u32", sT1, s(2), (2 << 16) | 3)
    e.I("s_add_u32", str_, sT0, sT1)
    e.I("s_lshr_b32", stc, s(2), 5)
    wdma_voff(e, vW, vl, (t0, t1), 1024)
    e.I("s_lshl_b32", sT0, str_, 2)
    e.I("s_add_u32", sT0, sT0, sw)
    e.I("s_mul_i32", sA, sT0, 368 * 1024)
    e.I("s_add_u32", sA, sA, WS_A3)
    e.I("s_lshl_b32", sT0, sw, 15)
    e.I("s_lshl_b32", sT1, stc, 7)
    e.I("s_add_u32", sWo, sT0, sT1)
    e.I("s_lshl_b32", sM0, sw, 12)
    if not fused:
        e.I("s_waitcnt", "lgkmcnt(0)")
    e.I("s_lshl_b32", sCT, str_, 2)
    e.I("s_add_u32", sCT, sCT, 4 * D_CTX)
    make_srd(e, S_WS, P_WS, WS_BYTES)
    make_srd(e, S_WO, P_WO, 4096 * 1024)
    make_srd(e, S_WD, P_WD, 1792 * 1024)
    stamp(e, 0)

    def setup2():
        tr_addr(e, vtr[0], vtr[1], vl, (t0, t1, t2), 0, True)
        e.I("v_add_u32", vtr2[0], 65536, vtr[0])
        e.I("v_add_u32", vtr2[1], 65536, vtr[1])
        make_srd(e, S_X, P_X, 2048 * 1024)
        make_srd(e, S_OUT, P_OUT, 2048 * 1024)
        if not fused:
            make_srd(e, S_DBG, P_DBG, 256)
        e.I("s_lshl_b32", sT0, str_, 3)
        e.I("s_add_u32", sT0, sT0, stc)
        e.I("s_lshl_b32", sP, sT0, 2)
        e.I("s_add_u32", sP, sP, sw)
        e.I("s_lshl_b32", sP, sP, 13)
        e.I("s_add_u32", sP, sP, WS_P)
        e.I("s_lshr_b32", sT1, sT0, 5)
        e.I("s_lshl_b32", sT1, sT1, 2)
        e.I("s_add_u32", sT1, sT1, 4 * D_PAIR)
        e.I("v_mov_b32", vFo, sT1)
        e.I("s_and_b32", sFl, sT0, 31)
        e.I("s_lshl_b32", sT0, 1, sFl)
        e.I("v_mov_b32", vOne, sT0)
        e.I("s_lshl_b32", sX, str_, 2)
        e.I("s_add_u32", sX, sX, sw)
        e.I("s_lshl_b32", sX, sX, 15)
        e.I("s_lshl_b32", sT0, stc, 7)
        e.I("s_add_u32", sX, sX, sT0)
        e.I("v_and_b32", t0, 31, vl)
        e.I("v_lshlrev_b32", t0, 10, t0)
        e.I("v_lshrrev_b32", t1, 5, vl)
        e.I("v_lshlrev_b32", t1, 3, t1)
        e.I("v_add_u32", vX, t0, t1)
        if gen.PF_TLB:
            e.I("v_lshlrev_b32", t0, 20, vl)
            Untracked(I("buffer_load_dword", v(52), t0, s(S_OUT, 4), 0, mods="offen"))(e)

    def program(split):
        stages = list(range(NS0)) if split == 0 else list(range(32, 46)) + list(range(NS0, 32))
        ns = len(stages)
        nk = ns * 8
        k0 = stages[0] * 8

        def afrag(t):
            return AR.sub((t % AD) * 4, 4)

        def wfrag(t, mb):
            return WP.sub(((t & 1) * 2 + mb) * 4, 4)

        def a_load(t):
            out = []
            if t % 4 == 0:
                out.append(I("s_add_u32", sTa, sA, (stages[t // 8] * 8 + t % 8) * 1024))
            out.append(I("buffer_load_dwordx4", afrag(t), vl16, s(S_WS, 4), sTa,
                         mods="offen offset:%d%s" % (1024 * (t % 4), AS)))
            return out

        def w_dma(i):
            g = stages[i]
            srd, row = (S_WO, g * 128) if g < 32 else (S_WD, (g - 32) * 128)
            out = [[I("s_add_u32", M0, sM0, (i % NSL) * 16384), I("s_add_u32", sTw, sWo, row * 1024)]]
            for q in range(4):
                x = I("buffer_load_dwordx4", vW[q], s(srd, 4), sTw, mods="offen offset:%d lds" % (1024 * q), tag=("W", i))
                if q == 0:
                    out[0].append(x)
                else:
                    out.append([x])
            return out

        def reads(t):
            i, sl = t // 8, t % 8
            off = (i % NSL) * 16384 + 16 * sl * 128
            at = vtr if off < 65536 else vtr2
            if at is vtr2:
                off -= 65536
            return [I("ds_read_b64_tr_b16", wfrag(t, mb).sub(2 * p, 2), at[mb], mods="offset:%d" % (off + p * 1024))
                    for mb in range(2) for p in range(2)]

        def mf(t):
            g = stages[t // 8]
            acc = ACC[0 if g < 32 else 1]
            first = t == 0 or (split == 1 and g == NS0 and t % 8 == 0)
            return [I(MFMA, acc.sub(mb * 16, 16), wfrag(t, mb), afrag(t), 0 if first else acc.sub(mb * 16, 16))
                    for mb in range(2)]

        dfill = d_side() if split == 1 else []
        for x in w_dma(0):
            emit_all(e, x)
        if fused:
            for x in w_dma(1):
                emit_all(e, x)
            setup2()
            e.wait_vm_tag(lambda tg: tg == "ctx")
            e.I("s_barrier")
            sig2(split)
            if split == 1:
                poll_check(e, v(18), 4 * D_H, 256, "h", sT0, sSpin)
            else:
                e.I("s_cmp_lg_u32", sw, 0)
                e.I("s_cbranch_scc1", "K3_PW")
                e.I("v_mov_b32", v(18), 0)
                poll_check(e, v(18), sCT, 32, "cp", sT0, sSpin, sleep=8)
                e.label("K3_PW")
                e.I("s_barrier")
        for t in range(8):
            emit_all(e, a_load(t))
        if not fused:
            for x in w_dma(1):
                emit_all(e, x)
            setup2()
        for t in range(8, AD):
            emit_all(e, a_load(t))
        wq = []
        for i in range(2, NSL - 1):
            wq += w_dma(i)
        if split == 1:
            stamp(e, 1)
        e.wait_vm_tag(lambda tg: tg == ("W", 0))
        e.I("s_barrier")
        emit_all(e, reads(0))
        nxt = NSL - 1
        if nxt < ns:
            wq += w_dma(nxt)
            nxt += 1
        for t in range(nk):
            i, sl = t // 8, t % 8
            if sl == 7 and t + 1 < nk:
                e.wait_lgkm0()
                while any(x[-1].tag == ("W", i + 1) for x in wq):
                    emit_all(e, wq.pop(0))
                e.wait_vm_tag(lambda tg: tg == ("W", i + 1))
                if split == 1 and i == ns - 2 - POLL_AT:
                    e.I("buffer_load_dword", vPoll, vFo, s(S_DBG, 4), 0, mods="offen sc1")
                if split == 1 and i == ns - 1 - POLL_AT:
                    poll()
                e.I("s_barrier")
                if nxt < ns:
                    wq += w_dma(nxt)
                    nxt += 1
                if split == 1 and i == ns - 1 - POLL_AT:
                    wq += fin_loads()
            if fused and split == 1 and t == 112 - AD - 9:
                poll_issue(e, v(18), sCT)
            if fused and split == 1 and t == 112 - AD - 1:
                poll_check(e, v(18), sCT, 32, "cc", sT0, sSpin, sleep=4)
            ms = mf(t)
            rd = reads(t + 1) if t + 1 < nk else []
            e.emit(ms[0])
            emit_all(e, rd[:2])
            if split == 1 and t >= 14 * 8 + 2 and dfill:
                for _ in range(5):
                    if dfill:
                        e.emit(dfill.pop(0))
            if wq and (t % 2 == 0 or len(wq) > 6):
                emit_all(e, wq.pop(0))
            e.emit(ms[1])
            emit_all(e, rd[2:])
            if t + AD < nk:
                emit_all(e, a_load(t + AD))
            elif wq:
                emit_all(e, wq.pop(0))
        while wq:
            emit_all(e, wq.pop(0))
        emit_all(e, dfill)

    def sig2(split):
        e.I("s_cmp_lg_u32", sw, 0)
        e.I("s_cbranch_scc1", "K3_SG%d" % split)
        e.I("s_mov_b64", EXEC, 1)
        e.I("v_mov_b32", v(19), 1)
        e.raw(I("buffer_atomic_add", v(19), "off", s(S_DBG, 4), sCA))
        e.raw(I("buffer_atomic_add", v(19), "off", s(S_DBG, 4), sCB))
        e.I("s_mov_b64", EXEC, -1)
        e.label("K3_SG%d" % split)

    PK = [v(52), v(53)]

    def rnd(out, vals):
        for k in range(2):
            out.append(I("v_cvt_pk_bf16_f32", PK[k], vals[2 * k], vals[2 * k + 1]))
        for k in range(2):
            out.append(I("v_lshlrev_b32", vals[2 * k], 16, PK[k]))
            out.append(I("v_and_b32", vals[2 * k + 1], 0xffff0000, PK[k]))

    def d_side():
        out = []
        for n in range(8):
            DD = [ACC[1][4 * n + i] for i in range(4)]
            G_ = [v(56 + i) for i in range(4)]
            rnd(out, DD)
            for i in range(4):
                out.append(I("v_mul_f32", G_[i], -LOG2E, DD[i]))
            for i in range(4):
                out.append(I("v_exp_f32", G_[i], G_[i]))
            for i in range(4):
                out.append(I("v_add_f32", G_[i], 1.0, G_[i]))
            for i in range(4):
                out.append(I("v_rcp_f32", G_[i], G_[i]))
            for i in range(4):
                out.append(I("v_mul_f32", DD[i], G_[i], DD[i]))
            rnd(out, DD)
        return out

    def poll():
        e.I("v_readfirstlane_b32", sT0, vPoll)
        e.I("s_lshr_b32", sT0, sT0, sFl)
        e.I("s_and_b32", sT0, sT0, 1)
        e.I("s_cmp_lg_u32", sT0, 0)
        e.I("s_cbranch_scc1", "K3_POLLX")
        e.I("s_mov_b32", sSpin, 1 << 16)
        e.label("K3_POLL")
        e.raw(I("buffer_load_dword", vPoll, vFo, s(S_DBG, 4), 0, mods="offen sc1"))
        e.raw(I("s_waitcnt", "vmcnt(0)"))
        e.I("v_readfirstlane_b32", sT0, vPoll)
        e.I("s_lshr_b32", sT0, sT0, sFl)
        e.I("s_and_b32", sT0, sT0, 1)
        e.I("s_sub_u32", sSpin, sSpin, 1)
        e.I("s_cmp_eq_u32", sSpin, 0)
        e.I("s_cbranch_scc1", "K3_POLLX")
        e.I("s_cmp_lg_u32", sT0, 0)
        e.I("s_cbranch_scc1", "K3_POLLX")
        e.I("s_sleep", 2)
        e.I("s_branch", "K3_POLL")
        e.label("K3_POLLX")

    def fin_loads():
        out = []
        for n in range(8):
            ins = []
            if n % 4 == 0:
                ins.append(I("s_add_u32", sT1, sP, n * 1024))
            ins.append(I("buffer_load_dwordx4", PS.sub(4 * n, 4), vl16, s(S_WS, 4), sT1,
                         mods="offen offset:%d sc1" % ((n % 4) * 1024)))
            out.append(ins)
        for n in range(8):
            out.append([I("buffer_load_dwordx2", XR.sub(2 * n, 2), vX, s(S_X, 4), sX,
                          mods="offen offset:%d" % ((n >> 2) * 64 + (n & 3) * 16))])
        return out

    e.I("s_cmp_eq_u32", ssp, 1)
    e.I("s_cbranch_scc1", "K3_CONS")
    st0 = e.state()
    program(0)
    for n in range(8):
        if n % 4 == 0:
            e.I("s_add_u32", sT1, sP, n * 1024)
        e.I("buffer_store_dwordx4", ACC[0].sub(4 * n, 4), vl16, s(S_WS, 4), sT1,
            mods="offen offset:%d sc1" % ((n % 4) * 1024), tag="final")
    e.wait_all()
    e.I("s_barrier")
    e.I("s_cmp_lg_u32", sw, 0)
    e.I("s_cbranch_scc1", "K3_PE")
    e.I("s_mov_b64", EXEC, 1)
    e.I("buffer_atomic_or", vOne, vFo, s(S_DBG, 4), 0, mods="offen")
    e.I("s_mov_b64", EXEC, -1)
    e.label("K3_PE")
    if fused:
        stamp_flush(e, 0, s(S_WS, 4), sw, 10)
    e.I("s_endpgm")
    e.label("K3_CONS")
    e.set_state(st0)
    program(1)
    stamp(e, 2)
    for n in range(8):
        SS = [ACC[0][4 * n + i] for i in range(4)]
        G_ = [ACC[1][4 * n + i] for i in range(4)]
        XX = [v(60 + i) for i in range(4)]
        o = []
        for i in range(4):
            o.append(I("v_add_f32", SS[i], SS[i], PS[4 * n + i]))
        rnd(o, SS)
        for i in range(4):
            o.append(I("v_mul_f32", SS[i], SS[i], G_[i]))
        rnd(o, SS)
        for k in range(2):
            o.append(I("v_lshlrev_b32", XX[2 * k], 16, XR[2 * n + k]))
            o.append(I("v_and_b32", XX[2 * k + 1], 0xffff0000, XR[2 * n + k]))
        for i in range(4):
            o.append(I("v_add_f32", SS[i], SS[i], XX[i]))
        OR = PS.sub(4 * n, 2)
        for k in range(2):
            o.append(I("v_cvt_pk_bf16_f32", OR[k], SS[2 * k], SS[2 * k + 1]))
        o.append(I("buffer_store_dwordx2", OR, vX, s(S_OUT, 4), sX,
                   mods="offen offset:%d" % ((n >> 2) * 64 + (n & 3) * 16), tag="final"))
        emit_all(e, o)
    stamp(e, 3)
    if fused:
        stamp_flush(e, 0, s(S_WS, 4), sw, 10)
        e.I("s_endpgm")
        return
    stamp_flush(e, 1 if gen.FUSE else 2, s(S_WS, 4), sw, 4)
    e.label(END)
    e.I("s_endpgm")
    return e.text(), dict(vgpr=160 + 4 * AD, sgpr=102, accum=160, grid=256, block=256, lds=NSL * 16384)


gen_k4 = None
```

```python
import sys
sys.path.insert(0, "dev")
from asmlib import *
import gen
from gen import *

LOG2E = 1.4426950408889634
QSCALE = LOG2E / (128 ** 0.5)
GC1 = -2.0 * (2.0 / math.pi) ** 0.5 * LOG2E
GC2 = GC1 * 0.044715
THRESH = float(2 ** 24)
CR = [(r & 3) + 8 * (r >> 2) for r in range(16)]
EXP = set()


def gen_ka():
    e = Emitter()
    fused = True
    END = "K2_END"
    KVS = " sc1"
    gen.STAMP_MAP = None
    prologue(e, 256, END)
    S_WS, S_A, S_B, S_C, S_K, S_V = 32, 36, 40, 44, 48, 52
    sw, sh, sj = s(56), s(57), s(58)
    sM0, sTmp, sSt = s(59), s(60), s(61)
    sXA, sXB = s(62), s(63)
    sWgu, sWq0, sWq1 = s(64), s(65), s(66)
    sHo = [s(67), s(68)]
    sCo = [s(69), s(70)]
    sKg, sVg, sRot = s(71), s(72), s(73)
    sCnt, sKv, sRet, sBact, sThr = s(74), s(75), s(76), s(77), s(78)
    sT0, sT1 = s(79), s(80)
    sQA, sQB, sHc = s(81), s(30), s(31)
    MASKS = [s(40, 2), s(42, 2), s(44, 2), s(46, 2)]
    sXrow = [s(71 + i) for i in range(8)]
    sXlds, sWb = s(67), s(68)
    sWb2, sWb3 = s(69), s(70)
    sKo, sVo = s(100), s(101)
    sLN0, sLN1 = s(64), s(65)
    vl, vl16 = v(1), v(2)
    t0, t1, t2 = v(3), v(4), v(5)
    vtr = [v(6), v(7)]
    vWg = [v(8 + i) for i in range(4)]
    vWq = [v(12 + i) for i in range(4)]
    vC2 = v(16)
    GT = [v(17 + i) for i in range(8)]
    vXd = [v(17), v(18)]
    vXr = [v(19 + i) for i in range(4)]
    vLNa, vLNs = v(23), v(24)
    vPl, vOne, vPk = v(25), v(26), v(27)
    PFD = v(28, 4)
    X_, Y_, Z_ = v(64, 64), v(128, 64), v(192, 64)
    SET = [Y_, Z_, X_]
    pool = v(32, 32)
    WR = 98304
    XS_W = 24576

    code_prefetch(e, "ka", "ka_kernel", "TEXT_END", s(30, 2), t0, PFD, 1)
    e.I("v_and_b32", vl, 63, v(0))
    e.I("v_lshrrev_b32", t0, 6, v(0))
    e.I("v_lshlrev_b32", vl16, 4, vl)
    e.I("v_readfirstlane_b32", sw, t0)
    head_j(e, sh, sj, sT0, sT1)
    e.I("v_lshrrev_b32", t0, 3, vl)
    e.I("v_lshlrev_b32", t1, 10, t0)
    e.I("v_lshrrev_b32", t0, 1, t0)
    e.I("v_xor_b32", t0, t0, vl)
    e.I("v_and_b32", t0, 7, t0)
    e.I("v_lshlrev_b32", t2, 4, t0)
    e.I("v_add_u32", vXd[0], t1, t2)
    e.I("v_xor_b32", t2, 64, t2)
    e.I("v_add_u32", vXd[1], t1, t2)
    e.I("s_lshl_b32", sT0, sj, 18)
    e.I("s_lshl_b32", sT1, sw, 16)
    e.I("s_add_u32", sT0, sT0, sT1)
    for i in range(8):
        e.I("s_add_u32", sXrow[i], sT0, i * 8192 - (i & 3) * 1024)
    e.I("s_mul_i32", sXlds, sw, XS_W)
    wdma_voff(e, vWq, vl, (t0, t1), 8192)
    e.I("s_and_b32", sT0, sw, 1)
    e.I("s_lshl_b32", sT0, sT0, 18)
    e.I("s_lshr_b32", sT1, sw, 1)
    e.I("s_lshl_b32", sT1, sT1, 7)
    e.I("s_lshl_b32", s(3), sh, 8)
    e.I("s_add_u32", sWb, s(3), sT0)
    e.I("s_add_u32", sWb, sWb, sT1)
    e.I("s_lshl_b32", sT0, sw, 18)
    e.I("s_add_u32", sWb2, s(3), sT0)
    e.I("s_add_u32", sWb3, sWb2, 128)
    e.I("s_lshl_b32", sM0, sw, 12)
    e.I("s_add_u32", sM0, sM0, WR)
    e.I("s_waitcnt", "lgkmcnt(0)")
    make_srd(e, S_A, P_CKV, 2048 * 1024)
    make_srd(e, S_B, P_WUK, 512 * 8192)
    stamp(e, 0)

    def c_dma(p):
        out = []
        for i in range(8):
            if i % 4 == 0:
                out.append(I("s_add_u32", M0, sXlds, (p % 3) * 8192 + (i >> 2) * 4096))
            out.append(I("buffer_load_dwordx4", vXd[i & 1], s(S_A, 4), sXrow[i],
                         mods="offen offset:%d lds" % (1024 * (i & 3)), tag=("C", p)))
        out.append(I("v_add_u32", vXd[0], 128, vXd[0]))
        out.append(I("v_add_u32", vXd[1], 128, vXd[1]))
        return out

    def c_jobs(p):
        ins = c_dma(p)
        k = ("C", p)
        return [(k, ins[0:2]), (k, [ins[2]]), (k, [ins[3]]), (k, [ins[4]]), (k, ins[5:7]), (k, [ins[7]]), (k, [ins[8]]),
                (k, ins[9:12])]

    def x_piece(p):
        out = []
        k = ("X", p)
        for rb in range(2):
            sb = sXA if rb == 0 else sXB
            for i in range(4):
                ins = []
                if i == 0:
                    ins.append(I("s_add_u32", sT0 if rb == 0 else sT1, sb, p * 4096))
                ins.append(I("buffer_load_dwordx4", a((rb * 32 + 4 * p + i) * 4, 4), vl16, s(S_WS, 4),
                             sT0 if rb == 0 else sT1, mods="offen offset:%d%s" % (1024 * i, " sc1" if gen.LD_SC1 else ""), tag=k))
                out.append((k, ins))
        return out

    def kv_jobs(kind, st):
        k = (kind, st)
        srd = s(S_K if kind == "K" else S_V, 4)
        base = (0 if kind == "K" else 65536) + (st & 3) * 16384
        out = []
        for i in range(4):
            ins = []
            if i == 0:
                ins.append(I("s_lshl_b32", sSt, sw, 12))
                ins.append(I("s_add_u32", M0, sSt, base))
                ins.append(I("s_add_u32", sSt, sSt, st * 16384))
            ins.append(I("buffer_load_dwordx4", vl16, srd, sSt, mods="offen offset:%d sc1 lds" % (1024 * i), tag=k))
            out.append((k, ins))
        return out

    srcK = dict(srd=s(S_B, 4), voff=vWq, s_base=sWb, stage_stride=64 * 8192)
    srcV0 = dict(srd=s(S_C, 4), voff=vWq, s_base=sWb2, stage_stride=128 * 8192)
    srcV1 = dict(srd=s(S_C, 4), voff=vWq, s_base=sWb3, stage_stride=128 * 8192)
    srcGU = dict(srd=s(S_A, 4), voff=vWg, s_base=sWgu, stage_stride=64 * 3584)
    srcQ0 = dict(srd=s(S_B, 4), voff=vWq, s_base=sWq0, stage_stride=128 * 8192)
    srcQ1 = dict(srd=s(S_B, 4), voff=vWq, s_base=sWq1, stage_stride=128 * 8192)
    acc4 = lambda s0, s1: (lambda rb, nb: (s0, s1)[rb].sub(nb * 16, 16))
    acc2 = lambda s0: (lambda rb, nb: s0.sub((rb * 2 + nb) * 16, 16))
    accK, accV0, accV1, accGU = acc4(X_, Y_), acc2(Z_), acc2(X_), acc4(Y_, Z_)

    def store_block(d, sbase, rb, idxs):
        out = []
        for hh in range(2):
            out += cvt_inplace(d, hh)
            off = rb * 8192 + idxs[hh] * 1024
            out.append(I("s_add_u32", s(3), sbase, off & ~4095))
            out.append(I("buffer_store_dwordx4", d.sub(8 * hh, 4), vl16, s(S_WS, 4), s(3),
                         mods="offen offset:%d" % (off & 4095), tag="kv"))
        return out

    def epiK():
        return [x for rb in range(2) for nb in range(4) for x in store_block(accK(rb, nb), sKo, rb, (2 * nb, 2 * nb + 1))]

    def epiV(acc, o):
        return [x for rb in range(2) for nb in range(2) for x in store_block(acc(rb, nb), sVo, rb, (o + nb, o + 4 + nb))]

    def ln_stream():
        Z = Z_
        LN0, LN1 = Z.sub(0, 4), Z.sub(4, 4)
        X = [Z[8 + i] for i in range(16)]
        D = [Z[24 + i] for i in range(16)]
        sm, sw2, mean, var, pk, mb, vb, sd, rc = [Z[40 + i] for i in range(9)]
        ln = []
        A_ = lambda *x, **k: ln.append(I(*x, **k))
        for i in range(4):
            A_("v_lshlrev_b32", X[2 * i], 16, LN0[i])
            A_("v_and_b32", X[2 * i + 1], 0xffff0000, LN0[i])
            A_("v_lshlrev_b32", X[8 + 2 * i], 16, LN1[i])
            A_("v_and_b32", X[8 + 2 * i + 1], 0xffff0000, LN1[i])

        def allreduce32(r):
            for off in (0x041F, 0x081F, 0x101F, 0x201F, 0x401F):
                A_("ds_swizzle_b32", sw2, r, mods="offset:0x%04x" % off)
                A_("v_add_f32", r, r, sw2)
        A_("v_add_f32", sm, X[0], X[1])
        for i in range(2, 16):
            A_("v_add_f32", sm, sm, X[i])
        allreduce32(sm)
        A_("v_mul_f32", mean, 1.0 / 512, sm)
        for i in range(16):
            A_("v_sub_f32", D[i], X[i], mean)
        A_("v_mul_f32", sm, D[0], D[0])
        for i in range(1, 16):
            A_("v_fmac_f32", sm, D[i], D[i])
        allreduce32(sm)
        A_("v_mul_f32", var, 1.0 / 512, sm)
        A_("v_cvt_pk_bf16_f32", pk, mean, var)
        A_("v_lshlrev_b32", mb, 16, pk)
        A_("v_and_b32", vb, 0xffff0000, pk)
        A_("v_add_f32", vb, 1e-5, vb)
        A_("v_cvt_pk_bf16_f32", pk, vb, vb)
        A_("v_lshlrev_b32", vb, 16, pk)
        A_("v_sqrt_f32", vb, vb)
        A_("v_cvt_pk_bf16_f32", pk, vb, vb)
        A_("v_lshlrev_b32", sd, 16, pk)
        A_("v_rcp_f32", rc, sd)
        for i in range(16):
            A_("v_sub_f32", D[i], X[i], mb)
        for i in range(8):
            A_("v_cvt_pk_bf16_f32", pk, D[2 * i], D[2 * i + 1])
            A_("v_lshlrev_b32", D[2 * i], 16, pk)
            A_("v_and_b32", D[2 * i + 1], 0xffff0000, pk)
        for i in range(16):
            A_("v_mul_f32", X[i], D[i], rc)
            A_("v_fma_f32", D[i], Neg(X[i]), sd, D[i])
            A_("v_fmac_f32", X[i], D[i], rc)
        for i in range(4):
            A_("v_cvt_pk_bf16_f32", LN0[i], X[2 * i], X[2 * i + 1])
            A_("v_cvt_pk_bf16_f32", LN1[i], X[8 + 2 * i], X[8 + 2 * i + 1])
        A_("buffer_store_dwordx4", LN0, vLNs, s(S_WS, 4), sLN0, mods="offen", tag="ln")
        A_("buffer_store_dwordx4", LN1, vLNs, s(S_WS, 4), sLN1, mods="offen", tag="ln")
        return ln

    NOP = lambda em: None

    def gu_epi(rb):
        out = []
        for nb in range(2):
            g_, u_ = accGU(rb, nb), accGU(rb, nb + 2)
            for hh in range(2):
                for half4 in range(2):
                    rs = [8 * hh + 4 * half4 + i for i in range(4)]
                    T = GT[0:4]
                    T2 = GT[4:8]
                    for i, r in enumerate(rs):
                        out.append(I("v_mul_f32", T[i], g_[r], g_[r]))
                    for i, r in enumerate(rs):
                        out.append(I("v_fmaak_f32", T[i], T[i], vC2, GC1))
                    for i, r in enumerate(rs):
                        out.append(I("v_mul_f32", T[i], T[i], g_[r]))
                    for i, r in enumerate(rs):
                        out.append(I("v_exp_f32", T[i], T[i]))
                    for i, r in enumerate(rs):
                        out.append(I("v_mul_f32", T2[i], g_[r], u_[r]))
                    for i, r in enumerate(rs):
                        out.append(I("v_add_f32", T[i], 1.0, T[i]))
                    for i, r in enumerate(rs):
                        out.append(I("v_rcp_f32", T[i], T[i]))
                    out.append(I("s_nop", 0))
                    for i, r in enumerate(rs):
                        out.append(I("v_mul_f32", g_[r], T2[i], T[i]))
                out += cvt_inplace(g_, hh)
                off = (2 * nb + hh) * 1024
                out.append(I("buffer_store_dwordx4", g_.sub(8 * hh, 4), vl16, s(S_WS, 4), sHo[rb],
                             mods="offen offset:%d" % off))
        return out

    def qfrag(qb, sidx):
        b, t = sidx >> 1, sidx & 1
        return X_.sub((qb * 2 + (b & 1)) * 16 + 8 * t + (4 if b >= 2 else 0), 4)

    def q_epi(acc, b0):
        out = []
        for rb in range(2):
            for nb in range(2):
                d = acc(rb, nb)
                for r in range(16):
                    out.append(I("v_mul_f32", d[r], QSCALE, d[r]))
                for t in range(2):
                    f = qfrag(rb, 2 * (b0 + nb) + t)
                    for q in range(4):
                        out.append(I("v_cvt_pk_bf16_f32", f[q], d[8 * t + 2 * q], d[8 * t + 2 * q + 1]))
        return out

    class L(list):
        def I(self, op, *ops, **k):
            self.append(I(op, *ops, **k))

    def setup_b():
        o = L()
        o.I("s_lshl_b32", sT0, sj, 2)
        o.I("s_add_u32", sQB, sT0, sw)
        o.I("s_sub_u32", sQA, 60, sT0)
        o.I("s_add_u32", sQA, sQA, sw)
        o.I("s_lshl_b32", sXA, sQA, 15)
        o.I("s_lshl_b32", sXB, sQB, 15)
        if WS_XN:
            o.I("s_add_u32", sXA, sXA, WS_XN)
            o.I("s_add_u32", sXB, sXB, WS_XN)
        wdma_voff(o, vWg, vl, (t0, t1), 3584)
        o.I("s_and_b32", sT0, sw, 1)
        o.I("s_mul_i32", sT0, sT0, 32 * 3584)
        o.I("s_lshl_b32", sT1, sh, 7)
        o.I("s_add_u32", sWgu, sT0, sT1)
        o.I("s_mov_b32", sWq0, sWb2)
        o.I("s_mov_b32", sWq1, sWb3)
        o.I("s_lshl_b32", sHc, sh, 2)
        o.I("s_add_u32", sHc, sHc, 4)
        o.I("s_cmp_lt_u32", sw, 2)
        g = [I("s_cmp_lt_u32", sw, 2), I("s_cselect_b32", s(S_A), s(P_WG), s(P_WU)),
             I("s_cselect_b32", s(S_A + 1), s(P_WG + 1), s(P_WU + 1))]
        o.append(lambda em: emit_all(em, g))
        o.I("s_mov_b32", s(S_A + 2), 512 * 3584)
        make_srd(o, S_B, P_WQ, 512 * 8192)
        o.I("v_mov_b32", vC2, GC2)
        for qb, sq in ((0, sQA), (1, sQB)):
            o.I("s_mul_i32", sT0, sq, 368 * 1024)
            o.I("s_lshl_b32", sT1, sh, 12)
            o.I("s_add_u32", sHo[qb], sT0, sT1)
            o.I("s_add_u32", sHo[qb], sHo[qb], WS_A3 + 256 * 1024)
        return o

    def setup_c():
        o = L()
        for qb in range(2):
            o.I("s_lshl_b32", sSt, sh, 12)
            o.I("s_add_u32", sCo[qb], sHo[qb], sSt)
            o.I("s_sub_u32", sCo[qb], sCo[qb], 256 * 1024)
        for srd, off in ((S_K, WS_K), (S_V, WS_V)):
            g = [I("s_lshl_b32", sSt, sh, 19), I("s_add_u32", sSt, sSt, off), I("s_add_u32", s(srd), s(P_WS), sSt),
                 I("s_addc_u32", s(srd + 1), s(P_WS + 1), 0)]
            o.append(lambda em, g=g: emit_all(em, g))
            o.I("s_lshl_b32", sSt, sj, 15)
            o.I("s_sub_u32", s(srd + 2), 64 * 8192, sSt)
            o.I("s_mov_b32", s(srd + 3), 0x20000)
        o.I("s_lshl_b32", sKg, sw, 12)
        o.I("s_mov_b32", sVg, sKg)
        o.I("s_mov_b32", sThr, THRESH)
        return o

    def touch(srd, bufs):
        g = [I("s_lshl_b32", sCnt, s(2), 2), I("s_add_u32", sCnt, sCnt, sw), I("s_lshl_b32", sCnt, sCnt, 13)]
        p0, n0 = bufs[0]
        g += [I("s_mov_b32", s(srd), s(p0)), I("s_mov_b32", s(srd + 1), s(p0 + 1)), I("s_mov_b32", s(srd + 2), n0),
              I("s_mov_b32", s(srd + 3), 0x20000)]
        for (pp, nn), (_, nprev) in zip(bufs[1:], bufs[:-1]):
            g += [I("s_cmp_ge_u32", sCnt, s(srd + 2)),
                  I("s_cselect_b32", sRet, s(srd + 2), 0),
                  I("s_cselect_b32", s(srd), s(pp), s(srd)), I("s_cselect_b32", s(srd + 1), s(pp + 1), s(srd + 1)),
                  I("s_cselect_b32", s(srd + 2), nn, s(srd + 2)),
                  I("s_sub_u32", sCnt, sCnt, sRet)]
        g += [I("v_lshlrev_b32", t2, 7, vl),
              Untracked(I("buffer_load_dword", PFD[0], t2, s(srd, 4), sCnt, mods="offen"))]
        return [lambda em: emit_all(em, g)]

    def proj(with_gu, tagp):
        ln = ln_stream()
        eV1 = epiV(accV1, 2)
        segs = [Seg(4, "WX", accK, srcK, [NOP] * (len(ln) // 4) + ln + [NOP] * (2 * len(ln))),
                Seg(2, "XW", accV0, srcV0, merge(epiK(), setup_b())),
                Seg(2, "XW", accV1, srcV1, epiV(accV0, 0) + [NOP] * 12)]
        if with_gu:
            aQ0, aQ1 = acc2(X_), acc2(Y_)
            segs += [Seg(4, "WX", accGU, srcGU, eV1 + setup_c() + [NOP] * 70), Seg(2, "WX", aQ0, srcQ0, gu_epi(0)),
                     Seg(2, "WX", aQ1, srcQ1, gu_epi(1) + q_epi(aQ0, 0))]
        else:
            aQ0, aQ1 = acc2(Y_), acc2(Z_)
            segs += [Seg(2, "WX", aQ0, srcQ0, eV1 + setup_c() + [NOP] * 70), Seg(2, "WX", aQ1, srcQ1, q_epi(aQ0, 0))]
        G = Gemm(e, 4, vtr, pool, sM0, sTmp, segs)
        nst = len(G.stages)

        def c_reads(p):
            out = [(lambda em: G.need(("C", p))) if p else (lambda em: em.wait_vm_tag(lambda tg: tg == ("C", p)))]
            for sl in range(4):
                for rb in range(2):
                    out.append(I("ds_read_b128", a((rb * 32 + 4 * p + sl) * 4, 4), vXr[sl],
                                 mods="offset:%d" % ((p % 3) * 8192 + rb * 4096)))
            return out
        emit_all(e, c_dma(0))
        emit_all(e, G.w_dma(0))
        make_srd(e, S_K, P_X, 2048 * 1024)
        make_srd(e, S_C, P_WUV, 512 * 8192)
        make_srd(e, S_WS, P_WS, WS_BYTES)
        make_srd(e, S_DBG, P_DBG, 256)
        e.I("v_lshrrev_b32", t0, 5, v(0))
        e.I("v_lshlrev_b32", t1, 10, t0)
        e.I("v_and_b32", t2, 31, vl)
        e.I("v_lshlrev_b32", vLNa, 4, t2)
        e.I("v_add_u32", vLNa, vLNa, t1)
        e.I("v_lshrrev_b32", t1, 1, t2)
        e.I("v_lshlrev_b32", t1, 10, t1)
        e.I("v_and_b32", t2, 1, t2)
        e.I("v_lshlrev_b32", t2, 9, t2)
        e.I("v_add_u32", t1, t1, t2)
        e.I("v_lshlrev_b32", t0, 4, t0)
        e.I("v_add_u32", vLNs, t1, t0)
        e.I("s_lshl_b32", sT0, s(2), 13)
        e.I("buffer_load_dwordx4", Z_.sub(0, 4), vLNa, s(S_K, 4), sT0, mods="offen")
        e.I("buffer_load_dwordx4", Z_.sub(4, 4), vLNa, s(S_K, 4), sT0, mods="offen offset:512")
        if gen.PF_IN:
            e.I("s_lshr_b32", sT0, s(2), 3)
            e.I("s_lshl_b32", sT0, sT0, 2)
            e.I("s_add_u32", sT0, sT0, sw)
            e.I("v_lshrrev_b32", t0, 3, vl)
            e.I("v_lshlrev_b32", t0, 13, t0)
            e.I("v_and_b32", t1, 7, vl)
            e.I("v_lshlrev_b32", t1, 7, t1)
            e.I("v_add_u32", t0, t0, t1)
            e.I("s_and_b32", sT1, sT0, 63)
            e.I("s_lshl_b32", sT1, sT1, 16)
            e.I("s_and_b32", s(3), s(2), 7)
            e.I("s_lshl_b32", s(3), s(3), 10)
            e.I("s_add_u32", sT1, sT1, s(3))
            e.I("s_cmp_ge_u32", sT0, 64)
            e.I("s_cselect_b32", s(S_V), s(P_WUV), s(P_WUK))
            e.I("s_cselect_b32", s(S_V + 1), s(P_WUV + 1), s(P_WUK + 1))
            e.I("s_mov_b32", s(S_V + 2), 512 * 8192)
            e.I("s_mov_b32", s(S_V + 3), 0x20000)
            e.I("v_lshlrev_b32", t1, 7, vl)
            e.I("s_lshl_b32", sT0, sT0, 14)
            Untracked(I("buffer_load_dword", PFD[1], t1, s(S_A, 4), sT0, mods="offen"))(e)
            e.I("s_add_u32", sT0, sT0, 8192)
            Untracked(I("buffer_load_dword", PFD[2], t1, s(S_A, 4), sT0, mods="offen"))(e)
            Untracked(I("buffer_load_dword", PFD[3], t0, s(S_V, 4), sT1, mods="offen"))(e)
        emit_all(e, c_dma(1))
        emit_all(e, G.w_dma(1))
        emit_all(e, c_dma(2))
        e.I("s_lshr_b32", sLN0, s(2), 2)
        e.I("s_lshl_b32", sLN0, sLN0, 15)
        e.I("s_and_b32", sLN1, s(2), 3)
        e.I("s_lshl_b32", sLN1, sLN1, 7)
        e.I("s_add_u32", sLN0, sLN0, sLN1)
        if WS_XN:
            e.I("s_add_u32", sLN0, sLN0, WS_XN)
        e.I("s_add_u32", sLN1, sLN0, 16384)
        e.I("v_and_b32", t0, 31, vl)
        e.I("v_lshlrev_b32", t1, 7, t0)
        e.I("v_add_u32", t1, sXlds, t1)
        e.I("v_bfe_u32", t0, vl, 1, 3)
        e.I("v_lshrrev_b32", t2, 5, vl)
        e.I("v_xor_b32", t0, t0, t2)
        for sl in range(4):
            e.I("v_xor_b32", t2, 2 * sl, t0)
            e.I("v_lshlrev_b32", t2, 4, t2)
            e.I("v_add_u32", vXr[sl], t1, t2)
        tr_addr(e, vtr[0], vtr[1], vl, (t0, t1, t2), WR, False)
        e.I("s_lshl_b32", sT0, sh, 6)
        e.I("s_lshl_b32", sT1, sj, 3)
        e.I("s_add_u32", sT0, sT0, sT1)
        e.I("s_lshl_b32", sT1, sw, 1)
        e.I("s_add_u32", sT0, sT0, sT1)
        e.I("s_lshl_b32", sT0, sT0, 13)
        e.I("s_add_u32", sKo, sT0, WS_K)
        e.I("s_add_u32", sVo, sT0, WS_V)
        emit_all(e, c_reads(0))
        if "early" in EXP and with_gu:
            stamp(e, 1)
        queue = []
        for g in range(2, nst):
            for p in {3: [3, 4], 4: [5, 6], 5: [7]}.get(g, []):
                queue += c_jobs(p)
            if 16 <= g < 20 and not with_gu:
                queue += x_piece(2 * (g - 16)) + x_piece(2 * (g - 16) + 1)
            queue += G.w_jobs(g)
            if with_gu:
                for p in {16: [0], 17: [1], 18: [2], 19: [3], 20: [4], 21: [5], 22: [6], 23: [7]}.get(g, []):
                    queue += x_piece(p)
        queue += kv_jobs("K", 0) + kv_jobs("K", 1) + kv_jobs("V", 0) + kv_jobs("K", 2) + kv_jobs("V", 1)
        queue += kv_jobs("K", 3) + kv_jobs("V", 2)
        LNSIG = 4
        CRD = {1: 1, 3: 2, 6: 3, 9: 4, 12: 5, 16: 6, 20: 7}
        XREL = {76: 0, 82: 1, 88: 2, 98: 3, 102: 4, 106: 5, 110: 6, 114: 7}
        pub = 20 if with_gu else 17
        kv_first = {("K", i) for i in range(3)} | {("V", 0), ("V", 1)}

        def pre_barrier(g):
            if g == LNSIG:
                e.wait_vm_tag(lambda tg: tg == "ln")
            if g == pub:
                e.wait_vm_tag(lambda tg: tg == "kv")

        def on_barrier(g):
            if "early" in EXP and with_gu and g in (0, 2, 4, 6):
                stamp(e, 2 + g // 2 if g < 6 else 4) if g < 6 else None
            if g == LNSIG:
                signal(e, sw, 0, "ln" + tagp, vOne)
            if g == 11:
                poll_issue(e, vPl, 0)
            if g == 12:
                poll_check(e, vPl, 0, 256, "ln" + tagp, sCnt, sRet)
                if not with_gu:
                    G.rel.add(("X", 0))
            if g == pub:
                signal(e, sw, sHc, "kv" + tagp, vOne)
            if g == nst - 6:
                poll_issue(e, vPk, sHc)
            if g == nst - 5:
                poll_check(e, vPk, sHc, 8, "kv" + tagp, sCnt, sRet)
                G.rel |= kv_first
            if g == nst - 2:
                G.rel.add(("V", 2))
                G.rel.add(("K", 3))

        def hook(t):
            sg, sidx, g, sl = G.ks[t]
            out = []
            if t in CRD:
                out += c_reads(CRD[t])
            if t == 0 or (t - 1) in CRD:
                pr = 0 if t == 0 else CRD[t - 1]

                def rel_c(em, pr=pr):
                    em.wait_lgkm0()
                    G.rel.add(("C", pr + 3))
                if t == 0:
                    out.append(rel_c)
                else:
                    rel_c(e)
            if t == 33 and gen.PF_W:
                out += touch(S_K, [(P_WQ, 512 * 8192), (P_WG, 512 * 3584), (P_WU, 512 * 3584)])
            if t == 100 and gen.PF_W:
                out += touch(S_C, [(P_WO, 4096 * 1024), (P_WD, 1792 * 1024)])
            if not with_gu and 72 <= t <= 96 and t % 4 == 0:
                G.rel.add(("X", (t - 68) // 4))
            if with_gu and t in XREL:
                G.rel.add(("X", XREL[t]))
            if 96 <= t < 128 and sidx % 4 == 0:
                p = sidx // 4
                while any(k == ("X", p) for k, _ in G.q):
                    k, ins = G.q.pop(0)
                    assert k in G.rel, k
                    emit_all(e, ins)
            return out
        cnt = [1]

        def seg_end(sg):
            if cnt[0] in (1, 3, 4) or not with_gu and False:
                pass
            if with_gu:
                m = {1: 1, 2: 2, 3: 3, 4: 4}.get(cnt[0])
                if m and "early" not in EXP:
                    stamp(e, m)
            cnt[0] += 1
        G.run(hook, seg_end, queue=queue, released={("W", 2), ("W", 3)}, on_barrier=on_barrier,
              pace=gen.PACE, pre_barrier=pre_barrier)
        while G.q:
            k, ins = G.q.pop(0)
            assert k in G.rel, k
            emit_all(e, ins)
        emit_all(e, q_epi(aQ1, 2))
        tags = [t for _, t in e.vm]
        assert all(t in (("K", 3), ("V", 2), None, "pf") for t in tags[-8:]), tags[-8:]
        assert all(t not in (("K", 0), ("K", 1), ("V", 0)) for t in tags[-16:]), tags[-16:]
        e.wait_vm_tag(lambda tg: tg == ("K", 0))
        e.wait_lgkm0()

    e.I("s_cmp_ge_u32", sh, 28)
    e.I("s_cbranch_scc1", "K2_NOGU")
    st0 = e.state()
    proj(True, "a")
    e.I("s_branch", "K2_ATT")
    e.label("K2_NOGU")
    e.set_state(st0)
    proj(False, "b")
    e.label("K2_ATT")
    e.vm = []
    e.lgkm = []
    e.I("s_nop", 1)
    stamp(e, 5)

    S = lambda par, qb: SET[0].sub((par * 2 + qb) * 16, 16)
    NM = lambda qb: SET[1].sub(qb * 16, 16)
    P = lambda par, qb: SET[1].sub(32 + (par * 2 + qb) * 8, 8)
    O = lambda qb, b: a((qb * 4 + b) * 16, 16)
    KF = lambda fs, si: a(128 + 64 * fs + 4 * si, 4)
    VF = lambda fs, t, b: a(128 + 64 * fs + 32 + 4 * (t * 4 + b), 4)
    vKr, vVr = v(6), v(7)
    vDq = [v(8), v(9)]
    vL = [[v(10), v(11)], [v(24), v(25)]]
    vTs = [v(12), v(13)]
    vTs2 = [v(4, 2), v(4, 2)]
    vTm, vDqT = v(14), [v(15), v(16)]
    vNinf = v(17)
    ET = [v(18 + i) for i in range(6)]
    vQx, vKx, vNx, vInvB, vPw = v(26), v(27), v(28), v(29), v(30)
    RT = [v(32 + i) for i in range(32)]
    QS = 131072
    sPw = sBact

    e.I("v_and_b32", t0, 31, vl)
    e.I("v_lshrrev_b32", t1, 5, vl)
    e.I("v_lshlrev_b32", t1, 2, t1)
    e.I("v_sub_u32", t0, t0, t1)
    e.I("s_lshl_b32", sT0, sQA, 5)
    e.I("s_lshl_b32", sT1, sQB, 5)
    e.I("v_add_u32", vDq[0], sT0, t0)
    e.I("v_add_u32", vDq[1], sT1, t0)
    e.I("v_mov_b32", vNinf, 0xff800000)
    e.I("v_mov_b32", vL[0][0], 0)
    e.I("v_mov_b32", vL[0][1], 0)
    e.I("v_add_u32", vKr, 16384, vl16)
    e.I("v_add_u32", vVr, 65536, vl16)
    e.I("s_lshl_b32", sRot, sw, 12)
    e.I("s_add_u32", sKg, sKg, 4 * 16384)
    e.I("s_add_u32", sVg, sVg, 3 * 16384)
    e.I("s_mov_b32", sKv, 0)
    e.I("s_and_b32", sPw, sw, 1)
    e.I("s_lshl_b32", sPw, sPw, 13)
    e.I("s_lshl_b32", sT0, sw, 13)
    e.I("s_add_u32", sT0, sT0, QS)
    e.I("v_add_u32", vQx, sT0, vl16)
    e.I("s_barrier")
    for si in range(8):
        e.I("ds_read_b128", KF(1, si), vl16, mods="offset:%d" % (si * 1024))
    for si in range(8):
        e.I("ds_read_b128", KF(0, si), vl16, mods="offset:%d" % (8192 + si * 1024))
    for si in range(8):
        for qb in range(2):
            e.I(MFMA, S(0, qb), KF(1, si), qfrag(qb, si), 0 if si == 0 else S(0, qb))
        e.I("ds_write_b128", vQx, qfrag(0, si), mods="offset:%d" % (si * 1024))
    e.I("v_xor_b32", vQx, 8192, vQx)

    def mask_S_inplace(em, Sx, dq):
        for r0 in range(0, 16, 4):
            for i in range(4):
                em.I("v_cmp_ge_i32", MASKS[i], dq, CR[r0 + i])
            for i in range(4):
                em.I("v_cndmask_b32", Sx[r0 + i], vNinf, Sx[r0 + i], MASKS[i])

    def rowmax(em, Sx, dst, tmp):
        em.I("v_max3_f32", dst, Sx[0], Sx[1], Sx[2])
        for r in range(3, 15, 2):
            em.I("v_max3_f32", dst, dst, Sx[r], Sx[r + 1])
        em.I("v_max_f32", dst, dst, Sx[15])
        em.I("v_mov_b32", tmp, dst)
        em.I("v_permlane32_swap_b32", dst, tmp)
        em.I("v_max_f32", dst, dst, tmp)

    for qb in range(2):
        Sx = S(0, qb)
        if qb == 1:
            mask_S_inplace(e, Sx, vDq[1])
        rowmax(e, Sx, RT[0], RT[1])
        for r in range(16):
            e.I("v_sub_f32", Sx[r], Sx[r], RT[0])
        for r in range(16):
            e.I("v_sub_f32", NM(qb)[r], 0, RT[0])
    e.wait_lgkm0()
    stamp(e, 6)

    ret_labels = []

    def sm_stream(par, qb, masked):
        Sx, Px = S(par, qb), P(par, qb)
        out = []
        if masked:
            out.append(I("v_subrev_u32", vDqT[qb], sKv, vDq[qb]))

        def front(k):
            o = []
            if masked:
                o.append(I("v_cmp_ge_i32", MASKS[(2 * k) & 3], vDqT[qb], CR[2 * k]))
                o.append(I("v_cmp_ge_i32", MASKS[(2 * k + 1) & 3], vDqT[qb], CR[2 * k + 1]))
            o.append(I("v_exp_f32", ET[(2 * k) % 6], Sx[2 * k]))
            o.append(I("v_exp_f32", ET[(2 * k + 1) % 6], Sx[2 * k + 1]))
            return o

        def back(k):
            ta, tb = ET[(2 * k) % 6], ET[(2 * k + 1) % 6]
            o = []
            if masked:
                o.append(I("v_cndmask_b32", ta, 0, ta, MASKS[(2 * k) & 3]))
                o.append(I("v_cndmask_b32", tb, 0, tb, MASKS[(2 * k + 1) & 3]))
            if "pk" in EXP:
                pr = v(ta.i, 2)
                if k == 1:
                    o.append(I("v_pk_add_f32", vTs2[qb], v(ET[0].i, 2), pr))
                elif k > 1:
                    o.append(I("v_pk_add_f32", vTs2[qb], vTs2[qb], pr))
                if k == 7:
                    o.append(I("v_add_f32", vTs[qb], vTs2[qb][0], vTs2[qb][1]))
            elif k == 0:
                o.append(I("v_add_f32", vTs[qb], ta, tb))
            else:
                o.append(I("v_add_f32", vTs[qb], vTs[qb], ta))
                o.append(I("v_add_f32", vTs[qb], vTs[qb], tb))
            o.append(I("v_cvt_pk_bf16_f32", Px[k], ta, tb))
            return o
        out += front(0)
        for k in range(8):
            if k + 1 < 8:
                out += front(k + 1)
            out += back(k)
        return out

    def qk_mfmas(par):
        return [I(MFMA, S(1 - par, qb), KF(par, si), qfrag(qb, si), NM(qb) if si == 0 else S(1 - par, qb))
                for si in range(8) for qb in range(2)]

    def pv_mfmas(par, first=(), order=None):
        ms = []
        for t in range(2):
            for b in range(4):
                for qb in range(2):
                    c = 0 if (qb in first and t == 0) else O(qb, b)
                    ms.append(I(MFMA, O(qb, b), VF(par, t, b), P(1 - par, qb).sub(4 * t, 4), c))
        return ms

    def k_reads(par, vaddr, off):
        return [I("ds_read_b128", KF(1 - par, si), vaddr, mods="offset:%d" % (off + si * 1024)) for si in range(8)]

    def v_reads(par, vaddr, off):
        return [I("ds_read_b128", VF(1 - par, si >> 2, si & 3), vaddr, mods="offset:%d" % (off + si * 1024))
                for si in range(8)]

    def step(par, name, qk, masks, pv, rds, dma, kvinc, pv_first=(), extra=(), tail=(), late_rd=True):
        ms = (qk_mfmas(par) if qk else []) + (pv_mfmas(par, pv_first) if pv else [])
        val = sm_stream(par, 0, masks[0]) + sm_stream(par, 1, masks[1])
        if "nords" in EXP:
            rds = []
        if "nodma" in EXP:
            dma = None
        if "nosm" in EXP:
            val = val[:4]
        cut = (len(val) * (9 if late_rd else 7)) // 10
        fill = merge(val[:cut], rds) + val[cut:]
        if extra:
            fill = merge(fill, list(extra))
        if dma:
            fill = merge(fill, dma)
        fill.append(I("v_max_f32", vTm, vTs[0], vTs[1]))
        fill.append(I("v_cmp_nge_f32", VCC, sThr, vTm))
        rid = len(ret_labels)
        ret_labels.append(("K2_RET_%s" % name, par))
        fill.append(I("s_mov_b32", sRet, rid))
        for qb in range(2):
            fill.append(I("v_add_f32", vL[1 - par][qb], vL[par][qb], vTs[qb]))
        fill += list(tail)
        interleave(e, ms, fill, close=True)
        e.I("s_cbranch_vccnz", "K2_RARE%d" % par)
        e.label("K2_RET_%s" % name)
        e.I("s_add_u32", sKv, sKv, kvinc)
        for x in EXP:
            if x.startswith("pad"):
                for _ in range(int(x[3:])):
                    e.I("s_nop", 15)

    def dma_group(kind, vdelta=16384):
        srd = s(S_K if kind == "K" else S_V, 4)
        sg = sKg if kind == "K" else sVg
        out = []
        if kind == "K":
            out.append(I("s_mov_b32", M0, sRot))
        else:
            out.append(I("s_sub_u32", sSt, sRot, vdelta))
            out.append(I("s_and_b32", sSt, sSt, 0xffff))
            out.append(I("s_add_u32", M0, sSt, 65536))
        for i in range(4):
            x = I("buffer_load_dwordx4", vl16, srd, sg, mods="offen offset:%d%s lds" % (1024 * i, KVS))
            x.cost = 16
            out.append(x)
        out.append(I("s_add_u32", sg, sg, 16384))
        return out

    def top():
        e.I("s_waitcnt", "vmcnt(16) lgkmcnt(0)")
        e.lgkm = []
        e.vm = []
        if "nobar" not in EXP:
            e.I("s_barrier")

    ROT = [I("s_add_u32", sRot, sRot, 16384), I("s_and_b32", sRot, sRot, 0xffff)]

    def iter1(name, maskB, first=False, last=False):
        top()
        step(0, name + "a", True, (False, maskB), not first,
             merge([] if last else k_reads(0, vKr, 0), v_reads(0, vVr, 0)), dma_group("K"), 32)
        tail = [I("v_add_u32", vVr, 65536, vKr), I("v_add_u32", vKr, 16384, vKr), I("v_and_b32", vKr, 0xffff, vKr),
                I("s_sub_u32", sCnt, sCnt, 1)] + ROT
        if last:
            rq = [I("ds_read_b128", qfrag(1, si), vQx, mods="offset:%d" % (si * 1024)) for si in range(8)]
            rds = [I("v_add_u32", vKx, sPw, vKr)] + merge(k_reads(1, vKx, 0), v_reads(1, vVr, 8192)) + rq
        else:
            rds = merge(k_reads(1, vKr, 8192), v_reads(1, vVr, 8192))
        step(1, name + "b", not last, (False, maskB), True, rds, dma_group("V"), 32,
             pv_first=(0, 1) if first else (), tail=tail, late_rd=False)

    def step2(par, name, masked, qk=True, pv=True, pv_first=(), extra=()):
        top()
        tail = [I("v_add_u32", vKr, 16384, vKr), I("v_and_b32", vKr, 0xffff, vKr),
                I("v_add_u32", vVr, 16384, vVr), I("v_and_b32", vVr, 0xffff, vVr), I("v_or_b32", vVr, 0x10000, vVr)] + ROT
        step(par, name, qk, (masked, masked), pv, merge(k_reads(par, vKr, 0), v_reads(par, vVr, 0)),
             dma_group("K") + dma_group("V", 32768), 64, pv_first=pv_first, extra=extra, tail=tail, late_rd=False)

    def loop(name, body):
        e.I("s_cmp_eq_u32", sCnt, 0)
        e.I("s_cbranch_scc1", "K2_%s_X" % name)
        e.label("K2_%s_L" % name)
        body()
        e.I("s_cmp_lg_u32", sCnt, 0)
        e.I("s_cbranch_scc1", "K2_%s_L" % name)
        e.label("K2_%s_X" % name)

    def ctx_store(qb_o, scale_regs, sbase, src2=None):
        out = []
        n = 0
        for b in range(4):
            for t in range(2):
                T = [RT[(n % 3) * 8 + 8 + r] for r in range(8)]
                Tq = v(RT[(n % 3) * 8 + 8].i, 4)
                n += 1
                for r in range(8):
                    out.append(I("v_accvgpr_read_b32", T[r], O(qb_o, b)[8 * t + r]))
                for r in range(8):
                    out.append(I("v_mul_f32", T[r], T[r], scale_regs[0]))
                if src2 is not None:
                    for r in range(8):
                        out.append(I("v_fmac_f32", T[r], src2[b * 16 + 8 * t + r], scale_regs[1]))
                for q in range(4):
                    out.append(I("v_cvt_pk_bf16_f32", T[q], T[2 * q], T[2 * q + 1]))
                off = (2 * b + t) * 1024
                if off % 4096 == 0:
                    out.append(I("s_add_u32", sTmp, sbase, off))
                out.append(I("buffer_store_dwordx4", Tq, vl16, s(S_WS, 4), sTmp, mods="offen offset:%d" % (off & 4095),
                             tag="ctx"))
        return out

    iter1("V0", True, first=True)
    e.I("s_lshl_b32", sCnt, sj, 1)
    e.I("s_sub_u32", sCnt, sCnt, 1)
    e.I("s_max_i32", sCnt, sCnt, 0)
    loop("V1", lambda: iter1("V1", False))
    e.I("s_min_u32", sCnt, sj, 1)
    loop("V2", lambda: iter1("V2", True))
    iter1("V2L", True, last=True)
    stamp(e, 7)
    top()
    if gen.FUSE3:
        signal(e, sw, 4 * 53, "h", RT[3])
    e.I("v_add_u32", vNx, 49152, vVr)
    e.I("v_and_b32", vNx, 0xc000, vNx)
    e.I("v_lshlrev_b32", t0, 2, vl)
    e.I("v_add_u32", vNx, vNx, t0)
    e.I("s_lshl_b32", sT0, sw, 8)
    e.I("s_add_u32", sT0, sT0, 65536)
    e.I("v_add_u32", vNx, sT0, vNx)
    e.I("ds_write_b32", vNx, NM(0)[0])
    e.I("v_xor_b32", vNx, 256, vNx)
    e.I("v_mov_b32", RT[0], vL[0][1])
    e.I("v_mov_b32", RT[1], vL[0][1])
    e.I("v_mov_b32", vL[1][0], vL[0][0])
    e.I("v_permlane32_swap_b32", RT[0], RT[1])
    e.I("v_mov_b32", vL[1][1], 0)
    e.I("v_add_f32", RT[0], RT[0], RT[1])
    e.I("v_rcp_f32", vInvB, RT[0])
    e.I("v_add_u32", vKr, sPw, vKr)
    e.I("v_add_u32", vVr, sPw, vVr)
    e.I("s_lshr_b32", sT0, sPw, 8)
    e.I("s_add_u32", sKv, sKv, sT0)
    e.I("s_lshl_b32", sT0, sT0, 1)
    e.I("v_add_u32", vDq[1], 32, vDq[0])
    e.I("v_subrev_u32", vDq[1], sT0, vDq[1])
    pvm = pv_mfmas(0)
    pvB = [m for m in pvm if m.ops[0].i >= 64]
    pvA = [m for m in pvm if m.ops[0].i < 64]
    interleave(e, pvB, k_reads(0, vKr, 0) + dma_group("K"))
    e.wait_lgkm0()
    e.I("s_barrier")
    e.I("ds_read_b32", RT[2], vNx)
    interleave(e, pvA[:4], ROT + [I("v_add_u32", vKr, 16384, vKr), I("v_and_b32", vKr, 0xffff, vKr)])
    interleave(e, pvA[4:], [I("v_mov_b32", NM(1)[r], RT[2]) for r in range(16)])
    bepi = ctx_store(1, [vInvB], sCo[1])
    nb1 = len(bepi) // 2
    qkm = qk_mfmas(0)
    interleave(e, [m for m in qkm if m.ops[0].i == S(1, 0).i] + [m for m in qkm if m.ops[0].i == S(1, 1).i], bepi[:nb1])
    step2(1, "P0", True, pv=False, extra=bepi[nb1:])
    step2(0, "P1", True, pv_first=(1,))
    e.I("s_cmp_eq_u32", sj, 7)
    e.I("s_cbranch_scc1", "K2_DRAIN")
    e.I("s_lshl_b32", sCnt, sj, 1)
    e.I("s_sub_u32", sCnt, 13, sCnt)

    def p2():
        step2(1, "P2a", False)
        step2(0, "P2b", False, extra=[I("s_sub_u32", sCnt, sCnt, 1)])
    loop("P2", p2)
    step2(1, "P3", True)
    step2(0, "P4", True, qk=False)
    e.label("K2_DRAIN")
    e.I("s_waitcnt", "lgkmcnt(0)")
    e.lgkm = []
    for m in pv_mfmas(1):
        e.emit(m)
    stamp(e, 8)
    MS = 17408
    e.I("s_mul_i32", sT0, sw, MS)
    e.I("v_add_u32", vQx, sT0, vl16)
    e.I("v_lshlrev_b32", t0, 2, vl)
    e.I("v_add_u32", vNx, sT0, t0)
    e.I("s_waitcnt", "vmcnt(0)")
    e.I("s_barrier")
    e.I("ds_write_b32", vNx, NM(1)[0], mods="offset:16384")
    e.I("ds_write_b32", vNx, vL[1][1], mods="offset:16640")
    for b in range(4):
        for i in range(4):
            e.I("ds_write_b128", vQx, O(1, b).sub(4 * i, 4), mods="offset:%d" % ((b * 4 + i) * 1024))
    e.I("s_xor_b32", sT1, sw, 1)
    e.I("s_mul_i32", sT0, sT1, MS)
    e.I("v_add_u32", vQx, sT0, vl16)
    e.I("v_add_u32", vNx, sT0, t0)
    e.wait_lgkm0()
    e.I("s_barrier")
    nm2, l2, nm, f1, f2, lt, tq = RT[0], RT[1], RT[2], RT[3], RT[4], RT[5], RT[6]
    e.I("ds_read_b32", nm2, vNx, mods="offset:16384")
    e.I("ds_read_b32", l2, vNx, mods="offset:16640")
    O2 = SET[0]
    for i in range(16):
        e.I("ds_read_b128", O2.sub(4 * i, 4), vQx, mods="offset:%d" % (i * 1024))
    e.I("v_min_f32", nm, NM(0)[0], nm2)
    e.I("v_sub_f32", f1, nm, NM(0)[0])
    e.I("v_sub_f32", f2, nm, nm2)
    e.I("v_exp_f32", f1, f1)
    e.I("v_exp_f32", f2, f2)
    e.I("v_mul_f32", lt, vL[1][0], f1)
    e.I("v_fmac_f32", lt, l2, f2)
    e.I("v_mov_b32", tq, lt)
    e.I("v_permlane32_swap_b32", lt, tq)
    e.I("v_add_f32", lt, lt, tq)
    e.I("v_rcp_f32", lt, lt)
    e.I("v_mul_f32", f1, f1, lt)
    e.I("v_mul_f32", f2, f2, lt)
    emit_all(e, ctx_store(0, [f1, f2], sCo[0], src2=O2))
    stamp(e, 9)
    if gen.FUSE3:
        import gen_k3
        gen_k3.gen_k3(e)
    else:
        stamp_flush(e, 0, s(S_WS, 4), sw, 10)
        e.I("s_endpgm")

    for par in range(2):
        e.label("K2_RARE%d" % par)
        e.vm, e.lgkm = [], []
        e.I("s_nop", 15)
        e.I("s_nop", 7)
        for qb in range(2):
            Sx, Sn, Px = S(par, qb), S(1 - par, qb), P(par, qb)
            dq, dl, f, tmp = RT[0], RT[1], RT[2], RT[3]
            e.I("v_subrev_u32", dq, sKv, vDq[qb])
            mask_S_inplace(e, Sx, dq)
            rowmax(e, Sx, dl, tmp)
            e.I("v_max_f32", dl, 0, dl)
            e.I("v_sub_f32", f, 0, dl)
            e.I("v_exp_f32", f, f)
            for r in range(16):
                e.I("v_sub_f32", Sx[r], Sx[r], dl)
            e.I("v_mul_f32", vL[1 - par][qb], vL[par][qb], f)
            for r in range(16):
                e.I("v_exp_f32", RT[8 + r], Sx[r])
            for r in range(16):
                e.I("v_sub_f32", Sn[r], Sn[r], dl)
            for r in range(16):
                e.I("v_add_f32", vL[1 - par][qb], vL[1 - par][qb], RT[8 + r])
            for k in range(8):
                e.I("v_cvt_pk_bf16_f32", Px[k], RT[8 + 2 * k], RT[9 + 2 * k])
            for r in range(16):
                e.I("v_sub_f32", NM(qb)[r], NM(qb)[r], dl)
            for b in range(4):
                for r0 in range(0, 16, 8):
                    for r in range(8):
                        e.I("v_accvgpr_read_b32", RT[8 + r], O(qb, b)[r0 + r])
                    for r in range(8):
                        e.I("v_mul_f32", RT[8 + r], RT[8 + r], f)
                    for r in range(8):
                        e.I("v_accvgpr_write_b32", O(qb, b)[r0 + r], RT[8 + r])
        e.I("s_nop", 3)
        mine = [(i, l) for i, (l, pp) in enumerate(ret_labels) if pp == par]
        for i, l in mine[:-1]:
            e.I("s_cmp_eq_u32", sRet, i)
            e.I("s_cbranch_scc1", l)
        e.I("s_branch", mine[-1][1])
    e.label(END)
    e.I("s_endpgm")
    return e.text(), dict(vgpr=512, sgpr=102, accum=256, grid=256, block=256, lds=163840)
```

```python
import sys, math
sys.path.insert(0, "dev")
from asmlib import *

NAME = "recurrent_scan__compressed_kv_cla__geglu_ffn__prompt"
WS_XN = 0x0000000
WS_K = 0x0200000
WS_V = 0x1200000
WS_A3 = 0x2200000
WS_F = 0x4800000
WS_BYTES = 0x10000000
MFMA = "v_mfma_f32_32x32x16_bf16"

P_X, P_CKV, P_WQ, P_WUK, P_WUV, P_WO, P_BX, P_WG, P_WU, P_WD, P_OUT, P_DBG, P_WS = [4 + 2 * i for i in range(13)]


def I(op, *ops, mods="", tag=None, comment=None):
    return Inst(op, ops, mods, tag, comment)


def emit_all(e, lst):
    for x in lst:
        if isinstance(x, tuple):
            x = x[1]
        if isinstance(x, Inst):
            e.emit(x)
        else:
            x(e)


PROFILE = False
STAMP_MAP = None
STAMP_RT = False
GEXP = set()
FUSE = True
FUSE3 = True
LD_SC1 = False
S_DBG = 96
PACE = 2
FAST0 = 96
WS_PROF = 0x8000000


def stamp(e, idx):
    if not PROFILE:
        return
    if STAMP_MAP is not None:
        if idx not in STAMP_MAP:
            return
        idx = STAMP_MAP[idx]
    assert idx < 10
    e.wait_lgkm0()
    e.I("s_memrealtime" if STAMP_RT else "s_memtime", s(82, 2))
    e.I("s_waitcnt", "lgkmcnt(0)")
    e.I("s_mov_b32", s(84 + idx), s(82))
    if idx == 0:
        e.I("s_memrealtime", s(82, 2))
        e.I("s_waitcnt", "lgkmcnt(0)")
        e.I("s_mov_b32", s(94), s(82))


def stamp_flush(e, kidx, srd_ws, sw, n, vt=(v(2), v(3))):
    if not PROFILE:
        return
    e.wait_all()
    e.I("s_memrealtime", s(82, 2))
    e.I("s_waitcnt", "lgkmcnt(0)")
    e.I("s_mov_b32", s(95), s(82))
    e.I("s_lshl_b32", s(82), s(2), 2)
    e.I("s_add_u32", s(82), s(82), sw)
    e.I("s_lshl_b32", s(82), s(82), 6)
    e.I("s_add_u32", s(82), s(82), WS_PROF + kidx * 65536)
    e.I("v_mov_b32", vt[1], 0)
    for i in list(range(n)) + [14, 15]:
        e.I("v_mov_b32", vt[0], s(84 + i if i < 10 else 80 + i))
        e.I("buffer_store_dword", vt[0], vt[1], srd_ws, s(82), mods="offen offset:%d" % (4 * i))


def prologue(e, nwg, endlabel):
    e.I("s_cmp_lt_u32", s(2), nwg)
    e.I("s_cbranch_scc1", "GO_" + endlabel)
    e.I("s_endpgm")
    e.label("GO_" + endlabel)
    e.I("s_load_dwordx16", s(4, 16), s(0, 2), 0)
    e.I("s_load_dwordx8", s(20, 8), s(0, 2), 64)
    e.I("s_load_dwordx2", s(28, 2), s(0, 2), 96)


PF_CODE = True
PF_W = True
PF_TLB = False
PF_IN = False


class Untracked:
    def __init__(self, inst):
        self.inst = inst
        self.cost = 8
        self.tag = "pf"

    def __call__(self, em):
        if len(em.vm) >= 63:
            em._emit_wait(vm=62)
        em.raw(self.inst)
        em.vm.append((set(), "pf"))


def code_prefetch(e, name, first, last, sbase, vtmp, vdst, nload):
    if not PF_CODE:
        return
    lab = "L_pc_" + name
    e.I("s_getpc_b64", sbase)
    e.label(lab)
    e.I("s_add_u32", sbase[0], sbase[0], "%s-%s" % (first, lab))
    e.I("s_addc_u32", sbase[1], sbase[1], -1)
    e.I("s_lshr_b32", s(3), s(2), 3)
    e.I("s_lshl_b32", s(3), s(3), 12)
    e.I("v_lshlrev_b32", vtmp, 4, v(0))
    e.I("v_add_u32", vtmp, s(3), vtmp)
    for i in range(nload):
        if i:
            e.I("v_add_u32", vtmp, 131072, vtmp)
        e.I("v_min_u32", vtmp, "%s-%s-16" % (last, first), vtmp)
        Untracked(I("global_load_dwordx4", vdst, vtmp, sbase))(e)


def make_srd(e, d, p, nbytes):
    e.I("s_mov_b32", s(d), s(p))
    e.I("s_mov_b32", s(d + 1), s(p + 1))
    e.I("s_mov_b32", s(d + 2), nbytes)
    e.I("s_mov_b32", s(d + 3), 0x20000)


def head_j(e, sh, sj, t0, t1):
    e.I("s_and_b32", t0, s(2), 7)
    e.I("s_lshl_b32", t0, t0, 2)
    e.I("s_bfe_u32", t1, s(2), (2 << 16) | 3)
    e.I("s_add_u32", sh, t0, t1)
    e.I("s_lshr_b32", sj, s(2), 5)


def tr_addr(e, dst0, dst1, vl, tmp, base, kperm):
    t0, t1, t2 = tmp
    e.I("v_lshrrev_b32", t0, 5, vl)
    e.I("v_lshlrev_b32", t0, (2 if kperm else 3) + 7, t0)
    e.I("v_bfe_u32", t1, vl, 2, 2)
    e.I("v_lshlrev_b32", t1, 7, t1)
    e.I("v_add_u32", t0, t0, t1)
    e.I("v_bfe_u32", t1, vl, 4, 1)
    e.I("v_lshlrev_b32", t1, 5, t1)
    e.I("v_add_u32", t0, t0, t1)
    e.I("v_and_b32", t1, 3, vl)
    e.I("v_lshlrev_b32", t1, 3, t1)
    e.I("v_add_u32", t0, t0, t1)
    if base is not None and not (isinstance(base, int) and base == 0):
        e.I("v_add_u32", t0, base, t0)
    e.I("v_bfe_u32", t2, vl, 3, 1)
    e.I("v_lshlrev_b32", t2, 6, t2)
    e.I("v_add_u32", dst0, t0, t2)
    e.I("v_xor_b32", t2, 64, t2)
    e.I("v_add_u32", dst1, t0, t2)


def wdma_voff(e, dsts, vl, tmp, rs):
    t0, t1 = tmp
    e.I("v_lshrrev_b32", t0, 3, vl)
    e.I("v_mul_u32_u24", t0, rs, t0)
    e.I("v_bfe_u32", t1, vl, 4, 1)
    e.I("v_lshlrev_b32", t1, 2, t1)
    e.I("v_xor_b32", t1, t1, vl)
    e.I("v_and_b32", t1, 7, t1)
    e.I("v_lshlrev_b32", t1, 4, t1)
    e.I("v_add_u32", dsts[0], t0, t1)
    for i in range(1, len(dsts)):
        e.I("v_add_u32", dsts[i], 8 * rs - 1024, dsts[i - 1])


def signal(e, sw, soff, name, vone, srd=None):
    e.I("s_cmp_lg_u32", sw, 0)
    e.I("s_cbranch_scc1", "L_sig_" + name)
    e.I("s_mov_b64", EXEC, 1)
    e.I("v_mov_b32", vone, 1)
    so, md = (0, "offset:%d" % soff) if isinstance(soff, int) else (soff, "")
    e.raw(I("buffer_atomic_add", vone, "off", s(S_DBG if srd is None else srd, 4), so, mods=md))
    e.I("s_mov_b64", EXEC, -1)
    e.label("L_sig_" + name)


def poll_issue(e, vp, soff, srd=None):
    so, md = (0, "offset:%d " % soff) if isinstance(soff, int) else (soff, "")
    e.I("buffer_load_dword", vp, "off", s(S_DBG if srd is None else srd, 4), so, mods=md + "sc1")


def poll_check(e, vp, soff, target, name, st, sspin, sleep=2, srd=None):
    e.I("v_readfirstlane_b32", st, vp)
    e.I("s_cmp_ge_u32", st, target)
    e.I("s_cbranch_scc1", "L_pollx_" + name)
    e.I("s_mov_b32", sspin, 1 << 16)
    e.label("L_poll_" + name)
    so, md = (0, "offset:%d " % soff) if isinstance(soff, int) else (soff, "")
    e.raw(I("buffer_load_dword", vp, "off", s(S_DBG if srd is None else srd, 4), so, mods=md + "sc1"))
    e.raw(I("s_waitcnt", "vmcnt(0)"))
    e.I("v_readfirstlane_b32", st, vp)
    e.I("s_sub_u32", sspin, sspin, 1)
    e.I("s_cmp_eq_u32", sspin, 0)
    e.I("s_cbranch_scc1", "L_pollx_" + name)
    e.I("s_cmp_ge_u32", st, target)
    e.I("s_cbranch_scc1", "L_pollx_" + name)
    e.I("s_sleep", sleep)
    e.I("s_branch", "L_poll_" + name)
    e.label("L_pollx_" + name)


class Seg:
    def __init__(self, nb, role, acc, src, fill=()):
        self.nb, self.role, self.acc, self.src, self.fill = nb, role, acc, src, list(fill)
        self.kps = 4 if nb == 4 else 8
        self.nst = 32 // self.kps


class Gemm:
    def __init__(self, e, ns, vtr, pool, s_m0, s_tmp, segs):
        self.e, self.ns, self.vtr, self.pool = e, ns, vtr, pool
        self.s_m0, self.s_tmp, self.segs = s_m0, s_tmp, segs
        self.ks = []
        self.stages = []
        for sg in segs:
            g0 = len(self.stages)
            for st in range(sg.nst):
                self.stages.append((sg, st))
            for sidx in range(32):
                self.ks.append((sg, sidx, g0 + sidx // sg.kps, sidx % sg.kps))

    def xfrag(self, rb, sidx):
        return a((rb * 32 + sidx) * 4, 4)

    def wfrag(self, t, nb):
        return self.pool.sub(((t & 1) * 4 + nb) * 4, 4)

    def w_reads(self, t):
        sg, sidx, g, sl = self.ks[t]
        out = []
        for nb in range(sg.nb):
            half, seg = nb >> 1, nb & 1
            f = self.wfrag(t, nb)
            for p in range(2):
                off = (g % self.ns) * 16384 + half * 8192 + (16 * sl + 4 * p) * 128
                out.append(I("ds_read_b64_tr_b16", f.sub(2 * p, 2), self.vtr[seg], mods="offset:%d" % off))
        return out

    def w_dma(self, g):
        sg, st = self.stages[g]
        src = sg.src
        out = [I("s_add_u32", M0, self.s_m0, (g % self.ns) * 16384),
               I("s_add_u32", self.s_tmp, src["s_base"], st * src["stage_stride"])]
        for i in range(4):
            out.append(I("buffer_load_dwordx4", src["voff"][i], src["srd"], self.s_tmp,
                         mods="offen offset:%d lds" % (1024 * i), tag=("W", g)))
        return out

    def mfmas(self, t):
        sg, sidx, g, sl = self.ks[t]
        out = []
        for nb in range(sg.nb):
            for rb in range(2):
                d = sg.acc(rb, nb)
                c = 0 if sidx == 0 else d
                w, x = self.wfrag(t, nb), self.xfrag(rb, sidx)
                out.append(I(MFMA, d, w, x, c) if sg.role == "WX" else I(MFMA, d, x, w, c))
        return out

    def run(self, hook=None, seg_end=None, queue=None, released=None, on_barrier=None, pace=2, pre_barrier=None):
        e = self.e
        nt = len(self.ks)
        nstage = len(self.stages)
        q = self.q = list(queue or [])
        rel = self.rel = set(released or [])
        st = {"n": 0, "last": -99}

        def need(key):
            while any(k == key for k, _ in q):
                k, insts = q.pop(0)
                assert k in rel, ("job needed before its slot is released", k)
                emit_all(e, insts)
            e.wait_vm_tag(lambda tg: tg == key)
        self.need = need

        def tick(em):
            st["n"] += 1
            backlog = sum(1 for k, _ in q[:14] if k in rel)
            if q and q[0][0] in rel and st["n"] - st["last"] >= (pace if (backlog < 14 and st["n"] > FAST0) else pace - 1):
                k, insts = q.pop(0)
                emit_all(e, insts)
                st["last"] = st["n"]
        tick.cost = 0
        need(("W", 0))
        e.I("s_barrier")
        emit_all(e, self.w_reads(0))
        for t in range(nt):
            sg, sidx, g, sl = self.ks[t]
            last = sl == sg.kps - 1
            if last and t + 1 < nt:
                if "g_nolgkm" not in GEXP:
                    e.wait_lgkm0()
                need(("W", g + 1))
                if pre_barrier:
                    pre_barrier(g)
                if "g_nobar" not in GEXP:
                    e.I("s_barrier")
                rel.add(("W", g + self.ns))
                if on_barrier:
                    on_barrier(g)
            rd = self.w_reads(t + 1) if t + 1 < nt else []
            ex = hook(t) if hook else []
            n = len(sg.fill)
            sf = sg.fill[(sidx * n) // 32: ((sidx + 1) * n) // 32]
            if "g_novalu" in GEXP:
                sf = [x for x in sf if not (isinstance(x, Inst) and x.kind in ("valu", "trans") and x.ops[0].i >= 17 and t >= 32)]
            if "g_nostore" in GEXP:
                sf = [x for x in sf if not (isinstance(x, Inst) and x.op.startswith("buffer_store") and t >= 32)]
            if "g_nord" in GEXP and t >= 32:
                rd = rd[:1]
            ex = ex + sf
            fill = merge(rd, ex)
            ms = []
            for m in self.mfmas(t):
                ms.append(Both(m, tick))
            interleave(e, ms, fill)
            if sidx == 31 and seg_end:
                seg_end(sg)

    def w_jobs(self, g):
        ins = self.w_dma(g)
        return [(("W", g), ins[0:3])] + [(("W", g), [x]) for x in ins[3:]]


class Both:
    def __init__(self, m, f):
        self.m, self.f = m, f
        self.cost = 8

    def __call__(self, em):
        em.emit(self.m)
        self.f(em)


def merge(x, y):
    out = []
    i = j = 0
    while i < len(x) or j < len(y):
        if j >= len(y) or (i < len(x) and i * len(y) <= j * len(x)):
            out.append(x[i]); i += 1
        else:
            out.append(y[j]); j += 1
    return out


def cvt_inplace(d, hh):
    return [I("v_cvt_pk_bf16_f32", d[8 * hh + q], d[8 * hh + 2 * q], d[8 * hh + 2 * q + 1]) for q in range(4)]


def gen_k1(e=None):
    global STAMP_MAP
    fused = e is not None
    if not fused:
        e = Emitter()
    END = "K2_END" if fused else "K1_END"
    STAMP_MAP = {0: 0, 3: 1, 6: 2} if fused else None
    prologue(e, 256, END)
    S_X, S_CKV, S_WK, S_WV, S_WS = 32, 36, 40, 44, 48
    sw, sh, sj = s(52), s(53), s(54)
    vl, vl16 = v(1), v(2)
    t0, t1, t2 = v(3), v(4), v(5)
    SET = [v(64, 64), v(128, 64), v(192, 64)]
    pool = v(32, 32)
    PFD = v(28, 4)
    code_prefetch(e, "k1", "ka_kernel" if fused else "k1_kernel", "TEXT_END", s(30, 2), t0, PFD, 1)
    e.I("v_and_b32", vl, 63, v(0))
    e.I("v_lshrrev_b32", t0, 6, v(0))
    e.I("v_lshlrev_b32", vl16, 4, vl)
    e.I("v_readfirstlane_b32", sw, t0)
    head_j(e, sh, sj, s(55), s(56))
    XS_BASE, XS_W = 65536, 24576
    vXd = [v(8), v(9)]
    e.I("v_lshrrev_b32", t0, 3, vl)
    e.I("v_lshlrev_b32", t1, 10, t0)
    e.I("v_lshrrev_b32", t0, 1, t0)
    e.I("v_xor_b32", t0, t0, vl)
    e.I("v_and_b32", t0, 7, t0)
    e.I("v_lshlrev_b32", t2, 4, t0)
    e.I("v_add_u32", vXd[0], t1, t2)
    e.I("v_xor_b32", t2, 64, t2)
    e.I("v_add_u32", vXd[1], t1, t2)
    sXrow = [s(60 + i) for i in range(8)]
    e.I("s_lshl_b32", s(58), sj, 18)
    e.I("s_lshl_b32", s(59), sw, 16)
    e.I("s_add_u32", s(58), s(58), s(59))
    for i in range(8):
        e.I("s_add_u32", sXrow[i], s(58), i * 8192 - (i & 3) * 1024)
    sXlds = s(68)
    e.I("s_mul_i32", sXlds, sw, XS_W)
    e.I("s_add_u32", sXlds, sXlds, XS_BASE)
    vW = [v(24 + i) for i in range(4)]
    wdma_voff(e, vW, vl, (t0, t1), 8192)
    sWb, sM0, sTmp, sWb2, sWb3 = s(69), s(70), s(71), s(80), s(81)
    e.I("s_and_b32", s(72), sw, 1)
    e.I("s_lshl_b32", s(72), s(72), 18)
    e.I("s_lshr_b32", s(73), sw, 1)
    e.I("s_lshl_b32", s(73), s(73), 7)
    e.I("s_lshl_b32", s(74), sh, 8)
    e.I("s_add_u32", sWb, s(74), s(72))
    e.I("s_add_u32", sWb, sWb, s(73))
    e.I("s_lshl_b32", s(72), sw, 18)
    e.I("s_add_u32", sWb2, s(74), s(72))
    e.I("s_add_u32", sWb3, sWb2, 128)
    e.I("s_lshl_b32", sM0, sw, 12)
    e.I("s_waitcnt", "lgkmcnt(0)")
    make_srd(e, S_CKV, P_CKV, 2048 * 1024)
    make_srd(e, S_WK, P_WUK, 512 * 8192)
    stamp(e, 0)

    def x_dma(p):
        out = []
        for i in range(8):
            if i % 4 == 0:
                out.append(I("s_add_u32", M0, sXlds, (p % 3) * 8192 + (i >> 2) * 4096))
            out.append(I("buffer_load_dwordx4", vXd[i & 1], s(S_CKV, 4), sXrow[i],
                         mods="offen offset:%d lds" % (1024 * (i & 3)), tag=("X", p)))
        out.append(I("v_add_u32", vXd[0], 128, vXd[0]))
        out.append(I("v_add_u32", vXd[1], 128, vXd[1]))
        return out

    vXr = [v(10 + i) for i in range(4)]

    def x_reads(p):
        out = [(lambda em: G.need(("X", p))) if p else (lambda em: em.wait_vm_tag(lambda tg: tg == ("X", p)))]
        for sl in range(4):
            for rb in range(2):
                out.append(I("ds_read_b128", a((rb * 32 + 4 * p + sl) * 4, 4), vXr[sl],
                             mods="offset:%d" % ((p % 3) * 8192 + rb * 4096)))
        return out

    srcK = dict(srd=s(S_WK, 4), voff=vW, s_base=sWb, stage_stride=64 * 8192)
    srcV0 = dict(srd=s(S_WV, 4), voff=vW, s_base=sWb2, stage_stride=128 * 8192)
    srcV1 = dict(srd=s(S_WV, 4), voff=vW, s_base=sWb3, stage_stride=128 * 8192)
    vtr = [v(14), v(15)]
    accA = lambda rb, nb: SET[rb].sub(nb * 16, 16)
    accB = lambda rb, nb: SET[2].sub((rb * 2 + nb) * 16, 16)
    accC = lambda rb, nb: SET[0].sub((rb * 2 + nb) * 16, 16)
    sKo, sVo, sSt = s(76), s(77), s(79)

    def store_block(d, sbase, rb, idxs):
        out = []
        for hh in range(2):
            out += cvt_inplace(d, hh)
            off = rb * 8192 + idxs[hh] * 1024
            out.append(I("s_add_u32", sSt, sbase, off & ~4095))
            out.append(I("buffer_store_dwordx4", d.sub(8 * hh, 4), vl16, s(S_WS, 4), sSt,
                         mods="offen offset:%d" % (off & 4095), tag="kv"))
        return out
    epiA = []
    for rb in range(2):
        for nb in range(4):
            epiA += store_block(accA(rb, nb), sKo, rb, (2 * nb, 2 * nb + 1))
    epiB, epiC = [], []
    for rb in range(2):
        for nb in range(2):
            epiB += store_block(accB(rb, nb), sVo, rb, (nb, 4 + nb))
            epiC += store_block(accC(rb, nb), sVo, rb, (2 + nb, 6 + nb))

    Z = SET[2]
    vLNa, vLNs = v(6), v(7)
    LN0, LN1 = Z.sub(0, 4), Z.sub(4, 4)
    X = [Z[8 + i] for i in range(16)]
    D = [Z[24 + i] for i in range(16)]
    sm, sw2, mean, var, pk, mb, vb, sd, rc = [Z[40 + i] for i in range(9)]
    ln = []
    A_ = lambda *x, **k: ln.append(I(*x, **k))
    for i in range(4):
        A_("v_lshlrev_b32", X[2 * i], 16, LN0[i])
        A_("v_and_b32", X[2 * i + 1], 0xffff0000, LN0[i])
        A_("v_lshlrev_b32", X[8 + 2 * i], 16, LN1[i])
        A_("v_and_b32", X[8 + 2 * i + 1], 0xffff0000, LN1[i])

    def allreduce32(r):
        for off in (0x041F, 0x081F, 0x101F, 0x201F, 0x401F):
            A_("ds_swizzle_b32", sw2, r, mods="offset:0x%04x" % off)
            A_("v_nop"); A_("v_nop"); A_("v_nop")
            A_("v_add_f32", r, r, sw2)
    A_("v_add_f32", sm, X[0], X[1])
    for i in range(2, 16):
        A_("v_add_f32", sm, sm, X[i])
    allreduce32(sm)
    A_("v_mul_f32", mean, 1.0 / 512, sm)
    for i in range(16):
        A_("v_sub_f32", D[i], X[i], mean)
    A_("v_mul_f32", sm, D[0], D[0])
    for i in range(1, 16):
        A_("v_fmac_f32", sm, D[i], D[i])
    allreduce32(sm)
    A_("v_mul_f32", var, 1.0 / 512, sm)
    A_("v_cvt_pk_bf16_f32", pk, mean, var)
    A_("v_lshlrev_b32", mb, 16, pk)
    A_("v_and_b32", vb, 0xffff0000, pk)
    A_("v_add_f32", vb, 1e-5, vb)
    A_("v_cvt_pk_bf16_f32", pk, vb, vb)
    A_("v_lshlrev_b32", vb, 16, pk)
    A_("v_sqrt_f32", vb, vb)
    A_("v_cvt_pk_bf16_f32", pk, vb, vb)
    A_("v_lshlrev_b32", sd, 16, pk)
    A_("v_rcp_f32", rc, sd)
    for i in range(16):
        A_("v_sub_f32", D[i], X[i], mb)
    for i in range(8):
        A_("v_cvt_pk_bf16_f32", pk, D[2 * i], D[2 * i + 1])
        A_("v_lshlrev_b32", D[2 * i], 16, pk)
        A_("v_and_b32", D[2 * i + 1], 0xffff0000, pk)
    for i in range(16):
        A_("v_mul_f32", X[i], D[i], rc)
        A_("v_fma_f32", D[i], Neg(X[i]), sd, D[i])
        A_("v_fmac_f32", X[i], D[i], rc)
    for i in range(4):
        A_("v_cvt_pk_bf16_f32", LN0[i], X[2 * i], X[2 * i + 1])
        A_("v_cvt_pk_bf16_f32", LN1[i], X[8 + 2 * i], X[8 + 2 * i + 1])
    A_("buffer_store_dwordx4", LN0, vLNs, s(S_WS, 4), s(74), mods="offen", tag="ln")
    A_("buffer_store_dwordx4", LN1, vLNs, s(S_WS, 4), s(75), mods="offen", tag="ln")
    ln = [x for x in ln if x.op != "v_nop"]
    pad = [lambda em: None] * (len(ln) // 2)
    for p_ in pad:
        pass
    segs = [Seg(4, "WX", accA, srcK, pad + ln), Seg(2, "XW", accB, srcV0, epiA), Seg(2, "XW", accC, srcV1, epiB)]
    G = Gemm(e, 4, vtr, pool, sM0, sTmp, segs)
    emit_all(e, x_dma(0))
    emit_all(e, G.w_dma(0))
    emit_all(e, x_dma(1))
    emit_all(e, G.w_dma(1))

    def x_jobs(p):
        ins = x_dma(p)
        k = ("X", p)
        return [(k, ins[0:2]), (k, [ins[2]]), (k, [ins[3]]), (k, [ins[4]]), (k, ins[5:7]), (k, [ins[7]]), (k, [ins[8]]),
                (k, ins[9:12])]
    queue = []
    for g in range(2, 16):
        if g < 8:
            queue += x_jobs(g)
        queue += G.w_jobs(g)
    make_srd(e, S_X, P_X, 2048 * 1024)
    make_srd(e, S_WV, P_WUV, 512 * 8192)
    make_srd(e, S_WS, P_WS, WS_BYTES)
    if fused:
        make_srd(e, S_DBG, P_DBG, 256)
    e.I("v_lshrrev_b32", t0, 5, v(0))
    e.I("v_lshlrev_b32", t1, 10, t0)
    e.I("v_and_b32", t2, 31, vl)
    e.I("v_lshlrev_b32", vLNa, 4, t2)
    e.I("v_add_u32", vLNa, vLNa, t1)
    e.I("v_lshrrev_b32", t1, 1, t2)
    e.I("v_lshlrev_b32", t1, 10, t1)
    e.I("v_and_b32", t2, 1, t2)
    e.I("v_lshlrev_b32", t2, 9, t2)
    e.I("v_add_u32", t1, t1, t2)
    e.I("v_lshlrev_b32", t0, 4, t0)
    e.I("v_add_u32", vLNs, t1, t0)
    e.I("s_lshl_b32", s(57), s(2), 13)
    e.I("buffer_load_dwordx4", LN0, vLNa, s(S_X, 4), s(57), mods="offen")
    e.I("buffer_load_dwordx4", LN1, vLNa, s(S_X, 4), s(57), mods="offen offset:512")
    if PF_TLB:
        e.I("s_cmp_eq_u32", sw, 0)
        e.I("s_cselect_b32", s(74), 20, 4)
        e.I("v_lshlrev_b32", t0, s(74), vl)
        e.I("s_mov_b32", s(75), 64 << 20)
        Untracked(I("buffer_load_dword", PFD[0], t0, s(S_WS, 4), 0, mods="offen"))(e)
        Untracked(I("buffer_load_dword", PFD[0], t0, s(S_WS, 4), s(75), mods="offen"))(e)
    e.I("s_lshr_b32", s(74), s(2), 2)
    e.I("s_lshl_b32", s(74), s(74), 15)
    e.I("s_and_b32", s(75), s(2), 3)
    e.I("s_lshl_b32", s(75), s(75), 7)
    e.I("s_add_u32", s(74), s(74), s(75))
    if WS_XN:
        e.I("s_add_u32", s(74), s(74), WS_XN)
    e.I("s_add_u32", s(75), s(74), 16384)
    e.I("v_and_b32", t0, 31, vl)
    e.I("v_lshlrev_b32", t1, 7, t0)
    e.I("v_add_u32", t1, sXlds, t1)
    e.I("v_bfe_u32", t0, vl, 1, 3)
    e.I("v_lshrrev_b32", t2, 5, vl)
    e.I("v_xor_b32", t0, t0, t2)
    for sl in range(4):
        e.I("v_xor_b32", t2, 2 * sl, t0)
        e.I("v_lshlrev_b32", t2, 4, t2)
        e.I("v_add_u32", vXr[sl], t1, t2)
    tr_addr(e, vtr[0], vtr[1], vl, (t0, t1, t2), 0, False)
    e.I("s_lshl_b32", s(78), sh, 6)
    e.I("s_lshl_b32", s(79), sj, 3)
    e.I("s_add_u32", s(78), s(78), s(79))
    e.I("s_lshl_b32", s(79), sw, 1)
    e.I("s_add_u32", s(78), s(78), s(79))
    e.I("s_lshl_b32", s(78), s(78), 13)
    e.I("s_add_u32", sKo, s(78), WS_K)
    e.I("s_add_u32", sVo, s(78), WS_V)
    stamp(e, 1)
    emit_all(e, x_reads(0))
    stamp(e, 2)

    def hook(t):
        g, sl = t >> 2, t & 3
        out = []
        if t < 32:
            if g < 7 and sl == 2:
                out += x_reads(g + 1)
        elif PF_W and t % 8 == 1:
            n = (t - 32) // 8
            if n == 0:
                out.append(I("s_lshl_b32", s(31), s(2), 2))
                out.append(I("s_add_u32", s(31), s(31), sw))
                out.append(I("s_lshl_b32", s(30), s(31), 12))
                out.append(I("s_lshl_b32", s(31), s(31), 11))
            p_, nbytes, so, off = ((P_WQ, 512 * 8192, s(30), n * 1024) if n < 4 else
                                   (P_WG if n < 6 else P_WU, 512 * 3584, s(31), (n & 1) * 1024))
            if n in (0, 4, 6):
                out += [I("s_mov_b32", s(S_X), s(p_)), I("s_mov_b32", s(S_X + 1), s(p_ + 1)),
                        I("s_mov_b32", s(S_X + 2), nbytes)]
            out.append(Untracked(I("buffer_load_dwordx4", PFD, vl16, s(S_X, 4), so, mods="offen offset:%d" % off)))
        return out
    cnt = [3]

    def seg_end(sg):
        stamp(e, cnt[0]); cnt[0] += 1
    def on_barrier(g):
        G.rel.add(("X", g + 3))
        G.rel.add(("X", g + 4))
        if fused and g == 10:
            signal(e, sw, 0, "ln", v(22))
        if fused and g == 13:
            poll_issue(e, v(23), 0)

    def pre_barrier(g):
        if fused and g == 10:
            e.wait_vm_tag(lambda tg: tg == "ln")
    G.run(hook, seg_end, queue=queue, released={("W", 2), ("W", 3), ("X", 2)},
          on_barrier=on_barrier, pace=PACE, pre_barrier=pre_barrier)
    emit_all(e, epiC)
    stamp(e, 6)
    if fused:
        return
    if PROFILE:
        e.wait_all()
    stamp(e, 7)
    stamp_flush(e, 0, s(S_WS, 4), sw, 8)
    e.label(END)
    e.I("s_endpgm")
    return e.text(), dict(vgpr=512, sgpr=102, accum=256, grid=256, block=256, lds=163840)


def gen_ka():
    import gen_ka as m
    return m.gen_ka()


KERNELS = [("k1_kernel", gen_k1)]
try:
    from gen_k2 import gen_k2
    KERNELS.append(("k2_kernel", gen_k2))
    from gen_k3 import gen_k3, gen_k4
    KERNELS.append(("k3_kernel", gen_k3))

except ImportError as ex:
    print("note:", ex)


def build(kernels=None):
    ks = KERNELS if kernels is None else kernels
    if FUSE:
        ks = [("ka_kernel", gen_ka)] + ([] if FUSE3 else ks[2:])
    hdr = open("cdna_kernels/%s.s.ref" % NAME).read().split("; Override")[0]
    out = [hdr]
    bodies, descs = [], []
    for name, fn in ks:
        txt, d = fn()
        out.append("; @launch kernel=%s grid=(%d,1,1) block=(%d,1,1) lds=%d\n" % (name, d["grid"], d["block"], d["lds"]))
        bodies.append(kernel_header(name) + txt)
        descs.append(".p2align 6" + kernel_desc(name, d["vgpr"], d["sgpr"], d["accum"]))
    out.append('.amdgcn_target "amdgcn-amd-amdhsa--gfx950"\n.text\n')
    out += bodies
    out.append("TEXT_END:\n")
    out.append('.section .rodata,"a"\n')
    out += descs
    return "".join(out)
```

```python
import sys
sys.path.insert(0, "dev")
from asmlib import *
import gen
from gen import *

LOG2E = 1.4426950408889634
WS_P = 0x4000000
NS0 = 21
AD = 20
NSL = 6
POLL_AT = 2


D_CTX, D_PAIR, D_H = 33, 49, 53


def gen_k3(e=None):
    fused = e is not None
    END = "K3_END"
    if not fused:
        e = Emitter()
        gen.STAMP_MAP = None
        prologue(e, 256, END)
    else:
        gen.STAMP_MAP = {10: 5, 11: 6, 12: 7, 2: 8, 3: 9} if "k3st" in gen.GEXP else {}
        stamp(e, 10)
    AS = " sc1" if (fused and gen.LD_SC1) else ""
    S_WS, S_WO, S_WD, S_X, S_OUT, S_DBG = 32, 36, 40, 44, 48, (gen.S_DBG if fused else 52)
    S_FL = S_WS if fused else S_DBG
    sCA, sCB, sCT, sCH = s(72), s(73), s(74), s(75)
    if fused:
        e.I("s_lshl_b32", sCB, s(58), 7)
        e.I("s_sub_u32", sCA, WS_F + 15 * 128, sCB)
        e.I("s_add_u32", sCB, sCB, WS_F)
        e.wait_lgkm0()
        e.I("s_barrier")
    sw, ssp, str_, stc = s(56), s(57), s(58), s(59)
    sA, sWo, sWd, sM0, sT0, sT1, sTa, sTw = s(60), s(61), s(62), s(63), s(64), s(65), s(66), s(67)
    sX, sP, sSpin, sFl = s(68), s(69), s(70), s(71)
    vl, vl16 = v(1), v(2)
    t0, t1, t2 = v(3), v(4), v(5)
    vtr = [v(6), v(7)]
    vtr2 = [v(12), v(13)]
    vW = [v(8 + i) for i in range(4)]
    vX, vFo, vOne, vPoll = v(14), v(15), v(16), v(17)
    WP = v(20, 16)
    XR = v(36, 16)
    ACC = [v(64, 32), v(96, 32)]
    PS = v(128, 32)
    AR = a(0, 4 * AD)
    if not fused:
        code_prefetch(e, "k3", "k3_kernel", "TEXT_END", s(100, 2), t0, v(52, 4), 1)
    e.I("v_and_b32", vl, 63, v(0))
    e.I("v_lshrrev_b32", t0, 6, v(0))
    e.I("v_lshlrev_b32", vl16, 4, vl)
    e.I("v_readfirstlane_b32", sw, t0)
    e.I("s_and_b32", ssp, s(2), 1)
    e.I("s_bfe_u32", sT0, s(2), (2 << 16) | 1)
    e.I("s_lshl_b32", sT0, sT0, 2)
    e.I("s_bfe_u32", sT1, s(2), (2 << 16) | 3)
    e.I("s_add_u32", str_, sT0, sT1)
    e.I("s_lshr_b32", stc, s(2), 5)
    wdma_voff(e, vW, vl, (t0, t1), 1024)
    e.I("s_lshl_b32", sT0, str_, 2)
    e.I("s_add_u32", sT0, sT0, sw)
    e.I("s_mul_i32", sA, sT0, 368 * 1024)
    e.I("s_add_u32", sA, sA, WS_A3)
    e.I("s_lshl_b32", sT0, sw, 15)
    e.I("s_lshl_b32", sT1, stc, 7)
    e.I("s_add_u32", sWo, sT0, sT1)
    e.I("s_lshl_b32", sM0, sw, 12)
    if not fused:
        e.I("s_waitcnt", "lgkmcnt(0)")
    e.I("s_lshl_b32", sCT, str_, 7)
    e.I("s_add_u32", sCT, sCT, WS_F)
    e.I("s_add_u32", sCH, sCT, 16 * 128)
    make_srd(e, S_WS, P_WS, WS_BYTES)
    if fused:
        poll_issue(e, v(18), sCH, srd=S_WS)
    make_srd(e, S_WO, P_WO, 4096 * 1024)
    make_srd(e, S_WD, P_WD, 1792 * 1024)
    stamp(e, 0)

    def setup2():
        tr_addr(e, vtr[0], vtr[1], vl, (t0, t1, t2), 0, True)
        e.I("v_add_u32", vtr2[0], 65536, vtr[0])
        e.I("v_add_u32", vtr2[1], 65536, vtr[1])
        make_srd(e, S_X, P_X, 2048 * 1024)
        make_srd(e, S_OUT, P_OUT, 2048 * 1024)
        if not fused:
            make_srd(e, S_DBG, P_DBG, 256)
        e.I("s_lshl_b32", sT0, str_, 3)
        e.I("s_add_u32", sT0, sT0, stc)
        e.I("s_lshl_b32", sP, sT0, 2)
        e.I("s_add_u32", sP, sP, sw)
        e.I("s_lshl_b32", sP, sP, 13)
        e.I("s_add_u32", sP, sP, WS_P)
        if fused:
            e.I("s_lshl_b32", sT1, sT0, 7)
            e.I("s_add_u32", sT1, sT1, WS_F + 32 * 128)
            e.I("s_mov_b32", sFl, 0)
        else:
            e.I("s_lshr_b32", sT1, sT0, 5)
            e.I("s_lshl_b32", sT1, sT1, 2)
            e.I("s_and_b32", sFl, sT0, 31)
        e.I("v_mov_b32", vFo, sT1)
        e.I("s_lshl_b32", sT0, 1, sFl)
        e.I("v_mov_b32", vOne, sT0)
        e.I("s_lshl_b32", sX, str_, 2)
        e.I("s_add_u32", sX, sX, sw)
        e.I("s_lshl_b32", sX, sX, 15)
        e.I("s_lshl_b32", sT0, stc, 7)
        e.I("s_add_u32", sX, sX, sT0)
        e.I("v_and_b32", t0, 31, vl)
        e.I("v_lshlrev_b32", t0, 10, t0)
        e.I("v_lshrrev_b32", t1, 5, vl)
        e.I("v_lshlrev_b32", t1, 3, t1)
        e.I("v_add_u32", vX, t0, t1)
        if gen.PF_TLB:
            e.I("v_lshlrev_b32", t0, 20, vl)
            Untracked(I("buffer_load_dword", v(52), t0, s(S_OUT, 4), 0, mods="offen"))(e)

    def program(split):
        stages = list(range(NS0)) if split == 0 else list(range(32, 46)) + list(range(NS0, 32))
        ns = len(stages)
        nk = ns * 8
        k0 = stages[0] * 8

        def afrag(t):
            return AR.sub((t % AD) * 4, 4)

        def wfrag(t, mb):
            return WP.sub(((t & 1) * 2 + mb) * 4, 4)

        def a_load(t):
            out = []
            if t % 4 == 0:
                out.append(I("s_add_u32", sTa, sA, (stages[t // 8] * 8 + t % 8) * 1024))
            out.append(I("buffer_load_dwordx4", afrag(t), vl16, s(S_WS, 4), sTa,
                         mods="offen offset:%d%s" % (1024 * (t % 4), AS)))
            return out

        def w_dma(i):
            g = stages[i]
            srd, row = (S_WO, g * 128) if g < 32 else (S_WD, (g - 32) * 128)
            out = [[I("s_add_u32", M0, sM0, (i % NSL) * 16384), I("s_add_u32", sTw, sWo, row * 1024)]]
            for q in range(4):
                x = I("buffer_load_dwordx4", vW[q], s(srd, 4), sTw, mods="offen offset:%d lds" % (1024 * q), tag=("W", i))
                if q == 0:
                    out[0].append(x)
                else:
                    out.append([x])
            return out

        def reads(t):
            i, sl = t // 8, t % 8
            off = (i % NSL) * 16384 + 16 * sl * 128
            at = vtr if off < 65536 else vtr2
            if at is vtr2:
                off -= 65536
            return [I("ds_read_b64_tr_b16", wfrag(t, mb).sub(2 * p, 2), at[mb], mods="offset:%d" % (off + p * 1024))
                    for mb in range(2) for p in range(2)]

        def mf(t):
            g = stages[t // 8]
            acc = ACC[0 if g < 32 else 1]
            first = t == 0 or (split == 1 and g == NS0 and t % 8 == 0)
            return [I(MFMA, acc.sub(mb * 16, 16), wfrag(t, mb), afrag(t), 0 if first else acc.sub(mb * 16, 16))
                    for mb in range(2)]

        dfill = d_side() if split == 1 else []
        for x in w_dma(0):
            emit_all(e, x)
        if fused:
            for x in w_dma(1):
                emit_all(e, x)
            setup2()
            e.wait_vm_tag(lambda tg: tg == "ctx")
            e.I("s_barrier")
            sig2(split)
            stamp(e, 11)
            if split == 1:
                poll_check(e, v(18), sCH, 32, "h", sT0, sSpin, sleep=16, srd=S_WS)
            else:
                e.I("s_cmp_lg_u32", sw, 0)
                e.I("s_cbranch_scc1", "K3_PW")
                e.I("v_mov_b32", v(18), 0)
                poll_check(e, v(18), sCT, 32, "cp", sT0, sSpin, sleep=8, srd=S_WS)
                e.label("K3_PW")
                e.I("s_barrier")
        stamp(e, 12)
        for t in range(8):
            emit_all(e, a_load(t))
        if not fused:
            for x in w_dma(1):
                emit_all(e, x)
            setup2()
        for t in range(8, AD):
            emit_all(e, a_load(t))
        wq = []
        for i in range(2, NSL - 1):
            wq += w_dma(i)
        if split == 1:
            stamp(e, 1)
        e.wait_vm_tag(lambda tg: tg == ("W", 0))
        e.I("s_barrier")
        emit_all(e, reads(0))
        nxt = NSL - 1
        if nxt < ns:
            wq += w_dma(nxt)
            nxt += 1
        for t in range(nk):
            i, sl = t // 8, t % 8
            if sl == 7 and t + 1 < nk:
                e.wait_lgkm0()
                while any(x[-1].tag == ("W", i + 1) for x in wq):
                    emit_all(e, wq.pop(0))
                e.wait_vm_tag(lambda tg: tg == ("W", i + 1))
                if split == 1 and i == ns - 2 - POLL_AT:
                    e.I("buffer_load_dword", vPoll, vFo, s(S_FL, 4), 0, mods="offen sc1")
                if split == 1 and i == ns - 1 - POLL_AT:
                    poll()
                e.I("s_barrier")
                if nxt < ns:
                    wq += w_dma(nxt)
                    nxt += 1
                if split == 1 and i == ns - 1 - POLL_AT:
                    wq += fin_loads()
            if fused and split == 1 and t == 112 - AD - 9:
                poll_issue(e, v(18), sCT, srd=S_WS)
            if fused and split == 1 and t == 112 - AD - 1:
                poll_check(e, v(18), sCT, 32, "cc", sT0, sSpin, sleep=16, srd=S_WS)
            ms = mf(t)
            rd = reads(t + 1) if t + 1 < nk else []
            e.emit(ms[0])
            emit_all(e, rd[:2])
            if split == 1 and t >= 14 * 8 + 2 and dfill:
                for _ in range(5):
                    if dfill:
                        e.emit(dfill.pop(0))
            if wq and (t % 2 == 0 or len(wq) > 6):
                emit_all(e, wq.pop(0))
            e.emit(ms[1])
            emit_all(e, rd[2:])
            if t + AD < nk:
                emit_all(e, a_load(t + AD))
            elif wq:
                emit_all(e, wq.pop(0))
        while wq:
            emit_all(e, wq.pop(0))
        emit_all(e, dfill)

    def sig2(split):
        e.I("s_cmp_lg_u32", sw, 0)
        e.I("s_cbranch_scc1", "K3_SG%d" % split)
        e.I("s_mov_b64", EXEC, 1)
        e.I("v_mov_b32", v(19), 1)
        e.raw(I("buffer_atomic_add", v(19), "off", s(S_WS, 4), sCA))
        e.raw(I("buffer_atomic_add", v(19), "off", s(S_WS, 4), sCB))
        e.I("s_mov_b64", EXEC, -1)
        e.label("K3_SG%d" % split)

    PK = [v(52), v(53)]

    def rnd(out, vals):
        for k in range(2):
            out.append(I("v_cvt_pk_bf16_f32", PK[k], vals[2 * k], vals[2 * k + 1]))
        for k in range(2):
            out.append(I("v_lshlrev_b32", vals[2 * k], 16, PK[k]))
            out.append(I("v_and_b32", vals[2 * k + 1], 0xffff0000, PK[k]))

    def d_side():
        out = []
        for n in range(8):
            DD = [ACC[1][4 * n + i] for i in range(4)]
            G_ = [v(56 + i) for i in range(4)]
            rnd(out, DD)
            for i in range(4):
                out.append(I("v_mul_f32", G_[i], -LOG2E, DD[i]))
            for i in range(4):
                out.append(I("v_exp_f32", G_[i], G_[i]))
            for i in range(4):
                out.append(I("v_add_f32", G_[i], 1.0, G_[i]))
            for i in range(4):
                out.append(I("v_rcp_f32", G_[i], G_[i]))
            for i in range(4):
                out.append(I("v_mul_f32", DD[i], G_[i], DD[i]))
            rnd(out, DD)
        return out

    def poll():
        e.I("v_readfirstlane_b32", sT0, vPoll)
        e.I("s_lshr_b32", sT0, sT0, sFl)
        e.I("s_and_b32", sT0, sT0, 1)
        e.I("s_cmp_lg_u32", sT0, 0)
        e.I("s_cbranch_scc1", "K3_POLLX")
        e.I("s_mov_b32", sSpin, 1 << 16)
        e.label("K3_POLL")
        e.raw(I("buffer_load_dword", vPoll, vFo, s(S_FL, 4), 0, mods="offen sc1"))
        e.raw(I("s_waitcnt", "vmcnt(0)"))
        e.I("v_readfirstlane_b32", sT0, vPoll)
        e.I("s_lshr_b32", sT0, sT0, sFl)
        e.I("s_and_b32", sT0, sT0, 1)
        e.I("s_sub_u32", sSpin, sSpin, 1)
        e.I("s_cmp_eq_u32", sSpin, 0)
        e.I("s_cbranch_scc1", "K3_POLLX")
        e.I("s_cmp_lg_u32", sT0, 0)
        e.I("s_cbranch_scc1", "K3_POLLX")
        e.I("s_sleep", 8)
        e.I("s_branch", "K3_POLL")
        e.label("K3_POLLX")

    def fin_loads():
        out = []
        for n in range(8):
            ins = []
            if n % 4 == 0:
                ins.append(I("s_add_u32", sT1, sP, n * 1024))
            ins.append(I("buffer_load_dwordx4", PS.sub(4 * n, 4), vl16, s(S_WS, 4), sT1,
                         mods="offen offset:%d sc1" % ((n % 4) * 1024)))
            out.append(ins)
        for n in range(8):
            out.append([I("buffer_load_dwordx2", XR.sub(2 * n, 2), vX, s(S_X, 4), sX,
                          mods="offen offset:%d" % ((n >> 2) * 64 + (n & 3) * 16))])
        return out

    e.I("s_cmp_eq_u32", ssp, 1)
    e.I("s_cbranch_scc1", "K3_CONS")
    st0 = e.state()
    program(0)
    stamp(e, 2)
    for n in range(8):
        if n % 4 == 0:
            e.I("s_add_u32", sT1, sP, n * 1024)
        e.I("buffer_store_dwordx4", ACC[0].sub(4 * n, 4), vl16, s(S_WS, 4), sT1,
            mods="offen offset:%d sc1" % ((n % 4) * 1024), tag="final")
    e.wait_all()
    e.I("s_barrier")
    e.I("s_cmp_lg_u32", sw, 0)
    e.I("s_cbranch_scc1", "K3_PE")
    e.I("s_mov_b64", EXEC, 1)
    e.I("buffer_atomic_or", vOne, vFo, s(S_FL, 4), 0, mods="offen")
    e.I("s_mov_b64", EXEC, -1)
    e.label("K3_PE")
    stamp(e, 3)
    if fused:
        stamp_flush(e, 0, s(S_WS, 4), sw, 10)
    e.I("s_endpgm")
    e.label("K3_CONS")
    e.set_state(st0)
    program(1)
    stamp(e, 2)
    for n in range(8):
        SS = [ACC[0][4 * n + i] for i in range(4)]
        G_ = [ACC[1][4 * n + i] for i in range(4)]
        XX = [v(60 + i) for i in range(4)]
        o = []
        for i in range(4):
            o.append(I("v_add_f32", SS[i], SS[i], PS[4 * n + i]))
        rnd(o, SS)
        for i in range(4):
            o.append(I("v_mul_f32", SS[i], SS[i], G_[i]))
        rnd(o, SS)
        for k in range(2):
            o.append(I("v_lshlrev_b32", XX[2 * k], 16, XR[2 * n + k]))
            o.append(I("v_and_b32", XX[2 * k + 1], 0xffff0000, XR[2 * n + k]))
        for i in range(4):
            o.append(I("v_add_f32", SS[i], SS[i], XX[i]))
        OR = PS.sub(4 * n, 2)
        for k in range(2):
            o.append(I("v_cvt_pk_bf16_f32", OR[k], SS[2 * k], SS[2 * k + 1]))
        o.append(I("buffer_store_dwordx2", OR, vX, s(S_OUT, 4), sX,
                   mods="offen offset:%d" % ((n >> 2) * 64 + (n & 3) * 16), tag="final"))
        emit_all(e, o)
    stamp(e, 3)
    if fused:
        stamp_flush(e, 0, s(S_WS, 4), sw, 10)
        e.I("s_endpgm")
        return
    stamp_flush(e, 1 if gen.FUSE else 2, s(S_WS, 4), sw, 4)
    e.label(END)
    e.I("s_endpgm")
    return e.text(), dict(vgpr=160 + 4 * AD, sgpr=102, accum=160, grid=256, block=256, lds=NSL * 16384)


gen_k4 = None
```

```python
import sys
sys.path.insert(0, "dev")
from asmlib import *
import gen
from gen import *

LOG2E = 1.4426950408889634
QSCALE = LOG2E / (128 ** 0.5)
GC1 = -2.0 * (2.0 / math.pi) ** 0.5 * LOG2E
GC2 = GC1 * 0.044715
THRESH = float(2 ** 24)
CR = [(r & 3) + 8 * (r >> 2) for r in range(16)]
EXP = set()


def gen_ka():
    e = Emitter()
    fused = True
    END = "K2_END"
    KVS = " sc1"
    gen.STAMP_MAP = None
    prologue(e, 256, END)
    S_WS, S_A, S_B, S_C, S_K, S_V = 32, 36, 40, 44, 48, 52
    sw, sh, sj = s(56), s(57), s(58)
    sM0, sTmp, sSt = s(59), s(60), s(61)
    sXA, sXB = s(62), s(63)
    sWgu, sWq0, sWq1 = s(64), s(65), s(66)
    sHo = [s(67), s(68)]
    sCo = [s(69), s(70)]
    sKg, sVg, sRot = s(71), s(72), s(73)
    sCnt, sKv, sRet, sBact, sThr = s(74), s(75), s(76), s(77), s(78)
    sT0, sT1 = s(79), s(80)
    sQA, sQB, sHc = s(81), s(30), s(31)
    MASKS = [s(40, 2), s(42, 2), s(44, 2), s(46, 2)]
    sXrow = [s(71 + i) for i in range(8)]
    sXlds, sWb = s(67), s(68)
    sWb2, sWb3 = s(69), s(70)
    sKo, sVo = s(100), s(101)
    sLN0, sLN1 = s(64), s(65)
    vl, vl16 = v(1), v(2)
    t0, t1, t2 = v(3), v(4), v(5)
    vtr = [v(6), v(7)]
    vWg = [v(8 + i) for i in range(4)]
    vWq = [v(12 + i) for i in range(4)]
    vC2 = v(16)
    GT = [v(17 + i) for i in range(8)]
    vXd = [v(17), v(18)]
    vXr = [v(19 + i) for i in range(4)]
    vLNa, vLNs = v(23), v(24)
    vPl, vOne, vPk = v(25), v(26), v(27)
    PFD = v(28, 4)
    X_, Y_, Z_ = v(64, 64), v(128, 64), v(192, 64)
    SET = [Y_, Z_, X_]
    pool = v(32, 32)
    WR = 98304
    XS_W = 24576

    code_prefetch(e, "ka", "ka_kernel", "TEXT_END", s(30, 2), t0, PFD, 1)
    e.I("v_and_b32", vl, 63, v(0))
    e.I("v_lshrrev_b32", t0, 6, v(0))
    e.I("v_lshlrev_b32", vl16, 4, vl)
    e.I("v_readfirstlane_b32", sw, t0)
    head_j(e, sh, sj, sT0, sT1)
    e.I("v_lshrrev_b32", t0, 3, vl)
    e.I("v_lshlrev_b32", t1, 10, t0)
    e.I("v_lshrrev_b32", t0, 1, t0)
    e.I("v_xor_b32", t0, t0, vl)
    e.I("v_and_b32", t0, 7, t0)
    e.I("v_lshlrev_b32", t2, 4, t0)
    e.I("v_add_u32", vXd[0], t1, t2)
    e.I("v_xor_b32", t2, 64, t2)
    e.I("v_add_u32", vXd[1], t1, t2)
    e.I("s_lshl_b32", sT0, sj, 18)
    e.I("s_lshl_b32", sT1, sw, 16)
    e.I("s_add_u32", sT0, sT0, sT1)
    for i in range(8):
        e.I("s_add_u32", sXrow[i], sT0, i * 8192 - (i & 3) * 1024)
    e.I("s_mul_i32", sXlds, sw, XS_W)
    wdma_voff(e, vWq, vl, (t0, t1), 8192)
    e.I("s_and_b32", sT0, sw, 1)
    e.I("s_lshl_b32", sT0, sT0, 18)
    e.I("s_lshr_b32", sT1, sw, 1)
    e.I("s_lshl_b32", sT1, sT1, 7)
    e.I("s_lshl_b32", s(3), sh, 8)
    e.I("s_add_u32", sWb, s(3), sT0)
    e.I("s_add_u32", sWb, sWb, sT1)
    e.I("s_lshl_b32", sT0, sw, 18)
    e.I("s_add_u32", sWb2, s(3), sT0)
    e.I("s_add_u32", sWb3, sWb2, 128)
    e.I("s_lshl_b32", sM0, sw, 12)
    e.I("s_add_u32", sM0, sM0, WR)
    e.I("s_waitcnt", "lgkmcnt(0)")
    make_srd(e, S_A, P_CKV, 2048 * 1024)
    make_srd(e, S_B, P_WUK, 512 * 8192)
    stamp(e, 0)

    def c_dma(p):
        out = []
        for i in range(8):
            if i % 4 == 0:
                out.append(I("s_add_u32", M0, sXlds, (p % 3) * 8192 + (i >> 2) * 4096))
            out.append(I("buffer_load_dwordx4", vXd[i & 1], s(S_A, 4), sXrow[i],
                         mods="offen offset:%d lds" % (1024 * (i & 3)), tag=("C", p)))
        out.append(I("v_add_u32", vXd[0], 128, vXd[0]))
        out.append(I("v_add_u32", vXd[1], 128, vXd[1]))
        return out

    def c_jobs(p):
        ins = c_dma(p)
        k = ("C", p)
        return [(k, ins[0:2]), (k, [ins[2]]), (k, [ins[3]]), (k, [ins[4]]), (k, ins[5:7]), (k, [ins[7]]), (k, [ins[8]]),
                (k, ins[9:12])]

    def x_piece(p):
        out = []
        k = ("X", p)
        for rb in range(2):
            sb = sXA if rb == 0 else sXB
            for i in range(4):
                ins = []
                if i == 0:
                    ins.append(I("s_add_u32", sT0 if rb == 0 else sT1, sb, p * 4096))
                ins.append(I("buffer_load_dwordx4", a((rb * 32 + 4 * p + i) * 4, 4), vl16, s(S_WS, 4),
                             sT0 if rb == 0 else sT1, mods="offen offset:%d%s" % (1024 * i, " sc1" if gen.LD_SC1 else ""), tag=k))
                out.append((k, ins))
        return out

    def kv_jobs(kind, st):
        k = (kind, st)
        srd = s(S_K if kind == "K" else S_V, 4)
        base = (0 if kind == "K" else 65536) + (st & 3) * 16384
        out = []
        for i in range(4):
            ins = []
            if i == 0:
                ins.append(I("s_lshl_b32", sSt, sw, 12))
                ins.append(I("s_add_u32", M0, sSt, base))
                ins.append(I("s_add_u32", sSt, sSt, st * 16384))
            ins.append(I("buffer_load_dwordx4", vl16, srd, sSt, mods="offen offset:%d sc1 lds" % (1024 * i), tag=k))
            out.append((k, ins))
        return out

    srcK = dict(srd=s(S_B, 4), voff=vWq, s_base=sWb, stage_stride=64 * 8192)
    srcV0 = dict(srd=s(S_C, 4), voff=vWq, s_base=sWb2, stage_stride=128 * 8192)
    srcV1 = dict(srd=s(S_C, 4), voff=vWq, s_base=sWb3, stage_stride=128 * 8192)
    srcGU = dict(srd=s(S_A, 4), voff=vWg, s_base=sWgu, stage_stride=64 * 3584)
    srcQ0 = dict(srd=s(S_B, 4), voff=vWq, s_base=sWq0, stage_stride=128 * 8192)
    srcQ1 = dict(srd=s(S_B, 4), voff=vWq, s_base=sWq1, stage_stride=128 * 8192)
    acc4 = lambda s0, s1: (lambda rb, nb: (s0, s1)[rb].sub(nb * 16, 16))
    acc2 = lambda s0: (lambda rb, nb: s0.sub((rb * 2 + nb) * 16, 16))
    accK, accV0, accV1, accGU = acc4(X_, Y_), acc2(Z_), acc2(X_), acc4(Y_, Z_)

    def store_block(d, sbase, rb, idxs):
        out = []
        for hh in range(2):
            out += cvt_inplace(d, hh)
            off = rb * 8192 + idxs[hh] * 1024
            out.append(I("s_add_u32", s(3), sbase, off & ~4095))
            out.append(I("buffer_store_dwordx4", d.sub(8 * hh, 4), vl16, s(S_WS, 4), s(3),
                         mods="offen offset:%d" % (off & 4095), tag="kv"))
        return out

    def epiK():
        return [x for rb in range(2) for nb in range(4) for x in store_block(accK(rb, nb), sKo, rb, (2 * nb, 2 * nb + 1))]

    def epiV(acc, o):
        return [x for rb in range(2) for nb in range(2) for x in store_block(acc(rb, nb), sVo, rb, (o + nb, o + 4 + nb))]

    def ln_stream():
        Z = Z_
        LN0, LN1 = Z.sub(0, 4), Z.sub(4, 4)
        X = [Z[8 + i] for i in range(16)]
        D = [Z[24 + i] for i in range(16)]
        sm, sw2, mean, var, pk, mb, vb, sd, rc = [Z[40 + i] for i in range(9)]
        ln = []
        A_ = lambda *x, **k: ln.append(I(*x, **k))
        for i in range(4):
            A_("v_lshlrev_b32", X[2 * i], 16, LN0[i])
            A_("v_and_b32", X[2 * i + 1], 0xffff0000, LN0[i])
            A_("v_lshlrev_b32", X[8 + 2 * i], 16, LN1[i])
            A_("v_and_b32", X[8 + 2 * i + 1], 0xffff0000, LN1[i])

        def allreduce32(r):
            for off in (0x041F, 0x081F, 0x101F, 0x201F, 0x401F):
                A_("ds_swizzle_b32", sw2, r, mods="offset:0x%04x" % off)
                A_("v_add_f32", r, r, sw2)
        A_("v_add_f32", sm, X[0], X[1])
        for i in range(2, 16):
            A_("v_add_f32", sm, sm, X[i])
        allreduce32(sm)
        A_("v_mul_f32", mean, 1.0 / 512, sm)
        for i in range(16):
            A_("v_sub_f32", D[i], X[i], mean)
        A_("v_mul_f32", sm, D[0], D[0])
        for i in range(1, 16):
            A_("v_fmac_f32", sm, D[i], D[i])
        allreduce32(sm)
        A_("v_mul_f32", var, 1.0 / 512, sm)
        A_("v_cvt_pk_bf16_f32", pk, mean, var)
        A_("v_lshlrev_b32", mb, 16, pk)
        A_("v_and_b32", vb, 0xffff0000, pk)
        A_("v_add_f32", vb, 1e-5, vb)
        A_("v_cvt_pk_bf16_f32", pk, vb, vb)
        A_("v_lshlrev_b32", vb, 16, pk)
        A_("v_sqrt_f32", vb, vb)
        A_("v_cvt_pk_bf16_f32", pk, vb, vb)
        A_("v_lshlrev_b32", sd, 16, pk)
        A_("v_rcp_f32", rc, sd)
        for i in range(16):
            A_("v_sub_f32", D[i], X[i], mb)
        for i in range(8):
            A_("v_cvt_pk_bf16_f32", pk, D[2 * i], D[2 * i + 1])
            A_("v_lshlrev_b32", D[2 * i], 16, pk)
            A_("v_and_b32", D[2 * i + 1], 0xffff0000, pk)
        for i in range(16):
            A_("v_mul_f32", X[i], D[i], rc)
            A_("v_fma_f32", D[i], Neg(X[i]), sd, D[i])
            A_("v_fmac_f32", X[i], D[i], rc)
        for i in range(4):
            A_("v_cvt_pk_bf16_f32", LN0[i], X[2 * i], X[2 * i + 1])
            A_("v_cvt_pk_bf16_f32", LN1[i], X[8 + 2 * i], X[8 + 2 * i + 1])
        if gen.FUSE3:
            A_("v_mov_b32", Z[50], 0)
            A_("v_mov_b32", Z[51], 0)
            A_("s_lshl_b32", sHc, s(2), 7)
            A_("s_add_u32", sHc, sHc, WS_F)
            A_("buffer_store_dwordx2", Z.sub(50, 2), "off", s(S_WS, 4), sHc, mods="sc1", tag="ln")
        A_("buffer_store_dwordx4", LN0, vLNs, s(S_WS, 4), sLN0, mods="offen", tag="ln")
        A_("buffer_store_dwordx4", LN1, vLNs, s(S_WS, 4), sLN1, mods="offen", tag="ln")
        return ln

    NOP = lambda em: None

    def gu_epi(rb):
        out = []
        for nb in range(2):
            g_, u_ = accGU(rb, nb), accGU(rb, nb + 2)
            for hh in range(2):
                for half4 in range(2):
                    rs = [8 * hh + 4 * half4 + i for i in range(4)]
                    T = GT[0:4]
                    T2 = GT[4:8]
                    for i, r in enumerate(rs):
                        out.append(I("v_mul_f32", T[i], g_[r], g_[r]))
                    for i, r in enumerate(rs):
                        out.append(I("v_fmaak_f32", T[i], T[i], vC2, GC1))
                    for i, r in enumerate(rs):
                        out.append(I("v_mul_f32", T[i], T[i], g_[r]))
                    for i, r in enumerate(rs):
                        out.append(I("v_exp_f32", T[i], T[i]))
                    for i, r in enumerate(rs):
                        out.append(I("v_mul_f32", T2[i], g_[r], u_[r]))
                    for i, r in enumerate(rs):
                        out.append(I("v_add_f32", T[i], 1.0, T[i]))
                    for i, r in enumerate(rs):
                        out.append(I("v_rcp_f32", T[i], T[i]))
                    out.append(I("s_nop", 0))
                    for i, r in enumerate(rs):
                        out.append(I("v_mul_f32", g_[r], T2[i], T[i]))
                out += cvt_inplace(g_, hh)
                off = (2 * nb + hh) * 1024
                out.append(I("buffer_store_dwordx4", g_.sub(8 * hh, 4), vl16, s(S_WS, 4), sHo[rb],
                             mods="offen offset:%d" % off))
        return out

    def qfrag(qb, sidx):
        b, t = sidx >> 1, sidx & 1
        return X_.sub((qb * 2 + (b & 1)) * 16 + 8 * t + (4 if b >= 2 else 0), 4)

    def q_epi(acc, b0):
        out = []
        for rb in range(2):
            for nb in range(2):
                d = acc(rb, nb)
                for r in range(16):
                    out.append(I("v_mul_f32", d[r], QSCALE, d[r]))
                for t in range(2):
                    f = qfrag(rb, 2 * (b0 + nb) + t)
                    for q in range(4):
                        out.append(I("v_cvt_pk_bf16_f32", f[q], d[8 * t + 2 * q], d[8 * t + 2 * q + 1]))
        return out

    class L(list):
        def I(self, op, *ops, **k):
            self.append(I(op, *ops, **k))

    def setup_b():
        o = L()
        o.I("s_lshl_b32", sT0, sj, 2)
        o.I("s_add_u32", sQB, sT0, sw)
        o.I("s_sub_u32", sQA, 60, sT0)
        o.I("s_add_u32", sQA, sQA, sw)
        o.I("s_lshl_b32", sXA, sQA, 15)
        o.I("s_lshl_b32", sXB, sQB, 15)
        if WS_XN:
            o.I("s_add_u32", sXA, sXA, WS_XN)
            o.I("s_add_u32", sXB, sXB, WS_XN)
        wdma_voff(o, vWg, vl, (t0, t1), 3584)
        o.I("s_and_b32", sT0, sw, 1)
        o.I("s_mul_i32", sT0, sT0, 32 * 3584)
        o.I("s_lshl_b32", sT1, sh, 7)
        o.I("s_add_u32", sWgu, sT0, sT1)
        o.I("s_mov_b32", sWq0, sWb2)
        o.I("s_mov_b32", sWq1, sWb3)
        o.I("s_lshl_b32", sHc, sh, 2)
        o.I("s_add_u32", sHc, sHc, 4)
        o.I("s_cmp_lt_u32", sw, 2)
        g = [I("s_cmp_lt_u32", sw, 2), I("s_cselect_b32", s(S_A), s(P_WG), s(P_WU)),
             I("s_cselect_b32", s(S_A + 1), s(P_WG + 1), s(P_WU + 1))]
        o.append(lambda em: emit_all(em, g))
        o.I("s_mov_b32", s(S_A + 2), 512 * 3584)
        make_srd(o, S_B, P_WQ, 512 * 8192)
        o.I("v_mov_b32", vC2, GC2)
        for qb, sq in ((0, sQA), (1, sQB)):
            o.I("s_mul_i32", sT0, sq, 368 * 1024)
            o.I("s_lshl_b32", sT1, sh, 12)
            o.I("s_add_u32", sHo[qb], sT0, sT1)
            o.I("s_add_u32", sHo[qb], sHo[qb], WS_A3 + 256 * 1024)
        return o

    def setup_c():
        o = L()
        for qb in range(2):
            o.I("s_lshl_b32", sSt, sh, 12)
            o.I("s_add_u32", sCo[qb], sHo[qb], sSt)
            o.I("s_sub_u32", sCo[qb], sCo[qb], 256 * 1024)
        for srd, off in ((S_K, WS_K), (S_V, WS_V)):
            g = [I("s_lshl_b32", sSt, sh, 19), I("s_add_u32", sSt, sSt, off), I("s_add_u32", s(srd), s(P_WS), sSt),
                 I("s_addc_u32", s(srd + 1), s(P_WS + 1), 0)]
            o.append(lambda em, g=g: emit_all(em, g))
            o.I("s_lshl_b32", sSt, sj, 15)
            o.I("s_sub_u32", s(srd + 2), 64 * 8192, sSt)
            o.I("s_mov_b32", s(srd + 3), 0x20000)
        o.I("s_lshl_b32", sKg, sw, 12)
        o.I("s_mov_b32", sVg, sKg)
        o.I("s_mov_b32", sThr, THRESH)
        return o

    def touch(srd, bufs):
        g = [I("s_lshl_b32", sCnt, s(2), 2), I("s_add_u32", sCnt, sCnt, sw), I("s_lshl_b32", sCnt, sCnt, 13)]
        p0, n0 = bufs[0]
        g += [I("s_mov_b32", s(srd), s(p0)), I("s_mov_b32", s(srd + 1), s(p0 + 1)), I("s_mov_b32", s(srd + 2), n0),
              I("s_mov_b32", s(srd + 3), 0x20000)]
        for (pp, nn), (_, nprev) in zip(bufs[1:], bufs[:-1]):
            g += [I("s_cmp_ge_u32", sCnt, s(srd + 2)),
                  I("s_cselect_b32", sRet, s(srd + 2), 0),
                  I("s_cselect_b32", s(srd), s(pp), s(srd)), I("s_cselect_b32", s(srd + 1), s(pp + 1), s(srd + 1)),
                  I("s_cselect_b32", s(srd + 2), nn, s(srd + 2)),
                  I("s_sub_u32", sCnt, sCnt, sRet)]
        g += [I("v_lshlrev_b32", t2, 7, vl),
              Untracked(I("buffer_load_dword", PFD[0], t2, s(srd, 4), sCnt, mods="offen"))]
        return [lambda em: emit_all(em, g)]

    def proj(with_gu, tagp):
        ln = ln_stream()
        eV1 = epiV(accV1, 2)
        segs = [Seg(4, "WX", accK, srcK, [NOP] * (len(ln) // 4) + ln + [NOP] * (2 * len(ln))),
                Seg(2, "XW", accV0, srcV0, merge(epiK(), setup_b())),
                Seg(2, "XW", accV1, srcV1, epiV(accV0, 0) + [NOP] * 12)]
        if with_gu:
            aQ0, aQ1 = acc2(X_), acc2(Y_)
            segs += [Seg(4, "WX", accGU, srcGU, eV1 + setup_c() + [NOP] * 70), Seg(2, "WX", aQ0, srcQ0, gu_epi(0)),
                     Seg(2, "WX", aQ1, srcQ1, gu_epi(1) + q_epi(aQ0, 0))]
        else:
            aQ0, aQ1 = acc2(Y_), acc2(Z_)
            segs += [Seg(2, "WX", aQ0, srcQ0, eV1 + setup_c() + [NOP] * 70), Seg(2, "WX", aQ1, srcQ1, q_epi(aQ0, 0))]
        G = Gemm(e, 4, vtr, pool, sM0, sTmp, segs)
        nst = len(G.stages)

        def c_reads(p):
            out = [(lambda em: G.need(("C", p))) if p else (lambda em: em.wait_vm_tag(lambda tg: tg == ("C", p)))]
            for sl in range(4):
                for rb in range(2):
                    out.append(I("ds_read_b128", a((rb * 32 + 4 * p + sl) * 4, 4), vXr[sl],
                                 mods="offset:%d" % ((p % 3) * 8192 + rb * 4096)))
            return out
        emit_all(e, c_dma(0))
        emit_all(e, G.w_dma(0))
        make_srd(e, S_K, P_X, 2048 * 1024)
        make_srd(e, S_C, P_WUV, 512 * 8192)
        make_srd(e, S_WS, P_WS, WS_BYTES)
        make_srd(e, S_DBG, P_DBG, 256)
        e.I("v_lshrrev_b32", t0, 5, v(0))
        e.I("v_lshlrev_b32", t1, 10, t0)
        e.I("v_and_b32", t2, 31, vl)
        e.I("v_lshlrev_b32", vLNa, 4, t2)
        e.I("v_add_u32", vLNa, vLNa, t1)
        e.I("v_lshrrev_b32", t1, 1, t2)
        e.I("v_lshlrev_b32", t1, 10, t1)
        e.I("v_and_b32", t2, 1, t2)
        e.I("v_lshlrev_b32", t2, 9, t2)
        e.I("v_add_u32", t1, t1, t2)
        e.I("v_lshlrev_b32", t0, 4, t0)
        e.I("v_add_u32", vLNs, t1, t0)
        e.I("s_lshl_b32", sT0, s(2), 13)
        e.I("buffer_load_dwordx4", Z_.sub(0, 4), vLNa, s(S_K, 4), sT0, mods="offen")
        e.I("buffer_load_dwordx4", Z_.sub(4, 4), vLNa, s(S_K, 4), sT0, mods="offen offset:512")
        if gen.PF_IN:
            e.I("s_lshr_b32", sT0, s(2), 3)
            e.I("s_lshl_b32", sT0, sT0, 2)
            e.I("s_add_u32", sT0, sT0, sw)
            e.I("v_lshrrev_b32", t0, 3, vl)
            e.I("v_lshlrev_b32", t0, 13, t0)
            e.I("v_and_b32", t1, 7, vl)
            e.I("v_lshlrev_b32", t1, 7, t1)
            e.I("v_add_u32", t0, t0, t1)
            e.I("s_and_b32", sT1, sT0, 63)
            e.I("s_lshl_b32", sT1, sT1, 16)
            e.I("s_and_b32", s(3), s(2), 7)
            e.I("s_lshl_b32", s(3), s(3), 10)
            e.I("s_add_u32", sT1, sT1, s(3))
            e.I("s_cmp_ge_u32", sT0, 64)
            e.I("s_cselect_b32", s(S_V), s(P_WUV), s(P_WUK))
            e.I("s_cselect_b32", s(S_V + 1), s(P_WUV + 1), s(P_WUK + 1))
            e.I("s_mov_b32", s(S_V + 2), 512 * 8192)
            e.I("s_mov_b32", s(S_V + 3), 0x20000)
            e.I("v_lshlrev_b32", t1, 7, vl)
            e.I("s_lshl_b32", sT0, sT0, 14)
            Untracked(I("buffer_load_dword", PFD[1], t1, s(S_A, 4), sT0, mods="offen"))(e)
            e.I("s_add_u32", sT0, sT0, 8192)
            Untracked(I("buffer_load_dword", PFD[2], t1, s(S_A, 4), sT0, mods="offen"))(e)
            Untracked(I("buffer_load_dword", PFD[3], t0, s(S_V, 4), sT1, mods="offen"))(e)
        emit_all(e, c_dma(1))
        emit_all(e, G.w_dma(1))
        emit_all(e, c_dma(2))
        e.I("s_lshr_b32", sLN0, s(2), 2)
        e.I("s_lshl_b32", sLN0, sLN0, 15)
        e.I("s_and_b32", sLN1, s(2), 3)
        e.I("s_lshl_b32", sLN1, sLN1, 7)
        e.I("s_add_u32", sLN0, sLN0, sLN1)
        if WS_XN:
            e.I("s_add_u32", sLN0, sLN0, WS_XN)
        e.I("s_add_u32", sLN1, sLN0, 16384)
        e.I("v_and_b32", t0, 31, vl)
        e.I("v_lshlrev_b32", t1, 7, t0)
        e.I("v_add_u32", t1, sXlds, t1)
        e.I("v_bfe_u32", t0, vl, 1, 3)
        e.I("v_lshrrev_b32", t2, 5, vl)
        e.I("v_xor_b32", t0, t0, t2)
        for sl in range(4):
            e.I("v_xor_b32", t2, 2 * sl, t0)
            e.I("v_lshlrev_b32", t2, 4, t2)
            e.I("v_add_u32", vXr[sl], t1, t2)
        tr_addr(e, vtr[0], vtr[1], vl, (t0, t1, t2), WR, False)
        e.I("s_lshl_b32", sT0, sh, 6)
        e.I("s_lshl_b32", sT1, sj, 3)
        e.I("s_add_u32", sT0, sT0, sT1)
        e.I("s_lshl_b32", sT1, sw, 1)
        e.I("s_add_u32", sT0, sT0, sT1)
        e.I("s_lshl_b32", sT0, sT0, 13)
        e.I("s_add_u32", sKo, sT0, WS_K)
        e.I("s_add_u32", sVo, sT0, WS_V)
        emit_all(e, c_reads(0))
        if "early" in EXP and with_gu:
            stamp(e, 1)
        queue = []
        for g in range(2, nst):
            for p in {3: [3, 4], 4: [5, 6], 5: [7]}.get(g, []):
                queue += c_jobs(p)
            if 16 <= g < 20 and not with_gu:
                queue += x_piece(2 * (g - 16)) + x_piece(2 * (g - 16) + 1)
            queue += G.w_jobs(g)
            if with_gu:
                for p in {16: [0], 17: [1], 18: [2], 19: [3], 20: [4], 21: [5], 22: [6], 23: [7]}.get(g, []):
                    queue += x_piece(p)
        queue += kv_jobs("K", 0) + kv_jobs("K", 1) + kv_jobs("V", 0) + kv_jobs("K", 2) + kv_jobs("V", 1)
        queue += kv_jobs("K", 3) + kv_jobs("V", 2)
        LNSIG = 4
        CRD = {1: 1, 3: 2, 6: 3, 9: 4, 12: 5, 16: 6, 20: 7}
        XREL = {76: 0, 82: 1, 88: 2, 98: 3, 102: 4, 106: 5, 110: 6, 114: 7}
        pub = 20 if with_gu else 17
        kv_first = {("K", i) for i in range(3)} | {("V", 0), ("V", 1)}

        def pre_barrier(g):
            if g == LNSIG:
                e.wait_vm_tag(lambda tg: tg == "ln")
            if g == pub:
                e.wait_vm_tag(lambda tg: tg == "kv")

        def on_barrier(g):
            if "early" in EXP and with_gu and g in (0, 2, 4, 6):
                stamp(e, 2 + g // 2 if g < 6 else 4) if g < 6 else None
            if g == LNSIG:
                signal(e, sw, 0, "ln" + tagp, vOne)
            if g == 11:
                poll_issue(e, vPl, 0)
            if g == 12:
                poll_check(e, vPl, 0, 256, "ln" + tagp, sCnt, sRet)
                if not with_gu:
                    G.rel.add(("X", 0))
            if g == pub:
                signal(e, sw, sHc, "kv" + tagp, vOne)
            if g == nst - 6:
                poll_issue(e, vPk, sHc)
            if g == nst - 5:
                poll_check(e, vPk, sHc, 8, "kv" + tagp, sCnt, sRet)
                G.rel |= kv_first
            if g == nst - 2:
                G.rel.add(("V", 2))
                G.rel.add(("K", 3))

        def hook(t):
            sg, sidx, g, sl = G.ks[t]
            out = []
            if t in CRD:
                out += c_reads(CRD[t])
            if t == 0 or (t - 1) in CRD:
                pr = 0 if t == 0 else CRD[t - 1]

                def rel_c(em, pr=pr):
                    em.wait_lgkm0()
                    G.rel.add(("C", pr + 3))
                if t == 0:
                    out.append(rel_c)
                else:
                    rel_c(e)
            if t == 33 and gen.PF_W:
                out += touch(S_K, [(P_WQ, 512 * 8192), (P_WG, 512 * 3584), (P_WU, 512 * 3584)])
            if t == 100 and gen.PF_W:
                out += touch(S_C, [(P_WO, 4096 * 1024), (P_WD, 1792 * 1024)])
            if not with_gu and 72 <= t <= 96 and t % 4 == 0:
                G.rel.add(("X", (t - 68) // 4))
            if with_gu and t in XREL:
                G.rel.add(("X", XREL[t]))
            if 96 <= t < 128 and sidx % 4 == 0:
                p = sidx // 4
                while any(k == ("X", p) for k, _ in G.q):
                    k, ins = G.q.pop(0)
                    assert k in G.rel, k
                    emit_all(e, ins)
            return out
        cnt = [1]

        def seg_end(sg):
            if cnt[0] in (1, 3, 4) or not with_gu and False:
                pass
            if with_gu:
                m = {1: 1, 2: 2, 3: 3, 4: 4}.get(cnt[0])
                if m and "early" not in EXP:
                    stamp(e, m)
            cnt[0] += 1
        G.run(hook, seg_end, queue=queue, released={("W", 2), ("W", 3)}, on_barrier=on_barrier,
              pace=gen.PACE, pre_barrier=pre_barrier)
        while G.q:
            k, ins = G.q.pop(0)
            assert k in G.rel, k
            emit_all(e, ins)
        emit_all(e, q_epi(aQ1, 2))
        tags = [t for _, t in e.vm]
        assert all(t in (("K", 3), ("V", 2), None, "pf") for t in tags[-8:]), tags[-8:]
        assert all(t not in (("K", 0), ("K", 1), ("V", 0)) for t in tags[-16:]), tags[-16:]
        e.wait_vm_tag(lambda tg: tg == ("K", 0))
        e.wait_lgkm0()

    e.I("s_cmp_ge_u32", sh, 28)
    e.I("s_cbranch_scc1", "K2_NOGU")
    st0 = e.state()
    proj(True, "a")
    e.I("s_branch", "K2_ATT")
    e.label("K2_NOGU")
    e.set_state(st0)
    proj(False, "b")
    e.label("K2_ATT")
    e.vm = []
    e.lgkm = []
    e.I("s_nop", 1)
    stamp(e, 5)

    S = lambda par, qb: SET[0].sub((par * 2 + qb) * 16, 16)
    NM = lambda qb: SET[1].sub(qb * 16, 16)
    P = lambda par, qb: SET[1].sub(32 + (par * 2 + qb) * 8, 8)
    O = lambda qb, b: a((qb * 4 + b) * 16, 16)
    KF = lambda fs, si: a(128 + 64 * fs + 4 * si, 4)
    VF = lambda fs, t, b: a(128 + 64 * fs + 32 + 4 * (t * 4 + b), 4)
    vKr, vVr = v(6), v(7)
    vDq = [v(8), v(9)]
    vL = [[v(10), v(11)], [v(24), v(25)]]
    vTs = [v(12), v(13)]
    vTs2 = [v(4, 2), v(4, 2)]
    vTm, vDqT = v(14), [v(15), v(16)]
    vNinf = v(17)
    ET = [v(18 + i) for i in range(6)]
    vQx, vKx, vNx, vInvB, vPw = v(26), v(27), v(28), v(29), v(30)
    RT = [v(32 + i) for i in range(32)]
    QS = 131072
    sPw = sBact

    e.I("v_and_b32", t0, 31, vl)
    e.I("v_lshrrev_b32", t1, 5, vl)
    e.I("v_lshlrev_b32", t1, 2, t1)
    e.I("v_sub_u32", t0, t0, t1)
    e.I("s_lshl_b32", sT0, sQA, 5)
    e.I("s_lshl_b32", sT1, sQB, 5)
    e.I("v_add_u32", vDq[0], sT0, t0)
    e.I("v_add_u32", vDq[1], sT1, t0)
    e.I("v_mov_b32", vNinf, 0xff800000)
    e.I("v_mov_b32", vL[0][0], 0)
    e.I("v_mov_b32", vL[0][1], 0)
    e.I("v_add_u32", vKr, 16384, vl16)
    e.I("v_add_u32", vVr, 65536, vl16)
    e.I("s_lshl_b32", sRot, sw, 12)
    e.I("s_add_u32", sKg, sKg, 4 * 16384)
    e.I("s_add_u32", sVg, sVg, 3 * 16384)
    e.I("s_mov_b32", sKv, 0)
    e.I("s_and_b32", sPw, sw, 1)
    e.I("s_lshl_b32", sPw, sPw, 13)
    e.I("s_lshl_b32", sT0, sw, 13)
    e.I("s_add_u32", sT0, sT0, QS)
    e.I("v_add_u32", vQx, sT0, vl16)
    e.I("s_barrier")
    for si in range(8):
        e.I("ds_read_b128", KF(1, si), vl16, mods="offset:%d" % (si * 1024))
    for si in range(8):
        e.I("ds_read_b128", KF(0, si), vl16, mods="offset:%d" % (8192 + si * 1024))
    for si in range(8):
        for qb in range(2):
            e.I(MFMA, S(0, qb), KF(1, si), qfrag(qb, si), 0 if si == 0 else S(0, qb))
        e.I("ds_write_b128", vQx, qfrag(0, si), mods="offset:%d" % (si * 1024))
    e.I("v_xor_b32", vQx, 8192, vQx)

    def mask_S_inplace(em, Sx, dq):
        for r0 in range(0, 16, 4):
            for i in range(4):
                em.I("v_cmp_ge_i32", MASKS[i], dq, CR[r0 + i])
            for i in range(4):
                em.I("v_cndmask_b32", Sx[r0 + i], vNinf, Sx[r0 + i], MASKS[i])

    def rowmax(em, Sx, dst, tmp):
        em.I("v_max3_f32", dst, Sx[0], Sx[1], Sx[2])
        for r in range(3, 15, 2):
            em.I("v_max3_f32", dst, dst, Sx[r], Sx[r + 1])
        em.I("v_max_f32", dst, dst, Sx[15])
        em.I("v_mov_b32", tmp, dst)
        em.I("v_permlane32_swap_b32", dst, tmp)
        em.I("v_max_f32", dst, dst, tmp)

    for qb in range(2):
        Sx = S(0, qb)
        if qb == 1:
            mask_S_inplace(e, Sx, vDq[1])
        rowmax(e, Sx, RT[0], RT[1])
        for r in range(16):
            e.I("v_sub_f32", Sx[r], Sx[r], RT[0])
        for r in range(16):
            e.I("v_sub_f32", NM(qb)[r], 0, RT[0])
    e.wait_lgkm0()
    stamp(e, 6)

    ret_labels = []

    def sm_stream(par, qb, masked):
        Sx, Px = S(par, qb), P(par, qb)
        out = []
        if masked:
            out.append(I("v_subrev_u32", vDqT[qb], sKv, vDq[qb]))

        def front(k):
            o = []
            if masked:
                o.append(I("v_cmp_ge_i32", MASKS[(2 * k) & 3], vDqT[qb], CR[2 * k]))
                o.append(I("v_cmp_ge_i32", MASKS[(2 * k + 1) & 3], vDqT[qb], CR[2 * k + 1]))
            o.append(I("v_exp_f32", ET[(2 * k) % 6], Sx[2 * k]))
            o.append(I("v_exp_f32", ET[(2 * k + 1) % 6], Sx[2 * k + 1]))
            return o

        def back(k):
            ta, tb = ET[(2 * k) % 6], ET[(2 * k + 1) % 6]
            o = []
            if masked:
                o.append(I("v_cndmask_b32", ta, 0, ta, MASKS[(2 * k) & 3]))
                o.append(I("v_cndmask_b32", tb, 0, tb, MASKS[(2 * k + 1) & 3]))
            if "pk" in EXP:
                pr = v(ta.i, 2)
                if k == 1:
                    o.append(I("v_pk_add_f32", vTs2[qb], v(ET[0].i, 2), pr))
                elif k > 1:
                    o.append(I("v_pk_add_f32", vTs2[qb], vTs2[qb], pr))
                if k == 7:
                    o.append(I("v_add_f32", vTs[qb], vTs2[qb][0], vTs2[qb][1]))
            elif k == 0:
                o.append(I("v_add_f32", vTs[qb], ta, tb))
            else:
                o.append(I("v_add_f32", vTs[qb], vTs[qb], ta))
                o.append(I("v_add_f32", vTs[qb], vTs[qb], tb))
            o.append(I("v_cvt_pk_bf16_f32", Px[k], ta, tb))
            return o
        out += front(0)
        for k in range(8):
            if k + 1 < 8:
                out += front(k + 1)
            out += back(k)
        return out

    def qk_mfmas(par):
        return [I(MFMA, S(1 - par, qb), KF(par, si), qfrag(qb, si), NM(qb) if si == 0 else S(1 - par, qb))
                for si in range(8) for qb in range(2)]

    def pv_mfmas(par, first=(), order=None):
        ms = []
        for t in range(2):
            for b in range(4):
                for qb in range(2):
                    c = 0 if (qb in first and t == 0) else O(qb, b)
                    ms.append(I(MFMA, O(qb, b), VF(par, t, b), P(1 - par, qb).sub(4 * t, 4), c))
        return ms

    def k_reads(par, vaddr, off):
        return [I("ds_read_b128", KF(1 - par, si), vaddr, mods="offset:%d" % (off + si * 1024)) for si in range(8)]

    def v_reads(par, vaddr, off):
        return [I("ds_read_b128", VF(1 - par, si >> 2, si & 3), vaddr, mods="offset:%d" % (off + si * 1024))
                for si in range(8)]

    def step(par, name, qk, masks, pv, rds, dma, kvinc, pv_first=(), extra=(), tail=(), late_rd=True):
        ms = (qk_mfmas(par) if qk else []) + (pv_mfmas(par, pv_first) if pv else [])
        val = sm_stream(par, 0, masks[0]) + sm_stream(par, 1, masks[1])
        if "nords" in EXP:
            rds = []
        if "nodma" in EXP:
            dma = None
        if "nosm" in EXP:
            val = val[:4]
        cut = (len(val) * (9 if late_rd else 7)) // 10
        fill = merge(val[:cut], rds) + val[cut:]
        if extra:
            fill = merge(fill, list(extra))
        if dma:
            fill = merge(fill, dma)
        fill.append(I("v_max_f32", vTm, vTs[0], vTs[1]))
        fill.append(I("v_cmp_nge_f32", VCC, sThr, vTm))
        rid = len(ret_labels)
        ret_labels.append(("K2_RET_%s" % name, par))
        fill.append(I("s_mov_b32", sRet, rid))
        for qb in range(2):
            fill.append(I("v_add_f32", vL[1 - par][qb], vL[par][qb], vTs[qb]))
        fill += list(tail)
        interleave(e, ms, fill, close=True)
        e.I("s_cbranch_vccnz", "K2_RARE%d" % par)
        e.label("K2_RET_%s" % name)
        e.I("s_add_u32", sKv, sKv, kvinc)
        for x in EXP:
            if x.startswith("pad"):
                for _ in range(int(x[3:])):
                    e.I("s_nop", 15)

    def dma_group(kind, vdelta=16384):
        srd = s(S_K if kind == "K" else S_V, 4)
        sg = sKg if kind == "K" else sVg
        out = []
        if kind == "K":
            out.append(I("s_mov_b32", M0, sRot))
        else:
            out.append(I("s_sub_u32", sSt, sRot, vdelta))
            out.append(I("s_and_b32", sSt, sSt, 0xffff))
            out.append(I("s_add_u32", M0, sSt, 65536))
        for i in range(4):
            x = I("buffer_load_dwordx4", vl16, srd, sg, mods="offen offset:%d%s lds" % (1024 * i, KVS))
            x.cost = 16
            out.append(x)
        out.append(I("s_add_u32", sg, sg, 16384))
        return out

    def top():
        e.I("s_waitcnt", "vmcnt(16) lgkmcnt(0)")
        e.lgkm = []
        e.vm = []
        if "nobar" not in EXP:
            e.I("s_barrier")

    ROT = [I("s_add_u32", sRot, sRot, 16384), I("s_and_b32", sRot, sRot, 0xffff)]

    def iter1(name, maskB, first=False, last=False):
        top()
        step(0, name + "a", True, (False, maskB), not first,
             merge([] if last else k_reads(0, vKr, 0), v_reads(0, vVr, 0)), dma_group("K"), 32)
        tail = [I("v_add_u32", vVr, 65536, vKr), I("v_add_u32", vKr, 16384, vKr), I("v_and_b32", vKr, 0xffff, vKr),
                I("s_sub_u32", sCnt, sCnt, 1)] + ROT
        if last:
            rq = [I("ds_read_b128", qfrag(1, si), vQx, mods="offset:%d" % (si * 1024)) for si in range(8)]
            rds = [I("v_add_u32", vKx, sPw, vKr)] + merge(k_reads(1, vKx, 0), v_reads(1, vVr, 8192)) + rq
        else:
            rds = merge(k_reads(1, vKr, 8192), v_reads(1, vVr, 8192))
        step(1, name + "b", not last, (False, maskB), True, rds, dma_group("V"), 32,
             pv_first=(0, 1) if first else (), tail=tail, late_rd=False)

    def step2(par, name, masked, qk=True, pv=True, pv_first=(), extra=()):
        top()
        tail = [I("v_add_u32", vKr, 16384, vKr), I("v_and_b32", vKr, 0xffff, vKr),
                I("v_add_u32", vVr, 16384, vVr), I("v_and_b32", vVr, 0xffff, vVr), I("v_or_b32", vVr, 0x10000, vVr)] + ROT
        step(par, name, qk, (masked, masked), pv, merge(k_reads(par, vKr, 0), v_reads(par, vVr, 0)),
             dma_group("K") + dma_group("V", 32768), 64, pv_first=pv_first, extra=extra, tail=tail, late_rd=False)

    def loop(name, body):
        e.I("s_cmp_eq_u32", sCnt, 0)
        e.I("s_cbranch_scc1", "K2_%s_X" % name)
        e.label("K2_%s_L" % name)
        body()
        e.I("s_cmp_lg_u32", sCnt, 0)
        e.I("s_cbranch_scc1", "K2_%s_L" % name)
        e.label("K2_%s_X" % name)

    def ctx_store(qb_o, scale_regs, sbase, src2=None):
        out = []
        n = 0
        for b in range(4):
            for t in range(2):
                T = [RT[(n % 3) * 8 + 8 + r] for r in range(8)]
                Tq = v(RT[(n % 3) * 8 + 8].i, 4)
                n += 1
                for r in range(8):
                    out.append(I("v_accvgpr_read_b32", T[r], O(qb_o, b)[8 * t + r]))
                for r in range(8):
                    out.append(I("v_mul_f32", T[r], T[r], scale_regs[0]))
                if src2 is not None:
                    for r in range(8):
                        out.append(I("v_fmac_f32", T[r], src2[b * 16 + 8 * t + r], scale_regs[1]))
                for q in range(4):
                    out.append(I("v_cvt_pk_bf16_f32", T[q], T[2 * q], T[2 * q + 1]))
                off = (2 * b + t) * 1024
                if off % 4096 == 0:
                    out.append(I("s_add_u32", sTmp, sbase, off))
                out.append(I("buffer_store_dwordx4", Tq, vl16, s(S_WS, 4), sTmp, mods="offen offset:%d" % (off & 4095),
                             tag="ctx"))
        return out

    iter1("V0", True, first=True)
    if gen.FUSE3:
        e.I("s_lshl_b32", sT0, sj, 7)
        e.I("s_add_u32", sT1, sT0, WS_F + 16 * 128)
        e.I("s_sub_u32", sT0, WS_F + 31 * 128, sT0)
        e.I("s_waitcnt", "vmcnt(8)")
        e.I("s_barrier")
        signal(e, sw, sT0, "ha", RT[3], srd=S_WS)
        signal(e, sw, sT1, "hb", RT[3], srd=S_WS)
    e.I("s_lshl_b32", sCnt, sj, 1)
    e.I("s_sub_u32", sCnt, sCnt, 1)
    e.I("s_max_i32", sCnt, sCnt, 0)
    loop("V1", lambda: iter1("V1", False))
    e.I("s_min_u32", sCnt, sj, 1)
    loop("V2", lambda: iter1("V2", True))
    iter1("V2L", True, last=True)
    stamp(e, 7)
    top()

    e.I("v_add_u32", vNx, 49152, vVr)
    e.I("v_and_b32", vNx, 0xc000, vNx)
    e.I("v_lshlrev_b32", t0, 2, vl)
    e.I("v_add_u32", vNx, vNx, t0)
    e.I("s_lshl_b32", sT0, sw, 8)
    e.I("s_add_u32", sT0, sT0, 65536)
    e.I("v_add_u32", vNx, sT0, vNx)
    e.I("ds_write_b32", vNx, NM(0)[0])
    e.I("v_xor_b32", vNx, 256, vNx)
    e.I("v_mov_b32", RT[0], vL[0][1])
    e.I("v_mov_b32", RT[1], vL[0][1])
    e.I("v_mov_b32", vL[1][0], vL[0][0])
    e.I("v_permlane32_swap_b32", RT[0], RT[1])
    e.I("v_mov_b32", vL[1][1], 0)
    e.I("v_add_f32", RT[0], RT[0], RT[1])
    e.I("v_rcp_f32", vInvB, RT[0])
    e.I("v_add_u32", vKr, sPw, vKr)
    e.I("v_add_u32", vVr, sPw, vVr)
    e.I("s_lshr_b32", sT0, sPw, 8)
    e.I("s_add_u32", sKv, sKv, sT0)
    e.I("s_lshl_b32", sT0, sT0, 1)
    e.I("v_add_u32", vDq[1], 32, vDq[0])
    e.I("v_subrev_u32", vDq[1], sT0, vDq[1])
    pvm = pv_mfmas(0)
    pvB = [m for m in pvm if m.ops[0].i >= 64]
    pvA = [m for m in pvm if m.ops[0].i < 64]
    interleave(e, pvB, k_reads(0, vKr, 0) + dma_group("K"))
    e.wait_lgkm0()
    e.I("s_barrier")
    e.I("ds_read_b32", RT[2], vNx)
    interleave(e, pvA[:4], ROT + [I("v_add_u32", vKr, 16384, vKr), I("v_and_b32", vKr, 0xffff, vKr)])
    interleave(e, pvA[4:], [I("v_mov_b32", NM(1)[r], RT[2]) for r in range(16)])
    bepi = ctx_store(1, [vInvB], sCo[1])
    nb1 = len(bepi) // 2
    qkm = qk_mfmas(0)
    interleave(e, [m for m in qkm if m.ops[0].i == S(1, 0).i] + [m for m in qkm if m.ops[0].i == S(1, 1).i], bepi[:nb1])
    step2(1, "P0", True, pv=False, extra=bepi[nb1:])
    step2(0, "P1", True, pv_first=(1,))
    e.I("s_cmp_eq_u32", sj, 7)
    e.I("s_cbranch_scc1", "K2_DRAIN")
    e.I("s_lshl_b32", sCnt, sj, 1)
    e.I("s_sub_u32", sCnt, 13, sCnt)

    def p2():
        step2(1, "P2a", False)
        step2(0, "P2b", False, extra=[I("s_sub_u32", sCnt, sCnt, 1)])
    loop("P2", p2)
    step2(1, "P3", True)
    step2(0, "P4", True, qk=False)
    e.label("K2_DRAIN")
    e.I("s_waitcnt", "lgkmcnt(0)")
    e.lgkm = []
    for m in pv_mfmas(1):
        e.emit(m)
    stamp(e, 8)
    MS = 17408
    e.I("s_mul_i32", sT0, sw, MS)
    e.I("v_add_u32", vQx, sT0, vl16)
    e.I("v_lshlrev_b32", t0, 2, vl)
    e.I("v_add_u32", vNx, sT0, t0)
    e.I("s_waitcnt", "vmcnt(0)")
    e.I("s_barrier")
    e.I("ds_write_b32", vNx, NM(1)[0], mods="offset:16384")
    e.I("ds_write_b32", vNx, vL[1][1], mods="offset:16640")
    for b in range(4):
        for i in range(4):
            e.I("ds_write_b128", vQx, O(1, b).sub(4 * i, 4), mods="offset:%d" % ((b * 4 + i) * 1024))
    e.I("s_xor_b32", sT1, sw, 1)
    e.I("s_mul_i32", sT0, sT1, MS)
    e.I("v_add_u32", vQx, sT0, vl16)
    e.I("v_add_u32", vNx, sT0, t0)
    e.wait_lgkm0()
    e.I("s_barrier")
    nm2, l2, nm, f1, f2, lt, tq = RT[0], RT[1], RT[2], RT[3], RT[4], RT[5], RT[6]
    e.I("ds_read_b32", nm2, vNx, mods="offset:16384")
    e.I("ds_read_b32", l2, vNx, mods="offset:16640")
    O2 = SET[0]
    for i in range(16):
        e.I("ds_read_b128", O2.sub(4 * i, 4), vQx, mods="offset:%d" % (i * 1024))
    e.I("v_min_f32", nm, NM(0)[0], nm2)
    e.I("v_sub_f32", f1, nm, NM(0)[0])
    e.I("v_sub_f32", f2, nm, nm2)
    e.I("v_exp_f32", f1, f1)
    e.I("v_exp_f32", f2, f2)
    e.I("v_mul_f32", lt, vL[1][0], f1)
    e.I("v_fmac_f32", lt, l2, f2)
    e.I("v_mov_b32", tq, lt)
    e.I("v_permlane32_swap_b32", lt, tq)
    e.I("v_add_f32", lt, lt, tq)
    e.I("v_rcp_f32", lt, lt)
    e.I("v_mul_f32", f1, f1, lt)
    e.I("v_mul_f32", f2, f2, lt)
    emit_all(e, ctx_store(0, [f1, f2], sCo[0], src2=O2))
    stamp(e, 9)
    if gen.FUSE3:
        import gen_k3
        gen_k3.gen_k3(e)
    else:
        stamp_flush(e, 0, s(S_WS, 4), sw, 10)
        e.I("s_endpgm")

    for par in range(2):
        e.label("K2_RARE%d" % par)
        e.vm, e.lgkm = [], []
        e.I("s_nop", 15)
        e.I("s_nop", 7)
        for qb in range(2):
            Sx, Sn, Px = S(par, qb), S(1 - par, qb), P(par, qb)
            dq, dl, f, tmp = RT[0], RT[1], RT[2], RT[3]
            e.I("v_subrev_u32", dq, sKv, vDq[qb])
            mask_S_inplace(e, Sx, dq)
            rowmax(e, Sx, dl, tmp)
            e.I("v_max_f32", dl, 0, dl)
            e.I("v_sub_f32", f, 0, dl)
            e.I("v_exp_f32", f, f)
            for r in range(16):
                e.I("v_sub_f32", Sx[r], Sx[r], dl)
            e.I("v_mul_f32", vL[1 - par][qb], vL[par][qb], f)
            for r in range(16):
                e.I("v_exp_f32", RT[8 + r], Sx[r])
            for r in range(16):
                e.I("v_sub_f32", Sn[r], Sn[r], dl)
            for r in range(16):
                e.I("v_add_f32", vL[1 - par][qb], vL[1 - par][qb], RT[8 + r])
            for k in range(8):
                e.I("v_cvt_pk_bf16_f32", Px[k], RT[8 + 2 * k], RT[9 + 2 * k])
            for r in range(16):
                e.I("v_sub_f32", NM(qb)[r], NM(qb)[r], dl)
            for b in range(4):
                for r0 in range(0, 16, 8):
                    for r in range(8):
                        e.I("v_accvgpr_read_b32", RT[8 + r], O(qb, b)[r0 + r])
                    for r in range(8):
                        e.I("v_mul_f32", RT[8 + r], RT[8 + r], f)
                    for r in range(8):
                        e.I("v_accvgpr_write_b32", O(qb, b)[r0 + r], RT[8 + r])
        e.I("s_nop", 3)
        mine = [(i, l) for i, (l, pp) in enumerate(ret_labels) if pp == par]
        for i, l in mine[:-1]:
            e.I("s_cmp_eq_u32", sRet, i)
            e.I("s_cbranch_scc1", l)
        e.I("s_branch", mine[-1][1])
    e.label(END)
    e.I("s_endpgm")
    return e.text(), dict(vgpr=512, sgpr=102, accum=256, grid=256, block=256, lds=163840)
```

```python
import sys
sys.path.insert(0, "dev")
from asmlib import *
import gen
from gen import *

LOG2E = 1.4426950408889634
WS_P = 0x4000000
HP = 7
LEAD = 12
NS0 = 15
AD = 20
NSL = 6
POLL_AT = 2


D_CTX, D_PAIR, D_H = 33, 49, 53


def gen_k3(e=None):
    fused = e is not None
    END = "K3_END"
    if not fused:
        e = Emitter()
        gen.STAMP_MAP = None
        prologue(e, 256, END)
    else:
        gen.STAMP_MAP = {10: 5, 11: 6, 12: 7, 2: 8, 3: 9} if "k3st" in gen.GEXP else {}
        stamp(e, 10)
    AS = " sc1" if (fused and gen.LD_SC1) else ""
    S_WS, S_WO, S_WD, S_X, S_OUT, S_DBG = 32, 36, 40, 44, 48, (gen.S_DBG if fused else 52)
    S_FL = S_WS if fused else S_DBG
    sCA, sCB, sCT, sCH = s(72), s(73), s(74), s(75)
    if fused:
        e.I("s_lshl_b32", sCB, s(58), 7)
        e.I("s_sub_u32", sCA, WS_F + 15 * 128, sCB)
        e.I("s_add_u32", sCB, sCB, WS_F)
        e.wait_lgkm0()
        e.I("s_barrier")
    sw, ssp, str_, stc = s(56), s(57), s(58), s(59)
    sA, sWo, sWd, sM0, sT0, sT1, sTa, sTw = s(60), s(61), s(62), s(63), s(64), s(65), s(66), s(67)
    sX, sP, sSpin, sFl = s(68), s(69), s(70), s(71)
    vl, vl16 = v(1), v(2)
    t0, t1, t2 = v(3), v(4), v(5)
    vtr = [v(6), v(7)]
    vtr2 = [v(12), v(13)]
    vW = [v(8 + i) for i in range(4)]
    vX, vFo, vOne, vPoll = v(14), v(15), v(16), v(17)
    WP = v(20, 16)
    XR = v(36, 16)
    ACC = [v(64, 32), v(96, 32)]
    PS = v(128, 32)
    PD = v(160, 32)
    AR = a(0, 4 * AD)
    if not fused:
        code_prefetch(e, "k3", "k3_kernel", "TEXT_END", s(100, 2), t0, v(52, 4), 1)
    e.I("v_and_b32", vl, 63, v(0))
    e.I("v_lshrrev_b32", t0, 6, v(0))
    e.I("v_lshlrev_b32", vl16, 4, vl)
    e.I("v_readfirstlane_b32", sw, t0)
    e.I("s_and_b32", ssp, s(2), 1)
    e.I("s_bfe_u32", sT0, s(2), (2 << 16) | 1)
    e.I("s_lshl_b32", sT0, sT0, 2)
    e.I("s_bfe_u32", sT1, s(2), (2 << 16) | 3)
    e.I("s_add_u32", str_, sT0, sT1)
    e.I("s_lshr_b32", stc, s(2), 5)
    wdma_voff(e, vW, vl, (t0, t1), 1024)
    e.I("s_lshl_b32", sT0, str_, 2)
    e.I("s_add_u32", sT0, sT0, sw)
    e.I("s_mul_i32", sA, sT0, 368 * 1024)
    e.I("s_add_u32", sA, sA, WS_A3)
    e.I("s_lshl_b32", sT0, sw, 15)
    e.I("s_lshl_b32", sT1, stc, 7)
    e.I("s_add_u32", sWo, sT0, sT1)
    e.I("s_lshl_b32", sM0, sw, 12)
    if not fused:
        e.I("s_waitcnt", "lgkmcnt(0)")
    e.I("s_lshl_b32", sCT, str_, 7)
    e.I("s_add_u32", sCT, sCT, WS_F)
    e.I("s_add_u32", sCH, sCT, 16 * 128)
    make_srd(e, S_WS, P_WS, WS_BYTES)
    if fused:
        poll_issue(e, v(18), sCH, srd=S_WS)
    make_srd(e, S_WO, P_WO, 4096 * 1024)
    make_srd(e, S_WD, P_WD, 1792 * 1024)
    stamp(e, 0)

    def setup2():
        tr_addr(e, vtr[0], vtr[1], vl, (t0, t1, t2), 0, True)
        e.I("v_add_u32", vtr2[0], 65536, vtr[0])
        e.I("v_add_u32", vtr2[1], 65536, vtr[1])
        make_srd(e, S_X, P_X, 2048 * 1024)
        make_srd(e, S_OUT, P_OUT, 2048 * 1024)
        if not fused:
            make_srd(e, S_DBG, P_DBG, 256)
        e.I("s_lshl_b32", sT0, str_, 3)
        e.I("s_add_u32", sT0, sT0, stc)
        e.I("s_lshl_b32", sP, sT0, 2)
        e.I("s_add_u32", sP, sP, sw)
        e.I("s_lshl_b32", sP, sP, 13)
        e.I("s_add_u32", sP, sP, WS_P)
        if fused:
            e.I("s_lshl_b32", sT1, sT0, 7)
            e.I("s_add_u32", sT1, sT1, WS_F + 32 * 128)
            e.I("s_mov_b32", sFl, 0)
        else:
            e.I("s_lshr_b32", sT1, sT0, 5)
            e.I("s_lshl_b32", sT1, sT1, 2)
            e.I("s_and_b32", sFl, sT0, 31)
        e.I("v_mov_b32", vFo, sT1)
        e.I("s_lshl_b32", sT0, 1, sFl)
        e.I("v_mov_b32", vOne, sT0)
        e.I("s_lshl_b32", sX, str_, 2)
        e.I("s_add_u32", sX, sX, sw)
        e.I("s_lshl_b32", sX, sX, 15)
        e.I("s_lshl_b32", sT0, stc, 7)
        e.I("s_add_u32", sX, sX, sT0)
        e.I("v_and_b32", t0, 31, vl)
        e.I("v_lshlrev_b32", t0, 10, t0)
        e.I("v_lshrrev_b32", t1, 5, vl)
        e.I("v_lshlrev_b32", t1, 3, t1)
        e.I("v_add_u32", vX, t0, t1)
        if gen.PF_TLB:
            e.I("v_lshlrev_b32", t0, 20, vl)
            Untracked(I("buffer_load_dword", v(52), t0, s(S_OUT, 4), 0, mods="offen"))(e)

    def program(split):
        assert fused
        stages = (list(range(32, 32 + HP)) + list(range(NS0)) if split == 0
                  else list(range(32 + HP, 46)) + list(range(NS0, 32)))
        nH = HP if split == 0 else 14 - HP
        ns = len(stages)
        nk = ns * 8
        tchk = nH * 8 - LEAD
        PD_AT = nH + 4

        def afrag(t):
            return AR.sub((t % AD) * 4, 4)

        def wfrag(t, mb):
            return WP.sub(((t & 1) * 2 + mb) * 4, 4)

        def a_load(t):
            out = []
            if t % 4 == 0:
                out.append(I("s_add_u32", sTa, sA, (stages[t // 8] * 8 + t % 8) * 1024))
            out.append(I("buffer_load_dwordx4", afrag(t), vl16, s(S_WS, 4), sTa,
                         mods="offen offset:%d%s" % (1024 * (t % 4), AS)))
            return out

        def w_dma(i):
            g = stages[i]
            srd, row = (S_WO, g * 128) if g < 32 else (S_WD, (g - 32) * 128)
            out = [[I("s_add_u32", M0, sM0, (i % NSL) * 16384), I("s_add_u32", sTw, sWo, row * 1024)]]
            for q in range(4):
                x = I("buffer_load_dwordx4", vW[q], s(srd, 4), sTw, mods="offen offset:%d lds" % (1024 * q), tag=("W", i))
                if q == 0:
                    out[0].append(x)
                else:
                    out.append([x])
            return out

        def reads(t):
            i, sl = t // 8, t % 8
            off = (i % NSL) * 16384 + 16 * sl * 128
            at = vtr if off < 65536 else vtr2
            if at is vtr2:
                off -= 65536
            return [I("ds_read_b64_tr_b16", wfrag(t, mb).sub(2 * p, 2), at[mb], mods="offset:%d" % (off + p * 1024))
                    for mb in range(2) for p in range(2)]

        def mf(t):
            g = stages[t // 8]
            acc = ACC[0 if g < 32 else 1]
            first = t == 0 or t == nH * 8
            return [I(MFMA, acc.sub(mb * 16, 16), wfrag(t, mb), afrag(t), 0 if first else acc.sub(mb * 16, 16))
                    for mb in range(2)]

        dfill = d_side() if split == 1 else []
        dstart = [10 ** 9]
        for x in w_dma(0) + w_dma(1):
            emit_all(e, x)
        setup2()
        poll_check(e, v(18), sCH, 32, "h%d" % split, sT0, sSpin, sleep=16, srd=S_WS)
        stamp(e, 12)
        for t in range(AD):
            emit_all(e, a_load(t))
        na = AD
        wq = []
        for i in range(2, NSL - 1):
            wq += w_dma(i)
        e.wait_vm_tag(lambda tg: tg == ("W", 0))
        e.I("s_barrier")
        sig2(split)
        emit_all(e, reads(0))
        nxt = NSL - 1
        wq += w_dma(nxt)
        nxt += 1
        for t in range(nk):
            i, sl = t // 8, t % 8
            if sl == 7 and t + 1 < nk:
                e.wait_lgkm0()
                while any(x[-1].tag == ("W", i + 1) for x in wq):
                    emit_all(e, wq.pop(0))
                e.wait_vm_tag(lambda tg: tg == ("W", i + 1))
                if split == 0 and i == nH + 1:
                    assert not any(x[-1].tag == "pd" for x in wq)
                    e.wait_vm_tag(lambda tg: tg == "pd")
                if split == 1 and i in (PD_AT - 1, ns - 2 - POLL_AT):
                    e.I("buffer_load_dword", vPoll, vFo, s(S_FL, 4), 0,
                        mods="offen offset:%d sc1" % (4 if i == PD_AT - 1 else 0))
                if split == 1 and i == PD_AT:
                    poll(4)
                if split == 1 and i == ns - 1 - POLL_AT:
                    poll(0)
                e.I("s_barrier")
                if split == 0 and i == nH + 1:
                    flag(4, "d")
                if nxt < ns:
                    wq += w_dma(nxt)
                    nxt += 1
                if split == 1 and i == PD_AT:
                    wq = part_loads(PD, 4 << 20) + wq
                    dstart[0] = t + 14
                if split == 1 and i == ns - 1 - POLL_AT:
                    wq += part_loads(PS, 0) + x_loads()
            if t == tchk - 8:
                poll_issue(e, v(18), sCT, srd=S_WS)
            if t == tchk:
                poll_check(e, v(18), sCT, 32, "cc%d" % split, sT0, sSpin, sleep=16, srd=S_WS)
            if split == 0 and t == nH * 8 + 2:
                wq = part_stores(ACC[1], 4 << 20, "pd") + wq
            ms = mf(t)
            rd = reads(t + 1) if t + 1 < nk else []
            e.emit(ms[0])
            emit_all(e, rd[:2])
            if t >= dstart[0] and dfill:
                for _ in range(5):
                    if dfill:
                        e.emit(dfill.pop(0))
            if wq and (t % 2 == 0 or len(wq) > 6):
                emit_all(e, wq.pop(0))
            e.emit(ms[1])
            emit_all(e, rd[2:])
            nl = 0
            while na < nk and na <= t + AD and nl < 2 and (na < nH * 8 or t >= tchk):
                emit_all(e, a_load(na))
                na += 1
                nl += 1
            if nl == 0 and wq:
                emit_all(e, wq.pop(0))
            assert na > t + 1 or na == nk
        while wq:
            emit_all(e, wq.pop(0))
        emit_all(e, dfill)

    def part_stores(acc, off, tag):
        out = []
        for n in range(8):
            ins = []
            if n % 4 == 0:
                ins.append(I("s_add_u32", sT1, sP, off + n * 1024))
            ins.append(I("buffer_store_dwordx4", acc.sub(4 * n, 4), vl16, s(S_WS, 4), sT1,
                         mods="offen offset:%d sc1" % ((n % 4) * 1024), tag=tag))
            out.append(ins)
        return out

    def part_loads(dst, off):
        out = []
        for n in range(8):
            ins = []
            if n % 4 == 0:
                ins.append(I("s_add_u32", sT1, sP, off + n * 1024))
            ins.append(I("buffer_load_dwordx4", dst.sub(4 * n, 4), vl16, s(S_WS, 4), sT1,
                         mods="offen offset:%d sc1" % ((n % 4) * 1024)))
            out.append(ins)
        return out

    def x_loads():
        return [[I("buffer_load_dwordx2", XR.sub(2 * n, 2), vX, s(S_X, 4), sX,
                   mods="offen offset:%d" % ((n >> 2) * 64 + (n & 3) * 16))] for n in range(8)]

    def flag(off, name):
        e.I("s_cmp_lg_u32", sw, 0)
        e.I("s_cbranch_scc1", "K3_FL" + name)
        e.I("s_mov_b64", EXEC, 1)
        e.raw(I("buffer_atomic_or", vOne, vFo, s(S_FL, 4), 0, mods="offen offset:%d" % off))
        e.I("s_mov_b64", EXEC, -1)
        e.label("K3_FL" + name)

    def sig2(split):
        e.I("s_cmp_lg_u32", sw, 0)
        e.I("s_cbranch_scc1", "K3_SG%d" % split)
        e.I("s_mov_b64", EXEC, 1)
        e.I("v_mov_b32", v(19), 1)
        e.raw(I("buffer_atomic_add", v(19), "off", s(S_WS, 4), sCA))
        e.raw(I("buffer_atomic_add", v(19), "off", s(S_WS, 4), sCB))
        e.I("s_mov_b64", EXEC, -1)
        e.label("K3_SG%d" % split)

    PK = [v(52), v(53)]

    def rnd(out, vals):
        for k in range(2):
            out.append(I("v_cvt_pk_bf16_f32", PK[k], vals[2 * k], vals[2 * k + 1]))
        for k in range(2):
            out.append(I("v_lshlrev_b32", vals[2 * k], 16, PK[k]))
            out.append(I("v_and_b32", vals[2 * k + 1], 0xffff0000, PK[k]))

    def d_side():
        out = []
        for n in range(8):
            DD = [ACC[1][4 * n + i] for i in range(4)]
            G_ = [v(56 + i) for i in range(4)]
            for i in range(4):
                out.append(I("v_add_f32", DD[i], DD[i], PD[4 * n + i]))
            rnd(out, DD)
            for i in range(4):
                out.append(I("v_mul_f32", G_[i], -LOG2E, DD[i]))
            for i in range(4):
                out.append(I("v_exp_f32", G_[i], G_[i]))
            for i in range(4):
                out.append(I("v_add_f32", G_[i], 1.0, G_[i]))
            for i in range(4):
                out.append(I("v_rcp_f32", G_[i], G_[i]))
            for i in range(4):
                out.append(I("v_mul_f32", DD[i], G_[i], DD[i]))
            rnd(out, DD)
        return out

    def poll(off):
        e.I("v_readfirstlane_b32", sT0, vPoll)
        e.I("s_cmp_lg_u32", sT0, 0)
        e.I("s_cbranch_scc1", "K3_POLLX%d" % off)
        e.I("s_mov_b32", sSpin, 1 << 16)
        e.label("K3_POLL%d" % off)
        e.raw(I("buffer_load_dword", vPoll, vFo, s(S_FL, 4), 0, mods="offen offset:%d sc1" % off))
        e.raw(I("s_waitcnt", "vmcnt(0)"))
        e.I("v_readfirstlane_b32", sT0, vPoll)
        e.I("s_sub_u32", sSpin, sSpin, 1)
        e.I("s_cmp_eq_u32", sSpin, 0)
        e.I("s_cbranch_scc1", "K3_POLLX%d" % off)
        e.I("s_cmp_lg_u32", sT0, 0)
        e.I("s_cbranch_scc1", "K3_POLLX%d" % off)
        e.I("s_sleep", 8)
        e.I("s_branch", "K3_POLL%d" % off)
        e.label("K3_POLLX%d" % off)

    e.I("s_cmp_eq_u32", ssp, 1)
    e.I("s_cbranch_scc1", "K3_CONS")
    st0 = e.state()
    program(0)
    stamp(e, 2)
    for n in range(8):
        if n % 4 == 0:
            e.I("s_add_u32", sT1, sP, n * 1024)
        e.I("buffer_store_dwordx4", ACC[0].sub(4 * n, 4), vl16, s(S_WS, 4), sT1,
            mods="offen offset:%d sc1" % ((n % 4) * 1024), tag="final")
    e.wait_all()
    e.I("s_barrier")
    e.I("s_cmp_lg_u32", sw, 0)
    e.I("s_cbranch_scc1", "K3_PE")
    e.I("s_mov_b64", EXEC, 1)
    e.I("buffer_atomic_or", vOne, vFo, s(S_FL, 4), 0, mods="offen")
    e.I("s_mov_b64", EXEC, -1)
    e.label("K3_PE")
    stamp(e, 3)
    if fused:
        stamp_flush(e, 0, s(S_WS, 4), sw, 10)
    e.I("s_endpgm")
    e.label("K3_CONS")
    e.set_state(st0)
    program(1)
    stamp(e, 2)
    for n in range(8):
        SS = [ACC[0][4 * n + i] for i in range(4)]
        G_ = [ACC[1][4 * n + i] for i in range(4)]
        XX = [v(60 + i) for i in range(4)]
        o = []
        for i in range(4):
            o.append(I("v_add_f32", SS[i], SS[i], PS[4 * n + i]))
        rnd(o, SS)
        for i in range(4):
            o.append(I("v_mul_f32", SS[i], SS[i], G_[i]))
        rnd(o, SS)
        for k in range(2):
            o.append(I("v_lshlrev_b32", XX[2 * k], 16, XR[2 * n + k]))
            o.append(I("v_and_b32", XX[2 * k + 1], 0xffff0000, XR[2 * n + k]))
        for i in range(4):
            o.append(I("v_add_f32", SS[i], SS[i], XX[i]))
        OR = PS.sub(4 * n, 2)
        for k in range(2):
            o.append(I("v_cvt_pk_bf16_f32", OR[k], SS[2 * k], SS[2 * k + 1]))
        o.append(I("buffer_store_dwordx2", OR, vX, s(S_OUT, 4), sX,
                   mods="offen offset:%d" % ((n >> 2) * 64 + (n & 3) * 16), tag="final"))
        emit_all(e, o)
    stamp(e, 3)
    if fused:
        stamp_flush(e, 0, s(S_WS, 4), sw, 10)
        e.I("s_endpgm")
        return
    stamp_flush(e, 1 if gen.FUSE else 2, s(S_WS, 4), sw, 4)
    e.label(END)
    e.I("s_endpgm")
    return e.text(), dict(vgpr=160 + 4 * AD, sgpr=102, accum=160, grid=256, block=256, lds=NSL * 16384)


gen_k4 = None
```

```python
import sys
sys.path.insert(0, "dev")
from asmlib import *
import gen
from gen import *

LOG2E = 1.4426950408889634
QSCALE = LOG2E / (128 ** 0.5)
GC1 = -2.0 * (2.0 / math.pi) ** 0.5 * LOG2E
GC2 = GC1 * 0.044715
THRESH = float(2 ** 24)
CR = [(r & 3) + 8 * (r >> 2) for r in range(16)]
EXP = set()


def gen_ka():
    e = Emitter()
    fused = True
    END = "K2_END"
    KVS = " sc1"
    gen.STAMP_MAP = None
    prologue(e, 256, END)
    S_WS, S_A, S_B, S_C, S_K, S_V = 32, 36, 40, 44, 48, 52
    sw, sh, sj = s(56), s(57), s(58)
    sM0, sTmp, sSt = s(59), s(60), s(61)
    sXA, sXB = s(62), s(63)
    sWgu, sWq0, sWq1 = s(64), s(65), s(66)
    sHo = [s(67), s(68)]
    sCo = [s(69), s(70)]
    sKg, sVg, sRot = s(71), s(72), s(73)
    sCnt, sKv, sRet, sBact, sThr = s(74), s(75), s(76), s(77), s(78)
    sT0, sT1 = s(79), s(80)
    sQA, sQB, sHc = s(81), s(30), s(31)
    MASKS = [s(40, 2), s(42, 2), s(44, 2), s(46, 2)]
    sXrow = [s(71 + i) for i in range(8)]
    sXlds, sWb = s(67), s(68)
    sWb2, sWb3 = s(69), s(70)
    sKo, sVo = s(100), s(101)
    sLN0, sLN1 = s(64), s(65)
    vl, vl16 = v(1), v(2)
    t0, t1, t2 = v(3), v(4), v(5)
    vtr = [v(6), v(7)]
    vWg = [v(8 + i) for i in range(4)]
    vWq = [v(12 + i) for i in range(4)]
    vC2 = v(16)
    GT = [v(17 + i) for i in range(8)]
    vXd = [v(17), v(18)]
    vXr = [v(19 + i) for i in range(4)]
    vLNa, vLNs = v(23), v(24)
    vPl, vOne, vPk = v(25), v(26), v(27)
    PFD = v(28, 4)
    X_, Y_, Z_ = v(64, 64), v(128, 64), v(192, 64)
    SET = [Y_, Z_, X_]
    pool = v(32, 32)
    WR = 98304
    XS_W = 24576

    code_prefetch(e, "ka", "ka_kernel", "TEXT_END", s(30, 2), t0, PFD, 1)
    e.I("v_and_b32", vl, 63, v(0))
    e.I("v_lshrrev_b32", t0, 6, v(0))
    e.I("v_lshlrev_b32", vl16, 4, vl)
    e.I("v_readfirstlane_b32", sw, t0)
    head_j(e, sh, sj, sT0, sT1)
    e.I("v_lshrrev_b32", t0, 3, vl)
    e.I("v_lshlrev_b32", t1, 10, t0)
    e.I("v_lshrrev_b32", t0, 1, t0)
    e.I("v_xor_b32", t0, t0, vl)
    e.I("v_and_b32", t0, 7, t0)
    e.I("v_lshlrev_b32", t2, 4, t0)
    e.I("v_add_u32", vXd[0], t1, t2)
    e.I("v_xor_b32", t2, 64, t2)
    e.I("v_add_u32", vXd[1], t1, t2)
    e.I("s_lshl_b32", sT0, sj, 18)
    e.I("s_lshl_b32", sT1, sw, 16)
    e.I("s_add_u32", sT0, sT0, sT1)
    for i in range(8):
        e.I("s_add_u32", sXrow[i], sT0, i * 8192 - (i & 3) * 1024)
    e.I("s_mul_i32", sXlds, sw, XS_W)
    wdma_voff(e, vWq, vl, (t0, t1), 8192)
    e.I("s_and_b32", sT0, sw, 1)
    e.I("s_lshl_b32", sT0, sT0, 18)
    e.I("s_lshr_b32", sT1, sw, 1)
    e.I("s_lshl_b32", sT1, sT1, 7)
    e.I("s_lshl_b32", s(3), sh, 8)
    e.I("s_add_u32", sWb, s(3), sT0)
    e.I("s_add_u32", sWb, sWb, sT1)
    e.I("s_lshl_b32", sT0, sw, 18)
    e.I("s_add_u32", sWb2, s(3), sT0)
    e.I("s_add_u32", sWb3, sWb2, 128)
    e.I("s_lshl_b32", sM0, sw, 12)
    e.I("s_add_u32", sM0, sM0, WR)
    e.I("s_waitcnt", "lgkmcnt(0)")
    make_srd(e, S_A, P_CKV, 2048 * 1024)
    make_srd(e, S_B, P_WUK, 512 * 8192)
    stamp(e, 0)

    def c_dma(p):
        out = []
        for i in range(8):
            if i % 4 == 0:
                out.append(I("s_add_u32", M0, sXlds, (p % 3) * 8192 + (i >> 2) * 4096))
            out.append(I("buffer_load_dwordx4", vXd[i & 1], s(S_A, 4), sXrow[i],
                         mods="offen offset:%d lds" % (1024 * (i & 3)), tag=("C", p)))
        out.append(I("v_add_u32", vXd[0], 128, vXd[0]))
        out.append(I("v_add_u32", vXd[1], 128, vXd[1]))
        return out

    def c_jobs(p):
        ins = c_dma(p)
        k = ("C", p)
        return [(k, ins[0:2]), (k, [ins[2]]), (k, [ins[3]]), (k, [ins[4]]), (k, ins[5:7]), (k, [ins[7]]), (k, [ins[8]]),
                (k, ins[9:12])]

    def x_piece(p):
        out = []
        k = ("X", p)
        for rb in range(2):
            sb = sXA if rb == 0 else sXB
            for i in range(4):
                ins = []
                if i == 0:
                    ins.append(I("s_add_u32", sT0 if rb == 0 else sT1, sb, p * 4096))
                ins.append(I("buffer_load_dwordx4", a((rb * 32 + 4 * p + i) * 4, 4), vl16, s(S_WS, 4),
                             sT0 if rb == 0 else sT1, mods="offen offset:%d%s" % (1024 * i, " sc1" if gen.LD_SC1 else ""), tag=k))
                out.append((k, ins))
        return out

    def kv_jobs(kind, st):
        k = (kind, st)
        srd = s(S_K if kind == "K" else S_V, 4)
        base = (0 if kind == "K" else 65536) + (st & 3) * 16384
        out = []
        for i in range(4):
            ins = []
            if i == 0:
                ins.append(I("s_lshl_b32", sSt, sw, 12))
                ins.append(I("s_add_u32", M0, sSt, base))
                ins.append(I("s_add_u32", sSt, sSt, st * 16384))
            ins.append(I("buffer_load_dwordx4", vl16, srd, sSt, mods="offen offset:%d sc1 lds" % (1024 * i), tag=k))
            out.append((k, ins))
        return out

    srcK = dict(srd=s(S_B, 4), voff=vWq, s_base=sWb, stage_stride=64 * 8192)
    srcV0 = dict(srd=s(S_C, 4), voff=vWq, s_base=sWb2, stage_stride=128 * 8192)
    srcV1 = dict(srd=s(S_C, 4), voff=vWq, s_base=sWb3, stage_stride=128 * 8192)
    srcGU = dict(srd=s(S_A, 4), voff=vWg, s_base=sWgu, stage_stride=64 * 3584)
    srcQ0 = dict(srd=s(S_B, 4), voff=vWq, s_base=sWq0, stage_stride=128 * 8192)
    srcQ1 = dict(srd=s(S_B, 4), voff=vWq, s_base=sWq1, stage_stride=128 * 8192)
    acc4 = lambda s0, s1: (lambda rb, nb: (s0, s1)[rb].sub(nb * 16, 16))
    acc2 = lambda s0: (lambda rb, nb: s0.sub((rb * 2 + nb) * 16, 16))
    accK, accV0, accV1, accGU = acc4(X_, Y_), acc2(Z_), acc2(X_), acc4(Y_, Z_)

    def store_block(d, sbase, rb, idxs):
        out = []
        for hh in range(2):
            out += cvt_inplace(d, hh)
            off = rb * 8192 + idxs[hh] * 1024
            out.append(I("s_add_u32", s(3), sbase, off & ~4095))
            out.append(I("buffer_store_dwordx4", d.sub(8 * hh, 4), vl16, s(S_WS, 4), s(3),
                         mods="offen offset:%d" % (off & 4095), tag="kv"))
        return out

    def epiK():
        return [x for rb in range(2) for nb in range(4) for x in store_block(accK(rb, nb), sKo, rb, (2 * nb, 2 * nb + 1))]

    def epiV(acc, o):
        return [x for rb in range(2) for nb in range(2) for x in store_block(acc(rb, nb), sVo, rb, (o + nb, o + 4 + nb))]

    def ln_stream():
        Z = Z_
        LN0, LN1 = Z.sub(0, 4), Z.sub(4, 4)
        X = [Z[8 + i] for i in range(16)]
        D = [Z[24 + i] for i in range(16)]
        sm, sw2, mean, var, pk, mb, vb, sd, rc = [Z[40 + i] for i in range(9)]
        ln = []
        A_ = lambda *x, **k: ln.append(I(*x, **k))
        for i in range(4):
            A_("v_lshlrev_b32", X[2 * i], 16, LN0[i])
            A_("v_and_b32", X[2 * i + 1], 0xffff0000, LN0[i])
            A_("v_lshlrev_b32", X[8 + 2 * i], 16, LN1[i])
            A_("v_and_b32", X[8 + 2 * i + 1], 0xffff0000, LN1[i])

        def allreduce32(r):
            for off in (0x041F, 0x081F, 0x101F, 0x201F, 0x401F):
                A_("ds_swizzle_b32", sw2, r, mods="offset:0x%04x" % off)
                A_("v_add_f32", r, r, sw2)
        A_("v_add_f32", sm, X[0], X[1])
        for i in range(2, 16):
            A_("v_add_f32", sm, sm, X[i])
        allreduce32(sm)
        A_("v_mul_f32", mean, 1.0 / 512, sm)
        for i in range(16):
            A_("v_sub_f32", D[i], X[i], mean)
        A_("v_mul_f32", sm, D[0], D[0])
        for i in range(1, 16):
            A_("v_fmac_f32", sm, D[i], D[i])
        allreduce32(sm)
        A_("v_mul_f32", var, 1.0 / 512, sm)
        A_("v_cvt_pk_bf16_f32", pk, mean, var)
        A_("v_lshlrev_b32", mb, 16, pk)
        A_("v_and_b32", vb, 0xffff0000, pk)
        A_("v_add_f32", vb, 1e-5, vb)
        A_("v_cvt_pk_bf16_f32", pk, vb, vb)
        A_("v_lshlrev_b32", vb, 16, pk)
        A_("v_sqrt_f32", vb, vb)
        A_("v_cvt_pk_bf16_f32", pk, vb, vb)
        A_("v_lshlrev_b32", sd, 16, pk)
        A_("v_rcp_f32", rc, sd)
        for i in range(16):
            A_("v_sub_f32", D[i], X[i], mb)
        for i in range(8):
            A_("v_cvt_pk_bf16_f32", pk, D[2 * i], D[2 * i + 1])
            A_("v_lshlrev_b32", D[2 * i], 16, pk)
            A_("v_and_b32", D[2 * i + 1], 0xffff0000, pk)
        for i in range(16):
            A_("v_mul_f32", X[i], D[i], rc)
            A_("v_fma_f32", D[i], Neg(X[i]), sd, D[i])
            A_("v_fmac_f32", X[i], D[i], rc)
        for i in range(4):
            A_("v_cvt_pk_bf16_f32", LN0[i], X[2 * i], X[2 * i + 1])
            A_("v_cvt_pk_bf16_f32", LN1[i], X[8 + 2 * i], X[8 + 2 * i + 1])
        if gen.FUSE3:
            A_("v_mov_b32", Z[50], 0)
            A_("v_mov_b32", Z[51], 0)
            A_("s_lshl_b32", sHc, s(2), 7)
            A_("s_add_u32", sHc, sHc, WS_F)
            A_("buffer_store_dwordx2", Z.sub(50, 2), "off", s(S_WS, 4), sHc, mods="sc1", tag="ln")
        A_("buffer_store_dwordx4", LN0, vLNs, s(S_WS, 4), sLN0, mods="offen", tag="ln")
        A_("buffer_store_dwordx4", LN1, vLNs, s(S_WS, 4), sLN1, mods="offen", tag="ln")
        return ln

    NOP = lambda em: None

    def gu_epi(rb):
        out = []
        for nb in range(2):
            g_, u_ = accGU(rb, nb), accGU(rb, nb + 2)
            for hh in range(2):
                for half4 in range(2):
                    rs = [8 * hh + 4 * half4 + i for i in range(4)]
                    T = GT[0:4]
                    T2 = GT[4:8]
                    for i, r in enumerate(rs):
                        out.append(I("v_mul_f32", T[i], g_[r], g_[r]))
                    for i, r in enumerate(rs):
                        out.append(I("v_fmaak_f32", T[i], T[i], vC2, GC1))
                    for i, r in enumerate(rs):
                        out.append(I("v_mul_f32", T[i], T[i], g_[r]))
                    for i, r in enumerate(rs):
                        out.append(I("v_exp_f32", T[i], T[i]))
                    for i, r in enumerate(rs):
                        out.append(I("v_mul_f32", T2[i], g_[r], u_[r]))
                    for i, r in enumerate(rs):
                        out.append(I("v_add_f32", T[i], 1.0, T[i]))
                    for i, r in enumerate(rs):
                        out.append(I("v_rcp_f32", T[i], T[i]))
                    out.append(I("s_nop", 0))
                    for i, r in enumerate(rs):
                        out.append(I("v_mul_f32", g_[r], T2[i], T[i]))
                out += cvt_inplace(g_, hh)
                off = (2 * nb + hh) * 1024
                out.append(I("buffer_store_dwordx4", g_.sub(8 * hh, 4), vl16, s(S_WS, 4), sHo[rb],
                             mods="offen offset:%d" % off))
        return out

    def qfrag(qb, sidx):
        b, t = sidx >> 1, sidx & 1
        return X_.sub((qb * 2 + (b & 1)) * 16 + 8 * t + (4 if b >= 2 else 0), 4)

    def q_epi(acc, b0):
        out = []
        for rb in range(2):
            for nb in range(2):
                d = acc(rb, nb)
                for r in range(16):
                    out.append(I("v_mul_f32", d[r], QSCALE, d[r]))
                for t in range(2):
                    f = qfrag(rb, 2 * (b0 + nb) + t)
                    for q in range(4):
                        out.append(I("v_cvt_pk_bf16_f32", f[q], d[8 * t + 2 * q], d[8 * t + 2 * q + 1]))
        return out

    class L(list):
        def I(self, op, *ops, **k):
            self.append(I(op, *ops, **k))

    def setup_b():
        o = L()
        o.I("s_lshl_b32", sT0, sj, 2)
        o.I("s_add_u32", sQB, sT0, sw)
        o.I("s_sub_u32", sQA, 60, sT0)
        o.I("s_add_u32", sQA, sQA, sw)
        o.I("s_lshl_b32", sXA, sQA, 15)
        o.I("s_lshl_b32", sXB, sQB, 15)
        if WS_XN:
            o.I("s_add_u32", sXA, sXA, WS_XN)
            o.I("s_add_u32", sXB, sXB, WS_XN)
        wdma_voff(o, vWg, vl, (t0, t1), 3584)
        o.I("s_and_b32", sT0, sw, 1)
        o.I("s_mul_i32", sT0, sT0, 32 * 3584)
        o.I("s_lshl_b32", sT1, sh, 7)
        o.I("s_add_u32", sWgu, sT0, sT1)
        o.I("s_mov_b32", sWq0, sWb2)
        o.I("s_mov_b32", sWq1, sWb3)
        o.I("s_lshl_b32", sHc, sh, 2)
        o.I("s_add_u32", sHc, sHc, 4)
        o.I("s_cmp_lt_u32", sw, 2)
        g = [I("s_cmp_lt_u32", sw, 2), I("s_cselect_b32", s(S_A), s(P_WG), s(P_WU)),
             I("s_cselect_b32", s(S_A + 1), s(P_WG + 1), s(P_WU + 1))]
        o.append(lambda em: emit_all(em, g))
        o.I("s_mov_b32", s(S_A + 2), 512 * 3584)
        make_srd(o, S_B, P_WQ, 512 * 8192)
        o.I("v_mov_b32", vC2, GC2)
        for qb, sq in ((0, sQA), (1, sQB)):
            o.I("s_mul_i32", sT0, sq, 368 * 1024)
            o.I("s_lshl_b32", sT1, sh, 12)
            o.I("s_add_u32", sHo[qb], sT0, sT1)
            o.I("s_add_u32", sHo[qb], sHo[qb], WS_A3 + 256 * 1024)
        return o

    def setup_c():
        o = L()
        for qb in range(2):
            o.I("s_lshl_b32", sSt, sh, 12)
            o.I("s_add_u32", sCo[qb], sHo[qb], sSt)
            o.I("s_sub_u32", sCo[qb], sCo[qb], 256 * 1024)
        for srd, off in ((S_K, WS_K), (S_V, WS_V)):
            g = [I("s_lshl_b32", sSt, sh, 19), I("s_add_u32", sSt, sSt, off), I("s_add_u32", s(srd), s(P_WS), sSt),
                 I("s_addc_u32", s(srd + 1), s(P_WS + 1), 0)]
            o.append(lambda em, g=g: emit_all(em, g))
            o.I("s_lshl_b32", sSt, sj, 15)
            o.I("s_sub_u32", s(srd + 2), 64 * 8192, sSt)
            o.I("s_mov_b32", s(srd + 3), 0x20000)
        o.I("s_lshl_b32", sKg, sw, 12)
        o.I("s_mov_b32", sVg, sKg)
        o.I("s_mov_b32", sThr, THRESH)
        return o

    def touch(srd, bufs):
        g = [I("s_lshl_b32", sCnt, s(2), 2), I("s_add_u32", sCnt, sCnt, sw), I("s_lshl_b32", sCnt, sCnt, 13)]
        p0, n0 = bufs[0]
        g += [I("s_mov_b32", s(srd), s(p0)), I("s_mov_b32", s(srd + 1), s(p0 + 1)), I("s_mov_b32", s(srd + 2), n0),
              I("s_mov_b32", s(srd + 3), 0x20000)]
        for (pp, nn), (_, nprev) in zip(bufs[1:], bufs[:-1]):
            g += [I("s_cmp_ge_u32", sCnt, s(srd + 2)),
                  I("s_cselect_b32", sRet, s(srd + 2), 0),
                  I("s_cselect_b32", s(srd), s(pp), s(srd)), I("s_cselect_b32", s(srd + 1), s(pp + 1), s(srd + 1)),
                  I("s_cselect_b32", s(srd + 2), nn, s(srd + 2)),
                  I("s_sub_u32", sCnt, sCnt, sRet)]
        g += [I("v_lshlrev_b32", t2, 7, vl),
              Untracked(I("buffer_load_dword", PFD[0], t2, s(srd, 4), sCnt, mods="offen"))]
        return [lambda em: emit_all(em, g)]

    def proj(with_gu, tagp):
        ln = ln_stream()
        eV1 = epiV(accV1, 2)
        segs = [Seg(4, "WX", accK, srcK, [NOP] * (len(ln) // 4) + ln + [NOP] * (2 * len(ln))),
                Seg(2, "XW", accV0, srcV0, merge(epiK(), setup_b())),
                Seg(2, "XW", accV1, srcV1, epiV(accV0, 0) + [NOP] * 12)]
        if with_gu:
            aQ0, aQ1 = acc2(X_), acc2(Y_)
            segs += [Seg(4, "WX", accGU, srcGU, eV1 + setup_c() + [NOP] * 70), Seg(2, "WX", aQ0, srcQ0, gu_epi(0)),
                     Seg(2, "WX", aQ1, srcQ1, gu_epi(1) + q_epi(aQ0, 0))]
        else:
            aQ0, aQ1 = acc2(Y_), acc2(Z_)
            segs += [Seg(2, "WX", aQ0, srcQ0, eV1 + setup_c() + [NOP] * 70), Seg(2, "WX", aQ1, srcQ1, q_epi(aQ0, 0))]
        G = Gemm(e, 4, vtr, pool, sM0, sTmp, segs)
        nst = len(G.stages)

        def c_reads(p):
            out = [(lambda em: G.need(("C", p))) if p else (lambda em: em.wait_vm_tag(lambda tg: tg == ("C", p)))]
            for sl in range(4):
                for rb in range(2):
                    out.append(I("ds_read_b128", a((rb * 32 + 4 * p + sl) * 4, 4), vXr[sl],
                                 mods="offset:%d" % ((p % 3) * 8192 + rb * 4096)))
            return out
        emit_all(e, c_dma(0))
        emit_all(e, G.w_dma(0))
        make_srd(e, S_K, P_X, 2048 * 1024)
        make_srd(e, S_C, P_WUV, 512 * 8192)
        make_srd(e, S_WS, P_WS, WS_BYTES)
        make_srd(e, S_DBG, P_DBG, 256)
        e.I("v_lshrrev_b32", t0, 5, v(0))
        e.I("v_lshlrev_b32", t1, 10, t0)
        e.I("v_and_b32", t2, 31, vl)
        e.I("v_lshlrev_b32", vLNa, 4, t2)
        e.I("v_add_u32", vLNa, vLNa, t1)
        e.I("v_lshrrev_b32", t1, 1, t2)
        e.I("v_lshlrev_b32", t1, 10, t1)
        e.I("v_and_b32", t2, 1, t2)
        e.I("v_lshlrev_b32", t2, 9, t2)
        e.I("v_add_u32", t1, t1, t2)
        e.I("v_lshlrev_b32", t0, 4, t0)
        e.I("v_add_u32", vLNs, t1, t0)
        e.I("s_lshl_b32", sT0, s(2), 13)
        e.I("buffer_load_dwordx4", Z_.sub(0, 4), vLNa, s(S_K, 4), sT0, mods="offen")
        e.I("buffer_load_dwordx4", Z_.sub(4, 4), vLNa, s(S_K, 4), sT0, mods="offen offset:512")
        if gen.PF_IN:
            e.I("s_lshr_b32", sT0, s(2), 3)
            e.I("s_lshl_b32", sT0, sT0, 2)
            e.I("s_add_u32", sT0, sT0, sw)
            e.I("v_lshrrev_b32", t0, 3, vl)
            e.I("v_lshlrev_b32", t0, 13, t0)
            e.I("v_and_b32", t1, 7, vl)
            e.I("v_lshlrev_b32", t1, 7, t1)
            e.I("v_add_u32", t0, t0, t1)
            e.I("s_and_b32", sT1, sT0, 63)
            e.I("s_lshl_b32", sT1, sT1, 16)
            e.I("s_and_b32", s(3), s(2), 7)
            e.I("s_lshl_b32", s(3), s(3), 10)
            e.I("s_add_u32", sT1, sT1, s(3))
            e.I("s_cmp_ge_u32", sT0, 64)
            e.I("s_cselect_b32", s(S_V), s(P_WUV), s(P_WUK))
            e.I("s_cselect_b32", s(S_V + 1), s(P_WUV + 1), s(P_WUK + 1))
            e.I("s_mov_b32", s(S_V + 2), 512 * 8192)
            e.I("s_mov_b32", s(S_V + 3), 0x20000)
            e.I("v_lshlrev_b32", t1, 7, vl)
            e.I("s_lshl_b32", sT0, sT0, 14)
            Untracked(I("buffer_load_dword", PFD[1], t1, s(S_A, 4), sT0, mods="offen"))(e)
            e.I("s_add_u32", sT0, sT0, 8192)
            Untracked(I("buffer_load_dword", PFD[2], t1, s(S_A, 4), sT0, mods="offen"))(e)
            Untracked(I("buffer_load_dword", PFD[3], t0, s(S_V, 4), sT1, mods="offen"))(e)
        emit_all(e, c_dma(1))
        emit_all(e, G.w_dma(1))
        emit_all(e, c_dma(2))
        if "own" in EXP:
            e.I("v_lshlrev_b32", t1, 10, vl)
            for p in range(3, 8):
                Untracked(I("buffer_load_dword", PFD[1], t1, s(S_A, 4), sXrow[0], mods="offen offset:%d" % (128 * p)))(e)
        if "ownw" in EXP:
            e.I("v_lshlrev_b32", t1, 13, vl)
            e.I("s_and_b32", sT0, sw, 1)
            e.I("s_mul_i32", sT0, sT0, 3 * 64 * 8192 - 32 * 8192)
            e.I("s_add_u32", sT0, sT0, sWb)
            for p in range(3):
                e.I("s_add_u32", sT1, sT0, (2 + p) * 64 * 8192)
                Untracked(I("buffer_load_dword", PFD[2], t1, s(S_B, 4), sT1, mods="offen"))(e)
        e.I("s_lshr_b32", sLN0, s(2), 2)
        e.I("s_lshl_b32", sLN0, sLN0, 15)
        e.I("s_and_b32", sLN1, s(2), 3)
        e.I("s_lshl_b32", sLN1, sLN1, 7)
        e.I("s_add_u32", sLN0, sLN0, sLN1)
        if WS_XN:
            e.I("s_add_u32", sLN0, sLN0, WS_XN)
        e.I("s_add_u32", sLN1, sLN0, 16384)
        e.I("v_and_b32", t0, 31, vl)
        e.I("v_lshlrev_b32", t1, 7, t0)
        e.I("v_add_u32", t1, sXlds, t1)
        e.I("v_bfe_u32", t0, vl, 1, 3)
        e.I("v_lshrrev_b32", t2, 5, vl)
        e.I("v_xor_b32", t0, t0, t2)
        for sl in range(4):
            e.I("v_xor_b32", t2, 2 * sl, t0)
            e.I("v_lshlrev_b32", t2, 4, t2)
            e.I("v_add_u32", vXr[sl], t1, t2)
        tr_addr(e, vtr[0], vtr[1], vl, (t0, t1, t2), WR, False)
        e.I("s_lshl_b32", sT0, sh, 6)
        e.I("s_lshl_b32", sT1, sj, 3)
        e.I("s_add_u32", sT0, sT0, sT1)
        e.I("s_lshl_b32", sT1, sw, 1)
        e.I("s_add_u32", sT0, sT0, sT1)
        e.I("s_lshl_b32", sT0, sT0, 13)
        e.I("s_add_u32", sKo, sT0, WS_K)
        e.I("s_add_u32", sVo, sT0, WS_V)
        emit_all(e, c_reads(0))
        if "early" in EXP and with_gu:
            stamp(e, 1)
        queue = []
        for g in range(2, nst):
            for p in {3: [3, 4], 4: [5, 6], 5: [7]}.get(g, []):
                queue += c_jobs(p)
            if 16 <= g < 20 and not with_gu:
                queue += x_piece(2 * (g - 16)) + x_piece(2 * (g - 16) + 1)
            queue += G.w_jobs(g)
            if with_gu:
                for p in {16: [0], 17: [1], 18: [2], 19: [3], 20: [4], 21: [5], 22: [6], 23: [7]}.get(g, []):
                    queue += x_piece(p)
        queue += kv_jobs("K", 0) + kv_jobs("K", 1) + kv_jobs("V", 0) + kv_jobs("K", 2) + kv_jobs("V", 1)
        queue += kv_jobs("K", 3) + kv_jobs("V", 2)
        LNSIG = 4
        CRD = {1: 1, 3: 2, 6: 3, 9: 4, 12: 5, 16: 6, 20: 7}
        XREL = {76: 0, 82: 1, 88: 2, 98: 3, 102: 4, 106: 5, 110: 6, 114: 7}
        pub = 20 if with_gu else 17
        kv_first = {("K", i) for i in range(3)} | {("V", 0), ("V", 1)}

        def pre_barrier(g):
            if g == LNSIG:
                e.wait_vm_tag(lambda tg: tg == "ln")
            if g == pub:
                e.wait_vm_tag(lambda tg: tg == "kv")

        def on_barrier(g):
            if "early" in EXP and with_gu and g in (0, 2, 4, 6):
                stamp(e, 2 + g // 2 if g < 6 else 4) if g < 6 else None
            if g == LNSIG:
                signal(e, sw, 0, "ln" + tagp, vOne)
            if g == 11:
                poll_issue(e, vPl, 0)
            if g == 12:
                poll_check(e, vPl, 0, 256, "ln" + tagp, sCnt, sRet)
                if not with_gu:
                    G.rel.add(("X", 0))
            if g == pub:
                signal(e, sw, sHc, "kv" + tagp, vOne)
            if g == nst - 6:
                poll_issue(e, vPk, sHc)
            if g == nst - 5:
                poll_check(e, vPk, sHc, 8, "kv" + tagp, sCnt, sRet)
                G.rel |= kv_first
            if g == nst - 2:
                G.rel.add(("V", 2))
                G.rel.add(("K", 3))

        def hook(t):
            sg, sidx, g, sl = G.ks[t]
            out = []
            if t in CRD:
                out += c_reads(CRD[t])
            if t == 0 or (t - 1) in CRD:
                pr = 0 if t == 0 else CRD[t - 1]

                def rel_c(em, pr=pr):
                    em.wait_lgkm0()
                    G.rel.add(("C", pr + 3))
                if t == 0:
                    out.append(rel_c)
                else:
                    rel_c(e)
            if t == 33 and gen.PF_W:
                out += touch(S_K, [(P_WQ, 512 * 8192), (P_WG, 512 * 3584), (P_WU, 512 * 3584)])
            if t == 100 and gen.PF_W:
                out += touch(S_C, [(P_WO, 4096 * 1024), (P_WD, 1792 * 1024)])
            if not with_gu and 72 <= t <= 96 and t % 4 == 0:
                G.rel.add(("X", (t - 68) // 4))
            if with_gu and t in XREL:
                G.rel.add(("X", XREL[t]))
            if 96 <= t < 128 and sidx % 4 == 0:
                p = sidx // 4
                while any(k == ("X", p) for k, _ in G.q):
                    k, ins = G.q.pop(0)
                    assert k in G.rel, k
                    emit_all(e, ins)
            return out
        cnt = [1]

        def seg_end(sg):
            if cnt[0] in (1, 3, 4) or not with_gu and False:
                pass
            if with_gu:
                m = {1: 1, 2: 2, 3: 3, 4: 4}.get(cnt[0])
                if m and "early" not in EXP:
                    stamp(e, m)
            cnt[0] += 1
        G.run(hook, seg_end, queue=queue, released={("W", 2), ("W", 3)}, on_barrier=on_barrier,
              pace=gen.PACE, pre_barrier=pre_barrier)
        while G.q:
            k, ins = G.q.pop(0)
            assert k in G.rel, k
            emit_all(e, ins)
        emit_all(e, q_epi(aQ1, 2))
        tags = [t for _, t in e.vm]
        assert all(t in (("K", 3), ("V", 2), None, "pf") for t in tags[-8:]), tags[-8:]
        assert all(t not in (("K", 0), ("K", 1), ("V", 0)) for t in tags[-16:]), tags[-16:]
        e.wait_vm_tag(lambda tg: tg == ("K", 0))
        e.wait_lgkm0()

    e.I("s_cmp_ge_u32", sh, 28)
    e.I("s_cbranch_scc1", "K2_NOGU")
    st0 = e.state()
    proj(True, "a")
    e.I("s_branch", "K2_ATT")
    e.label("K2_NOGU")
    e.set_state(st0)
    proj(False, "b")
    e.label("K2_ATT")
    e.vm = []
    e.lgkm = []
    e.I("s_nop", 1)
    stamp(e, 5)

    S = lambda par, qb: SET[0].sub((par * 2 + qb) * 16, 16)
    NM = lambda qb: SET[1].sub(qb * 16, 16)
    P = lambda par, qb: SET[1].sub(32 + (par * 2 + qb) * 8, 8)
    O = lambda qb, b: a((qb * 4 + b) * 16, 16)
    KF = lambda fs, si: a(128 + 64 * fs + 4 * si, 4)
    VF = lambda fs, t, b: a(128 + 64 * fs + 32 + 4 * (t * 4 + b), 4)
    vKr, vVr = v(6), v(7)
    vDq = [v(8), v(9)]
    vL = [[v(10), v(11)], [v(24), v(25)]]
    vTs = [v(12), v(13)]
    vTs2 = [v(4, 2), v(4, 2)]
    vTm, vDqT = v(14), [v(15), v(16)]
    vNinf = v(17)
    ET = [v(18 + i) for i in range(6)]
    vQx, vKx, vNx, vInvB, vPw = v(26), v(27), v(28), v(29), v(30)
    RT = [v(32 + i) for i in range(32)]
    QS = 131072
    sPw = sBact

    e.I("v_and_b32", t0, 31, vl)
    e.I("v_lshrrev_b32", t1, 5, vl)
    e.I("v_lshlrev_b32", t1, 2, t1)
    e.I("v_sub_u32", t0, t0, t1)
    e.I("s_lshl_b32", sT0, sQA, 5)
    e.I("s_lshl_b32", sT1, sQB, 5)
    e.I("v_add_u32", vDq[0], sT0, t0)
    e.I("v_add_u32", vDq[1], sT1, t0)
    e.I("v_mov_b32", vNinf, 0xff800000)
    e.I("v_mov_b32", vL[0][0], 0)
    e.I("v_mov_b32", vL[0][1], 0)
    e.I("v_add_u32", vKr, 16384, vl16)
    e.I("v_add_u32", vVr, 65536, vl16)
    e.I("s_lshl_b32", sRot, sw, 12)
    e.I("s_add_u32", sKg, sKg, 4 * 16384)
    e.I("s_add_u32", sVg, sVg, 3 * 16384)
    e.I("s_mov_b32", sKv, 0)
    e.I("s_and_b32", sPw, sw, 1)
    e.I("s_lshl_b32", sPw, sPw, 13)
    e.I("s_lshl_b32", sT0, sw, 13)
    e.I("s_add_u32", sT0, sT0, QS)
    e.I("v_add_u32", vQx, sT0, vl16)
    e.I("s_barrier")
    for si in range(8):
        e.I("ds_read_b128", KF(1, si), vl16, mods="offset:%d" % (si * 1024))
    for si in range(8):
        e.I("ds_read_b128", KF(0, si), vl16, mods="offset:%d" % (8192 + si * 1024))
    for si in range(8):
        for qb in range(2):
            e.I(MFMA, S(0, qb), KF(1, si), qfrag(qb, si), 0 if si == 0 else S(0, qb))
        e.I("ds_write_b128", vQx, qfrag(0, si), mods="offset:%d" % (si * 1024))
    e.I("v_xor_b32", vQx, 8192, vQx)

    def mask_S_inplace(em, Sx, dq):
        for r0 in range(0, 16, 4):
            for i in range(4):
                em.I("v_cmp_ge_i32", MASKS[i], dq, CR[r0 + i])
            for i in range(4):
                em.I("v_cndmask_b32", Sx[r0 + i], vNinf, Sx[r0 + i], MASKS[i])

    def rowmax(em, Sx, dst, tmp):
        em.I("v_max3_f32", dst, Sx[0], Sx[1], Sx[2])
        for r in range(3, 15, 2):
            em.I("v_max3_f32", dst, dst, Sx[r], Sx[r + 1])
        em.I("v_max_f32", dst, dst, Sx[15])
        em.I("v_mov_b32", tmp, dst)
        em.I("v_permlane32_swap_b32", dst, tmp)
        em.I("v_max_f32", dst, dst, tmp)

    for qb in range(2):
        Sx = S(0, qb)
        if qb == 1:
            mask_S_inplace(e, Sx, vDq[1])
        rowmax(e, Sx, RT[0], RT[1])
        for r in range(16):
            e.I("v_sub_f32", Sx[r], Sx[r], RT[0])
        for r in range(16):
            e.I("v_sub_f32", NM(qb)[r], 0, RT[0])
    e.wait_lgkm0()
    stamp(e, 6)

    ret_labels = []

    def sm_stream(par, qb, masked):
        Sx, Px = S(par, qb), P(par, qb)
        out = []
        if masked:
            out.append(I("v_subrev_u32", vDqT[qb], sKv, vDq[qb]))

        def front(k):
            o = []
            if masked:
                o.append(I("v_cmp_ge_i32", MASKS[(2 * k) & 3], vDqT[qb], CR[2 * k]))
                o.append(I("v_cmp_ge_i32", MASKS[(2 * k + 1) & 3], vDqT[qb], CR[2 * k + 1]))
            o.append(I("v_exp_f32", ET[(2 * k) % 6], Sx[2 * k]))
            o.append(I("v_exp_f32", ET[(2 * k + 1) % 6], Sx[2 * k + 1]))
            return o

        def back(k):
            ta, tb = ET[(2 * k) % 6], ET[(2 * k + 1) % 6]
            o = []
            if masked:
                o.append(I("v_cndmask_b32", ta, 0, ta, MASKS[(2 * k) & 3]))
                o.append(I("v_cndmask_b32", tb, 0, tb, MASKS[(2 * k + 1) & 3]))
            if "pk" in EXP:
                pr = v(ta.i, 2)
                if k == 1:
                    o.append(I("v_pk_add_f32", vTs2[qb], v(ET[0].i, 2), pr))
                elif k > 1:
                    o.append(I("v_pk_add_f32", vTs2[qb], vTs2[qb], pr))
                if k == 7:
                    o.append(I("v_add_f32", vTs[qb], vTs2[qb][0], vTs2[qb][1]))
            elif k == 0:
                o.append(I("v_add_f32", vTs[qb], ta, tb))
            else:
                o.append(I("v_add_f32", vTs[qb], vTs[qb], ta))
                o.append(I("v_add_f32", vTs[qb], vTs[qb], tb))
            o.append(I("v_cvt_pk_bf16_f32", Px[k], ta, tb))
            return o
        out += front(0)
        for k in range(8):
            if k + 1 < 8:
                out += front(k + 1)
            out += back(k)
        return out

    def qk_mfmas(par):
        return [I(MFMA, S(1 - par, qb), KF(par, si), qfrag(qb, si), NM(qb) if si == 0 else S(1 - par, qb))
                for si in range(8) for qb in range(2)]

    def pv_mfmas(par, first=(), order=None):
        ms = []
        for t in range(2):
            for b in range(4):
                for qb in range(2):
                    c = 0 if (qb in first and t == 0) else O(qb, b)
                    ms.append(I(MFMA, O(qb, b), VF(par, t, b), P(1 - par, qb).sub(4 * t, 4), c))
        return ms

    def k_reads(par, vaddr, off):
        return [I("ds_read_b128", KF(1 - par, si), vaddr, mods="offset:%d" % (off + si * 1024)) for si in range(8)]

    def v_reads(par, vaddr, off):
        return [I("ds_read_b128", VF(1 - par, si >> 2, si & 3), vaddr, mods="offset:%d" % (off + si * 1024))
                for si in range(8)]

    def step(par, name, qk, masks, pv, rds, dma, kvinc, pv_first=(), extra=(), tail=(), late_rd=True):
        ms = (qk_mfmas(par) if qk else []) + (pv_mfmas(par, pv_first) if pv else [])
        val = sm_stream(par, 0, masks[0]) + sm_stream(par, 1, masks[1])
        if "nords" in EXP:
            rds = []
        if "nodma" in EXP:
            dma = None
        if "nosm" in EXP:
            val = val[:4]
        cut = (len(val) * (9 if late_rd else 7)) // 10
        fill = merge(val[:cut], rds) + val[cut:]
        if extra:
            fill = merge(fill, list(extra))
        if dma:
            fill = merge(fill, dma)
        fill.append(I("v_max_f32", vTm, vTs[0], vTs[1]))
        fill.append(I("v_cmp_nge_f32", VCC, sThr, vTm))
        rid = len(ret_labels)
        ret_labels.append(("K2_RET_%s" % name, par))
        fill.append(I("s_mov_b32", sRet, rid))
        for qb in range(2):
            fill.append(I("v_add_f32", vL[1 - par][qb], vL[par][qb], vTs[qb]))
        fill += list(tail)
        interleave(e, ms, fill, close=True)
        e.I("s_cbranch_vccnz", "K2_RARE%d" % par)
        e.label("K2_RET_%s" % name)
        e.I("s_add_u32", sKv, sKv, kvinc)
        for x in EXP:
            if x.startswith("pad"):
                for _ in range(int(x[3:])):
                    e.I("s_nop", 15)

    def dma_group(kind, vdelta=16384):
        srd = s(S_K if kind == "K" else S_V, 4)
        sg = sKg if kind == "K" else sVg
        out = []
        if kind == "K":
            out.append(I("s_mov_b32", M0, sRot))
        else:
            out.append(I("s_sub_u32", sSt, sRot, vdelta))
            out.append(I("s_and_b32", sSt, sSt, 0xffff))
            out.append(I("s_add_u32", M0, sSt, 65536))
        for i in range(4):
            x = I("buffer_load_dwordx4", vl16, srd, sg, mods="offen offset:%d%s lds" % (1024 * i, KVS))
            x.cost = 16
            out.append(x)
        out.append(I("s_add_u32", sg, sg, 16384))
        return out

    def top():
        e.I("s_waitcnt", "vmcnt(16) lgkmcnt(0)")
        e.lgkm = []
        e.vm = []
        if "nobar" not in EXP:
            e.I("s_barrier")

    ROT = [I("s_add_u32", sRot, sRot, 16384), I("s_and_b32", sRot, sRot, 0xffff)]

    def iter1(name, maskB, first=False, last=False):
        top()
        step(0, name + "a", True, (False, maskB), not first,
             merge([] if last else k_reads(0, vKr, 0), v_reads(0, vVr, 0)), dma_group("K"), 32)
        tail = [I("v_add_u32", vVr, 65536, vKr), I("v_add_u32", vKr, 16384, vKr), I("v_and_b32", vKr, 0xffff, vKr),
                I("s_sub_u32", sCnt, sCnt, 1)] + ROT
        if last:
            rq = [I("ds_read_b128", qfrag(1, si), vQx, mods="offset:%d" % (si * 1024)) for si in range(8)]
            rds = [I("v_add_u32", vKx, sPw, vKr)] + merge(k_reads(1, vKx, 0), v_reads(1, vVr, 8192)) + rq
        else:
            rds = merge(k_reads(1, vKr, 8192), v_reads(1, vVr, 8192))
        step(1, name + "b", not last, (False, maskB), True, rds, dma_group("V"), 32,
             pv_first=(0, 1) if first else (), tail=tail, late_rd=False)

    def step2(par, name, masked, qk=True, pv=True, pv_first=(), extra=()):
        top()
        tail = [I("v_add_u32", vKr, 16384, vKr), I("v_and_b32", vKr, 0xffff, vKr),
                I("v_add_u32", vVr, 16384, vVr), I("v_and_b32", vVr, 0xffff, vVr), I("v_or_b32", vVr, 0x10000, vVr)] + ROT
        step(par, name, qk, (masked, masked), pv, merge(k_reads(par, vKr, 0), v_reads(par, vVr, 0)),
             dma_group("K") + dma_group("V", 32768), 64, pv_first=pv_first, extra=extra, tail=tail, late_rd=False)

    def loop(name, body):
        e.I("s_cmp_eq_u32", sCnt, 0)
        e.I("s_cbranch_scc1", "K2_%s_X" % name)
        e.label("K2_%s_L" % name)
        body()
        e.I("s_cmp_lg_u32", sCnt, 0)
        e.I("s_cbranch_scc1", "K2_%s_L" % name)
        e.label("K2_%s_X" % name)

    def ctx_store(qb_o, scale_regs, sbase, src2=None):
        out = []
        n = 0
        for b in range(4):
            for t in range(2):
                T = [RT[(n % 3) * 8 + 8 + r] for r in range(8)]
                Tq = v(RT[(n % 3) * 8 + 8].i, 4)
                n += 1
                for r in range(8):
                    out.append(I("v_accvgpr_read_b32", T[r], O(qb_o, b)[8 * t + r]))
                for r in range(8):
                    out.append(I("v_mul_f32", T[r], T[r], scale_regs[0]))
                if src2 is not None:
                    for r in range(8):
                        out.append(I("v_fmac_f32", T[r], src2[b * 16 + 8 * t + r], scale_regs[1]))
                for q in range(4):
                    out.append(I("v_cvt_pk_bf16_f32", T[q], T[2 * q], T[2 * q + 1]))
                off = (2 * b + t) * 1024
                if off % 4096 == 0:
                    out.append(I("s_add_u32", sTmp, sbase, off))
                out.append(I("buffer_store_dwordx4", Tq, vl16, s(S_WS, 4), sTmp, mods="offen offset:%d" % (off & 4095),
                             tag="ctx"))
        return out

    iter1("V0", True, first=True)
    if gen.FUSE3:
        e.I("s_lshl_b32", sT0, sj, 7)
        e.I("s_add_u32", sT1, sT0, WS_F + 16 * 128)
        e.I("s_sub_u32", sT0, WS_F + 31 * 128, sT0)
        e.I("s_waitcnt", "vmcnt(8)")
        e.I("s_barrier")
        signal(e, sw, sT0, "ha", RT[3], srd=S_WS)
        signal(e, sw, sT1, "hb", RT[3], srd=S_WS)
    e.I("s_lshl_b32", sCnt, sj, 1)
    e.I("s_sub_u32", sCnt, sCnt, 1)
    e.I("s_max_i32", sCnt, sCnt, 0)
    loop("V1", lambda: iter1("V1", False))
    e.I("s_min_u32", sCnt, sj, 1)
    loop("V2", lambda: iter1("V2", True))
    iter1("V2L", True, last=True)
    stamp(e, 7)
    top()

    e.I("v_add_u32", vNx, 49152, vVr)
    e.I("v_and_b32", vNx, 0xc000, vNx)
    e.I("v_lshlrev_b32", t0, 2, vl)
    e.I("v_add_u32", vNx, vNx, t0)
    e.I("s_lshl_b32", sT0, sw, 8)
    e.I("s_add_u32", sT0, sT0, 65536)
    e.I("v_add_u32", vNx, sT0, vNx)
    e.I("ds_write_b32", vNx, NM(0)[0])
    e.I("v_xor_b32", vNx, 256, vNx)
    e.I("v_mov_b32", RT[0], vL[0][1])
    e.I("v_mov_b32", RT[1], vL[0][1])
    e.I("v_mov_b32", vL[1][0], vL[0][0])
    e.I("v_permlane32_swap_b32", RT[0], RT[1])
    e.I("v_mov_b32", vL[1][1], 0)
    e.I("v_add_f32", RT[0], RT[0], RT[1])
    e.I("v_rcp_f32", vInvB, RT[0])
    e.I("v_add_u32", vKr, sPw, vKr)
    e.I("v_add_u32", vVr, sPw, vVr)
    e.I("s_lshr_b32", sT0, sPw, 8)
    e.I("s_add_u32", sKv, sKv, sT0)
    e.I("s_lshl_b32", sT0, sT0, 1)
    e.I("v_add_u32", vDq[1], 32, vDq[0])
    e.I("v_subrev_u32", vDq[1], sT0, vDq[1])
    pvm = pv_mfmas(0)
    pvB = [m for m in pvm if m.ops[0].i >= 64]
    pvA = [m for m in pvm if m.ops[0].i < 64]
    interleave(e, pvB, k_reads(0, vKr, 0) + dma_group("K"))
    e.wait_lgkm0()
    e.I("s_barrier")
    e.I("ds_read_b32", RT[2], vNx)
    interleave(e, pvA[:4], ROT + [I("v_add_u32", vKr, 16384, vKr), I("v_and_b32", vKr, 0xffff, vKr)])
    interleave(e, pvA[4:], [I("v_mov_b32", NM(1)[r], RT[2]) for r in range(16)])
    bepi = ctx_store(1, [vInvB], sCo[1])
    nb1 = len(bepi) // 2
    qkm = qk_mfmas(0)
    interleave(e, [m for m in qkm if m.ops[0].i == S(1, 0).i] + [m for m in qkm if m.ops[0].i == S(1, 1).i], bepi[:nb1])
    step2(1, "P0", True, pv=False, extra=bepi[nb1:])
    step2(0, "P1", True, pv_first=(1,))
    e.I("s_cmp_eq_u32", sj, 7)
    e.I("s_cbranch_scc1", "K2_DRAIN")
    e.I("s_lshl_b32", sCnt, sj, 1)
    e.I("s_sub_u32", sCnt, 13, sCnt)

    def p2():
        step2(1, "P2a", False)
        step2(0, "P2b", False, extra=[I("s_sub_u32", sCnt, sCnt, 1)])
    loop("P2", p2)
    step2(1, "P3", True)
    step2(0, "P4", True, qk=False)
    e.label("K2_DRAIN")
    e.I("s_waitcnt", "lgkmcnt(0)")
    e.lgkm = []
    for m in pv_mfmas(1):
        e.emit(m)
    stamp(e, 8)
    MS = 17408
    e.I("s_mul_i32", sT0, sw, MS)
    e.I("v_add_u32", vQx, sT0, vl16)
    e.I("v_lshlrev_b32", t0, 2, vl)
    e.I("v_add_u32", vNx, sT0, t0)
    e.I("s_waitcnt", "vmcnt(0)")
    e.I("s_barrier")
    e.I("ds_write_b32", vNx, NM(1)[0], mods="offset:16384")
    e.I("ds_write_b32", vNx, vL[1][1], mods="offset:16640")
    for b in range(4):
        for i in range(4):
            e.I("ds_write_b128", vQx, O(1, b).sub(4 * i, 4), mods="offset:%d" % ((b * 4 + i) * 1024))
    e.I("s_xor_b32", sT1, sw, 1)
    e.I("s_mul_i32", sT0, sT1, MS)
    e.I("v_add_u32", vQx, sT0, vl16)
    e.I("v_add_u32", vNx, sT0, t0)
    e.wait_lgkm0()
    e.I("s_barrier")
    nm2, l2, nm, f1, f2, lt, tq = RT[0], RT[1], RT[2], RT[3], RT[4], RT[5], RT[6]
    e.I("ds_read_b32", nm2, vNx, mods="offset:16384")
    e.I("ds_read_b32", l2, vNx, mods="offset:16640")
    O2 = SET[0]
    for i in range(16):
        e.I("ds_read_b128", O2.sub(4 * i, 4), vQx, mods="offset:%d" % (i * 1024))
    e.I("v_min_f32", nm, NM(0)[0], nm2)
    e.I("v_sub_f32", f1, nm, NM(0)[0])
    e.I("v_sub_f32", f2, nm, nm2)
    e.I("v_exp_f32", f1, f1)
    e.I("v_exp_f32", f2, f2)
    e.I("v_mul_f32", lt, vL[1][0], f1)
    e.I("v_fmac_f32", lt, l2, f2)
    e.I("v_mov_b32", tq, lt)
    e.I("v_permlane32_swap_b32", lt, tq)
    e.I("v_add_f32", lt, lt, tq)
    e.I("v_rcp_f32", lt, lt)
    e.I("v_mul_f32", f1, f1, lt)
    e.I("v_mul_f32", f2, f2, lt)
    emit_all(e, ctx_store(0, [f1, f2], sCo[0], src2=O2))
    stamp(e, 9)
    if gen.FUSE3:
        import gen_k3
        gen_k3.gen_k3(e)
    else:
        stamp_flush(e, 0, s(S_WS, 4), sw, 10)
        e.I("s_endpgm")

    for par in range(2):
        e.label("K2_RARE%d" % par)
        e.vm, e.lgkm = [], []
        e.I("s_nop", 15)
        e.I("s_nop", 7)
        for qb in range(2):
            Sx, Sn, Px = S(par, qb), S(1 - par, qb), P(par, qb)
            dq, dl, f, tmp = RT[0], RT[1], RT[2], RT[3]
            e.I("v_subrev_u32", dq, sKv, vDq[qb])
            mask_S_inplace(e, Sx, dq)
            rowmax(e, Sx, dl, tmp)
            e.I("v_max_f32", dl, 0, dl)
            e.I("v_sub_f32", f, 0, dl)
            e.I("v_exp_f32", f, f)
            for r in range(16):
                e.I("v_sub_f32", Sx[r], Sx[r], dl)
            e.I("v_mul_f32", vL[1 - par][qb], vL[par][qb], f)
            for r in range(16):
                e.I("v_exp_f32", RT[8 + r], Sx[r])
            for r in range(16):
                e.I("v_sub_f32", Sn[r], Sn[r], dl)
            for r in range(16):
                e.I("v_add_f32", vL[1 - par][qb], vL[1 - par][qb], RT[8 + r])
            for k in range(8):
                e.I("v_cvt_pk_bf16_f32", Px[k], RT[8 + 2 * k], RT[9 + 2 * k])
            for r in range(16):
                e.I("v_sub_f32", NM(qb)[r], NM(qb)[r], dl)
            for b in range(4):
                for r0 in range(0, 16, 8):
                    for r in range(8):
                        e.I("v_accvgpr_read_b32", RT[8 + r], O(qb, b)[r0 + r])
                    for r in range(8):
                        e.I("v_mul_f32", RT[8 + r], RT[8 + r], f)
                    for r in range(8):
                        e.I("v_accvgpr_write_b32", O(qb, b)[r0 + r], RT[8 + r])
        e.I("s_nop", 3)
        mine = [(i, l) for i, (l, pp) in enumerate(ret_labels) if pp == par]
        for i, l in mine[:-1]:
            e.I("s_cmp_eq_u32", sRet, i)
            e.I("s_cbranch_scc1", l)
        e.I("s_branch", mine[-1][1])
    e.label(END)
    e.I("s_endpgm")
    return e.text(), dict(vgpr=512, sgpr=102, accum=256, grid=256, block=256, lds=163840)
```

```python
import sys
sys.path.insert(0, "dev")
from asmlib import *
import gen
from gen import *

LOG2E = 1.4426950408889634
QSCALE = LOG2E / (128 ** 0.5)
GC1 = -2.0 * (2.0 / math.pi) ** 0.5 * LOG2E
GC2 = GC1 * 0.044715
THRESH = float(2 ** 24)
CR = [(r & 3) + 8 * (r >> 2) for r in range(16)]
EXP = set()


def gen_ka():
    e = Emitter()
    fused = True
    END = "K2_END"
    KVS = " sc1"
    gen.STAMP_MAP = None
    prologue(e, 256, END)
    S_WS, S_A, S_B, S_C, S_K, S_V = 32, 36, 40, 44, 48, 52
    sw, sh, sj = s(56), s(57), s(58)
    sM0, sTmp, sSt = s(59), s(60), s(61)
    sXA, sXB = s(62), s(63)
    sWgu, sWq0, sWq1 = s(64), s(65), s(66)
    sHo = [s(67), s(68)]
    sCo = [s(69), s(70)]
    sKg, sVg, sRot = s(71), s(72), s(73)
    sCnt, sKv, sRet, sBact, sThr = s(74), s(75), s(76), s(77), s(78)
    sT0, sT1 = s(79), s(80)
    sQA, sQB, sHc = s(81), s(30), s(31)
    MASKS = [s(40, 2), s(42, 2), s(44, 2), s(46, 2)]
    sXrow = [s(71 + i) for i in range(8)]
    sXlds, sWb = s(67), s(68)
    sWb2, sWb3 = s(69), s(70)
    sKo, sVo = s(100), s(101)
    sLN0, sLN1 = s(64), s(65)
    vl, vl16 = v(1), v(2)
    t0, t1, t2 = v(3), v(4), v(5)
    vtr = [v(6), v(7)]
    vWg = [v(8 + i) for i in range(4)]
    vWq = [v(12 + i) for i in range(4)]
    vC2 = v(16)
    GT = [v(17 + i) for i in range(8)]
    vXd = [v(17), v(18)]
    vXr = [v(19 + i) for i in range(4)]
    vLNa, vLNs = v(23), v(24)
    vPl, vOne, vPk = v(25), v(26), v(27)
    PFD = v(28, 4)
    X_, Y_, Z_ = v(64, 64), v(128, 64), v(192, 64)
    SET = [Y_, Z_, X_]
    pool = v(32, 32)
    WR = 98304
    XS_W = 24576

    if "latepf" not in EXP:
        code_prefetch(e, "ka", "ka_kernel", "TEXT_END", s(30, 2), t0, PFD, 1)
    e.I("v_and_b32", vl, 63, v(0))
    e.I("v_lshrrev_b32", t0, 6, v(0))
    e.I("v_lshlrev_b32", vl16, 4, vl)
    e.I("v_readfirstlane_b32", sw, t0)
    head_j(e, sh, sj, sT0, sT1)
    e.I("v_lshrrev_b32", t0, 3, vl)
    e.I("v_lshlrev_b32", t1, 10, t0)
    e.I("v_lshrrev_b32", t0, 1, t0)
    e.I("v_xor_b32", t0, t0, vl)
    e.I("v_and_b32", t0, 7, t0)
    e.I("v_lshlrev_b32", t2, 4, t0)
    e.I("v_add_u32", vXd[0], t1, t2)
    e.I("v_xor_b32", t2, 64, t2)
    e.I("v_add_u32", vXd[1], t1, t2)
    e.I("s_lshl_b32", sT0, sj, 18)
    e.I("s_lshl_b32", sT1, sw, 16)
    e.I("s_add_u32", sT0, sT0, sT1)
    for i in range(8):
        e.I("s_add_u32", sXrow[i], sT0, i * 8192 - (i & 3) * 1024)
    e.I("s_mul_i32", sXlds, sw, XS_W)
    wdma_voff(e, vWq, vl, (t0, t1), 8192)
    e.I("s_and_b32", sT0, sw, 1)
    e.I("s_lshl_b32", sT0, sT0, 18)
    e.I("s_lshr_b32", sT1, sw, 1)
    e.I("s_lshl_b32", sT1, sT1, 7)
    e.I("s_lshl_b32", s(3), sh, 8)
    e.I("s_add_u32", sWb, s(3), sT0)
    e.I("s_add_u32", sWb, sWb, sT1)
    e.I("s_lshl_b32", sT0, sw, 18)
    e.I("s_add_u32", sWb2, s(3), sT0)
    e.I("s_add_u32", sWb3, sWb2, 128)
    e.I("s_lshl_b32", sM0, sw, 12)
    e.I("s_add_u32", sM0, sM0, WR)
    e.I("s_waitcnt", "lgkmcnt(0)")
    make_srd(e, S_A, P_CKV, 2048 * 1024)
    make_srd(e, S_B, P_WUK, 512 * 8192)
    stamp(e, 0)

    def c_dma(p):
        out = []
        for i in range(8):
            if i % 4 == 0:
                out.append(I("s_add_u32", M0, sXlds, (p % 3) * 8192 + (i >> 2) * 4096))
            out.append(I("buffer_load_dwordx4", vXd[i & 1], s(S_A, 4), sXrow[i],
                         mods="offen offset:%d lds" % (1024 * (i & 3)), tag=("C", p)))
        out.append(I("v_add_u32", vXd[0], 128, vXd[0]))
        out.append(I("v_add_u32", vXd[1], 128, vXd[1]))
        return out

    def c_jobs(p):
        ins = c_dma(p)
        k = ("C", p)
        return [(k, ins[0:2]), (k, [ins[2]]), (k, [ins[3]]), (k, [ins[4]]), (k, ins[5:7]), (k, [ins[7]]), (k, [ins[8]]),
                (k, ins[9:12])]

    def x_piece(p):
        out = []
        k = ("X", p)
        for rb in range(2):
            sb = sXA if rb == 0 else sXB
            for i in range(4):
                ins = []
                if i == 0:
                    ins.append(I("s_add_u32", sT0 if rb == 0 else sT1, sb, p * 4096))
                ins.append(I("buffer_load_dwordx4", a((rb * 32 + 4 * p + i) * 4, 4), vl16, s(S_WS, 4),
                             sT0 if rb == 0 else sT1, mods="offen offset:%d%s" % (1024 * i, " sc1" if gen.LD_SC1 else ""), tag=k))
                out.append((k, ins))
        return out

    def kv_jobs(kind, st):
        k = (kind, st)
        srd = s(S_K if kind == "K" else S_V, 4)
        base = (0 if kind == "K" else 65536) + (st & 3) * 16384
        out = []
        for i in range(4):
            ins = []
            if i == 0:
                ins.append(I("s_lshl_b32", sSt, sw, 12))
                ins.append(I("s_add_u32", M0, sSt, base))
                ins.append(I("s_add_u32", sSt, sSt, st * 16384))
            ins.append(I("buffer_load_dwordx4", vl16, srd, sSt, mods="offen offset:%d sc1 lds" % (1024 * i), tag=k))
            out.append((k, ins))
        return out

    srcK = dict(srd=s(S_B, 4), voff=vWq, s_base=sWb, stage_stride=64 * 8192)
    srcV0 = dict(srd=s(S_C, 4), voff=vWq, s_base=sWb2, stage_stride=128 * 8192)
    srcV1 = dict(srd=s(S_C, 4), voff=vWq, s_base=sWb3, stage_stride=128 * 8192)
    srcGU = dict(srd=s(S_A, 4), voff=vWg, s_base=sWgu, stage_stride=64 * 3584)
    srcQ0 = dict(srd=s(S_B, 4), voff=vWq, s_base=sWq0, stage_stride=128 * 8192)
    srcQ1 = dict(srd=s(S_B, 4), voff=vWq, s_base=sWq1, stage_stride=128 * 8192)
    acc4 = lambda s0, s1: (lambda rb, nb: (s0, s1)[rb].sub(nb * 16, 16))
    acc2 = lambda s0: (lambda rb, nb: s0.sub((rb * 2 + nb) * 16, 16))
    accK, accV0, accV1, accGU = acc4(X_, Y_), acc2(Z_), acc2(X_), acc4(Y_, Z_)

    def store_block(d, sbase, rb, idxs):
        out = []
        for hh in range(2):
            out += cvt_inplace(d, hh)
            off = rb * 8192 + idxs[hh] * 1024
            out.append(I("s_add_u32", s(3), sbase, off & ~4095))
            out.append(I("buffer_store_dwordx4", d.sub(8 * hh, 4), vl16, s(S_WS, 4), s(3),
                         mods="offen offset:%d" % (off & 4095), tag="kv"))
        return out

    def epiK():
        return [x for rb in range(2) for nb in range(4) for x in store_block(accK(rb, nb), sKo, rb, (2 * nb, 2 * nb + 1))]

    def epiV(acc, o):
        return [x for rb in range(2) for nb in range(2) for x in store_block(acc(rb, nb), sVo, rb, (o + nb, o + 4 + nb))]

    def ln_stream():
        Z = Z_
        LN0, LN1 = Z.sub(0, 4), Z.sub(4, 4)
        X = [Z[8 + i] for i in range(16)]
        D = [Z[24 + i] for i in range(16)]
        sm, sw2, mean, var, pk, mb, vb, sd, rc = [Z[40 + i] for i in range(9)]
        ln = []
        A_ = lambda *x, **k: ln.append(I(*x, **k))
        for i in range(4):
            A_("v_lshlrev_b32", X[2 * i], 16, LN0[i])
            A_("v_and_b32", X[2 * i + 1], 0xffff0000, LN0[i])
            A_("v_lshlrev_b32", X[8 + 2 * i], 16, LN1[i])
            A_("v_and_b32", X[8 + 2 * i + 1], 0xffff0000, LN1[i])

        def allreduce32(r):
            for off in (0x041F, 0x081F, 0x101F, 0x201F, 0x401F):
                A_("ds_swizzle_b32", sw2, r, mods="offset:0x%04x" % off)
                A_("v_add_f32", r, r, sw2)
        A_("v_add_f32", sm, X[0], X[1])
        for i in range(2, 16):
            A_("v_add_f32", sm, sm, X[i])
        allreduce32(sm)
        A_("v_mul_f32", mean, 1.0 / 512, sm)
        for i in range(16):
            A_("v_sub_f32", D[i], X[i], mean)
        A_("v_mul_f32", sm, D[0], D[0])
        for i in range(1, 16):
            A_("v_fmac_f32", sm, D[i], D[i])
        allreduce32(sm)
        A_("v_mul_f32", var, 1.0 / 512, sm)
        A_("v_cvt_pk_bf16_f32", pk, mean, var)
        A_("v_lshlrev_b32", mb, 16, pk)
        A_("v_and_b32", vb, 0xffff0000, pk)
        A_("v_add_f32", vb, 1e-5, vb)
        A_("v_cvt_pk_bf16_f32", pk, vb, vb)
        A_("v_lshlrev_b32", vb, 16, pk)
        A_("v_sqrt_f32", vb, vb)
        A_("v_cvt_pk_bf16_f32", pk, vb, vb)
        A_("v_lshlrev_b32", sd, 16, pk)
        A_("v_rcp_f32", rc, sd)
        for i in range(16):
            A_("v_sub_f32", D[i], X[i], mb)
        for i in range(8):
            A_("v_cvt_pk_bf16_f32", pk, D[2 * i], D[2 * i + 1])
            A_("v_lshlrev_b32", D[2 * i], 16, pk)
            A_("v_and_b32", D[2 * i + 1], 0xffff0000, pk)
        for i in range(16):
            A_("v_mul_f32", X[i], D[i], rc)
            A_("v_fma_f32", D[i], Neg(X[i]), sd, D[i])
            A_("v_fmac_f32", X[i], D[i], rc)
        for i in range(4):
            A_("v_cvt_pk_bf16_f32", LN0[i], X[2 * i], X[2 * i + 1])
            A_("v_cvt_pk_bf16_f32", LN1[i], X[8 + 2 * i], X[8 + 2 * i + 1])
        if gen.FUSE3:
            A_("v_mov_b32", Z[50], 0)
            A_("v_mov_b32", Z[51], 0)
            A_("s_lshl_b32", sHc, s(2), 7)
            A_("s_add_u32", sHc, sHc, WS_F)
            A_("buffer_store_dwordx2", Z.sub(50, 2), "off", s(S_WS, 4), sHc, mods="sc1", tag="ln")
        A_("buffer_store_dwordx4", LN0, vLNs, s(S_WS, 4), sLN0, mods="offen", tag="ln")
        A_("buffer_store_dwordx4", LN1, vLNs, s(S_WS, 4), sLN1, mods="offen", tag="ln")
        return ln

    NOP = lambda em: None

    def gu_epi(rb):
        out = []
        for nb in range(2):
            g_, u_ = accGU(rb, nb), accGU(rb, nb + 2)
            for hh in range(2):
                for half4 in range(2):
                    rs = [8 * hh + 4 * half4 + i for i in range(4)]
                    T = GT[0:4]
                    T2 = GT[4:8]
                    for i, r in enumerate(rs):
                        out.append(I("v_mul_f32", T[i], g_[r], g_[r]))
                    for i, r in enumerate(rs):
                        out.append(I("v_fmaak_f32", T[i], T[i], vC2, GC1))
                    for i, r in enumerate(rs):
                        out.append(I("v_mul_f32", T[i], T[i], g_[r]))
                    for i, r in enumerate(rs):
                        out.append(I("v_exp_f32", T[i], T[i]))
                    for i, r in enumerate(rs):
                        out.append(I("v_mul_f32", T2[i], g_[r], u_[r]))
                    for i, r in enumerate(rs):
                        out.append(I("v_add_f32", T[i], 1.0, T[i]))
                    for i, r in enumerate(rs):
                        out.append(I("v_rcp_f32", T[i], T[i]))
                    out.append(I("s_nop", 0))
                    for i, r in enumerate(rs):
                        out.append(I("v_mul_f32", g_[r], T2[i], T[i]))
                out += cvt_inplace(g_, hh)
                off = (2 * nb + hh) * 1024
                out.append(I("buffer_store_dwordx4", g_.sub(8 * hh, 4), vl16, s(S_WS, 4), sHo[rb],
                             mods="offen offset:%d" % off))
        return out

    def qfrag(qb, sidx):
        b, t = sidx >> 1, sidx & 1
        return X_.sub((qb * 2 + (b & 1)) * 16 + 8 * t + (4 if b >= 2 else 0), 4)

    def q_epi(acc, b0):
        out = []
        for rb in range(2):
            for nb in range(2):
                d = acc(rb, nb)
                for r in range(16):
                    out.append(I("v_mul_f32", d[r], QSCALE, d[r]))
                for t in range(2):
                    f = qfrag(rb, 2 * (b0 + nb) + t)
                    for q in range(4):
                        out.append(I("v_cvt_pk_bf16_f32", f[q], d[8 * t + 2 * q], d[8 * t + 2 * q + 1]))
        return out

    class L(list):
        def I(self, op, *ops, **k):
            self.append(I(op, *ops, **k))

    def setup_b():
        o = L()
        o.I("s_lshl_b32", sT0, sj, 2)
        o.I("s_add_u32", sQB, sT0, sw)
        o.I("s_sub_u32", sQA, 60, sT0)
        o.I("s_add_u32", sQA, sQA, sw)
        o.I("s_lshl_b32", sXA, sQA, 15)
        o.I("s_lshl_b32", sXB, sQB, 15)
        if WS_XN:
            o.I("s_add_u32", sXA, sXA, WS_XN)
            o.I("s_add_u32", sXB, sXB, WS_XN)
        wdma_voff(o, vWg, vl, (t0, t1), 3584)
        o.I("s_and_b32", sT0, sw, 1)
        o.I("s_mul_i32", sT0, sT0, 32 * 3584)
        o.I("s_lshl_b32", sT1, sh, 7)
        o.I("s_add_u32", sWgu, sT0, sT1)
        o.I("s_mov_b32", sWq0, sWb2)
        o.I("s_mov_b32", sWq1, sWb3)
        o.I("s_lshl_b32", sHc, sh, 2)
        o.I("s_add_u32", sHc, sHc, 4)
        o.I("s_cmp_lt_u32", sw, 2)
        g = [I("s_cmp_lt_u32", sw, 2), I("s_cselect_b32", s(S_A), s(P_WG), s(P_WU)),
             I("s_cselect_b32", s(S_A + 1), s(P_WG + 1), s(P_WU + 1))]
        o.append(lambda em: emit_all(em, g))
        o.I("s_mov_b32", s(S_A + 2), 512 * 3584)
        make_srd(o, S_B, P_WQ, 512 * 8192)
        o.I("v_mov_b32", vC2, GC2)
        for qb, sq in ((0, sQA), (1, sQB)):
            o.I("s_mul_i32", sT0, sq, 368 * 1024)
            o.I("s_lshl_b32", sT1, sh, 12)
            o.I("s_add_u32", sHo[qb], sT0, sT1)
            o.I("s_add_u32", sHo[qb], sHo[qb], WS_A3 + 256 * 1024)
        return o

    def setup_c():
        o = L()
        for qb in range(2):
            o.I("s_lshl_b32", sSt, sh, 12)
            o.I("s_add_u32", sCo[qb], sHo[qb], sSt)
            o.I("s_sub_u32", sCo[qb], sCo[qb], 256 * 1024)
        for srd, off in ((S_K, WS_K), (S_V, WS_V)):
            g = [I("s_lshl_b32", sSt, sh, 19), I("s_add_u32", sSt, sSt, off), I("s_add_u32", s(srd), s(P_WS), sSt),
                 I("s_addc_u32", s(srd + 1), s(P_WS + 1), 0)]
            o.append(lambda em, g=g: emit_all(em, g))
            o.I("s_lshl_b32", sSt, sj, 15)
            o.I("s_sub_u32", s(srd + 2), 64 * 8192, sSt)
            o.I("s_mov_b32", s(srd + 3), 0x20000)
        o.I("s_lshl_b32", sKg, sw, 12)
        o.I("s_mov_b32", sVg, sKg)
        o.I("s_mov_b32", sThr, THRESH)
        return o

    def touch(srd, bufs):
        g = [I("s_lshl_b32", sCnt, s(2), 2), I("s_add_u32", sCnt, sCnt, sw), I("s_lshl_b32", sCnt, sCnt, 13)]
        p0, n0 = bufs[0]
        g += [I("s_mov_b32", s(srd), s(p0)), I("s_mov_b32", s(srd + 1), s(p0 + 1)), I("s_mov_b32", s(srd + 2), n0),
              I("s_mov_b32", s(srd + 3), 0x20000)]
        for (pp, nn), (_, nprev) in zip(bufs[1:], bufs[:-1]):
            g += [I("s_cmp_ge_u32", sCnt, s(srd + 2)),
                  I("s_cselect_b32", sRet, s(srd + 2), 0),
                  I("s_cselect_b32", s(srd), s(pp), s(srd)), I("s_cselect_b32", s(srd + 1), s(pp + 1), s(srd + 1)),
                  I("s_cselect_b32", s(srd + 2), nn, s(srd + 2)),
                  I("s_sub_u32", sCnt, sCnt, sRet)]
        g += [I("v_lshlrev_b32", t2, 7, vl),
              Untracked(I("buffer_load_dword", PFD[0], t2, s(srd, 4), sCnt, mods="offen"))]
        return [lambda em: emit_all(em, g)]

    def proj(with_gu, tagp):
        ln = ln_stream()
        eV1 = epiV(accV1, 2)
        segs = [Seg(4, "WX", accK, srcK, [NOP] * (len(ln) // 4) + ln + [NOP] * (2 * len(ln))),
                Seg(2, "XW", accV0, srcV0, merge(epiK(), setup_b())),
                Seg(2, "XW", accV1, srcV1, epiV(accV0, 0) + [NOP] * 12)]
        if with_gu:
            aQ0, aQ1 = acc2(X_), acc2(Y_)
            segs += [Seg(4, "WX", accGU, srcGU, eV1 + setup_c() + [NOP] * 70), Seg(2, "WX", aQ0, srcQ0, gu_epi(0)),
                     Seg(2, "WX", aQ1, srcQ1, gu_epi(1) + q_epi(aQ0, 0))]
        else:
            aQ0, aQ1 = acc2(Y_), acc2(Z_)
            segs += [Seg(2, "WX", aQ0, srcQ0, eV1 + setup_c() + [NOP] * 70), Seg(2, "WX", aQ1, srcQ1, q_epi(aQ0, 0))]
        G = Gemm(e, 4, vtr, pool, sM0, sTmp, segs)
        nst = len(G.stages)

        def c_reads(p):
            out = [(lambda em: G.need(("C", p))) if p else (lambda em: em.wait_vm_tag(lambda tg: tg == ("C", p)))]
            for sl in range(4):
                for rb in range(2):
                    out.append(I("ds_read_b128", a((rb * 32 + 4 * p + sl) * 4, 4), vXr[sl],
                                 mods="offset:%d" % ((p % 3) * 8192 + rb * 4096)))
            return out
        emit_all(e, c_dma(0))
        emit_all(e, G.w_dma(0))
        make_srd(e, S_K, P_X, 2048 * 1024)
        make_srd(e, S_C, P_WUV, 512 * 8192)
        make_srd(e, S_WS, P_WS, WS_BYTES)
        make_srd(e, S_DBG, P_DBG, 256)
        e.I("v_lshrrev_b32", t0, 5, v(0))
        e.I("v_lshlrev_b32", t1, 10, t0)
        e.I("v_and_b32", t2, 31, vl)
        e.I("v_lshlrev_b32", vLNa, 4, t2)
        e.I("v_add_u32", vLNa, vLNa, t1)
        e.I("v_lshrrev_b32", t1, 1, t2)
        e.I("v_lshlrev_b32", t1, 10, t1)
        e.I("v_and_b32", t2, 1, t2)
        e.I("v_lshlrev_b32", t2, 9, t2)
        e.I("v_add_u32", t1, t1, t2)
        e.I("v_lshlrev_b32", t0, 4, t0)
        e.I("v_add_u32", vLNs, t1, t0)
        e.I("s_lshl_b32", sT0, s(2), 13)
        e.I("buffer_load_dwordx4", Z_.sub(0, 4), vLNa, s(S_K, 4), sT0, mods="offen")
        e.I("buffer_load_dwordx4", Z_.sub(4, 4), vLNa, s(S_K, 4), sT0, mods="offen offset:512")
        if gen.PF_IN:
            e.I("s_lshr_b32", sT0, s(2), 3)
            e.I("s_lshl_b32", sT0, sT0, 2)
            e.I("s_add_u32", sT0, sT0, sw)
            e.I("v_lshrrev_b32", t0, 3, vl)
            e.I("v_lshlrev_b32", t0, 13, t0)
            e.I("v_and_b32", t1, 7, vl)
            e.I("v_lshlrev_b32", t1, 7, t1)
            e.I("v_add_u32", t0, t0, t1)
            e.I("s_and_b32", sT1, sT0, 63)
            e.I("s_lshl_b32", sT1, sT1, 16)
            e.I("s_and_b32", s(3), s(2), 7)
            e.I("s_lshl_b32", s(3), s(3), 10)
            e.I("s_add_u32", sT1, sT1, s(3))
            e.I("s_cmp_ge_u32", sT0, 64)
            e.I("s_cselect_b32", s(S_V), s(P_WUV), s(P_WUK))
            e.I("s_cselect_b32", s(S_V + 1), s(P_WUV + 1), s(P_WUK + 1))
            e.I("s_mov_b32", s(S_V + 2), 512 * 8192)
            e.I("s_mov_b32", s(S_V + 3), 0x20000)
            e.I("v_lshlrev_b32", t1, 7, vl)
            e.I("s_lshl_b32", sT0, sT0, 14)
            Untracked(I("buffer_load_dword", PFD[1], t1, s(S_A, 4), sT0, mods="offen"))(e)
            e.I("s_add_u32", sT0, sT0, 8192)
            Untracked(I("buffer_load_dword", PFD[2], t1, s(S_A, 4), sT0, mods="offen"))(e)
            Untracked(I("buffer_load_dword", PFD[3], t0, s(S_V, 4), sT1, mods="offen"))(e)
        emit_all(e, c_dma(1))
        emit_all(e, G.w_dma(1))
        emit_all(e, c_dma(2))
        if "own" in EXP:
            e.I("v_lshlrev_b32", t1, 10, vl)
            for p in range(3, 8):
                Untracked(I("buffer_load_dword", PFD[1], t1, s(S_A, 4), sXrow[0], mods="offen offset:%d" % (128 * p)))(e)
        if "ownw" in EXP:
            e.I("v_lshlrev_b32", t1, 13, vl)
            e.I("s_and_b32", sT0, sw, 1)
            e.I("s_mul_i32", sT0, sT0, 3 * 64 * 8192 - 32 * 8192)
            e.I("s_add_u32", sT0, sT0, sWb)
            for p in range(3):
                e.I("s_add_u32", sT1, sT0, (2 + p) * 64 * 8192)
                Untracked(I("buffer_load_dword", PFD[2], t1, s(S_B, 4), sT1, mods="offen"))(e)
        e.I("s_lshr_b32", sLN0, s(2), 2)
        e.I("s_lshl_b32", sLN0, sLN0, 15)
        e.I("s_and_b32", sLN1, s(2), 3)
        e.I("s_lshl_b32", sLN1, sLN1, 7)
        e.I("s_add_u32", sLN0, sLN0, sLN1)
        if WS_XN:
            e.I("s_add_u32", sLN0, sLN0, WS_XN)
        e.I("s_add_u32", sLN1, sLN0, 16384)
        e.I("v_and_b32", t0, 31, vl)
        e.I("v_lshlrev_b32", t1, 7, t0)
        e.I("v_add_u32", t1, sXlds, t1)
        e.I("v_bfe_u32", t0, vl, 1, 3)
        e.I("v_lshrrev_b32", t2, 5, vl)
        e.I("v_xor_b32", t0, t0, t2)
        for sl in range(4):
            e.I("v_xor_b32", t2, 2 * sl, t0)
            e.I("v_lshlrev_b32", t2, 4, t2)
            e.I("v_add_u32", vXr[sl], t1, t2)
        tr_addr(e, vtr[0], vtr[1], vl, (t0, t1, t2), WR, False)
        e.I("s_lshl_b32", sT0, sh, 6)
        e.I("s_lshl_b32", sT1, sj, 3)
        e.I("s_add_u32", sT0, sT0, sT1)
        e.I("s_lshl_b32", sT1, sw, 1)
        e.I("s_add_u32", sT0, sT0, sT1)
        e.I("s_lshl_b32", sT0, sT0, 13)
        e.I("s_add_u32", sKo, sT0, WS_K)
        e.I("s_add_u32", sVo, sT0, WS_V)
        emit_all(e, c_reads(0))
        if "early" in EXP and with_gu:
            stamp(e, 1)
        queue = []
        for g in range(2, nst):
            for p in {3: [3, 4], 4: [5, 6], 5: [7]}.get(g, []):
                queue += c_jobs(p)
            if 16 <= g < 20 and not with_gu:
                queue += x_piece(2 * (g - 16)) + x_piece(2 * (g - 16) + 1)
            queue += G.w_jobs(g)
            if with_gu:
                for p in {16: [0], 17: [1], 18: [2], 19: [3], 20: [4], 21: [5], 22: [6], 23: [7]}.get(g, []):
                    queue += x_piece(p)
        queue += kv_jobs("K", 0) + kv_jobs("K", 1) + kv_jobs("V", 0) + kv_jobs("K", 2) + kv_jobs("V", 1)
        queue += kv_jobs("K", 3) + kv_jobs("V", 2)
        LNSIG = 4
        CRD = {1: 1, 3: 2, 6: 3, 9: 4, 12: 5, 16: 6, 20: 7}
        XREL = {76: 0, 82: 1, 88: 2, 98: 3, 102: 4, 106: 5, 110: 6, 114: 7}
        pub = 20 if with_gu else 17
        kv_first = {("K", i) for i in range(3)} | {("V", 0), ("V", 1)}

        def pre_barrier(g):
            if g == LNSIG:
                e.wait_vm_tag(lambda tg: tg == "ln")
            if g == pub:
                e.wait_vm_tag(lambda tg: tg == "kv")

        def on_barrier(g):
            if "early" in EXP and with_gu and g in (0, 2, 4, 6):
                stamp(e, 2 + g // 2 if g < 6 else 4) if g < 6 else None
            if g == LNSIG:
                signal(e, sw, 0, "ln" + tagp, vOne)
            if g == 11:
                poll_issue(e, vPl, 0)
            if g == 12:
                poll_check(e, vPl, 0, 256, "ln" + tagp, sCnt, sRet)
                if not with_gu:
                    G.rel.add(("X", 0))
            if g == pub:
                signal(e, sw, sHc, "kv" + tagp, vOne)
            if g == nst - 6:
                poll_issue(e, vPk, sHc)
            if g == nst - 5:
                poll_check(e, vPk, sHc, 8, "kv" + tagp, sCnt, sRet)
                G.rel |= kv_first
            if g == nst - 2:
                G.rel.add(("V", 2))
                G.rel.add(("K", 3))

        def hook(t):
            sg, sidx, g, sl = G.ks[t]
            out = []
            if t in CRD:
                out += c_reads(CRD[t])
            if t == 0 or (t - 1) in CRD:
                pr = 0 if t == 0 else CRD[t - 1]

                def rel_c(em, pr=pr):
                    em.wait_lgkm0()
                    G.rel.add(("C", pr + 3))
                if t == 0:
                    out.append(rel_c)
                else:
                    rel_c(e)
            if t == 24 and "latepf" in EXP:
                out.append(lambda em: code_prefetch(em, "ka" + tagp, "ka_kernel", "TEXT_END", s(62, 2), t2, PFD, 1))
            if t == 33 and gen.PF_W:
                out += touch(S_K, [(P_WQ, 512 * 8192), (P_WG, 512 * 3584), (P_WU, 512 * 3584)])
            if t == 100 and gen.PF_W:
                out += touch(S_C, [(P_WO, 4096 * 1024), (P_WD, 1792 * 1024)])
            if not with_gu and 72 <= t <= 96 and t % 4 == 0:
                G.rel.add(("X", (t - 68) // 4))
            if with_gu and t in XREL:
                G.rel.add(("X", XREL[t]))
            if 96 <= t < 128 and sidx % 4 == 0:
                p = sidx // 4
                while any(k == ("X", p) for k, _ in G.q):
                    k, ins = G.q.pop(0)
                    assert k in G.rel, k
                    emit_all(e, ins)
            return out
        cnt = [1]

        def seg_end(sg):
            if cnt[0] in (1, 3, 4) or not with_gu and False:
                pass
            if with_gu:
                m = {1: 1, 2: 2, 3: 3, 4: 4}.get(cnt[0])
                if m and "early" not in EXP:
                    stamp(e, m)
            cnt[0] += 1
        G.run(hook, seg_end, queue=queue, released={("W", 2), ("W", 3)}, on_barrier=on_barrier,
              pace=gen.PACE, pre_barrier=pre_barrier)
        while G.q:
            k, ins = G.q.pop(0)
            assert k in G.rel, k
            emit_all(e, ins)
        emit_all(e, q_epi(aQ1, 2))
        tags = [t for _, t in e.vm]
        assert all(t in (("K", 3), ("V", 2), None, "pf") for t in tags[-8:]), tags[-8:]
        assert all(t not in (("K", 0), ("K", 1), ("V", 0)) for t in tags[-16:]), tags[-16:]
        e.wait_vm_tag(lambda tg: tg == ("K", 0))
        e.wait_lgkm0()

    e.I("s_cmp_ge_u32", sh, 28)
    e.I("s_cbranch_scc1", "K2_NOGU")
    st0 = e.state()
    proj(True, "a")
    e.I("s_branch", "K2_ATT")
    e.label("K2_NOGU")
    e.set_state(st0)
    proj(False, "b")
    e.label("K2_ATT")
    e.vm = []
    e.lgkm = []
    e.I("s_nop", 1)
    stamp(e, 5)

    S = lambda par, qb: SET[0].sub((par * 2 + qb) * 16, 16)
    NM = lambda qb: SET[1].sub(qb * 16, 16)
    P = lambda par, qb: SET[1].sub(32 + (par * 2 + qb) * 8, 8)
    O = lambda qb, b: a((qb * 4 + b) * 16, 16)
    KF = lambda fs, si: a(128 + 64 * fs + 4 * si, 4)
    VF = lambda fs, t, b: a(128 + 64 * fs + 32 + 4 * (t * 4 + b), 4)
    vKr, vVr = v(6), v(7)
    vDq = [v(8), v(9)]
    vL = [[v(10), v(11)], [v(24), v(25)]]
    vTs = [v(12), v(13)]
    vTs2 = [v(4, 2), v(4, 2)]
    vTm, vDqT = v(14), [v(15), v(16)]
    vNinf = v(17)
    ET = [v(18 + i) for i in range(6)]
    vQx, vKx, vNx, vInvB, vPw = v(26), v(27), v(28), v(29), v(30)
    RT = [v(32 + i) for i in range(32)]
    QS = 131072
    sPw = sBact

    e.I("v_and_b32", t0, 31, vl)
    e.I("v_lshrrev_b32", t1, 5, vl)
    e.I("v_lshlrev_b32", t1, 2, t1)
    e.I("v_sub_u32", t0, t0, t1)
    e.I("s_lshl_b32", sT0, sQA, 5)
    e.I("s_lshl_b32", sT1, sQB, 5)
    e.I("v_add_u32", vDq[0], sT0, t0)
    e.I("v_add_u32", vDq[1], sT1, t0)
    e.I("v_mov_b32", vNinf, 0xff800000)
    e.I("v_mov_b32", vL[0][0], 0)
    e.I("v_mov_b32", vL[0][1], 0)
    e.I("v_add_u32", vKr, 16384, vl16)
    e.I("v_add_u32", vVr, 65536, vl16)
    e.I("s_lshl_b32", sRot, sw, 12)
    e.I("s_add_u32", sKg, sKg, 4 * 16384)
    e.I("s_add_u32", sVg, sVg, 3 * 16384)
    e.I("s_mov_b32", sKv, 0)
    e.I("s_and_b32", sPw, sw, 1)
    e.I("s_lshl_b32", sPw, sPw, 13)
    e.I("s_lshl_b32", sT0, sw, 13)
    e.I("s_add_u32", sT0, sT0, QS)
    e.I("v_add_u32", vQx, sT0, vl16)
    e.I("s_barrier")
    for si in range(8):
        e.I("ds_read_b128", KF(1, si), vl16, mods="offset:%d" % (si * 1024))
    for si in range(8):
        e.I("ds_read_b128", KF(0, si), vl16, mods="offset:%d" % (8192 + si * 1024))
    for si in range(8):
        for qb in range(2):
            e.I(MFMA, S(0, qb), KF(1, si), qfrag(qb, si), 0 if si == 0 else S(0, qb))
        e.I("ds_write_b128", vQx, qfrag(0, si), mods="offset:%d" % (si * 1024))
    e.I("v_xor_b32", vQx, 8192, vQx)

    def mask_S_inplace(em, Sx, dq):
        for r0 in range(0, 16, 4):
            for i in range(4):
                em.I("v_cmp_ge_i32", MASKS[i], dq, CR[r0 + i])
            for i in range(4):
                em.I("v_cndmask_b32", Sx[r0 + i], vNinf, Sx[r0 + i], MASKS[i])

    def rowmax(em, Sx, dst, tmp):
        em.I("v_max3_f32", dst, Sx[0], Sx[1], Sx[2])
        for r in range(3, 15, 2):
            em.I("v_max3_f32", dst, dst, Sx[r], Sx[r + 1])
        em.I("v_max_f32", dst, dst, Sx[15])
        em.I("v_mov_b32", tmp, dst)
        em.I("v_permlane32_swap_b32", dst, tmp)
        em.I("v_max_f32", dst, dst, tmp)

    for qb in range(2):
        Sx = S(0, qb)
        if qb == 1:
            mask_S_inplace(e, Sx, vDq[1])
        rowmax(e, Sx, RT[0], RT[1])
        for r in range(16):
            e.I("v_sub_f32", Sx[r], Sx[r], RT[0])
        for r in range(16):
            e.I("v_sub_f32", NM(qb)[r], 0, RT[0])
    e.wait_lgkm0()
    stamp(e, 6)

    ret_labels = []

    def sm_stream(par, qb, masked):
        Sx, Px = S(par, qb), P(par, qb)
        out = []
        if masked:
            out.append(I("v_subrev_u32", vDqT[qb], sKv, vDq[qb]))

        def front(k):
            o = []
            if masked:
                o.append(I("v_cmp_ge_i32", MASKS[(2 * k) & 3], vDqT[qb], CR[2 * k]))
                o.append(I("v_cmp_ge_i32", MASKS[(2 * k + 1) & 3], vDqT[qb], CR[2 * k + 1]))
            o.append(I("v_exp_f32", ET[(2 * k) % 6], Sx[2 * k]))
            o.append(I("v_exp_f32", ET[(2 * k + 1) % 6], Sx[2 * k + 1]))
            return o

        def back(k):
            ta, tb = ET[(2 * k) % 6], ET[(2 * k + 1) % 6]
            o = []
            if masked:
                o.append(I("v_cndmask_b32", ta, 0, ta, MASKS[(2 * k) & 3]))
                o.append(I("v_cndmask_b32", tb, 0, tb, MASKS[(2 * k + 1) & 3]))
            if "pk" in EXP:
                pr = v(ta.i, 2)
                if k == 1:
                    o.append(I("v_pk_add_f32", vTs2[qb], v(ET[0].i, 2), pr))
                elif k > 1:
                    o.append(I("v_pk_add_f32", vTs2[qb], vTs2[qb], pr))
                if k == 7:
                    o.append(I("v_add_f32", vTs[qb], vTs2[qb][0], vTs2[qb][1]))
            elif k == 0:
                o.append(I("v_add_f32", vTs[qb], ta, tb))
            else:
                o.append(I("v_add_f32", vTs[qb], vTs[qb], ta))
                o.append(I("v_add_f32", vTs[qb], vTs[qb], tb))
            o.append(I("v_cvt_pk_bf16_f32", Px[k], ta, tb))
            return o
        out += front(0)
        for k in range(8):
            if k + 1 < 8:
                out += front(k + 1)
            out += back(k)
        return out

    def qk_mfmas(par):
        return [I(MFMA, S(1 - par, qb), KF(par, si), qfrag(qb, si), NM(qb) if si == 0 else S(1 - par, qb))
                for si in range(8) for qb in range(2)]

    def pv_mfmas(par, first=(), order=None):
        ms = []
        for t in range(2):
            for b in range(4):
                for qb in range(2):
                    c = 0 if (qb in first and t == 0) else O(qb, b)
                    ms.append(I(MFMA, O(qb, b), VF(par, t, b), P(1 - par, qb).sub(4 * t, 4), c))
        return ms

    def k_reads(par, vaddr, off):
        return [I("ds_read_b128", KF(1 - par, si), vaddr, mods="offset:%d" % (off + si * 1024)) for si in range(8)]

    def v_reads(par, vaddr, off):
        return [I("ds_read_b128", VF(1 - par, si >> 2, si & 3), vaddr, mods="offset:%d" % (off + si * 1024))
                for si in range(8)]

    def step(par, name, qk, masks, pv, rds, dma, kvinc, pv_first=(), extra=(), tail=(), late_rd=True):
        ms = (qk_mfmas(par) if qk else []) + (pv_mfmas(par, pv_first) if pv else [])
        val = sm_stream(par, 0, masks[0]) + sm_stream(par, 1, masks[1])
        if "nords" in EXP:
            rds = []
        if "nodma" in EXP:
            dma = None
        if "nosm" in EXP:
            val = val[:4]
        cut = (len(val) * (9 if late_rd else 7)) // 10
        fill = merge(val[:cut], rds) + val[cut:]
        if extra:
            fill = merge(fill, list(extra))
        if dma:
            fill = merge(fill, dma)
        fill.append(I("v_max_f32", vTm, vTs[0], vTs[1]))
        fill.append(I("v_cmp_nge_f32", VCC, sThr, vTm))
        rid = len(ret_labels)
        ret_labels.append(("K2_RET_%s" % name, par))
        fill.append(I("s_mov_b32", sRet, rid))
        for qb in range(2):
            fill.append(I("v_add_f32", vL[1 - par][qb], vL[par][qb], vTs[qb]))
        fill += list(tail)
        interleave(e, ms, fill, close=True)
        e.I("s_cbranch_vccnz", "K2_RARE%d" % par)
        e.label("K2_RET_%s" % name)
        e.I("s_add_u32", sKv, sKv, kvinc)
        for x in EXP:
            if x.startswith("pad"):
                for _ in range(int(x[3:])):
                    e.I("s_nop", 15)

    def dma_group(kind, vdelta=16384):
        srd = s(S_K if kind == "K" else S_V, 4)
        sg = sKg if kind == "K" else sVg
        out = []
        if kind == "K":
            out.append(I("s_mov_b32", M0, sRot))
        else:
            out.append(I("s_sub_u32", sSt, sRot, vdelta))
            out.append(I("s_and_b32", sSt, sSt, 0xffff))
            out.append(I("s_add_u32", M0, sSt, 65536))
        for i in range(4):
            x = I("buffer_load_dwordx4", vl16, srd, sg, mods="offen offset:%d%s lds" % (1024 * i, KVS))
            x.cost = 16
            out.append(x)
        out.append(I("s_add_u32", sg, sg, 16384))
        return out

    def top():
        e.I("s_waitcnt", "vmcnt(16) lgkmcnt(0)")
        e.lgkm = []
        e.vm = []
        if "nobar" not in EXP:
            e.I("s_barrier")

    ROT = [I("s_add_u32", sRot, sRot, 16384), I("s_and_b32", sRot, sRot, 0xffff)]

    def iter1(name, maskB, first=False, last=False):
        top()
        step(0, name + "a", True, (False, maskB), not first,
             merge([] if last else k_reads(0, vKr, 0), v_reads(0, vVr, 0)), dma_group("K"), 32)
        tail = [I("v_add_u32", vVr, 65536, vKr), I("v_add_u32", vKr, 16384, vKr), I("v_and_b32", vKr, 0xffff, vKr),
                I("s_sub_u32", sCnt, sCnt, 1)] + ROT
        if last:
            rq = [I("ds_read_b128", qfrag(1, si), vQx, mods="offset:%d" % (si * 1024)) for si in range(8)]
            rds = [I("v_add_u32", vKx, sPw, vKr)] + merge(k_reads(1, vKx, 0), v_reads(1, vVr, 8192)) + rq
        else:
            rds = merge(k_reads(1, vKr, 8192), v_reads(1, vVr, 8192))
        step(1, name + "b", not last, (False, maskB), True, rds, dma_group("V"), 32,
             pv_first=(0, 1) if first else (), tail=tail, late_rd=False)

    def step2(par, name, masked, qk=True, pv=True, pv_first=(), extra=()):
        top()
        tail = [I("v_add_u32", vKr, 16384, vKr), I("v_and_b32", vKr, 0xffff, vKr),
                I("v_add_u32", vVr, 16384, vVr), I("v_and_b32", vVr, 0xffff, vVr), I("v_or_b32", vVr, 0x10000, vVr)] + ROT
        step(par, name, qk, (masked, masked), pv, merge(k_reads(par, vKr, 0), v_reads(par, vVr, 0)),
             dma_group("K") + dma_group("V", 32768), 64, pv_first=pv_first, extra=extra, tail=tail, late_rd=False)

    def loop(name, body):
        e.I("s_cmp_eq_u32", sCnt, 0)
        e.I("s_cbranch_scc1", "K2_%s_X" % name)
        e.label("K2_%s_L" % name)
        body()
        e.I("s_cmp_lg_u32", sCnt, 0)
        e.I("s_cbranch_scc1", "K2_%s_L" % name)
        e.label("K2_%s_X" % name)

    def ctx_store(qb_o, scale_regs, sbase, src2=None):
        out = []
        n = 0
        for b in range(4):
            for t in range(2):
                T = [RT[(n % 3) * 8 + 8 + r] for r in range(8)]
                Tq = v(RT[(n % 3) * 8 + 8].i, 4)
                n += 1
                for r in range(8):
                    out.append(I("v_accvgpr_read_b32", T[r], O(qb_o, b)[8 * t + r]))
                for r in range(8):
                    out.append(I("v_mul_f32", T[r], T[r], scale_regs[0]))
                if src2 is not None:
                    for r in range(8):
                        out.append(I("v_fmac_f32", T[r], src2[b * 16 + 8 * t + r], scale_regs[1]))
                for q in range(4):
                    out.append(I("v_cvt_pk_bf16_f32", T[q], T[2 * q], T[2 * q + 1]))
                off = (2 * b + t) * 1024
                if off % 4096 == 0:
                    out.append(I("s_add_u32", sTmp, sbase, off))
                out.append(I("buffer_store_dwordx4", Tq, vl16, s(S_WS, 4), sTmp, mods="offen offset:%d" % (off & 4095),
                             tag="ctx"))
        return out

    iter1("V0", True, first=True)
    if gen.FUSE3:
        e.I("s_lshl_b32", sT0, sj, 7)
        e.I("s_add_u32", sT1, sT0, WS_F + 16 * 128)
        e.I("s_sub_u32", sT0, WS_F + 31 * 128, sT0)
        e.I("s_waitcnt", "vmcnt(8)")
        e.I("s_barrier")
        signal(e, sw, sT0, "ha", RT[3], srd=S_WS)
        signal(e, sw, sT1, "hb", RT[3], srd=S_WS)
    e.I("s_lshl_b32", sCnt, sj, 1)
    e.I("s_sub_u32", sCnt, sCnt, 1)
    e.I("s_max_i32", sCnt, sCnt, 0)
    loop("V1", lambda: iter1("V1", False))
    e.I("s_min_u32", sCnt, sj, 1)
    loop("V2", lambda: iter1("V2", True))
    iter1("V2L", True, last=True)
    stamp(e, 7)
    top()

    e.I("v_add_u32", vNx, 49152, vVr)
    e.I("v_and_b32", vNx, 0xc000, vNx)
    e.I("v_lshlrev_b32", t0, 2, vl)
    e.I("v_add_u32", vNx, vNx, t0)
    e.I("s_lshl_b32", sT0, sw, 8)
    e.I("s_add_u32", sT0, sT0, 65536)
    e.I("v_add_u32", vNx, sT0, vNx)
    e.I("ds_write_b32", vNx, NM(0)[0])
    e.I("v_xor_b32", vNx, 256, vNx)
    e.I("v_mov_b32", RT[0], vL[0][1])
    e.I("v_mov_b32", RT[1], vL[0][1])
    e.I("v_mov_b32", vL[1][0], vL[0][0])
    e.I("v_permlane32_swap_b32", RT[0], RT[1])
    e.I("v_mov_b32", vL[1][1], 0)
    e.I("v_add_f32", RT[0], RT[0], RT[1])
    e.I("v_rcp_f32", vInvB, RT[0])
    e.I("v_add_u32", vKr, sPw, vKr)
    e.I("v_add_u32", vVr, sPw, vVr)
    e.I("s_lshr_b32", sT0, sPw, 8)
    e.I("s_add_u32", sKv, sKv, sT0)
    e.I("s_lshl_b32", sT0, sT0, 1)
    e.I("v_add_u32", vDq[1], 32, vDq[0])
    e.I("v_subrev_u32", vDq[1], sT0, vDq[1])
    pvm = pv_mfmas(0)
    pvB = [m for m in pvm if m.ops[0].i >= 64]
    pvA = [m for m in pvm if m.ops[0].i < 64]
    interleave(e, pvB, k_reads(0, vKr, 0) + dma_group("K"))
    e.wait_lgkm0()
    e.I("s_barrier")
    e.I("ds_read_b32", RT[2], vNx)
    interleave(e, pvA[:4], ROT + [I("v_add_u32", vKr, 16384, vKr), I("v_and_b32", vKr, 0xffff, vKr)])
    interleave(e, pvA[4:], [I("v_mov_b32", NM(1)[r], RT[2]) for r in range(16)])
    bepi = ctx_store(1, [vInvB], sCo[1])
    nb1 = len(bepi) // 2
    qkm = qk_mfmas(0)
    interleave(e, [m for m in qkm if m.ops[0].i == S(1, 0).i] + [m for m in qkm if m.ops[0].i == S(1, 1).i], bepi[:nb1])
    step2(1, "P0", True, pv=False, extra=bepi[nb1:])
    step2(0, "P1", True, pv_first=(1,))
    e.I("s_cmp_eq_u32", sj, 7)
    e.I("s_cbranch_scc1", "K2_DRAIN")
    e.I("s_lshl_b32", sCnt, sj, 1)
    e.I("s_sub_u32", sCnt, 13, sCnt)

    def p2():
        step2(1, "P2a", False)
        step2(0, "P2b", False, extra=[I("s_sub_u32", sCnt, sCnt, 1)])
    loop("P2", p2)
    step2(1, "P3", True)
    step2(0, "P4", True, qk=False)
    e.label("K2_DRAIN")
    e.I("s_waitcnt", "lgkmcnt(0)")
    e.lgkm = []
    for m in pv_mfmas(1):
        e.emit(m)
    stamp(e, 8)
    MS = 17408
    e.I("s_mul_i32", sT0, sw, MS)
    e.I("v_add_u32", vQx, sT0, vl16)
    e.I("v_lshlrev_b32", t0, 2, vl)
    e.I("v_add_u32", vNx, sT0, t0)
    e.I("s_waitcnt", "vmcnt(0)")
    e.I("s_barrier")
    e.I("ds_write_b32", vNx, NM(1)[0], mods="offset:16384")
    e.I("ds_write_b32", vNx, vL[1][1], mods="offset:16640")
    for b in range(4):
        for i in range(4):
            e.I("ds_write_b128", vQx, O(1, b).sub(4 * i, 4), mods="offset:%d" % ((b * 4 + i) * 1024))
    e.I("s_xor_b32", sT1, sw, 1)
    e.I("s_mul_i32", sT0, sT1, MS)
    e.I("v_add_u32", vQx, sT0, vl16)
    e.I("v_add_u32", vNx, sT0, t0)
    e.wait_lgkm0()
    e.I("s_barrier")
    nm2, l2, nm, f1, f2, lt, tq = RT[0], RT[1], RT[2], RT[3], RT[4], RT[5], RT[6]
    e.I("ds_read_b32", nm2, vNx, mods="offset:16384")
    e.I("ds_read_b32", l2, vNx, mods="offset:16640")
    O2 = SET[0]
    for i in range(16):
        e.I("ds_read_b128", O2.sub(4 * i, 4), vQx, mods="offset:%d" % (i * 1024))
    e.I("v_min_f32", nm, NM(0)[0], nm2)
    e.I("v_sub_f32", f1, nm, NM(0)[0])
    e.I("v_sub_f32", f2, nm, nm2)
    e.I("v_exp_f32", f1, f1)
    e.I("v_exp_f32", f2, f2)
    e.I("v_mul_f32", lt, vL[1][0], f1)
    e.I("v_fmac_f32", lt, l2, f2)
    e.I("v_mov_b32", tq, lt)
    e.I("v_permlane32_swap_b32", lt, tq)
    e.I("v_add_f32", lt, lt, tq)
    e.I("v_rcp_f32", lt, lt)
    e.I("v_mul_f32", f1, f1, lt)
    e.I("v_mul_f32", f2, f2, lt)
    emit_all(e, ctx_store(0, [f1, f2], sCo[0], src2=O2))
    stamp(e, 9)
    if gen.FUSE3:
        import gen_k3
        gen_k3.gen_k3(e)
    else:
        stamp_flush(e, 0, s(S_WS, 4), sw, 10)
        e.I("s_endpgm")

    for par in range(2):
        e.label("K2_RARE%d" % par)
        e.vm, e.lgkm = [], []
        e.I("s_nop", 15)
        e.I("s_nop", 7)
        for qb in range(2):
            Sx, Sn, Px = S(par, qb), S(1 - par, qb), P(par, qb)
            dq, dl, f, tmp = RT[0], RT[1], RT[2], RT[3]
            e.I("v_subrev_u32", dq, sKv, vDq[qb])
            mask_S_inplace(e, Sx, dq)
            rowmax(e, Sx, dl, tmp)
            e.I("v_max_f32", dl, 0, dl)
            e.I("v_sub_f32", f, 0, dl)
            e.I("v_exp_f32", f, f)
            for r in range(16):
                e.I("v_sub_f32", Sx[r], Sx[r], dl)
            e.I("v_mul_f32", vL[1 - par][qb], vL[par][qb], f)
            for r in range(16):
                e.I("v_exp_f32", RT[8 + r], Sx[r])
            for r in range(16):
                e.I("v_sub_f32", Sn[r], Sn[r], dl)
            for r in range(16):
                e.I("v_add_f32", vL[1 - par][qb], vL[1 - par][qb], RT[8 + r])
            for k in range(8):
                e.I("v_cvt_pk_bf16_f32", Px[k], RT[8 + 2 * k], RT[9 + 2 * k])
            for r in range(16):
                e.I("v_sub_f32", NM(qb)[r], NM(qb)[r], dl)
            for b in range(4):
                for r0 in range(0, 16, 8):
                    for r in range(8):
                        e.I("v_accvgpr_read_b32", RT[8 + r], O(qb, b)[r0 + r])
                    for r in range(8):
                        e.I("v_mul_f32", RT[8 + r], RT[8 + r], f)
                    for r in range(8):
                        e.I("v_accvgpr_write_b32", O(qb, b)[r0 + r], RT[8 + r])
        e.I("s_nop", 3)
        mine = [(i, l) for i, (l, pp) in enumerate(ret_labels) if pp == par]
        for i, l in mine[:-1]:
            e.I("s_cmp_eq_u32", sRet, i)
            e.I("s_cbranch_scc1", l)
        e.I("s_branch", mine[-1][1])
    e.label(END)
    e.I("s_endpgm")
    return e.text(), dict(vgpr=512, sgpr=102, accum=256, grid=256, block=256, lds=163840)
```

```python
import re


STORE_MODS = ""


class R:
    __slots__ = ("k", "i", "n")

    def __init__(self, k, i, n=1):
        self.k, self.i, self.n = k, i, n

    def __str__(self):
        if self.k in ("vcc", "exec", "m0", "scc"):
            return self.k
        if self.n == 1:
            return "%s%d" % (self.k, self.i)
        return "%s[%d:%d]" % (self.k, self.i, self.i + self.n - 1)

    def regs(self):
        if self.k in ("vcc", "exec", "m0", "scc"):
            return {(self.k, 0)}
        return {(self.k, self.i + j) for j in range(self.n)}

    def sub(self, off, n=1):
        assert off + n <= self.n, (str(self), off, n)
        return R(self.k, self.i + off, n)

    def __getitem__(self, j):
        return self.sub(j, 1)


def v(i, n=1):
    assert 0 <= i and i + n <= 256, (i, n)
    return R("v", i, n)


def a(i, n=1):
    assert 0 <= i and i + n <= 256, (i, n)
    return R("a", i, n)


def s(i, n=1):
    assert 0 <= i and i + n <= 102, (i, n)
    return R("s", i, n)


VCC = R("vcc", 0)
EXEC = R("exec", 0)
M0 = R("m0", 0)

TRANS = ("v_exp_f32", "v_log_f32", "v_rcp_f32", "v_rsq_f32", "v_sqrt_f32", "v_sin_f32", "v_cos_f32")
NO_DST_S = ("s_cmp", "s_waitcnt", "s_barrier", "s_branch", "s_cbranch", "s_nop", "s_setprio", "s_endpgm",
            "s_sleep", "s_bitcmp")


class Neg:
    def __init__(self, r):
        self.r = r

    def __str__(self):
        return "-" + str(self.r)


class Inst:
    __slots__ = ("op", "ops", "mods", "rd", "wr", "kind", "tag", "cost", "label", "comment")

    def __init__(self, op, ops=(), mods="", tag=None, comment=None):
        self.op, self.ops, self.mods, self.tag, self.comment = op, list(ops), mods, tag, comment
        self.label = None
        self.rd, self.wr = set(), set()
        self._classify()

    def _rs(self, o):
        if isinstance(o, Neg):
            o = o.r
        return o.regs() if isinstance(o, R) else set()

    def _classify(self):
        op, ops = self.op, self.ops
        rd, wr = set(), set()
        if op == "label":
            self.kind = "label"
        elif op.startswith("v_mfma"):
            self.kind = "mfma"
            wr |= self._rs(ops[0])
            for o in ops[1:]:
                rd |= self._rs(o)
        elif op.startswith("v_"):
            self.kind = "trans" if op in TRANS else "valu"
            if op.startswith("v_permlane") and "swap" in op:
                for o in ops:
                    rd |= self._rs(o)
                    wr |= self._rs(o)
            elif op == "v_nop":
                pass
            else:
                wr |= self._rs(ops[0])
                for o in ops[1:]:
                    rd |= self._rs(o)
                if op.startswith("v_fmac") or op.startswith("v_pk_fmac") or op.startswith("v_dot2c"):
                    rd |= self._rs(ops[0])
        elif op.startswith("ds_"):
            self.kind = "ds"
            if op.startswith("ds_write"):
                for o in ops:
                    rd |= self._rs(o)
            else:
                wr |= self._rs(ops[0])
                for o in ops[1:]:
                    rd |= self._rs(o)
        elif op.startswith("buffer_") or op.startswith("global_"):
            self.kind = "vmem"
            if op in ("buffer_wbl2", "buffer_inv"):
                pass
            elif "load" in op and " lds" in (" " + self.mods):
                for o in ops:
                    rd |= self._rs(o)
                rd |= {("m0", 0)}
            elif "load" in op:
                wr |= self._rs(ops[0])
                for o in ops[1:]:
                    rd |= self._rs(o)
            elif "atomic" in op:
                for o in ops:
                    rd |= self._rs(o)
                if "sc0" in self.mods.split():
                    wr |= self._rs(ops[0])
            else:
                for o in ops:
                    rd |= self._rs(o)
        elif op.startswith("s_load") or op.startswith("s_memtime") or op.startswith("s_memrealtime") or op.startswith("s_buffer_load") or op.startswith("s_atomic"):
            self.kind = "smem"
            wr |= self._rs(ops[0])
            for o in ops[1:]:
                rd |= self._rs(o)
        elif op.startswith("s_"):
            self.kind = "salu"
            if any(op.startswith(p) for p in NO_DST_S):
                for o in ops:
                    rd |= self._rs(o)
            else:
                wr |= self._rs(ops[0])
                for o in ops[1:]:
                    rd |= self._rs(o)
                if "saveexec" in op:
                    wr |= {("exec", 0)}
                if op in ("s_addk_i32", "s_mulk_i32"):
                    rd |= self._rs(ops[0])
            if op.startswith("s_cbranch_vcc"):
                rd |= {("vcc", 0)}
        else:
            raise ValueError("unknown op " + op)
        self.rd, self.wr = rd, wr
        k = self.kind
        if k == "trans":
            self.cost = 8
        elif k == "mfma":
            self.cost = 8
        elif k == "vmem":
            self.cost = 8
        elif k == "label":
            self.cost = 0
        elif op == "s_nop":
            self.cost = 4 * (int(ops[0]) + 1)
        else:
            self.cost = 4

    def states(self):
        if self.kind == "label":
            return 0
        if self.op == "s_nop":
            return int(self.ops[0]) + 1
        return 1

    def text(self):
        if STORE_MODS and self.op.startswith("buffer_store") and self.tag != "final":
            if STORE_MODS not in self.mods:
                self.mods = self.mods + " " + STORE_MODS
        if self.kind == "label":
            return "%s:" % self.ops[0]
        t = self.op
        if self.ops:
            t += " " + ", ".join(_fmt(o) for o in self.ops)
        if self.mods:
            t += " " + self.mods
        if self.comment:
            t += "   ; " + self.comment
        return "    " + t


def _fmt(o):
    if isinstance(o, float):
        if o in (0.5, -0.5, 1.0, -1.0, 2.0, -2.0, 4.0, -4.0):
            return repr(o)
        if o == 0.0:
            return "0"
        import struct
        return "0x%08x" % struct.unpack("<I", struct.pack("<f", o))[0]
    if isinstance(o, int):
        if -16 <= o <= 64:
            return str(o)
        return "0x%x" % (o & 0xFFFFFFFF)
    return str(o)


def mfma_passes(op):
    return 8 if "32x32" in op else 4


class Emitter:
    def __init__(self):
        self.insts = []
        self.lgkm = []
        self.vm = []
        self.auto = True

    def raw(self, inst):
        self.insts.append(inst)
        return inst

    def label(self, name):
        self.raw(Inst("label", [name]))

    def _need(self, fifo, regs):
        last = -1
        for i, (wr, tag) in enumerate(fifo):
            if wr & regs:
                last = i
        if last < 0:
            return None
        return len(fifo) - 1 - last

    def _emit_wait(self, vm=None, lgkm=None):
        parts = []
        if vm is not None:
            assert vm <= 63
            parts.append("vmcnt(%d)" % vm)
            self.vm = self.vm[len(self.vm) - vm:] if vm else []
        if lgkm is not None:
            assert lgkm <= 15
            parts.append("lgkmcnt(%d)" % lgkm)
            self.lgkm = self.lgkm[len(self.lgkm) - lgkm:] if lgkm else []
        if parts:
            self.raw(Inst("s_waitcnt", [" ".join(parts)]))

    def I(self, op, *ops, mods="", tag=None, comment=None):
        inst = Inst(op, ops, mods, tag, comment)
        return self.emit(inst)

    def emit(self, inst):
        if self.auto and inst.kind != "label":
            touched = inst.rd | inst.wr
            nl = self._need(self.lgkm, touched)
            nv = self._need(self.vm, touched)
            if inst.kind == "ds" and len(self.lgkm) >= 15:
                nl = 8 if nl is None else min(nl, 8)
            if inst.kind == "vmem" and len(self.vm) >= 63:
                nv = 62 if nv is None else min(nv, 62)
            if nl is not None or nv is not None:
                self._emit_wait(vm=nv, lgkm=nl)
        self.raw(inst)
        if inst.kind == "ds":
            self.lgkm.append((set(inst.wr), inst.tag))
        elif inst.kind == "vmem":
            self.vm.append((set(inst.wr), inst.tag))
        return inst

    def wait_vm_tag(self, pred):
        last = -1
        for i, (wr, tag) in enumerate(self.vm):
            if pred(tag):
                last = i
        if last >= 0:
            self._emit_wait(vm=len(self.vm) - 1 - last)

    def wait_all(self, vm=True, lgkm=True):
        self._emit_wait(vm=0 if vm else None, lgkm=0 if lgkm else None)

    def wait_lgkm0(self):
        if self.lgkm:
            self._emit_wait(lgkm=0)

    def state(self):
        return ([(frozenset(w), t) for w, t in self.lgkm], [(frozenset(w), t) for w, t in self.vm])

    def set_state(self, st):
        self.lgkm = [(set(w), t) for w, t in st[0]]
        self.vm = [(set(w), t) for w, t in st[1]]

    def text(self):
        return "\n".join(i.text() for i in fix_hazards(self.insts)) + "\n"


def _req(p, c):
    req = 0
    pk, ck = p.kind, c.kind
    if pk in ("valu", "trans"):
        pw_v = {r for r in p.wr if r[0] in ("v", "a")}
        pw_s = {r for r in p.wr if r[0] in ("s", "vcc")}
        if ck == "mfma" and (pw_v & c.rd):
            req = max(req, 2)
        if pk == "trans" and ck in ("valu", "trans", "mfma") and (pw_v & c.rd):
            req = max(req, 1)
        if ck == "valu" and c.op.startswith("v_permlane") and (pw_v & c.rd):
            req = max(req, 2)
        if ck == "valu" and (c.op.startswith("v_readlane") or c.op.startswith("v_readfirstlane")) and (pw_v & c.rd):
            req = max(req, 1)
        if ck in ("valu", "trans") and "dpp" in c.mods.lower().replace("row_", "dpp_").replace("quad_perm", "dpp_") and (pw_v & c.rd):
            req = max(req, 2)
        if pw_s:
            if ck in ("valu", "trans", "mfma") and (pw_s & c.rd):
                req = max(req, 4 if c.op.startswith("v_readlane") or c.op.startswith("v_writelane") else 2)
            if ck == "vmem" and (pw_s & c.rd):
                req = max(req, 5)
            if ck in ("salu", "smem") and (pw_s & c.rd):
                req = max(req, 1)
    elif pk == "mfma":
        n = mfma_passes(p.op)
        big = 12 if n == 8 else 8
        if ck == "mfma":
            cC = c._rs(c.ops[3])
            cAB = c._rs(c.ops[1]) | c._rs(c.ops[2])
            if p.wr & cAB:
                req = max(req, big)
            if p.wr & cC:
                same = (isinstance(c.ops[3], R) and c.ops[3].k == p.ops[0].k and c.ops[3].i == p.ops[0].i
                        and c.ops[3].n == p.ops[0].n and mfma_passes(c.op) == n)
                if not same:
                    req = max(req, big - 2)
            if (p.wr & c.wr) and not (p.wr & cC):
                req = max(req, big - 2)
        elif ck in ("valu", "trans", "vmem", "ds"):
            if p.wr & (c.rd | c.wr):
                req = max(req, big)
            if ck in ("valu", "trans"):
                pC = p._rs(p.ops[3])
                if pC & c.wr:
                    req = max(req, 7 if n == 8 else 3)
    elif pk == "salu":
        if ("m0", 0) in p.wr and ck == "vmem" and ("m0", 0) in c.rd:
            req = max(req, 1)
    elif pk == "vmem":
        if "store" in p.op and ("x4" in p.op or "x3" in p.op):
            data = p._rs(p.ops[0]) if p.op.startswith("buffer_") else p._rs(p.ops[1])
            if data & c.wr:
                req = max(req, 2 if ck in ("valu", "trans") else 1)
    return req


def fix_hazards(insts, window=24):
    out = []
    for c in insts:
        if c.kind == "label":
            out.append(c)
            continue
        need = 0
        dist = 0
        j = len(out) - 1
        cnt = 0
        skip_labels = set()
        while j >= 0 and dist < 20 and cnt < 90:
            p = out[j]
            if p.kind == "label":
                skip_labels.add(p.ops[0])
            else:
                r = _req(p, c)
                if r > dist:
                    need = max(need, r - dist)
                if p.op.startswith("s_cbranch") and p.ops[0] in skip_labels:
                    dist = _dist_after_label(out, p.ops[0], skip_labels) + 1
                else:
                    dist += p.states()
            j -= 1
            cnt += 1
        while need > 0:
            n = min(need, 16)
            out.append(Inst("s_nop", [n - 1], comment="hazard"))
            need -= n
        out.append(c)
    return out


def _dist_after_label(out, label, _):
    d = 0
    j = len(out) - 1
    while not (out[j].kind == "label" and out[j].ops[0] == label):
        if out[j].kind != "label":
            d += out[j].states()
        j -= 1
    return d


def interleave(em, mfmas, fillers, budget=None, lead=0, close=False):
    n = len(mfmas)
    tot = sum(_fc(f) for f in fillers)
    ngap = max(n - 1, 1) if close else max(n, 1)
    per = tot / ngap if budget is None else budget
    fi = 0
    acc = 0.0
    for i, m in enumerate(mfmas):
        if close and i == n - 1:
            while fi < len(fillers):
                f = fillers[fi]
                _em(em, f[1] if isinstance(f, tuple) else f)
                fi += 1
        _em(em, m)
        target = per * (i + 1) + lead
        while fi < len(fillers):
            f = fillers[fi]
            mi = f[0] if isinstance(f, tuple) else -1
            if mi > i:
                break
            c = _fc(f)
            if acc + c * 0.5 > target:
                break
            _em(em, f[1] if isinstance(f, tuple) else f)
            acc += c
            fi += 1
    while fi < len(fillers):
        f = fillers[fi]
        _em(em, f[1] if isinstance(f, tuple) else f)
        fi += 1


def _fc(f):
    if isinstance(f, tuple):
        f = f[1]
    if isinstance(f, Inst):
        return f.cost
    return getattr(f, "cost", 4)


def _em(em, x):
    if isinstance(x, Inst):
        em.emit(x)
    else:
        x(em)


def kernel_header(name):
    return (".globl %s\n.p2align 8\n.type %s,@function\n%s:\n" % (name, name, name))


def kernel_desc(name, vgpr, sgpr, accum):
    return ("""
.amdhsa_kernel %s
  .amdhsa_next_free_vgpr %d
  .amdhsa_next_free_sgpr %d
  .amdhsa_accum_offset %d
  .amdhsa_group_segment_fixed_size 0
  .amdhsa_kernarg_size 104
  .amdhsa_user_sgpr_count 2
  .amdhsa_user_sgpr_kernarg_segment_ptr 1
  .amdhsa_system_sgpr_workgroup_id_x 1
.end_amdhsa_kernel
""" % (name, vgpr, sgpr, accum))
```

```python
import sys
sys.path.insert(0, "dev")
from asmlib import *
import gen
from gen import *

LOG2E = 1.4426950408889634
QSCALE = LOG2E / (128 ** 0.5)
GC1 = -2.0 * (2.0 / math.pi) ** 0.5 * LOG2E
GC2 = GC1 * 0.044715
THRESH = float(2 ** 24)
CR = [(r & 3) + 8 * (r >> 2) for r in range(16)]
EXP = set()


def gen_ka():
    e = Emitter()
    fused = True
    END = "K2_END"
    KVS = " sc1"
    gen.STAMP_MAP = None
    prologue(e, 256, END)
    S_WS, S_A, S_B, S_C, S_K, S_V = 32, 36, 40, 44, 48, 52
    sw, sh, sj = s(56), s(57), s(58)
    sM0, sTmp, sSt = s(59), s(60), s(61)
    sXA, sXB = s(62), s(63)
    sWgu, sWq0, sWq1 = s(64), s(65), s(66)
    sHo = [s(67), s(68)]
    sCo = [s(69), s(70)]
    sKg, sVg, sRot = s(71), s(72), s(73)
    sCnt, sKv, sRet, sBact, sThr = s(74), s(75), s(76), s(77), s(78)
    sT0, sT1 = s(79), s(80)
    sQA, sQB, sHc = s(81), s(30), s(31)
    MASKS = [s(40, 2), s(42, 2), s(44, 2), s(46, 2)]
    sXrow = [s(71 + i) for i in range(8)]
    sXlds, sWb = s(67), s(68)
    sWb2, sWb3 = s(69), s(70)
    sKo, sVo = s(100), s(101)
    sLN0, sLN1 = s(64), s(65)
    vl, vl16 = v(1), v(2)
    t0, t1, t2 = v(3), v(4), v(5)
    vtr = [v(6), v(7)]
    vWg = [v(8 + i) for i in range(4)]
    vWq = [v(12 + i) for i in range(4)]
    vC2 = v(16)
    GT = [v(17 + i) for i in range(8)]
    vXd = [v(17), v(18)]
    vXr = [v(19 + i) for i in range(4)]
    vLNa, vLNs = v(23), v(24)
    vPl, vOne, vPk = v(25), v(26), v(27)
    PFD = v(28, 4)
    X_, Y_, Z_ = v(64, 64), v(128, 64), v(192, 64)
    SET = [Y_, Z_, X_]
    pool = v(32, 32)
    WR = 98304
    XS_W = 24576

    if "latepf" not in EXP:
        code_prefetch(e, "ka", "ka_kernel", "TEXT_END", s(30, 2), t0, PFD, 1)
    e.I("v_and_b32", vl, 63, v(0))
    e.I("v_lshrrev_b32", t0, 6, v(0))
    e.I("v_lshlrev_b32", vl16, 4, vl)
    e.I("v_readfirstlane_b32", sw, t0)
    head_j(e, sh, sj, sT0, sT1)
    e.I("v_lshrrev_b32", t0, 3, vl)
    e.I("v_lshlrev_b32", t1, 10, t0)
    e.I("v_lshrrev_b32", t0, 1, t0)
    e.I("v_xor_b32", t0, t0, vl)
    e.I("v_and_b32", t0, 7, t0)
    e.I("v_lshlrev_b32", t2, 4, t0)
    e.I("v_add_u32", vXd[0], t1, t2)
    e.I("v_xor_b32", t2, 64, t2)
    e.I("v_add_u32", vXd[1], t1, t2)
    e.I("s_lshl_b32", sT0, sj, 18)
    e.I("s_lshl_b32", sT1, sw, 16)
    e.I("s_add_u32", sT0, sT0, sT1)
    for i in range(8):
        e.I("s_add_u32", sXrow[i], sT0, i * 8192 - (i & 3) * 1024)
    e.I("s_mul_i32", sXlds, sw, XS_W)
    wdma_voff(e, vWq, vl, (t0, t1), 8192)
    e.I("s_and_b32", sT0, sw, 1)
    e.I("s_lshl_b32", sT0, sT0, 18)
    e.I("s_lshr_b32", sT1, sw, 1)
    e.I("s_lshl_b32", sT1, sT1, 7)
    e.I("s_lshl_b32", s(3), sh, 8)
    e.I("s_add_u32", sWb, s(3), sT0)
    e.I("s_add_u32", sWb, sWb, sT1)
    e.I("s_lshl_b32", sT0, sw, 18)
    e.I("s_add_u32", sWb2, s(3), sT0)
    e.I("s_add_u32", sWb3, sWb2, 128)
    e.I("s_lshl_b32", sM0, sw, 12)
    e.I("s_add_u32", sM0, sM0, WR)
    e.I("s_waitcnt", "lgkmcnt(0)")
    make_srd(e, S_A, P_CKV, 2048 * 1024)
    make_srd(e, S_B, P_WUK, 512 * 8192)
    stamp(e, 0)

    def c_dma(p):
        out = []
        for i in range(8):
            if i % 4 == 0:
                out.append(I("s_add_u32", M0, sXlds, (p % 3) * 8192 + (i >> 2) * 4096))
            out.append(I("buffer_load_dwordx4", vXd[i & 1], s(S_A, 4), sXrow[i],
                         mods="offen offset:%d lds" % (1024 * (i & 3)), tag=("C", p)))
        out.append(I("v_add_u32", vXd[0], 128, vXd[0]))
        out.append(I("v_add_u32", vXd[1], 128, vXd[1]))
        return out

    def c_jobs(p):
        ins = c_dma(p)
        k = ("C", p)
        return [(k, ins[0:2]), (k, [ins[2]]), (k, [ins[3]]), (k, [ins[4]]), (k, ins[5:7]), (k, [ins[7]]), (k, [ins[8]]),
                (k, ins[9:12])]

    def x_piece(p):
        out = []
        k = ("X", p)
        for rb in range(2):
            sb = sXA if rb == 0 else sXB
            for i in range(4):
                ins = []
                if i == 0:
                    ins.append(I("s_add_u32", sT0 if rb == 0 else sT1, sb, p * 4096))
                ins.append(I("buffer_load_dwordx4", a((rb * 32 + 4 * p + i) * 4, 4), vl16, s(S_WS, 4),
                             sT0 if rb == 0 else sT1, mods="offen offset:%d%s" % (1024 * i, " sc1" if gen.LD_SC1 else ""), tag=k))
                out.append((k, ins))
        return out

    def kv_jobs(kind, st):
        k = (kind, st)
        srd = s(S_K if kind == "K" else S_V, 4)
        base = (0 if kind == "K" else 65536) + (st & 3) * 16384
        out = []
        for i in range(4):
            ins = []
            if i == 0:
                ins.append(I("s_lshl_b32", sSt, sw, 12))
                ins.append(I("s_add_u32", M0, sSt, base))
                ins.append(I("s_add_u32", sSt, sSt, st * 16384))
            ins.append(I("buffer_load_dwordx4", vl16, srd, sSt, mods="offen offset:%d sc1 lds" % (1024 * i), tag=k))
            out.append((k, ins))
        return out

    srcK = dict(srd=s(S_B, 4), voff=vWq, s_base=sWb, stage_stride=64 * 8192)
    srcV0 = dict(srd=s(S_C, 4), voff=vWq, s_base=sWb2, stage_stride=128 * 8192)
    srcV1 = dict(srd=s(S_C, 4), voff=vWq, s_base=sWb3, stage_stride=128 * 8192)
    srcGU = dict(srd=s(S_A, 4), voff=vWg, s_base=sWgu, stage_stride=64 * 3584)
    srcQ0 = dict(srd=s(S_B, 4), voff=vWq, s_base=sWq0, stage_stride=128 * 8192)
    srcQ1 = dict(srd=s(S_B, 4), voff=vWq, s_base=sWq1, stage_stride=128 * 8192)
    acc4 = lambda s0, s1: (lambda rb, nb: (s0, s1)[rb].sub(nb * 16, 16))
    acc2 = lambda s0: (lambda rb, nb: s0.sub((rb * 2 + nb) * 16, 16))
    accK, accV0, accV1, accGU = acc4(X_, Y_), acc2(Z_), acc2(X_), acc4(Y_, Z_)

    def store_block(d, sbase, rb, idxs):
        out = []
        for hh in range(2):
            out += cvt_inplace(d, hh)
            off = rb * 8192 + idxs[hh] * 1024
            out.append(I("s_add_u32", s(3), sbase, off & ~4095))
            out.append(I("buffer_store_dwordx4", d.sub(8 * hh, 4), vl16, s(S_WS, 4), s(3),
                         mods="offen offset:%d" % (off & 4095), tag="kv"))
        return out

    def epiK():
        return [x for rb in range(2) for nb in range(4) for x in store_block(accK(rb, nb), sKo, rb, (2 * nb, 2 * nb + 1))]

    def epiV(acc, o):
        return [x for rb in range(2) for nb in range(2) for x in store_block(acc(rb, nb), sVo, rb, (o + nb, o + 4 + nb))]

    def ln_stream():
        Z = Z_
        LN0, LN1 = Z.sub(0, 4), Z.sub(4, 4)
        X = [Z[8 + i] for i in range(16)]
        D = [Z[24 + i] for i in range(16)]
        sm, sw2, mean, var, pk, mb, vb, sd, rc = [Z[40 + i] for i in range(9)]
        ln = []
        A_ = lambda *x, **k: ln.append(I(*x, **k))
        for i in range(4):
            A_("v_lshlrev_b32", X[2 * i], 16, LN0[i])
            A_("v_and_b32", X[2 * i + 1], 0xffff0000, LN0[i])
            A_("v_lshlrev_b32", X[8 + 2 * i], 16, LN1[i])
            A_("v_and_b32", X[8 + 2 * i + 1], 0xffff0000, LN1[i])

        def allreduce32(r):
            for off in (0x041F, 0x081F, 0x101F, 0x201F, 0x401F):
                A_("ds_swizzle_b32", sw2, r, mods="offset:0x%04x" % off)
                A_("v_add_f32", r, r, sw2)
        A_("v_add_f32", sm, X[0], X[1])
        for i in range(2, 16):
            A_("v_add_f32", sm, sm, X[i])
        allreduce32(sm)
        A_("v_mul_f32", mean, 1.0 / 512, sm)
        for i in range(16):
            A_("v_sub_f32", D[i], X[i], mean)
        A_("v_mul_f32", sm, D[0], D[0])
        for i in range(1, 16):
            A_("v_fmac_f32", sm, D[i], D[i])
        allreduce32(sm)
        A_("v_mul_f32", var, 1.0 / 512, sm)
        A_("v_cvt_pk_bf16_f32", pk, mean, var)
        A_("v_lshlrev_b32", mb, 16, pk)
        A_("v_and_b32", vb, 0xffff0000, pk)
        A_("v_add_f32", vb, 1e-5, vb)
        A_("v_cvt_pk_bf16_f32", pk, vb, vb)
        A_("v_lshlrev_b32", vb, 16, pk)
        A_("v_sqrt_f32", vb, vb)
        A_("v_cvt_pk_bf16_f32", pk, vb, vb)
        A_("v_lshlrev_b32", sd, 16, pk)
        A_("v_rcp_f32", rc, sd)
        for i in range(16):
            A_("v_sub_f32", D[i], X[i], mb)
        for i in range(8):
            A_("v_cvt_pk_bf16_f32", pk, D[2 * i], D[2 * i + 1])
            A_("v_lshlrev_b32", D[2 * i], 16, pk)
            A_("v_and_b32", D[2 * i + 1], 0xffff0000, pk)
        for i in range(16):
            A_("v_mul_f32", X[i], D[i], rc)
            A_("v_fma_f32", D[i], Neg(X[i]), sd, D[i])
            A_("v_fmac_f32", X[i], D[i], rc)
        for i in range(4):
            A_("v_cvt_pk_bf16_f32", LN0[i], X[2 * i], X[2 * i + 1])
            A_("v_cvt_pk_bf16_f32", LN1[i], X[8 + 2 * i], X[8 + 2 * i + 1])
        if gen.FUSE3:
            A_("v_mov_b32", Z[50], 0)
            A_("v_mov_b32", Z[51], 0)
            A_("s_lshl_b32", sHc, s(2), 7)
            A_("s_add_u32", sHc, sHc, WS_F)
            A_("buffer_store_dwordx2", Z.sub(50, 2), "off", s(S_WS, 4), sHc, mods="sc1", tag="ln")
        A_("buffer_store_dwordx4", LN0, vLNs, s(S_WS, 4), sLN0, mods="offen", tag="ln")
        A_("buffer_store_dwordx4", LN1, vLNs, s(S_WS, 4), sLN1, mods="offen", tag="ln")
        return ln

    NOP = lambda em: None

    def gu_epi(rb):
        out = []
        for nb in range(2):
            g_, u_ = accGU(rb, nb), accGU(rb, nb + 2)
            for hh in range(2):
                for half4 in range(2):
                    rs = [8 * hh + 4 * half4 + i for i in range(4)]
                    T = GT[0:4]
                    T2 = GT[4:8]
                    for i, r in enumerate(rs):
                        out.append(I("v_mul_f32", T[i], g_[r], g_[r]))
                    for i, r in enumerate(rs):
                        out.append(I("v_fmaak_f32", T[i], T[i], vC2, GC1))
                    for i, r in enumerate(rs):
                        out.append(I("v_mul_f32", T[i], T[i], g_[r]))
                    for i, r in enumerate(rs):
                        out.append(I("v_exp_f32", T[i], T[i]))
                    for i, r in enumerate(rs):
                        out.append(I("v_mul_f32", T2[i], g_[r], u_[r]))
                    for i, r in enumerate(rs):
                        out.append(I("v_add_f32", T[i], 1.0, T[i]))
                    for i, r in enumerate(rs):
                        out.append(I("v_rcp_f32", T[i], T[i]))
                    out.append(I("s_nop", 0))
                    for i, r in enumerate(rs):
                        out.append(I("v_mul_f32", g_[r], T2[i], T[i]))
                out += cvt_inplace(g_, hh)
                off = (2 * nb + hh) * 1024
                out.append(I("buffer_store_dwordx4", g_.sub(8 * hh, 4), vl16, s(S_WS, 4), sHo[rb],
                             mods="offen offset:%d" % off))
        return out

    def qfrag(qb, sidx):
        b, t = sidx >> 1, sidx & 1
        return X_.sub((qb * 2 + (b & 1)) * 16 + 8 * t + (4 if b >= 2 else 0), 4)

    def q_epi(acc, b0):
        out = []
        for rb in range(2):
            for nb in range(2):
                d = acc(rb, nb)
                for r in range(16):
                    out.append(I("v_mul_f32", d[r], QSCALE, d[r]))
                for t in range(2):
                    f = qfrag(rb, 2 * (b0 + nb) + t)
                    for q in range(4):
                        out.append(I("v_cvt_pk_bf16_f32", f[q], d[8 * t + 2 * q], d[8 * t + 2 * q + 1]))
        return out

    class L(list):
        def I(self, op, *ops, **k):
            self.append(I(op, *ops, **k))

    def setup_b():
        o = L()
        o.I("s_lshl_b32", sT0, sj, 2)
        o.I("s_add_u32", sQB, sT0, sw)
        o.I("s_sub_u32", sQA, 60, sT0)
        o.I("s_add_u32", sQA, sQA, sw)
        o.I("s_lshl_b32", sXA, sQA, 15)
        o.I("s_lshl_b32", sXB, sQB, 15)
        if WS_XN:
            o.I("s_add_u32", sXA, sXA, WS_XN)
            o.I("s_add_u32", sXB, sXB, WS_XN)
        wdma_voff(o, vWg, vl, (t0, t1), 3584)
        o.I("s_and_b32", sT0, sw, 1)
        o.I("s_mul_i32", sT0, sT0, 32 * 3584)
        o.I("s_lshl_b32", sT1, sh, 7)
        o.I("s_add_u32", sWgu, sT0, sT1)
        o.I("s_mov_b32", sWq0, sWb2)
        o.I("s_mov_b32", sWq1, sWb3)
        o.I("s_lshl_b32", sHc, sh, 2)
        o.I("s_add_u32", sHc, sHc, 4)
        o.I("s_cmp_lt_u32", sw, 2)
        g = [I("s_cmp_lt_u32", sw, 2), I("s_cselect_b32", s(S_A), s(P_WG), s(P_WU)),
             I("s_cselect_b32", s(S_A + 1), s(P_WG + 1), s(P_WU + 1))]
        o.append(lambda em: emit_all(em, g))
        o.I("s_mov_b32", s(S_A + 2), 512 * 3584)
        make_srd(o, S_B, P_WQ, 512 * 8192)
        o.I("v_mov_b32", vC2, GC2)
        for qb, sq in ((0, sQA), (1, sQB)):
            o.I("s_mul_i32", sT0, sq, 368 * 1024)
            o.I("s_lshl_b32", sT1, sh, 12)
            o.I("s_add_u32", sHo[qb], sT0, sT1)
            o.I("s_add_u32", sHo[qb], sHo[qb], WS_A3 + 256 * 1024)
        return o

    def setup_c():
        o = L()
        for qb in range(2):
            o.I("s_lshl_b32", sSt, sh, 12)
            o.I("s_add_u32", sCo[qb], sHo[qb], sSt)
            o.I("s_sub_u32", sCo[qb], sCo[qb], 256 * 1024)
        for srd, off in ((S_K, WS_K), (S_V, WS_V)):
            g = [I("s_lshl_b32", sSt, sh, 19), I("s_add_u32", sSt, sSt, off), I("s_add_u32", s(srd), s(P_WS), sSt),
                 I("s_addc_u32", s(srd + 1), s(P_WS + 1), 0)]
            o.append(lambda em, g=g: emit_all(em, g))
            o.I("s_lshl_b32", sSt, sj, 15)
            o.I("s_sub_u32", s(srd + 2), 64 * 8192, sSt)
            o.I("s_mov_b32", s(srd + 3), 0x20000)
        o.I("s_lshl_b32", sKg, sw, 12)
        o.I("s_mov_b32", sVg, sKg)
        o.I("s_mov_b32", sThr, THRESH)
        return o

    def touch(srd, bufs):
        g = [I("s_lshl_b32", sCnt, s(2), 2), I("s_add_u32", sCnt, sCnt, sw), I("s_lshl_b32", sCnt, sCnt, 13)]
        p0, n0 = bufs[0]
        g += [I("s_mov_b32", s(srd), s(p0)), I("s_mov_b32", s(srd + 1), s(p0 + 1)), I("s_mov_b32", s(srd + 2), n0),
              I("s_mov_b32", s(srd + 3), 0x20000)]
        for (pp, nn), (_, nprev) in zip(bufs[1:], bufs[:-1]):
            g += [I("s_cmp_ge_u32", sCnt, s(srd + 2)),
                  I("s_cselect_b32", sRet, s(srd + 2), 0),
                  I("s_cselect_b32", s(srd), s(pp), s(srd)), I("s_cselect_b32", s(srd + 1), s(pp + 1), s(srd + 1)),
                  I("s_cselect_b32", s(srd + 2), nn, s(srd + 2)),
                  I("s_sub_u32", sCnt, sCnt, sRet)]
        g += [I("v_lshlrev_b32", t2, 7, vl),
              Untracked(I("buffer_load_dword", PFD[0], t2, s(srd, 4), sCnt, mods="offen"))]
        return [lambda em: emit_all(em, g)]

    def proj(with_gu, tagp):
        ln = ln_stream()
        eV1 = epiV(accV1, 2)
        eK = epiK()
        n34 = len(eK) if "nospread" in EXP else (len(eK) * 3) // 4
        segs = [Seg(4, "WX", accK, srcK, [NOP] * (len(ln) // 4) + ln + [NOP] * (2 * len(ln))),
                Seg(2, "XW", accV0, srcV0, merge(eK[:n34], setup_b())),
                Seg(2, "XW", accV1, srcV1, eK[n34:] + epiV(accV0, 0) + [NOP] * 12)]
        if with_gu:
            aQ0, aQ1 = acc2(X_), acc2(Y_)
            segs += [Seg(4, "WX", accGU, srcGU, eV1 + setup_c() + [NOP] * 70), Seg(2, "WX", aQ0, srcQ0, gu_epi(0)),
                     Seg(2, "WX", aQ1, srcQ1, gu_epi(1) + q_epi(aQ0, 0))]
        else:
            aQ0, aQ1 = acc2(Y_), acc2(Z_)
            segs += [Seg(2, "WX", aQ0, srcQ0, eV1 + setup_c() + [NOP] * 70), Seg(2, "WX", aQ1, srcQ1, q_epi(aQ0, 0))]
        G = Gemm(e, 4, vtr, pool, sM0, sTmp, segs)
        nst = len(G.stages)

        def c_reads(p):
            out = [(lambda em: G.need(("C", p))) if p else (lambda em: em.wait_vm_tag(lambda tg: tg == ("C", p)))]
            for sl in range(4):
                for rb in range(2):
                    out.append(I("ds_read_b128", a((rb * 32 + 4 * p + sl) * 4, 4), vXr[sl],
                                 mods="offset:%d" % ((p % 3) * 8192 + rb * 4096)))
            return out
        emit_all(e, c_dma(0))
        emit_all(e, G.w_dma(0))
        make_srd(e, S_K, P_X, 2048 * 1024)
        make_srd(e, S_C, P_WUV, 512 * 8192)
        make_srd(e, S_WS, P_WS, WS_BYTES)
        make_srd(e, S_DBG, P_DBG, 256)
        e.I("v_lshrrev_b32", t0, 5, v(0))
        e.I("v_lshlrev_b32", t1, 10, t0)
        e.I("v_and_b32", t2, 31, vl)
        e.I("v_lshlrev_b32", vLNa, 4, t2)
        e.I("v_add_u32", vLNa, vLNa, t1)
        e.I("v_lshrrev_b32", t1, 1, t2)
        e.I("v_lshlrev_b32", t1, 10, t1)
        e.I("v_and_b32", t2, 1, t2)
        e.I("v_lshlrev_b32", t2, 9, t2)
        e.I("v_add_u32", t1, t1, t2)
        e.I("v_lshlrev_b32", t0, 4, t0)
        e.I("v_add_u32", vLNs, t1, t0)
        e.I("s_lshl_b32", sT0, s(2), 13)
        e.I("buffer_load_dwordx4", Z_.sub(0, 4), vLNa, s(S_K, 4), sT0, mods="offen")
        e.I("buffer_load_dwordx4", Z_.sub(4, 4), vLNa, s(S_K, 4), sT0, mods="offen offset:512")
        if gen.PF_IN:
            e.I("s_lshr_b32", sT0, s(2), 3)
            e.I("s_lshl_b32", sT0, sT0, 2)
            e.I("s_add_u32", sT0, sT0, sw)
            e.I("v_lshrrev_b32", t0, 3, vl)
            e.I("v_lshlrev_b32", t0, 13, t0)
            e.I("v_and_b32", t1, 7, vl)
            e.I("v_lshlrev_b32", t1, 7, t1)
            e.I("v_add_u32", t0, t0, t1)
            e.I("s_and_b32", sT1, sT0, 63)
            e.I("s_lshl_b32", sT1, sT1, 16)
            e.I("s_and_b32", s(3), s(2), 7)
            e.I("s_lshl_b32", s(3), s(3), 10)
            e.I("s_add_u32", sT1, sT1, s(3))
            e.I("s_cmp_ge_u32", sT0, 64)
            e.I("s_cselect_b32", s(S_V), s(P_WUV), s(P_WUK))
            e.I("s_cselect_b32", s(S_V + 1), s(P_WUV + 1), s(P_WUK + 1))
            e.I("s_mov_b32", s(S_V + 2), 512 * 8192)
            e.I("s_mov_b32", s(S_V + 3), 0x20000)
            e.I("v_lshlrev_b32", t1, 7, vl)
            e.I("s_lshl_b32", sT0, sT0, 14)
            Untracked(I("buffer_load_dword", PFD[1], t1, s(S_A, 4), sT0, mods="offen"))(e)
            e.I("s_add_u32", sT0, sT0, 8192)
            Untracked(I("buffer_load_dword", PFD[2], t1, s(S_A, 4), sT0, mods="offen"))(e)
            Untracked(I("buffer_load_dword", PFD[3], t0, s(S_V, 4), sT1, mods="offen"))(e)
        emit_all(e, c_dma(1))
        emit_all(e, G.w_dma(1))
        emit_all(e, c_dma(2))
        if "own" in EXP:
            e.I("v_lshlrev_b32", t1, 10, vl)
            for p in range(3, 8):
                Untracked(I("buffer_load_dword", PFD[1], t1, s(S_A, 4), sXrow[0], mods="offen offset:%d" % (128 * p)))(e)
        if "ownw" in EXP:
            e.I("v_lshlrev_b32", t1, 13, vl)
            e.I("s_and_b32", sT0, sw, 1)
            e.I("s_mul_i32", sT0, sT0, 3 * 64 * 8192 - 32 * 8192)
            e.I("s_add_u32", sT0, sT0, sWb)
            for p in range(3):
                e.I("s_add_u32", sT1, sT0, (2 + p) * 64 * 8192)
                Untracked(I("buffer_load_dword", PFD[2], t1, s(S_B, 4), sT1, mods="offen"))(e)
        e.I("s_lshr_b32", sLN0, s(2), 2)
        e.I("s_lshl_b32", sLN0, sLN0, 15)
        e.I("s_and_b32", sLN1, s(2), 3)
        e.I("s_lshl_b32", sLN1, sLN1, 7)
        e.I("s_add_u32", sLN0, sLN0, sLN1)
        if WS_XN:
            e.I("s_add_u32", sLN0, sLN0, WS_XN)
        e.I("s_add_u32", sLN1, sLN0, 16384)
        e.I("v_and_b32", t0, 31, vl)
        e.I("v_lshlrev_b32", t1, 7, t0)
        e.I("v_add_u32", t1, sXlds, t1)
        e.I("v_bfe_u32", t0, vl, 1, 3)
        e.I("v_lshrrev_b32", t2, 5, vl)
        e.I("v_xor_b32", t0, t0, t2)
        for sl in range(4):
            e.I("v_xor_b32", t2, 2 * sl, t0)
            e.I("v_lshlrev_b32", t2, 4, t2)
            e.I("v_add_u32", vXr[sl], t1, t2)
        tr_addr(e, vtr[0], vtr[1], vl, (t0, t1, t2), WR, False)
        e.I("s_lshl_b32", sT0, sh, 6)
        e.I("s_lshl_b32", sT1, sj, 3)
        e.I("s_add_u32", sT0, sT0, sT1)
        e.I("s_lshl_b32", sT1, sw, 1)
        e.I("s_add_u32", sT0, sT0, sT1)
        e.I("s_lshl_b32", sT0, sT0, 13)
        e.I("s_add_u32", sKo, sT0, WS_K)
        e.I("s_add_u32", sVo, sT0, WS_V)
        emit_all(e, c_reads(0))
        if "early" in EXP and with_gu:
            stamp(e, 1)
        queue = []
        for g in range(2, nst):
            for p in {3: [3, 4], 4: [5, 6], 5: [7]}.get(g, []):
                queue += c_jobs(p)
            if 16 <= g < 20 and not with_gu:
                queue += x_piece(2 * (g - 16)) + x_piece(2 * (g - 16) + 1)
            queue += G.w_jobs(g)
            if with_gu:
                for p in {16: [0], 17: [1], 18: [2], 19: [3], 20: [4], 21: [5], 22: [6], 23: [7]}.get(g, []):
                    queue += x_piece(p)
        queue += kv_jobs("K", 0) + kv_jobs("K", 1) + kv_jobs("V", 0) + kv_jobs("K", 2) + kv_jobs("V", 1)
        queue += kv_jobs("K", 3) + kv_jobs("V", 2)
        LNSIG = 4
        CRD = {1: 1, 3: 2, 6: 3, 9: 4, 12: 5, 16: 6, 20: 7}
        XREL = {76: 0, 82: 1, 88: 2, 98: 3, 102: 4, 106: 5, 110: 6, 114: 7}
        pub = 20 if with_gu else 17
        kv_first = {("K", i) for i in range(3)} | {("V", 0), ("V", 1)}

        def pre_barrier(g):
            if g == LNSIG:
                e.wait_vm_tag(lambda tg: tg == "ln")
            if g == pub:
                e.wait_vm_tag(lambda tg: tg == "kv")

        def on_barrier(g):
            if "early" in EXP and with_gu and g in (0, 2, 4, 6):
                stamp(e, 2 + g // 2 if g < 6 else 4) if g < 6 else None
            if g == LNSIG:
                signal(e, sw, 0, "ln" + tagp, vOne)
            if g == 11:
                poll_issue(e, vPl, 0)
            if g == 12:
                poll_check(e, vPl, 0, 256, "ln" + tagp, sCnt, sRet)
                if not with_gu:
                    G.rel.add(("X", 0))
            if g == pub:
                signal(e, sw, sHc, "kv" + tagp, vOne)
            if g == nst - 6:
                poll_issue(e, vPk, sHc)
            if g == nst - 5:
                poll_check(e, vPk, sHc, 8, "kv" + tagp, sCnt, sRet)
                G.rel |= kv_first
            if g == nst - 2:
                G.rel.add(("V", 2))
                G.rel.add(("K", 3))

        def hook(t):
            sg, sidx, g, sl = G.ks[t]
            out = []
            if t in CRD:
                out += c_reads(CRD[t])
            if t == 0 or (t - 1) in CRD:
                pr = 0 if t == 0 else CRD[t - 1]

                def rel_c(em, pr=pr):
                    em.wait_lgkm0()
                    G.rel.add(("C", pr + 3))
                if t == 0:
                    out.append(rel_c)
                else:
                    rel_c(e)
            if t == 24 and "latepf" in EXP:
                out.append(lambda em: code_prefetch(em, "ka" + tagp, "ka_kernel", "TEXT_END", s(62, 2), t2, PFD, 1))
            if t == 33 and gen.PF_W:
                out += touch(S_K, [(P_WQ, 512 * 8192), (P_WG, 512 * 3584), (P_WU, 512 * 3584)])
            if t == 100 and gen.PF_W:
                out += touch(S_C, [(P_WO, 4096 * 1024), (P_WD, 1792 * 1024)])
            if not with_gu and 72 <= t <= 96 and t % 4 == 0:
                G.rel.add(("X", (t - 68) // 4))
            if with_gu and t in XREL:
                G.rel.add(("X", XREL[t]))
            if 96 <= t < 128 and sidx % 4 == 0:
                p = sidx // 4
                while any(k == ("X", p) for k, _ in G.q):
                    k, ins = G.q.pop(0)
                    assert k in G.rel, k
                    emit_all(e, ins)
            return out
        cnt = [1]

        def seg_end(sg):
            if cnt[0] in (1, 3, 4) or not with_gu and False:
                pass
            if with_gu:
                m = {1: 1, 2: 2, 3: 3, 4: 4}.get(cnt[0])
                if m and "early" not in EXP:
                    stamp(e, m)
            cnt[0] += 1
        G.run(hook, seg_end, queue=queue, released={("W", 2), ("W", 3)}, on_barrier=on_barrier,
              pace=gen.PACE, pre_barrier=pre_barrier)
        while G.q:
            k, ins = G.q.pop(0)
            assert k in G.rel, k
            emit_all(e, ins)
        emit_all(e, q_epi(aQ1, 2))
        tags = [t for _, t in e.vm]
        assert all(t in (("K", 3), ("V", 2), None, "pf") for t in tags[-8:]), tags[-8:]
        assert all(t not in (("K", 0), ("K", 1), ("V", 0)) for t in tags[-16:]), tags[-16:]
        e.wait_vm_tag(lambda tg: tg == ("K", 0))
        e.wait_lgkm0()

    e.I("s_cmp_ge_u32", sh, 28)
    e.I("s_cbranch_scc1", "K2_NOGU")
    st0 = e.state()
    proj(True, "a")
    e.I("s_branch", "K2_ATT")
    e.label("K2_NOGU")
    e.set_state(st0)
    proj(False, "b")
    e.label("K2_ATT")
    e.vm = []
    e.lgkm = []
    e.I("s_nop", 1)
    stamp(e, 5)

    S = lambda par, qb: SET[0].sub((par * 2 + qb) * 16, 16)
    NM = lambda qb: SET[1].sub(qb * 16, 16)
    P = lambda par, qb: SET[1].sub(32 + (par * 2 + qb) * 8, 8)
    O = lambda qb, b: a((qb * 4 + b) * 16, 16)
    KF = lambda fs, si: a(128 + 64 * fs + 4 * si, 4)
    VF = lambda fs, t, b: a(128 + 64 * fs + 32 + 4 * (t * 4 + b), 4)
    vKr, vVr = v(6), v(7)
    vDq = [v(8), v(9)]
    vL = [[v(10), v(11)], [v(24), v(25)]]
    vTs = [v(12), v(13)]
    vTs2 = [v(4, 2), v(4, 2)]
    vTm, vDqT = v(14), [v(15), v(16)]
    vNinf = v(17)
    ET = [v(18 + i) for i in range(6)]
    vQx, vKx, vNx, vInvB, vPw = v(26), v(27), v(28), v(29), v(30)
    RT = [v(32 + i) for i in range(32)]
    QS = 131072
    sPw = sBact

    e.I("v_and_b32", t0, 31, vl)
    e.I("v_lshrrev_b32", t1, 5, vl)
    e.I("v_lshlrev_b32", t1, 2, t1)
    e.I("v_sub_u32", t0, t0, t1)
    e.I("s_lshl_b32", sT0, sQA, 5)
    e.I("s_lshl_b32", sT1, sQB, 5)
    e.I("v_add_u32", vDq[0], sT0, t0)
    e.I("v_add_u32", vDq[1], sT1, t0)
    e.I("v_mov_b32", vNinf, 0xff800000)
    e.I("v_mov_b32", vL[0][0], 0)
    e.I("v_mov_b32", vL[0][1], 0)
    e.I("v_add_u32", vKr, 16384, vl16)
    e.I("v_add_u32", vVr, 65536, vl16)
    e.I("s_lshl_b32", sRot, sw, 12)
    e.I("s_add_u32", sKg, sKg, 4 * 16384)
    e.I("s_add_u32", sVg, sVg, 3 * 16384)
    e.I("s_mov_b32", sKv, 0)
    e.I("s_and_b32", sPw, sw, 1)
    e.I("s_lshl_b32", sPw, sPw, 13)
    e.I("s_lshl_b32", sT0, sw, 13)
    e.I("s_add_u32", sT0, sT0, QS)
    e.I("v_add_u32", vQx, sT0, vl16)
    e.I("s_barrier")
    for si in range(8):
        e.I("ds_read_b128", KF(1, si), vl16, mods="offset:%d" % (si * 1024))
    for si in range(8):
        e.I("ds_read_b128", KF(0, si), vl16, mods="offset:%d" % (8192 + si * 1024))
    for si in range(8):
        for qb in range(2):
            e.I(MFMA, S(0, qb), KF(1, si), qfrag(qb, si), 0 if si == 0 else S(0, qb))
        e.I("ds_write_b128", vQx, qfrag(0, si), mods="offset:%d" % (si * 1024))
    e.I("v_xor_b32", vQx, 8192, vQx)

    def mask_S_inplace(em, Sx, dq):
        for r0 in range(0, 16, 4):
            for i in range(4):
                em.I("v_cmp_ge_i32", MASKS[i], dq, CR[r0 + i])
            for i in range(4):
                em.I("v_cndmask_b32", Sx[r0 + i], vNinf, Sx[r0 + i], MASKS[i])

    def rowmax(em, Sx, dst, tmp):
        em.I("v_max3_f32", dst, Sx[0], Sx[1], Sx[2])
        for r in range(3, 15, 2):
            em.I("v_max3_f32", dst, dst, Sx[r], Sx[r + 1])
        em.I("v_max_f32", dst, dst, Sx[15])
        em.I("v_mov_b32", tmp, dst)
        em.I("v_permlane32_swap_b32", dst, tmp)
        em.I("v_max_f32", dst, dst, tmp)

    for qb in range(2):
        Sx = S(0, qb)
        if qb == 1:
            mask_S_inplace(e, Sx, vDq[1])
        rowmax(e, Sx, RT[0], RT[1])
        for r in range(16):
            e.I("v_sub_f32", Sx[r], Sx[r], RT[0])
        for r in range(16):
            e.I("v_sub_f32", NM(qb)[r], 0, RT[0])
    e.wait_lgkm0()
    stamp(e, 6)

    ret_labels = []

    def sm_stream(par, qb, masked):
        Sx, Px = S(par, qb), P(par, qb)
        out = []
        if masked:
            out.append(I("v_subrev_u32", vDqT[qb], sKv, vDq[qb]))

        def front(k):
            o = []
            if masked:
                o.append(I("v_cmp_ge_i32", MASKS[(2 * k) & 3], vDqT[qb], CR[2 * k]))
                o.append(I("v_cmp_ge_i32", MASKS[(2 * k + 1) & 3], vDqT[qb], CR[2 * k + 1]))
            o.append(I("v_exp_f32", ET[(2 * k) % 6], Sx[2 * k]))
            o.append(I("v_exp_f32", ET[(2 * k + 1) % 6], Sx[2 * k + 1]))
            return o

        def back(k):
            ta, tb = ET[(2 * k) % 6], ET[(2 * k + 1) % 6]
            o = []
            if masked:
                o.append(I("v_cndmask_b32", ta, 0, ta, MASKS[(2 * k) & 3]))
                o.append(I("v_cndmask_b32", tb, 0, tb, MASKS[(2 * k + 1) & 3]))
            if "pk" in EXP:
                pr = v(ta.i, 2)
                if k == 1:
                    o.append(I("v_pk_add_f32", vTs2[qb], v(ET[0].i, 2), pr))
                elif k > 1:
                    o.append(I("v_pk_add_f32", vTs2[qb], vTs2[qb], pr))
                if k == 7:
                    o.append(I("v_add_f32", vTs[qb], vTs2[qb][0], vTs2[qb][1]))
            elif k == 0:
                o.append(I("v_add_f32", vTs[qb], ta, tb))
            else:
                o.append(I("v_add_f32", vTs[qb], vTs[qb], ta))
                o.append(I("v_add_f32", vTs[qb], vTs[qb], tb))
            o.append(I("v_cvt_pk_bf16_f32", Px[k], ta, tb))
            return o
        out += front(0)
        for k in range(8):
            if k + 1 < 8:
                out += front(k + 1)
            out += back(k)
        return out

    def qk_mfmas(par):
        return [I(MFMA, S(1 - par, qb), KF(par, si), qfrag(qb, si), NM(qb) if si == 0 else S(1 - par, qb))
                for si in range(8) for qb in range(2)]

    def pv_mfmas(par, first=(), order=None):
        ms = []
        for t in range(2):
            for b in range(4):
                for qb in range(2):
                    c = 0 if (qb in first and t == 0) else O(qb, b)
                    ms.append(I(MFMA, O(qb, b), VF(par, t, b), P(1 - par, qb).sub(4 * t, 4), c))
        return ms

    def k_reads(par, vaddr, off):
        return [I("ds_read_b128", KF(1 - par, si), vaddr, mods="offset:%d" % (off + si * 1024)) for si in range(8)]

    def v_reads(par, vaddr, off):
        return [I("ds_read_b128", VF(1 - par, si >> 2, si & 3), vaddr, mods="offset:%d" % (off + si * 1024))
                for si in range(8)]

    def step(par, name, qk, masks, pv, rds, dma, kvinc, pv_first=(), extra=(), tail=(), late_rd=True):
        ms = (qk_mfmas(par) if qk else []) + (pv_mfmas(par, pv_first) if pv else [])
        val = sm_stream(par, 0, masks[0]) + sm_stream(par, 1, masks[1])
        if "nords" in EXP:
            rds = []
        if "nodma" in EXP:
            dma = None
        if "nosm" in EXP:
            val = val[:4]
        cut = (len(val) * (9 if late_rd else 7)) // 10
        fill = merge(val[:cut], rds) + val[cut:]
        if extra:
            fill = merge(fill, list(extra))
        if dma:
            fill = merge(fill, dma)
        fill.append(I("v_max_f32", vTm, vTs[0], vTs[1]))
        fill.append(I("v_cmp_nge_f32", VCC, sThr, vTm))
        rid = len(ret_labels)
        ret_labels.append(("K2_RET_%s" % name, par))
        fill.append(I("s_mov_b32", sRet, rid))
        for qb in range(2):
            fill.append(I("v_add_f32", vL[1 - par][qb], vL[par][qb], vTs[qb]))
        fill += list(tail)
        interleave(e, ms, fill, close=True)
        e.I("s_cbranch_vccnz", "K2_RARE%d" % par)
        e.label("K2_RET_%s" % name)
        e.I("s_add_u32", sKv, sKv, kvinc)
        for x in EXP:
            if x.startswith("pad"):
                for _ in range(int(x[3:])):
                    e.I("s_nop", 15)

    def dma_group(kind, vdelta=16384):
        srd = s(S_K if kind == "K" else S_V, 4)
        sg = sKg if kind == "K" else sVg
        out = []
        if kind == "K":
            out.append(I("s_mov_b32", M0, sRot))
        else:
            out.append(I("s_sub_u32", sSt, sRot, vdelta))
            out.append(I("s_and_b32", sSt, sSt, 0xffff))
            out.append(I("s_add_u32", M0, sSt, 65536))
        for i in range(4):
            x = I("buffer_load_dwordx4", vl16, srd, sg, mods="offen offset:%d%s lds" % (1024 * i, KVS))
            x.cost = 16
            out.append(x)
        out.append(I("s_add_u32", sg, sg, 16384))
        return out

    def top():
        e.I("s_waitcnt", "vmcnt(16) lgkmcnt(0)")
        e.lgkm = []
        e.vm = []
        if "nobar" not in EXP:
            e.I("s_barrier")

    ROT = [I("s_add_u32", sRot, sRot, 16384), I("s_and_b32", sRot, sRot, 0xffff)]

    def iter1(name, maskB, first=False, last=False):
        top()
        step(0, name + "a", True, (False, maskB), not first,
             merge([] if last else k_reads(0, vKr, 0), v_reads(0, vVr, 0)), dma_group("K"), 32)
        tail = [I("v_add_u32", vVr, 65536, vKr), I("v_add_u32", vKr, 16384, vKr), I("v_and_b32", vKr, 0xffff, vKr),
                I("s_sub_u32", sCnt, sCnt, 1)] + ROT
        if last:
            rq = [I("ds_read_b128", qfrag(1, si), vQx, mods="offset:%d" % (si * 1024)) for si in range(8)]
            rds = [I("v_add_u32", vKx, sPw, vKr)] + merge(k_reads(1, vKx, 0), v_reads(1, vVr, 8192)) + rq
        else:
            rds = merge(k_reads(1, vKr, 8192), v_reads(1, vVr, 8192))
        step(1, name + "b", not last, (False, maskB), True, rds, dma_group("V"), 32,
             pv_first=(0, 1) if first else (), tail=tail, late_rd=False)

    def step2(par, name, masked, qk=True, pv=True, pv_first=(), extra=()):
        top()
        tail = [I("v_add_u32", vKr, 16384, vKr), I("v_and_b32", vKr, 0xffff, vKr),
                I("v_add_u32", vVr, 16384, vVr), I("v_and_b32", vVr, 0xffff, vVr), I("v_or_b32", vVr, 0x10000, vVr)] + ROT
        step(par, name, qk, (masked, masked), pv, merge(k_reads(par, vKr, 0), v_reads(par, vVr, 0)),
             dma_group("K") + dma_group("V", 32768), 64, pv_first=pv_first, extra=extra, tail=tail, late_rd=False)

    def loop(name, body):
        e.I("s_cmp_eq_u32", sCnt, 0)
        e.I("s_cbranch_scc1", "K2_%s_X" % name)
        e.label("K2_%s_L" % name)
        body()
        e.I("s_cmp_lg_u32", sCnt, 0)
        e.I("s_cbranch_scc1", "K2_%s_L" % name)
        e.label("K2_%s_X" % name)

    def ctx_store(qb_o, scale_regs, sbase, src2=None):
        out = []
        n = 0
        for b in range(4):
            for t in range(2):
                T = [RT[(n % 3) * 8 + 8 + r] for r in range(8)]
                Tq = v(RT[(n % 3) * 8 + 8].i, 4)
                n += 1
                for r in range(8):
                    out.append(I("v_accvgpr_read_b32", T[r], O(qb_o, b)[8 * t + r]))
                for r in range(8):
                    out.append(I("v_mul_f32", T[r], T[r], scale_regs[0]))
                if src2 is not None:
                    for r in range(8):
                        out.append(I("v_fmac_f32", T[r], src2[b * 16 + 8 * t + r], scale_regs[1]))
                for q in range(4):
                    out.append(I("v_cvt_pk_bf16_f32", T[q], T[2 * q], T[2 * q + 1]))
                off = (2 * b + t) * 1024
                if off % 4096 == 0:
                    out.append(I("s_add_u32", sTmp, sbase, off))
                out.append(I("buffer_store_dwordx4", Tq, vl16, s(S_WS, 4), sTmp, mods="offen offset:%d" % (off & 4095),
                             tag="ctx"))
        return out

    iter1("V0", True, first=True)
    if gen.FUSE3:
        e.I("s_lshl_b32", sT0, sj, 7)
        e.I("s_add_u32", sT1, sT0, WS_F + 16 * 128)
        e.I("s_sub_u32", sT0, WS_F + 31 * 128, sT0)
        e.I("s_waitcnt", "vmcnt(8)")
        e.I("s_barrier")
        signal(e, sw, sT0, "ha", RT[3], srd=S_WS)
        signal(e, sw, sT1, "hb", RT[3], srd=S_WS)
    e.I("s_lshl_b32", sCnt, sj, 1)
    e.I("s_sub_u32", sCnt, sCnt, 1)
    e.I("s_max_i32", sCnt, sCnt, 0)
    loop("V1", lambda: iter1("V1", False))
    e.I("s_min_u32", sCnt, sj, 1)
    loop("V2", lambda: iter1("V2", True))
    iter1("V2L", True, last=True)
    stamp(e, 7)
    top()

    e.I("v_add_u32", vNx, 49152, vVr)
    e.I("v_and_b32", vNx, 0xc000, vNx)
    e.I("v_lshlrev_b32", t0, 2, vl)
    e.I("v_add_u32", vNx, vNx, t0)
    e.I("s_lshl_b32", sT0, sw, 8)
    e.I("s_add_u32", sT0, sT0, 65536)
    e.I("v_add_u32", vNx, sT0, vNx)
    e.I("ds_write_b32", vNx, NM(0)[0])
    e.I("v_xor_b32", vNx, 256, vNx)
    e.I("v_mov_b32", RT[0], vL[0][1])
    e.I("v_mov_b32", RT[1], vL[0][1])
    e.I("v_mov_b32", vL[1][0], vL[0][0])
    e.I("v_permlane32_swap_b32", RT[0], RT[1])
    e.I("v_mov_b32", vL[1][1], 0)
    e.I("v_add_f32", RT[0], RT[0], RT[1])
    e.I("v_rcp_f32", vInvB, RT[0])
    e.I("v_add_u32", vKr, sPw, vKr)
    e.I("v_add_u32", vVr, sPw, vVr)
    e.I("s_lshr_b32", sT0, sPw, 8)
    e.I("s_add_u32", sKv, sKv, sT0)
    e.I("s_lshl_b32", sT0, sT0, 1)
    e.I("v_add_u32", vDq[1], 32, vDq[0])
    e.I("v_subrev_u32", vDq[1], sT0, vDq[1])
    pvm = pv_mfmas(0)
    pvB = [m for m in pvm if m.ops[0].i >= 64]
    pvA = [m for m in pvm if m.ops[0].i < 64]
    interleave(e, pvB, k_reads(0, vKr, 0) + dma_group("K"))
    e.wait_lgkm0()
    e.I("s_barrier")
    e.I("ds_read_b32", RT[2], vNx)
    interleave(e, pvA[:4], ROT + [I("v_add_u32", vKr, 16384, vKr), I("v_and_b32", vKr, 0xffff, vKr)])
    interleave(e, pvA[4:], [I("v_mov_b32", NM(1)[r], RT[2]) for r in range(16)])
    bepi = ctx_store(1, [vInvB], sCo[1])
    nb1 = len(bepi) // 2
    qkm = qk_mfmas(0)
    interleave(e, [m for m in qkm if m.ops[0].i == S(1, 0).i] + [m for m in qkm if m.ops[0].i == S(1, 1).i], bepi[:nb1])
    step2(1, "P0", True, pv=False, extra=bepi[nb1:])
    step2(0, "P1", True, pv_first=(1,))
    e.I("s_cmp_eq_u32", sj, 7)
    e.I("s_cbranch_scc1", "K2_DRAIN")
    e.I("s_lshl_b32", sCnt, sj, 1)
    e.I("s_sub_u32", sCnt, 13, sCnt)

    def p2():
        step2(1, "P2a", False)
        step2(0, "P2b", False, extra=[I("s_sub_u32", sCnt, sCnt, 1)])
    loop("P2", p2)
    step2(1, "P3", True)
    step2(0, "P4", True, qk=False)
    e.label("K2_DRAIN")
    e.I("s_waitcnt", "lgkmcnt(0)")
    e.lgkm = []
    for m in pv_mfmas(1):
        e.emit(m)
    stamp(e, 8)
    MS = 17408
    e.I("s_mul_i32", sT0, sw, MS)
    e.I("v_add_u32", vQx, sT0, vl16)
    e.I("v_lshlrev_b32", t0, 2, vl)
    e.I("v_add_u32", vNx, sT0, t0)
    e.I("s_waitcnt", "vmcnt(0)")
    e.I("s_barrier")
    e.I("ds_write_b32", vNx, NM(1)[0], mods="offset:16384")
    e.I("ds_write_b32", vNx, vL[1][1], mods="offset:16640")
    for b in range(4):
        for i in range(4):
            e.I("ds_write_b128", vQx, O(1, b).sub(4 * i, 4), mods="offset:%d" % ((b * 4 + i) * 1024))
    e.I("s_xor_b32", sT1, sw, 1)
    e.I("s_mul_i32", sT0, sT1, MS)
    e.I("v_add_u32", vQx, sT0, vl16)
    e.I("v_add_u32", vNx, sT0, t0)
    e.wait_lgkm0()
    e.I("s_barrier")
    nm2, l2, nm, f1, f2, lt, tq = RT[0], RT[1], RT[2], RT[3], RT[4], RT[5], RT[6]
    e.I("ds_read_b32", nm2, vNx, mods="offset:16384")
    e.I("ds_read_b32", l2, vNx, mods="offset:16640")
    O2 = SET[0]
    for i in range(16):
        e.I("ds_read_b128", O2.sub(4 * i, 4), vQx, mods="offset:%d" % (i * 1024))
    e.I("v_min_f32", nm, NM(0)[0], nm2)
    e.I("v_sub_f32", f1, nm, NM(0)[0])
    e.I("v_sub_f32", f2, nm, nm2)
    e.I("v_exp_f32", f1, f1)
    e.I("v_exp_f32", f2, f2)
    e.I("v_mul_f32", lt, vL[1][0], f1)
    e.I("v_fmac_f32", lt, l2, f2)
    e.I("v_mov_b32", tq, lt)
    e.I("v_permlane32_swap_b32", lt, tq)
    e.I("v_add_f32", lt, lt, tq)
    e.I("v_rcp_f32", lt, lt)
    e.I("v_mul_f32", f1, f1, lt)
    e.I("v_mul_f32", f2, f2, lt)
    emit_all(e, ctx_store(0, [f1, f2], sCo[0], src2=O2))
    stamp(e, 9)
    if gen.FUSE3:
        import gen_k3
        gen_k3.gen_k3(e)
    else:
        stamp_flush(e, 0, s(S_WS, 4), sw, 10)
        e.I("s_endpgm")

    for par in range(2):
        e.label("K2_RARE%d" % par)
        e.vm, e.lgkm = [], []
        e.I("s_nop", 15)
        e.I("s_nop", 7)
        for qb in range(2):
            Sx, Sn, Px = S(par, qb), S(1 - par, qb), P(par, qb)
            dq, dl, f, tmp = RT[0], RT[1], RT[2], RT[3]
            e.I("v_subrev_u32", dq, sKv, vDq[qb])
            mask_S_inplace(e, Sx, dq)
            rowmax(e, Sx, dl, tmp)
            e.I("v_max_f32", dl, 0, dl)
            e.I("v_sub_f32", f, 0, dl)
            e.I("v_exp_f32", f, f)
            for r in range(16):
                e.I("v_sub_f32", Sx[r], Sx[r], dl)
            e.I("v_mul_f32", vL[1 - par][qb], vL[par][qb], f)
            for r in range(16):
                e.I("v_exp_f32", RT[8 + r], Sx[r])
            for r in range(16):
                e.I("v_sub_f32", Sn[r], Sn[r], dl)
            for r in range(16):
                e.I("v_add_f32", vL[1 - par][qb], vL[1 - par][qb], RT[8 + r])
            for k in range(8):
                e.I("v_cvt_pk_bf16_f32", Px[k], RT[8 + 2 * k], RT[9 + 2 * k])
            for r in range(16):
                e.I("v_sub_f32", NM(qb)[r], NM(qb)[r], dl)
            for b in range(4):
                for r0 in range(0, 16, 8):
                    for r in range(8):
                        e.I("v_accvgpr_read_b32", RT[8 + r], O(qb, b)[r0 + r])
                    for r in range(8):
                        e.I("v_mul_f32", RT[8 + r], RT[8 + r], f)
                    for r in range(8):
                        e.I("v_accvgpr_write_b32", O(qb, b)[r0 + r], RT[8 + r])
        e.I("s_nop", 3)
        mine = [(i, l) for i, (l, pp) in enumerate(ret_labels) if pp == par]
        for i, l in mine[:-1]:
            e.I("s_cmp_eq_u32", sRet, i)
            e.I("s_cbranch_scc1", l)
        e.I("s_branch", mine[-1][1])
    e.label(END)
    e.I("s_endpgm")
    return e.text(), dict(vgpr=512, sgpr=102, accum=256, grid=256, block=256, lds=163840)
```

```python
import sys, math
sys.path.insert(0, "dev")
from asmlib import *

NAME = "recurrent_scan__compressed_kv_cla__geglu_ffn__prompt"
WS_XN = 0x0000000
WS_K = 0x0200000
WS_V = 0x1200000
WS_A3 = 0x2200000
WS_F = 0x4800000
WS_BYTES = 0x10000000
MFMA = "v_mfma_f32_32x32x16_bf16"

P_X, P_CKV, P_WQ, P_WUK, P_WUV, P_WO, P_BX, P_WG, P_WU, P_WD, P_OUT, P_DBG, P_WS = [4 + 2 * i for i in range(13)]


def I(op, *ops, mods="", tag=None, comment=None):
    return Inst(op, ops, mods, tag, comment)


def emit_all(e, lst):
    for x in lst:
        if isinstance(x, tuple):
            x = x[1]
        if isinstance(x, Inst):
            e.emit(x)
        else:
            x(e)


PROFILE = False
STAMP_MAP = None
STAMP_RT = False
GEXP = set()
FUSE = True
FUSE3 = True
SINGLE = True
LD_SC1 = False
S_DBG = 96
PACE = 2
FAST0 = 96
WS_PROF = 0x8000000


def stamp(e, idx):
    if not PROFILE:
        return
    if STAMP_MAP is not None:
        if idx not in STAMP_MAP:
            return
        idx = STAMP_MAP[idx]
    assert idx < 10
    e.wait_lgkm0()
    e.I("s_memrealtime" if STAMP_RT else "s_memtime", s(82, 2))
    e.I("s_waitcnt", "lgkmcnt(0)")
    e.I("s_mov_b32", s(84 + idx), s(82))
    if idx == 0:
        e.I("s_memrealtime", s(82, 2))
        e.I("s_waitcnt", "lgkmcnt(0)")
        e.I("s_mov_b32", s(94), s(82))


def stamp_flush(e, kidx, srd_ws, sw, n, vt=(v(2), v(3))):
    if not PROFILE:
        return
    e.wait_all()
    e.I("s_memrealtime", s(82, 2))
    e.I("s_waitcnt", "lgkmcnt(0)")
    e.I("s_mov_b32", s(95), s(82))
    e.I("s_lshl_b32", s(82), s(2), 2)
    e.I("s_add_u32", s(82), s(82), sw)
    e.I("s_lshl_b32", s(82), s(82), 6)
    e.I("s_add_u32", s(82), s(82), WS_PROF + kidx * 65536)
    e.I("v_mov_b32", vt[1], 0)
    for i in list(range(n)) + [14, 15]:
        e.I("v_mov_b32", vt[0], s(84 + i if i < 10 else 80 + i))
        e.I("buffer_store_dword", vt[0], vt[1], srd_ws, s(82), mods="offen offset:%d" % (4 * i))


def prologue(e, nwg, endlabel):
    e.I("s_cmp_lt_u32", s(2), nwg)
    e.I("s_cbranch_scc1", "GO_" + endlabel)
    e.I("s_endpgm")
    e.label("GO_" + endlabel)
    e.I("s_load_dwordx16", s(4, 16), s(0, 2), 0)
    e.I("s_load_dwordx8", s(20, 8), s(0, 2), 64)
    e.I("s_load_dwordx2", s(28, 2), s(0, 2), 96)


PF_CODE = True
PF_W = True
PF_TLB = False
PF_IN = False


class Untracked:
    def __init__(self, inst):
        self.inst = inst
        self.cost = 8
        self.tag = "pf"

    def __call__(self, em):
        if len(em.vm) >= 63:
            em._emit_wait(vm=62)
        em.raw(self.inst)
        em.vm.append((set(), "pf"))


def code_prefetch(e, name, first, last, sbase, vtmp, vdst, nload):
    if not PF_CODE:
        return
    lab = "L_pc_" + name
    e.I("s_getpc_b64", sbase)
    e.label(lab)
    e.I("s_add_u32", sbase[0], sbase[0], "%s-%s" % (first, lab))
    e.I("s_addc_u32", sbase[1], sbase[1], -1)
    e.I("s_lshr_b32", s(3), s(2), 3)
    e.I("s_lshl_b32", s(3), s(3), 12)
    e.I("v_lshlrev_b32", vtmp, 4, v(0))
    e.I("v_add_u32", vtmp, s(3), vtmp)
    for i in range(nload):
        if i:
            e.I("v_add_u32", vtmp, 131072, vtmp)
        e.I("v_min_u32", vtmp, "%s-%s-16" % (last, first), vtmp)
        Untracked(I("global_load_dwordx4", vdst, vtmp, sbase))(e)


def make_srd(e, d, p, nbytes):
    e.I("s_mov_b32", s(d), s(p))
    e.I("s_mov_b32", s(d + 1), s(p + 1))
    e.I("s_mov_b32", s(d + 2), nbytes)
    e.I("s_mov_b32", s(d + 3), 0x20000)


def head_j(e, sh, sj, t0, t1):
    e.I("s_and_b32", t0, s(2), 7)
    e.I("s_lshl_b32", t0, t0, 2)
    e.I("s_bfe_u32", t1, s(2), (2 << 16) | 3)
    e.I("s_add_u32", sh, t0, t1)
    e.I("s_lshr_b32", sj, s(2), 5)


def tr_addr(e, dst0, dst1, vl, tmp, base, kperm):
    t0, t1, t2 = tmp
    e.I("v_lshrrev_b32", t0, 5, vl)
    e.I("v_lshlrev_b32", t0, (2 if kperm else 3) + 7, t0)
    e.I("v_bfe_u32", t1, vl, 2, 2)
    e.I("v_lshlrev_b32", t1, 7, t1)
    e.I("v_add_u32", t0, t0, t1)
    e.I("v_bfe_u32", t1, vl, 4, 1)
    e.I("v_lshlrev_b32", t1, 5, t1)
    e.I("v_add_u32", t0, t0, t1)
    e.I("v_and_b32", t1, 3, vl)
    e.I("v_lshlrev_b32", t1, 3, t1)
    e.I("v_add_u32", t0, t0, t1)
    if base is not None and not (isinstance(base, int) and base == 0):
        e.I("v_add_u32", t0, base, t0)
    e.I("v_bfe_u32", t2, vl, 3, 1)
    e.I("v_lshlrev_b32", t2, 6, t2)
    e.I("v_add_u32", dst0, t0, t2)
    e.I("v_xor_b32", t2, 64, t2)
    e.I("v_add_u32", dst1, t0, t2)


def wdma_voff(e, dsts, vl, tmp, rs):
    t0, t1 = tmp
    e.I("v_lshrrev_b32", t0, 3, vl)
    e.I("v_mul_u32_u24", t0, rs, t0)
    e.I("v_bfe_u32", t1, vl, 4, 1)
    e.I("v_lshlrev_b32", t1, 2, t1)
    e.I("v_xor_b32", t1, t1, vl)
    e.I("v_and_b32", t1, 7, t1)
    e.I("v_lshlrev_b32", t1, 4, t1)
    e.I("v_add_u32", dsts[0], t0, t1)
    for i in range(1, len(dsts)):
        e.I("v_add_u32", dsts[i], 8 * rs - 1024, dsts[i - 1])


def signal(e, sw, soff, name, vone, srd=None):
    e.I("s_cmp_lg_u32", sw, 0)
    e.I("s_cbranch_scc1", "L_sig_" + name)
    e.I("s_mov_b64", EXEC, 1)
    e.I("v_mov_b32", vone, 1)
    so, md = (0, "offset:%d" % soff) if isinstance(soff, int) else (soff, "")
    e.raw(I("buffer_atomic_add", vone, "off", s(S_DBG if srd is None else srd, 4), so, mods=md))
    e.I("s_mov_b64", EXEC, -1)
    e.label("L_sig_" + name)


def poll_issue(e, vp, soff, srd=None):
    so, md = (0, "offset:%d " % soff) if isinstance(soff, int) else (soff, "")
    e.I("buffer_load_dword", vp, "off", s(S_DBG if srd is None else srd, 4), so, mods=md + "sc1")


def poll_check(e, vp, soff, target, name, st, sspin, sleep=2, srd=None):
    e.I("v_readfirstlane_b32", st, vp)
    e.I("s_cmp_ge_u32", st, target)
    e.I("s_cbranch_scc1", "L_pollx_" + name)
    e.I("s_mov_b32", sspin, 1 << 16)
    e.label("L_poll_" + name)
    so, md = (0, "offset:%d " % soff) if isinstance(soff, int) else (soff, "")
    e.raw(I("buffer_load_dword", vp, "off", s(S_DBG if srd is None else srd, 4), so, mods=md + "sc1"))
    e.raw(I("s_waitcnt", "vmcnt(0)"))
    e.I("v_readfirstlane_b32", st, vp)
    e.I("s_sub_u32", sspin, sspin, 1)
    e.I("s_cmp_eq_u32", sspin, 0)
    e.I("s_cbranch_scc1", "L_pollx_" + name)
    e.I("s_cmp_ge_u32", st, target)
    e.I("s_cbranch_scc1", "L_pollx_" + name)
    e.I("s_sleep", sleep)
    e.I("s_branch", "L_poll_" + name)
    e.label("L_pollx_" + name)


class Seg:
    def __init__(self, nb, role, acc, src, fill=()):
        self.nb, self.role, self.acc, self.src, self.fill = nb, role, acc, src, list(fill)
        self.kps = 4 if nb == 4 else 8
        self.nst = 32 // self.kps


class Gemm:
    def __init__(self, e, ns, vtr, pool, s_m0, s_tmp, segs):
        self.e, self.ns, self.vtr, self.pool = e, ns, vtr, pool
        self.s_m0, self.s_tmp, self.segs = s_m0, s_tmp, segs
        self.ks = []
        self.stages = []
        for sg in segs:
            g0 = len(self.stages)
            for st in range(sg.nst):
                self.stages.append((sg, st))
            for sidx in range(32):
                self.ks.append((sg, sidx, g0 + sidx // sg.kps, sidx % sg.kps))

    def xfrag(self, rb, sidx):
        return a((rb * 32 + sidx) * 4, 4)

    def wfrag(self, t, nb):
        return self.pool.sub(((t & 1) * 4 + nb) * 4, 4)

    def w_reads(self, t):
        sg, sidx, g, sl = self.ks[t]
        out = []
        for nb in range(sg.nb):
            half, seg = nb >> 1, nb & 1
            f = self.wfrag(t, nb)
            for p in range(2):
                off = (g % self.ns) * 16384 + half * 8192 + (16 * sl + 4 * p) * 128
                out.append(I("ds_read_b64_tr_b16", f.sub(2 * p, 2), self.vtr[seg], mods="offset:%d" % off))
        return out

    def w_dma(self, g):
        sg, st = self.stages[g]
        src = sg.src
        out = [I("s_add_u32", M0, self.s_m0, (g % self.ns) * 16384),
               I("s_add_u32", self.s_tmp, src["s_base"], st * src["stage_stride"])]
        for i in range(4):
            out.append(I("buffer_load_dwordx4", src["voff"][i], src["srd"], self.s_tmp,
                         mods="offen offset:%d lds" % (1024 * i), tag=("W", g)))
        return out

    def mfmas(self, t):
        sg, sidx, g, sl = self.ks[t]
        out = []
        for nb in range(sg.nb):
            for rb in range(2):
                d = sg.acc(rb, nb)
                c = 0 if sidx == 0 else d
                w, x = self.wfrag(t, nb), self.xfrag(rb, sidx)
                out.append(I(MFMA, d, w, x, c) if sg.role == "WX" else I(MFMA, d, x, w, c))
        return out

    def run(self, hook=None, seg_end=None, queue=None, released=None, on_barrier=None, pace=2, pre_barrier=None):
        e = self.e
        nt = len(self.ks)
        nstage = len(self.stages)
        q = self.q = list(queue or [])
        rel = self.rel = set(released or [])
        st = {"n": 0, "last": -99}

        def need(key):
            while any(k == key for k, _ in q):
                k, insts = q.pop(0)
                assert k in rel, ("job needed before its slot is released", k)
                emit_all(e, insts)
            e.wait_vm_tag(lambda tg: tg == key)
        self.need = need

        def tick(em):
            st["n"] += 1
            backlog = sum(1 for k, _ in q[:14] if k in rel)
            if q and q[0][0] in rel and st["n"] - st["last"] >= (pace if (backlog < 14 and st["n"] > FAST0) else pace - 1):
                k, insts = q.pop(0)
                emit_all(e, insts)
                st["last"] = st["n"]
        tick.cost = 0
        need(("W", 0))
        e.I("s_barrier")
        emit_all(e, self.w_reads(0))
        for t in range(nt):
            sg, sidx, g, sl = self.ks[t]
            last = sl == sg.kps - 1
            if last and t + 1 < nt:
                if "g_nolgkm" not in GEXP:
                    e.wait_lgkm0()
                need(("W", g + 1))
                if pre_barrier:
                    pre_barrier(g)
                if "g_nobar" not in GEXP:
                    e.I("s_barrier")
                rel.add(("W", g + self.ns))
                if on_barrier:
                    on_barrier(g)
            rd = self.w_reads(t + 1) if t + 1 < nt else []
            ex = hook(t) if hook else []
            n = len(sg.fill)
            sf = sg.fill[(sidx * n) // 32: ((sidx + 1) * n) // 32]
            if "g_novalu" in GEXP:
                sf = [x for x in sf if not (isinstance(x, Inst) and x.kind in ("valu", "trans") and x.ops[0].i >= 17 and t >= 32)]
            if "g_nostore" in GEXP:
                sf = [x for x in sf if not (isinstance(x, Inst) and x.op.startswith("buffer_store") and t >= 32)]
            if "g_nord" in GEXP and t >= 32:
                rd = rd[:1]
            ex = ex + sf
            fill = merge(rd, ex)
            ms = []
            for m in self.mfmas(t):
                ms.append(Both(m, tick))
            interleave(e, ms, fill)
            if sidx == 31 and seg_end:
                seg_end(sg)

    def w_jobs(self, g):
        ins = self.w_dma(g)
        return [(("W", g), ins[0:3])] + [(("W", g), [x]) for x in ins[3:]]


class Both:
    def __init__(self, m, f):
        self.m, self.f = m, f
        self.cost = 8

    def __call__(self, em):
        em.emit(self.m)
        self.f(em)


def merge(x, y):
    out = []
    i = j = 0
    while i < len(x) or j < len(y):
        if j >= len(y) or (i < len(x) and i * len(y) <= j * len(x)):
            out.append(x[i]); i += 1
        else:
            out.append(y[j]); j += 1
    return out


def cvt_inplace(d, hh):
    return [I("v_cvt_pk_bf16_f32", d[8 * hh + q], d[8 * hh + 2 * q], d[8 * hh + 2 * q + 1]) for q in range(4)]


def gen_k1(e=None):
    global STAMP_MAP
    fused = e is not None
    if not fused:
        e = Emitter()
    END = "K2_END" if fused else "K1_END"
    STAMP_MAP = {0: 0, 3: 1, 6: 2} if fused else None
    prologue(e, 256, END)
    S_X, S_CKV, S_WK, S_WV, S_WS = 32, 36, 40, 44, 48
    sw, sh, sj = s(52), s(53), s(54)
    vl, vl16 = v(1), v(2)
    t0, t1, t2 = v(3), v(4), v(5)
    SET = [v(64, 64), v(128, 64), v(192, 64)]
    pool = v(32, 32)
    PFD = v(28, 4)
    code_prefetch(e, "k1", "ka_kernel" if fused else "k1_kernel", "TEXT_END", s(30, 2), t0, PFD, 1)
    e.I("v_and_b32", vl, 63, v(0))
    e.I("v_lshrrev_b32", t0, 6, v(0))
    e.I("v_lshlrev_b32", vl16, 4, vl)
    e.I("v_readfirstlane_b32", sw, t0)
    head_j(e, sh, sj, s(55), s(56))
    XS_BASE, XS_W = 65536, 24576
    vXd = [v(8), v(9)]
    e.I("v_lshrrev_b32", t0, 3, vl)
    e.I("v_lshlrev_b32", t1, 10, t0)
    e.I("v_lshrrev_b32", t0, 1, t0)
    e.I("v_xor_b32", t0, t0, vl)
    e.I("v_and_b32", t0, 7, t0)
    e.I("v_lshlrev_b32", t2, 4, t0)
    e.I("v_add_u32", vXd[0], t1, t2)
    e.I("v_xor_b32", t2, 64, t2)
    e.I("v_add_u32", vXd[1], t1, t2)
    sXrow = [s(60 + i) for i in range(8)]
    e.I("s_lshl_b32", s(58), sj, 18)
    e.I("s_lshl_b32", s(59), sw, 16)
    e.I("s_add_u32", s(58), s(58), s(59))
    for i in range(8):
        e.I("s_add_u32", sXrow[i], s(58), i * 8192 - (i & 3) * 1024)
    sXlds = s(68)
    e.I("s_mul_i32", sXlds, sw, XS_W)
    e.I("s_add_u32", sXlds, sXlds, XS_BASE)
    vW = [v(24 + i) for i in range(4)]
    wdma_voff(e, vW, vl, (t0, t1), 8192)
    sWb, sM0, sTmp, sWb2, sWb3 = s(69), s(70), s(71), s(80), s(81)
    e.I("s_and_b32", s(72), sw, 1)
    e.I("s_lshl_b32", s(72), s(72), 18)
    e.I("s_lshr_b32", s(73), sw, 1)
    e.I("s_lshl_b32", s(73), s(73), 7)
    e.I("s_lshl_b32", s(74), sh, 8)
    e.I("s_add_u32", sWb, s(74), s(72))
    e.I("s_add_u32", sWb, sWb, s(73))
    e.I("s_lshl_b32", s(72), sw, 18)
    e.I("s_add_u32", sWb2, s(74), s(72))
    e.I("s_add_u32", sWb3, sWb2, 128)
    e.I("s_lshl_b32", sM0, sw, 12)
    e.I("s_waitcnt", "lgkmcnt(0)")
    make_srd(e, S_CKV, P_CKV, 2048 * 1024)
    make_srd(e, S_WK, P_WUK, 512 * 8192)
    stamp(e, 0)

    def x_dma(p):
        out = []
        for i in range(8):
            if i % 4 == 0:
                out.append(I("s_add_u32", M0, sXlds, (p % 3) * 8192 + (i >> 2) * 4096))
            out.append(I("buffer_load_dwordx4", vXd[i & 1], s(S_CKV, 4), sXrow[i],
                         mods="offen offset:%d lds" % (1024 * (i & 3)), tag=("X", p)))
        out.append(I("v_add_u32", vXd[0], 128, vXd[0]))
        out.append(I("v_add_u32", vXd[1], 128, vXd[1]))
        return out

    vXr = [v(10 + i) for i in range(4)]

    def x_reads(p):
        out = [(lambda em: G.need(("X", p))) if p else (lambda em: em.wait_vm_tag(lambda tg: tg == ("X", p)))]
        for sl in range(4):
            for rb in range(2):
                out.append(I("ds_read_b128", a((rb * 32 + 4 * p + sl) * 4, 4), vXr[sl],
                             mods="offset:%d" % ((p % 3) * 8192 + rb * 4096)))
        return out

    srcK = dict(srd=s(S_WK, 4), voff=vW, s_base=sWb, stage_stride=64 * 8192)
    srcV0 = dict(srd=s(S_WV, 4), voff=vW, s_base=sWb2, stage_stride=128 * 8192)
    srcV1 = dict(srd=s(S_WV, 4), voff=vW, s_base=sWb3, stage_stride=128 * 8192)
    vtr = [v(14), v(15)]
    accA = lambda rb, nb: SET[rb].sub(nb * 16, 16)
    accB = lambda rb, nb: SET[2].sub((rb * 2 + nb) * 16, 16)
    accC = lambda rb, nb: SET[0].sub((rb * 2 + nb) * 16, 16)
    sKo, sVo, sSt = s(76), s(77), s(79)

    def store_block(d, sbase, rb, idxs):
        out = []
        for hh in range(2):
            out += cvt_inplace(d, hh)
            off = rb * 8192 + idxs[hh] * 1024
            out.append(I("s_add_u32", sSt, sbase, off & ~4095))
            out.append(I("buffer_store_dwordx4", d.sub(8 * hh, 4), vl16, s(S_WS, 4), sSt,
                         mods="offen offset:%d" % (off & 4095), tag="kv"))
        return out
    epiA = []
    for rb in range(2):
        for nb in range(4):
            epiA += store_block(accA(rb, nb), sKo, rb, (2 * nb, 2 * nb + 1))
    epiB, epiC = [], []
    for rb in range(2):
        for nb in range(2):
            epiB += store_block(accB(rb, nb), sVo, rb, (nb, 4 + nb))
            epiC += store_block(accC(rb, nb), sVo, rb, (2 + nb, 6 + nb))

    Z = SET[2]
    vLNa, vLNs = v(6), v(7)
    LN0, LN1 = Z.sub(0, 4), Z.sub(4, 4)
    X = [Z[8 + i] for i in range(16)]
    D = [Z[24 + i] for i in range(16)]
    sm, sw2, mean, var, pk, mb, vb, sd, rc = [Z[40 + i] for i in range(9)]
    ln = []
    A_ = lambda *x, **k: ln.append(I(*x, **k))
    for i in range(4):
        A_("v_lshlrev_b32", X[2 * i], 16, LN0[i])
        A_("v_and_b32", X[2 * i + 1], 0xffff0000, LN0[i])
        A_("v_lshlrev_b32", X[8 + 2 * i], 16, LN1[i])
        A_("v_and_b32", X[8 + 2 * i + 1], 0xffff0000, LN1[i])

    def allreduce32(r):
        for off in (0x041F, 0x081F, 0x101F, 0x201F, 0x401F):
            A_("ds_swizzle_b32", sw2, r, mods="offset:0x%04x" % off)
            A_("v_nop"); A_("v_nop"); A_("v_nop")
            A_("v_add_f32", r, r, sw2)
    A_("v_add_f32", sm, X[0], X[1])
    for i in range(2, 16):
        A_("v_add_f32", sm, sm, X[i])
    allreduce32(sm)
    A_("v_mul_f32", mean, 1.0 / 512, sm)
    for i in range(16):
        A_("v_sub_f32", D[i], X[i], mean)
    A_("v_mul_f32", sm, D[0], D[0])
    for i in range(1, 16):
        A_("v_fmac_f32", sm, D[i], D[i])
    allreduce32(sm)
    A_("v_mul_f32", var, 1.0 / 512, sm)
    A_("v_cvt_pk_bf16_f32", pk, mean, var)
    A_("v_lshlrev_b32", mb, 16, pk)
    A_("v_and_b32", vb, 0xffff0000, pk)
    A_("v_add_f32", vb, 1e-5, vb)
    A_("v_cvt_pk_bf16_f32", pk, vb, vb)
    A_("v_lshlrev_b32", vb, 16, pk)
    A_("v_sqrt_f32", vb, vb)
    A_("v_cvt_pk_bf16_f32", pk, vb, vb)
    A_("v_lshlrev_b32", sd, 16, pk)
    A_("v_rcp_f32", rc, sd)
    for i in range(16):
        A_("v_sub_f32", D[i], X[i], mb)
    for i in range(8):
        A_("v_cvt_pk_bf16_f32", pk, D[2 * i], D[2 * i + 1])
        A_("v_lshlrev_b32", D[2 * i], 16, pk)
        A_("v_and_b32", D[2 * i + 1], 0xffff0000, pk)
    for i in range(16):
        A_("v_mul_f32", X[i], D[i], rc)
        A_("v_fma_f32", D[i], Neg(X[i]), sd, D[i])
        A_("v_fmac_f32", X[i], D[i], rc)
    for i in range(4):
        A_("v_cvt_pk_bf16_f32", LN0[i], X[2 * i], X[2 * i + 1])
        A_("v_cvt_pk_bf16_f32", LN1[i], X[8 + 2 * i], X[8 + 2 * i + 1])
    A_("buffer_store_dwordx4", LN0, vLNs, s(S_WS, 4), s(74), mods="offen", tag="ln")
    A_("buffer_store_dwordx4", LN1, vLNs, s(S_WS, 4), s(75), mods="offen", tag="ln")
    ln = [x for x in ln if x.op != "v_nop"]
    pad = [lambda em: None] * (len(ln) // 2)
    for p_ in pad:
        pass
    segs = [Seg(4, "WX", accA, srcK, pad + ln), Seg(2, "XW", accB, srcV0, epiA), Seg(2, "XW", accC, srcV1, epiB)]
    G = Gemm(e, 4, vtr, pool, sM0, sTmp, segs)
    emit_all(e, x_dma(0))
    emit_all(e, G.w_dma(0))
    emit_all(e, x_dma(1))
    emit_all(e, G.w_dma(1))

    def x_jobs(p):
        ins = x_dma(p)
        k = ("X", p)
        return [(k, ins[0:2]), (k, [ins[2]]), (k, [ins[3]]), (k, [ins[4]]), (k, ins[5:7]), (k, [ins[7]]), (k, [ins[8]]),
                (k, ins[9:12])]
    queue = []
    for g in range(2, 16):
        if g < 8:
            queue += x_jobs(g)
        queue += G.w_jobs(g)
    make_srd(e, S_X, P_X, 2048 * 1024)
    make_srd(e, S_WV, P_WUV, 512 * 8192)
    make_srd(e, S_WS, P_WS, WS_BYTES)
    if fused:
        make_srd(e, S_DBG, P_DBG, 256)
    e.I("v_lshrrev_b32", t0, 5, v(0))
    e.I("v_lshlrev_b32", t1, 10, t0)
    e.I("v_and_b32", t2, 31, vl)
    e.I("v_lshlrev_b32", vLNa, 4, t2)
    e.I("v_add_u32", vLNa, vLNa, t1)
    e.I("v_lshrrev_b32", t1, 1, t2)
    e.I("v_lshlrev_b32", t1, 10, t1)
    e.I("v_and_b32", t2, 1, t2)
    e.I("v_lshlrev_b32", t2, 9, t2)
    e.I("v_add_u32", t1, t1, t2)
    e.I("v_lshlrev_b32", t0, 4, t0)
    e.I("v_add_u32", vLNs, t1, t0)
    e.I("s_lshl_b32", s(57), s(2), 13)
    e.I("buffer_load_dwordx4", LN0, vLNa, s(S_X, 4), s(57), mods="offen")
    e.I("buffer_load_dwordx4", LN1, vLNa, s(S_X, 4), s(57), mods="offen offset:512")
    if PF_TLB:
        e.I("s_cmp_eq_u32", sw, 0)
        e.I("s_cselect_b32", s(74), 20, 4)
        e.I("v_lshlrev_b32", t0, s(74), vl)
        e.I("s_mov_b32", s(75), 64 << 20)
        Untracked(I("buffer_load_dword", PFD[0], t0, s(S_WS, 4), 0, mods="offen"))(e)
        Untracked(I("buffer_load_dword", PFD[0], t0, s(S_WS, 4), s(75), mods="offen"))(e)
    e.I("s_lshr_b32", s(74), s(2), 2)
    e.I("s_lshl_b32", s(74), s(74), 15)
    e.I("s_and_b32", s(75), s(2), 3)
    e.I("s_lshl_b32", s(75), s(75), 7)
    e.I("s_add_u32", s(74), s(74), s(75))
    if WS_XN:
        e.I("s_add_u32", s(74), s(74), WS_XN)
    e.I("s_add_u32", s(75), s(74), 16384)
    e.I("v_and_b32", t0, 31, vl)
    e.I("v_lshlrev_b32", t1, 7, t0)
    e.I("v_add_u32", t1, sXlds, t1)
    e.I("v_bfe_u32", t0, vl, 1, 3)
    e.I("v_lshrrev_b32", t2, 5, vl)
    e.I("v_xor_b32", t0, t0, t2)
    for sl in range(4):
        e.I("v_xor_b32", t2, 2 * sl, t0)
        e.I("v_lshlrev_b32", t2, 4, t2)
        e.I("v_add_u32", vXr[sl], t1, t2)
    tr_addr(e, vtr[0], vtr[1], vl, (t0, t1, t2), 0, False)
    e.I("s_lshl_b32", s(78), sh, 6)
    e.I("s_lshl_b32", s(79), sj, 3)
    e.I("s_add_u32", s(78), s(78), s(79))
    e.I("s_lshl_b32", s(79), sw, 1)
    e.I("s_add_u32", s(78), s(78), s(79))
    e.I("s_lshl_b32", s(78), s(78), 13)
    e.I("s_add_u32", sKo, s(78), WS_K)
    e.I("s_add_u32", sVo, s(78), WS_V)
    stamp(e, 1)
    emit_all(e, x_reads(0))
    stamp(e, 2)

    def hook(t):
        g, sl = t >> 2, t & 3
        out = []
        if t < 32:
            if g < 7 and sl == 2:
                out += x_reads(g + 1)
        elif PF_W and t % 8 == 1:
            n = (t - 32) // 8
            if n == 0:
                out.append(I("s_lshl_b32", s(31), s(2), 2))
                out.append(I("s_add_u32", s(31), s(31), sw))
                out.append(I("s_lshl_b32", s(30), s(31), 12))
                out.append(I("s_lshl_b32", s(31), s(31), 11))
            p_, nbytes, so, off = ((P_WQ, 512 * 8192, s(30), n * 1024) if n < 4 else
                                   (P_WG if n < 6 else P_WU, 512 * 3584, s(31), (n & 1) * 1024))
            if n in (0, 4, 6):
                out += [I("s_mov_b32", s(S_X), s(p_)), I("s_mov_b32", s(S_X + 1), s(p_ + 1)),
                        I("s_mov_b32", s(S_X + 2), nbytes)]
            out.append(Untracked(I("buffer_load_dwordx4", PFD, vl16, s(S_X, 4), so, mods="offen offset:%d" % off)))
        return out
    cnt = [3]

    def seg_end(sg):
        stamp(e, cnt[0]); cnt[0] += 1
    def on_barrier(g):
        G.rel.add(("X", g + 3))
        G.rel.add(("X", g + 4))
        if fused and g == 10:
            signal(e, sw, 0, "ln", v(22))
        if fused and g == 13:
            poll_issue(e, v(23), 0)

    def pre_barrier(g):
        if fused and g == 10:
            e.wait_vm_tag(lambda tg: tg == "ln")
    G.run(hook, seg_end, queue=queue, released={("W", 2), ("W", 3), ("X", 2)},
          on_barrier=on_barrier, pace=PACE, pre_barrier=pre_barrier)
    emit_all(e, epiC)
    stamp(e, 6)
    if fused:
        return
    if PROFILE:
        e.wait_all()
    stamp(e, 7)
    stamp_flush(e, 0, s(S_WS, 4), sw, 8)
    e.label(END)
    e.I("s_endpgm")
    return e.text(), dict(vgpr=512, sgpr=102, accum=256, grid=256, block=256, lds=163840)


def gen_ka():
    import gen_ka as m
    return m.gen_ka()


KERNELS = [("k1_kernel", gen_k1)]
try:
    from gen_k2 import gen_k2
    KERNELS.append(("k2_kernel", gen_k2))
    from gen_k3 import gen_k3, gen_k4
    KERNELS.append(("k3_kernel", gen_k3))

except ImportError as ex:
    print("note:", ex)


def build(kernels=None):
    ks = KERNELS if kernels is None else kernels
    if FUSE:
        ks = [("ka_kernel", gen_ka)] + ([] if FUSE3 else ks[2:])
    hdr = open("cdna_kernels/%s.s.ref" % NAME).read().split("; Override")[0]
    out = [hdr]
    bodies, descs = [], []
    for name, fn in ks:
        txt, d = fn()
        out.append("; @launch kernel=%s grid=(%d,1,1) block=(%d,1,1) lds=%d\n" % (name, d["grid"], d["block"], d["lds"]))
        bodies.append(kernel_header(name) + txt)
        descs.append(".p2align 6" + kernel_desc(name, d["vgpr"], d["sgpr"], d["accum"]))
    out.append('.amdgcn_target "amdgcn-amd-amdhsa--gfx950"\n.text\n')
    out += bodies
    out.append("TEXT_END:\n")
    out.append('.section .rodata,"a"\n')
    out += descs
    txt = "".join(out)
    if SINGLE and len(ks) == 1:
        txt = txt.replace("; @launch kernel=ka_kernel grid", "; @launch grid").replace("ka_kernel", NAME + "_kernel")
    return txt
```

```python
import sys
sys.path.insert(0, "dev")
from asmlib import *
import gen
from gen import *

LOG2E = 1.4426950408889634
QSCALE = LOG2E / (128 ** 0.5)
GC1 = -2.0 * (2.0 / math.pi) ** 0.5 * LOG2E
GC2 = GC1 * 0.044715
THRESH = float(2 ** 24)
CR = [(r & 3) + 8 * (r >> 2) for r in range(16)]
EXP = set()


def gen_ka():
    e = Emitter()
    fused = True
    END = "K2_END"
    KVS = " sc1"
    gen.STAMP_MAP = None
    prologue(e, 256, END)
    S_WS, S_A, S_B, S_C, S_K, S_V = 32, 36, 40, 44, 48, 52
    sw, sh, sj = s(56), s(57), s(58)
    sM0, sTmp, sSt = s(59), s(60), s(61)
    sXA, sXB = s(62), s(63)
    sWgu, sWq0, sWq1 = s(64), s(65), s(66)
    sHo = [s(67), s(68)]
    sCo = [s(69), s(70)]
    sKg, sVg, sRot = s(71), s(72), s(73)
    sCnt, sKv, sRet, sBact, sThr = s(74), s(75), s(76), s(77), s(78)
    sT0, sT1 = s(79), s(80)
    sQA, sQB, sHc = s(81), s(30), s(31)
    MASKS = [s(40, 2), s(42, 2), s(44, 2), s(46, 2)]
    sXrow = [s(71 + i) for i in range(8)]
    sXlds, sWb = s(67), s(68)
    sWb2, sWb3 = s(69), s(70)
    sKo, sVo = s(100), s(101)
    sLN0, sLN1 = s(64), s(65)
    vl, vl16 = v(1), v(2)
    t0, t1, t2 = v(3), v(4), v(5)
    vtr = [v(6), v(7)]
    vWg = [v(8 + i) for i in range(4)]
    vWq = [v(12 + i) for i in range(4)]
    vC2 = v(16)
    GT = [v(17 + i) for i in range(8)]
    vXd = [v(17), v(18)]
    vXr = [v(19 + i) for i in range(4)]
    vLNa, vLNs = v(23), v(24)
    vPl, vOne, vPk = v(25), v(26), v(27)
    PFD = v(28, 4)
    X_, Y_, Z_ = v(64, 64), v(128, 64), v(192, 64)
    SET = [Y_, Z_, X_]
    pool = v(32, 32)
    WR = 98304
    XS_W = 24576

    if "latepf" not in EXP:
        code_prefetch(e, "ka", "ka_kernel", "TEXT_END", s(30, 2), t0, PFD, 1)
    e.I("v_and_b32", vl, 63, v(0))
    e.I("v_lshrrev_b32", t0, 6, v(0))
    e.I("v_lshlrev_b32", vl16, 4, vl)
    e.I("v_readfirstlane_b32", sw, t0)
    head_j(e, sh, sj, sT0, sT1)
    e.I("v_lshrrev_b32", t0, 3, vl)
    e.I("v_lshlrev_b32", t1, 10, t0)
    e.I("v_lshrrev_b32", t0, 1, t0)
    e.I("v_xor_b32", t0, t0, vl)
    e.I("v_and_b32", t0, 7, t0)
    e.I("v_lshlrev_b32", t2, 4, t0)
    e.I("v_add_u32", vXd[0], t1, t2)
    e.I("v_xor_b32", t2, 64, t2)
    e.I("v_add_u32", vXd[1], t1, t2)
    e.I("s_lshl_b32", sT0, sj, 18)
    e.I("s_lshl_b32", sT1, sw, 16)
    e.I("s_add_u32", sT0, sT0, sT1)
    for i in range(8):
        e.I("s_add_u32", sXrow[i], sT0, i * 8192 - (i & 3) * 1024)
    e.I("s_mul_i32", sXlds, sw, XS_W)
    def w_setup():
        wdma_voff(e, vWq, vl, (t0, t1), 8192)
        e.I("s_and_b32", sT0, sw, 1)
        e.I("s_lshl_b32", sT0, sT0, 18)
        e.I("s_lshr_b32", sT1, sw, 1)
        e.I("s_lshl_b32", sT1, sT1, 7)
        e.I("s_lshl_b32", s(3), sh, 8)
        e.I("s_add_u32", sWb, s(3), sT0)
        e.I("s_add_u32", sWb, sWb, sT1)
        e.I("s_lshl_b32", sT0, sw, 18)
        e.I("s_add_u32", sWb2, s(3), sT0)
        e.I("s_add_u32", sWb3, sWb2, 128)
        e.I("s_lshl_b32", sM0, sw, 12)
        e.I("s_add_u32", sM0, sM0, WR)
        make_srd(e, S_B, P_WUK, 512 * 8192)
    if "early_w" in EXP:
        w_setup()
    e.I("s_waitcnt", "lgkmcnt(0)")
    make_srd(e, S_A, P_CKV, 2048 * 1024)
    if "early_w" in EXP:
        make_srd(e, S_B, P_WUK, 512 * 8192)
    stamp(e, 0)

    def c_dma(p):
        out = []
        for i in range(8):
            if i % 4 == 0:
                out.append(I("s_add_u32", M0, sXlds, (p % 3) * 8192 + (i >> 2) * 4096))
            out.append(I("buffer_load_dwordx4", vXd[i & 1], s(S_A, 4), sXrow[i],
                         mods="offen offset:%d lds" % (1024 * (i & 3)), tag=("C", p)))
        out.append(I("v_add_u32", vXd[0], 128, vXd[0]))
        out.append(I("v_add_u32", vXd[1], 128, vXd[1]))
        return out

    def c_jobs(p):
        ins = c_dma(p)
        k = ("C", p)
        return [(k, ins[0:2]), (k, [ins[2]]), (k, [ins[3]]), (k, [ins[4]]), (k, ins[5:7]), (k, [ins[7]]), (k, [ins[8]]),
                (k, ins[9:12])]

    def x_piece(p):
        out = []
        k = ("X", p)
        for rb in range(2):
            sb = sXA if rb == 0 else sXB
            for i in range(4):
                ins = []
                if i == 0:
                    ins.append(I("s_add_u32", sT0 if rb == 0 else sT1, sb, p * 4096))
                ins.append(I("buffer_load_dwordx4", a((rb * 32 + 4 * p + i) * 4, 4), vl16, s(S_WS, 4),
                             sT0 if rb == 0 else sT1, mods="offen offset:%d%s" % (1024 * i, " sc1" if gen.LD_SC1 else ""), tag=k))
                out.append((k, ins))
        return out

    def kv_jobs(kind, st):
        k = (kind, st)
        srd = s(S_K if kind == "K" else S_V, 4)
        base = (0 if kind == "K" else 65536) + (st & 3) * 16384
        out = []
        for i in range(4):
            ins = []
            if i == 0:
                ins.append(I("s_lshl_b32", sSt, sw, 12))
                ins.append(I("s_add_u32", M0, sSt, base))
                ins.append(I("s_add_u32", sSt, sSt, st * 16384))
            ins.append(I("buffer_load_dwordx4", vl16, srd, sSt, mods="offen offset:%d sc1 lds" % (1024 * i), tag=k))
            out.append((k, ins))
        return out

    srcK = dict(srd=s(S_B, 4), voff=vWq, s_base=sWb, stage_stride=64 * 8192)
    srcV0 = dict(srd=s(S_C, 4), voff=vWq, s_base=sWb2, stage_stride=128 * 8192)
    srcV1 = dict(srd=s(S_C, 4), voff=vWq, s_base=sWb3, stage_stride=128 * 8192)
    srcGU = dict(srd=s(S_A, 4), voff=vWg, s_base=sWgu, stage_stride=64 * 3584)
    srcQ0 = dict(srd=s(S_B, 4), voff=vWq, s_base=sWq0, stage_stride=128 * 8192)
    srcQ1 = dict(srd=s(S_B, 4), voff=vWq, s_base=sWq1, stage_stride=128 * 8192)
    acc4 = lambda s0, s1: (lambda rb, nb: (s0, s1)[rb].sub(nb * 16, 16))
    acc2 = lambda s0: (lambda rb, nb: s0.sub((rb * 2 + nb) * 16, 16))
    accK, accV0, accV1, accGU = acc4(X_, Y_), acc2(Z_), acc2(X_), acc4(Y_, Z_)

    def store_block(d, sbase, rb, idxs):
        out = []
        for hh in range(2):
            out += cvt_inplace(d, hh)
            off = rb * 8192 + idxs[hh] * 1024
            out.append(I("s_add_u32", s(3), sbase, off & ~4095))
            out.append(I("buffer_store_dwordx4", d.sub(8 * hh, 4), vl16, s(S_WS, 4), s(3),
                         mods="offen offset:%d" % (off & 4095), tag="kv"))
        return out

    def epiK():
        return [x for rb in range(2) for nb in range(4) for x in store_block(accK(rb, nb), sKo, rb, (2 * nb, 2 * nb + 1))]

    def epiV(acc, o):
        return [x for rb in range(2) for nb in range(2) for x in store_block(acc(rb, nb), sVo, rb, (o + nb, o + 4 + nb))]

    def ln_stream():
        Z = Z_
        LN0, LN1 = Z.sub(0, 4), Z.sub(4, 4)
        X = [Z[8 + i] for i in range(16)]
        D = [Z[24 + i] for i in range(16)]
        sm, sw2, mean, var, pk, mb, vb, sd, rc = [Z[40 + i] for i in range(9)]
        ln = []
        A_ = lambda *x, **k: ln.append(I(*x, **k))
        for i in range(4):
            A_("v_lshlrev_b32", X[2 * i], 16, LN0[i])
            A_("v_and_b32", X[2 * i + 1], 0xffff0000, LN0[i])
            A_("v_lshlrev_b32", X[8 + 2 * i], 16, LN1[i])
            A_("v_and_b32", X[8 + 2 * i + 1], 0xffff0000, LN1[i])

        def allreduce32(r):
            for off in (0x041F, 0x081F, 0x101F, 0x201F, 0x401F):
                A_("ds_swizzle_b32", sw2, r, mods="offset:0x%04x" % off)
                A_("v_add_f32", r, r, sw2)
        A_("v_add_f32", sm, X[0], X[1])
        for i in range(2, 16):
            A_("v_add_f32", sm, sm, X[i])
        allreduce32(sm)
        A_("v_mul_f32", mean, 1.0 / 512, sm)
        for i in range(16):
            A_("v_sub_f32", D[i], X[i], mean)
        A_("v_mul_f32", sm, D[0], D[0])
        for i in range(1, 16):
            A_("v_fmac_f32", sm, D[i], D[i])
        allreduce32(sm)
        A_("v_mul_f32", var, 1.0 / 512, sm)
        A_("v_cvt_pk_bf16_f32", pk, mean, var)
        A_("v_lshlrev_b32", mb, 16, pk)
        A_("v_and_b32", vb, 0xffff0000, pk)
        A_("v_add_f32", vb, 1e-5, vb)
        A_("v_cvt_pk_bf16_f32", pk, vb, vb)
        A_("v_lshlrev_b32", vb, 16, pk)
        A_("v_sqrt_f32", vb, vb)
        A_("v_cvt_pk_bf16_f32", pk, vb, vb)
        A_("v_lshlrev_b32", sd, 16, pk)
        A_("v_rcp_f32", rc, sd)
        for i in range(16):
            A_("v_sub_f32", D[i], X[i], mb)
        for i in range(8):
            A_("v_cvt_pk_bf16_f32", pk, D[2 * i], D[2 * i + 1])
            A_("v_lshlrev_b32", D[2 * i], 16, pk)
            A_("v_and_b32", D[2 * i + 1], 0xffff0000, pk)
        for i in range(16):
            A_("v_mul_f32", X[i], D[i], rc)
            A_("v_fma_f32", D[i], Neg(X[i]), sd, D[i])
            A_("v_fmac_f32", X[i], D[i], rc)
        for i in range(4):
            A_("v_cvt_pk_bf16_f32", LN0[i], X[2 * i], X[2 * i + 1])
            A_("v_cvt_pk_bf16_f32", LN1[i], X[8 + 2 * i], X[8 + 2 * i + 1])
        if gen.FUSE3:
            A_("v_mov_b32", Z[50], 0)
            A_("v_mov_b32", Z[51], 0)
            A_("s_lshl_b32", sHc, s(2), 7)
            A_("s_add_u32", sHc, sHc, WS_F)
            A_("buffer_store_dwordx2", Z.sub(50, 2), "off", s(S_WS, 4), sHc, mods="sc1", tag="ln")
        A_("buffer_store_dwordx4", LN0, vLNs, s(S_WS, 4), sLN0, mods="offen", tag="ln")
        A_("buffer_store_dwordx4", LN1, vLNs, s(S_WS, 4), sLN1, mods="offen", tag="ln")
        return ln

    NOP = lambda em: None

    def gu_epi(rb):
        out = []
        for nb in range(2):
            g_, u_ = accGU(rb, nb), accGU(rb, nb + 2)
            for hh in range(2):
                for half4 in range(2):
                    rs = [8 * hh + 4 * half4 + i for i in range(4)]
                    T = GT[0:4]
                    T2 = GT[4:8]
                    for i, r in enumerate(rs):
                        out.append(I("v_mul_f32", T[i], g_[r], g_[r]))
                    for i, r in enumerate(rs):
                        out.append(I("v_fmaak_f32", T[i], T[i], vC2, GC1))
                    for i, r in enumerate(rs):
                        out.append(I("v_mul_f32", T[i], T[i], g_[r]))
                    for i, r in enumerate(rs):
                        out.append(I("v_exp_f32", T[i], T[i]))
                    for i, r in enumerate(rs):
                        out.append(I("v_mul_f32", T2[i], g_[r], u_[r]))
                    for i, r in enumerate(rs):
                        out.append(I("v_add_f32", T[i], 1.0, T[i]))
                    for i, r in enumerate(rs):
                        out.append(I("v_rcp_f32", T[i], T[i]))
                    out.append(I("s_nop", 0))
                    for i, r in enumerate(rs):
                        out.append(I("v_mul_f32", g_[r], T2[i], T[i]))
                out += cvt_inplace(g_, hh)
                off = (2 * nb + hh) * 1024
                out.append(I("buffer_store_dwordx4", g_.sub(8 * hh, 4), vl16, s(S_WS, 4), sHo[rb],
                             mods="offen offset:%d" % off))
        return out

    def qfrag(qb, sidx):
        b, t = sidx >> 1, sidx & 1
        return X_.sub((qb * 2 + (b & 1)) * 16 + 8 * t + (4 if b >= 2 else 0), 4)

    def q_epi(acc, b0):
        out = []
        for rb in range(2):
            for nb in range(2):
                d = acc(rb, nb)
                for r in range(16):
                    out.append(I("v_mul_f32", d[r], QSCALE, d[r]))
                for t in range(2):
                    f = qfrag(rb, 2 * (b0 + nb) + t)
                    for q in range(4):
                        out.append(I("v_cvt_pk_bf16_f32", f[q], d[8 * t + 2 * q], d[8 * t + 2 * q + 1]))
        return out

    class L(list):
        def I(self, op, *ops, **k):
            self.append(I(op, *ops, **k))

    def setup_b():
        o = L()
        o.I("s_lshl_b32", sT0, sj, 2)
        o.I("s_add_u32", sQB, sT0, sw)
        o.I("s_sub_u32", sQA, 60, sT0)
        o.I("s_add_u32", sQA, sQA, sw)
        o.I("s_lshl_b32", sXA, sQA, 15)
        o.I("s_lshl_b32", sXB, sQB, 15)
        if WS_XN:
            o.I("s_add_u32", sXA, sXA, WS_XN)
            o.I("s_add_u32", sXB, sXB, WS_XN)
        wdma_voff(o, vWg, vl, (t0, t1), 3584)
        o.I("s_and_b32", sT0, sw, 1)
        o.I("s_mul_i32", sT0, sT0, 32 * 3584)
        o.I("s_lshl_b32", sT1, sh, 7)
        o.I("s_add_u32", sWgu, sT0, sT1)
        o.I("s_mov_b32", sWq0, sWb2)
        o.I("s_mov_b32", sWq1, sWb3)
        o.I("s_lshl_b32", sHc, sh, 2)
        o.I("s_add_u32", sHc, sHc, 4)
        o.I("s_cmp_lt_u32", sw, 2)
        g = [I("s_cmp_lt_u32", sw, 2), I("s_cselect_b32", s(S_A), s(P_WG), s(P_WU)),
             I("s_cselect_b32", s(S_A + 1), s(P_WG + 1), s(P_WU + 1))]
        o.append(lambda em: emit_all(em, g))
        o.I("s_mov_b32", s(S_A + 2), 512 * 3584)
        make_srd(o, S_B, P_WQ, 512 * 8192)
        o.I("v_mov_b32", vC2, GC2)
        for qb, sq in ((0, sQA), (1, sQB)):
            o.I("s_mul_i32", sT0, sq, 368 * 1024)
            o.I("s_lshl_b32", sT1, sh, 12)
            o.I("s_add_u32", sHo[qb], sT0, sT1)
            o.I("s_add_u32", sHo[qb], sHo[qb], WS_A3 + 256 * 1024)
        return o

    def setup_c():
        o = L()
        for qb in range(2):
            o.I("s_lshl_b32", sSt, sh, 12)
            o.I("s_add_u32", sCo[qb], sHo[qb], sSt)
            o.I("s_sub_u32", sCo[qb], sCo[qb], 256 * 1024)
        for srd, off in ((S_K, WS_K), (S_V, WS_V)):
            g = [I("s_lshl_b32", sSt, sh, 19), I("s_add_u32", sSt, sSt, off), I("s_add_u32", s(srd), s(P_WS), sSt),
                 I("s_addc_u32", s(srd + 1), s(P_WS + 1), 0)]
            o.append(lambda em, g=g: emit_all(em, g))
            o.I("s_lshl_b32", sSt, sj, 15)
            o.I("s_sub_u32", s(srd + 2), 64 * 8192, sSt)
            o.I("s_mov_b32", s(srd + 3), 0x20000)
        o.I("s_lshl_b32", sKg, sw, 12)
        o.I("s_mov_b32", sVg, sKg)
        o.I("s_mov_b32", sThr, THRESH)
        return o

    def touch(srd, bufs):
        g = [I("s_lshl_b32", sCnt, s(2), 2), I("s_add_u32", sCnt, sCnt, sw), I("s_lshl_b32", sCnt, sCnt, 13)]
        p0, n0 = bufs[0]
        g += [I("s_mov_b32", s(srd), s(p0)), I("s_mov_b32", s(srd + 1), s(p0 + 1)), I("s_mov_b32", s(srd + 2), n0),
              I("s_mov_b32", s(srd + 3), 0x20000)]
        for (pp, nn), (_, nprev) in zip(bufs[1:], bufs[:-1]):
            g += [I("s_cmp_ge_u32", sCnt, s(srd + 2)),
                  I("s_cselect_b32", sRet, s(srd + 2), 0),
                  I("s_cselect_b32", s(srd), s(pp), s(srd)), I("s_cselect_b32", s(srd + 1), s(pp + 1), s(srd + 1)),
                  I("s_cselect_b32", s(srd + 2), nn, s(srd + 2)),
                  I("s_sub_u32", sCnt, sCnt, sRet)]
        g += [I("v_lshlrev_b32", t2, 7, vl),
              Untracked(I("buffer_load_dword", PFD[0], t2, s(srd, 4), sCnt, mods="offen"))]
        return [lambda em: emit_all(em, g)]

    def proj(with_gu, tagp):
        ln = ln_stream()
        eV1 = epiV(accV1, 2)
        eK = epiK()
        n34 = len(eK) if "nospread" in EXP else (len(eK) * 3) // 4
        segs = [Seg(4, "WX", accK, srcK, [NOP] * (len(ln) // 4) + ln + [NOP] * (2 * len(ln))),
                Seg(2, "XW", accV0, srcV0, merge(eK[:n34], setup_b())),
                Seg(2, "XW", accV1, srcV1, eK[n34:] + epiV(accV0, 0) + [NOP] * 12)]
        if with_gu:
            aQ0, aQ1 = acc2(X_), acc2(Y_)
            segs += [Seg(4, "WX", accGU, srcGU, eV1 + setup_c() + [NOP] * 70), Seg(2, "WX", aQ0, srcQ0, gu_epi(0)),
                     Seg(2, "WX", aQ1, srcQ1, gu_epi(1) + q_epi(aQ0, 0))]
        else:
            aQ0, aQ1 = acc2(Y_), acc2(Z_)
            segs += [Seg(2, "WX", aQ0, srcQ0, eV1 + setup_c() + [NOP] * 70), Seg(2, "WX", aQ1, srcQ1, q_epi(aQ0, 0))]
        G = Gemm(e, 4, vtr, pool, sM0, sTmp, segs)
        nst = len(G.stages)

        def c_reads(p):
            out = [(lambda em: G.need(("C", p))) if p else (lambda em: em.wait_vm_tag(lambda tg: tg == ("C", p)))]
            for sl in range(4):
                for rb in range(2):
                    out.append(I("ds_read_b128", a((rb * 32 + 4 * p + sl) * 4, 4), vXr[sl],
                                 mods="offset:%d" % ((p % 3) * 8192 + rb * 4096)))
            return out
        emit_all(e, c_dma(0))
        if "early_w" not in EXP:
            w_setup()
        emit_all(e, G.w_dma(0))
        make_srd(e, S_K, P_X, 2048 * 1024)
        make_srd(e, S_C, P_WUV, 512 * 8192)
        make_srd(e, S_WS, P_WS, WS_BYTES)
        make_srd(e, S_DBG, P_DBG, 256)
        e.I("v_lshrrev_b32", t0, 5, v(0))
        e.I("v_lshlrev_b32", t1, 10, t0)
        e.I("v_and_b32", t2, 31, vl)
        e.I("v_lshlrev_b32", vLNa, 4, t2)
        e.I("v_add_u32", vLNa, vLNa, t1)
        e.I("v_lshrrev_b32", t1, 1, t2)
        e.I("v_lshlrev_b32", t1, 10, t1)
        e.I("v_and_b32", t2, 1, t2)
        e.I("v_lshlrev_b32", t2, 9, t2)
        e.I("v_add_u32", t1, t1, t2)
        e.I("v_lshlrev_b32", t0, 4, t0)
        e.I("v_add_u32", vLNs, t1, t0)
        e.I("s_lshl_b32", sT0, s(2), 13)
        e.I("buffer_load_dwordx4", Z_.sub(0, 4), vLNa, s(S_K, 4), sT0, mods="offen")
        e.I("buffer_load_dwordx4", Z_.sub(4, 4), vLNa, s(S_K, 4), sT0, mods="offen offset:512")
        if gen.PF_IN:
            e.I("s_lshr_b32", sT0, s(2), 3)
            e.I("s_lshl_b32", sT0, sT0, 2)
            e.I("s_add_u32", sT0, sT0, sw)
            e.I("v_lshrrev_b32", t0, 3, vl)
            e.I("v_lshlrev_b32", t0, 13, t0)
            e.I("v_and_b32", t1, 7, vl)
            e.I("v_lshlrev_b32", t1, 7, t1)
            e.I("v_add_u32", t0, t0, t1)
            e.I("s_and_b32", sT1, sT0, 63)
            e.I("s_lshl_b32", sT1, sT1, 16)
            e.I("s_and_b32", s(3), s(2), 7)
            e.I("s_lshl_b32", s(3), s(3), 10)
            e.I("s_add_u32", sT1, sT1, s(3))
            e.I("s_cmp_ge_u32", sT0, 64)
            e.I("s_cselect_b32", s(S_V), s(P_WUV), s(P_WUK))
            e.I("s_cselect_b32", s(S_V + 1), s(P_WUV + 1), s(P_WUK + 1))
            e.I("s_mov_b32", s(S_V + 2), 512 * 8192)
            e.I("s_mov_b32", s(S_V + 3), 0x20000)
            e.I("v_lshlrev_b32", t1, 7, vl)
            e.I("s_lshl_b32", sT0, sT0, 14)
            Untracked(I("buffer_load_dword", PFD[1], t1, s(S_A, 4), sT0, mods="offen"))(e)
            e.I("s_add_u32", sT0, sT0, 8192)
            Untracked(I("buffer_load_dword", PFD[2], t1, s(S_A, 4), sT0, mods="offen"))(e)
            Untracked(I("buffer_load_dword", PFD[3], t0, s(S_V, 4), sT1, mods="offen"))(e)
        emit_all(e, c_dma(1))
        emit_all(e, G.w_dma(1))
        emit_all(e, c_dma(2))
        if "own" in EXP:
            e.I("v_lshlrev_b32", t1, 10, vl)
            for p in range(3, 8):
                Untracked(I("buffer_load_dword", PFD[1], t1, s(S_A, 4), sXrow[0], mods="offen offset:%d" % (128 * p)))(e)
        if "ownw" in EXP:
            e.I("v_lshlrev_b32", t1, 13, vl)
            e.I("s_and_b32", sT0, sw, 1)
            e.I("s_mul_i32", sT0, sT0, 3 * 64 * 8192 - 32 * 8192)
            e.I("s_add_u32", sT0, sT0, sWb)
            for p in range(3):
                e.I("s_add_u32", sT1, sT0, (2 + p) * 64 * 8192)
                Untracked(I("buffer_load_dword", PFD[2], t1, s(S_B, 4), sT1, mods="offen"))(e)
        e.I("s_lshr_b32", sLN0, s(2), 2)
        e.I("s_lshl_b32", sLN0, sLN0, 15)
        e.I("s_and_b32", sLN1, s(2), 3)
        e.I("s_lshl_b32", sLN1, sLN1, 7)
        e.I("s_add_u32", sLN0, sLN0, sLN1)
        if WS_XN:
            e.I("s_add_u32", sLN0, sLN0, WS_XN)
        e.I("s_add_u32", sLN1, sLN0, 16384)
        e.I("v_and_b32", t0, 31, vl)
        e.I("v_lshlrev_b32", t1, 7, t0)
        e.I("v_add_u32", t1, sXlds, t1)
        e.I("v_bfe_u32", t0, vl, 1, 3)
        e.I("v_lshrrev_b32", t2, 5, vl)
        e.I("v_xor_b32", t0, t0, t2)
        for sl in range(4):
            e.I("v_xor_b32", t2, 2 * sl, t0)
            e.I("v_lshlrev_b32", t2, 4, t2)
            e.I("v_add_u32", vXr[sl], t1, t2)
        tr_addr(e, vtr[0], vtr[1], vl, (t0, t1, t2), WR, False)
        e.I("s_lshl_b32", sT0, sh, 6)
        e.I("s_lshl_b32", sT1, sj, 3)
        e.I("s_add_u32", sT0, sT0, sT1)
        e.I("s_lshl_b32", sT1, sw, 1)
        e.I("s_add_u32", sT0, sT0, sT1)
        e.I("s_lshl_b32", sT0, sT0, 13)
        e.I("s_add_u32", sKo, sT0, WS_K)
        e.I("s_add_u32", sVo, sT0, WS_V)
        emit_all(e, c_reads(0))
        if "early" in EXP and with_gu:
            stamp(e, 1)
        queue = []
        for g in range(2, nst):
            for p in {3: [3, 4], 4: [5, 6], 5: [7]}.get(g, []):
                queue += c_jobs(p)
            if 16 <= g < 20 and not with_gu:
                queue += x_piece(2 * (g - 16)) + x_piece(2 * (g - 16) + 1)
            queue += G.w_jobs(g)
            if with_gu:
                for p in {16: [0], 17: [1], 18: [2], 19: [3], 20: [4], 21: [5], 22: [6], 23: [7]}.get(g, []):
                    queue += x_piece(p)
        queue += kv_jobs("K", 0) + kv_jobs("K", 1) + kv_jobs("V", 0) + kv_jobs("K", 2) + kv_jobs("V", 1)
        queue += kv_jobs("K", 3) + kv_jobs("V", 2)
        LNSIG = 4
        CRD = {1: 1, 3: 2, 6: 3, 9: 4, 12: 5, 16: 6, 20: 7}
        XREL = {76: 0, 82: 1, 88: 2, 98: 3, 102: 4, 106: 5, 110: 6, 114: 7}
        pub = 20 if with_gu else 17
        kv_first = {("K", i) for i in range(3)} | {("V", 0), ("V", 1)}

        def pre_barrier(g):
            if g == LNSIG:
                e.wait_vm_tag(lambda tg: tg == "ln")
            if g == pub:
                e.wait_vm_tag(lambda tg: tg == "kv")

        def on_barrier(g):
            if "early" in EXP and with_gu and g in (0, 2, 4, 6):
                stamp(e, 2 + g // 2 if g < 6 else 4) if g < 6 else None
            if g == LNSIG:
                signal(e, sw, 0, "ln" + tagp, vOne)
            if g == 11:
                poll_issue(e, vPl, 0)
            if g == 12:
                poll_check(e, vPl, 0, 256, "ln" + tagp, sCnt, sRet)
                if not with_gu:
                    G.rel.add(("X", 0))
            if g == pub:
                signal(e, sw, sHc, "kv" + tagp, vOne)
            if g == nst - 6:
                poll_issue(e, vPk, sHc)
            if g == nst - 5:
                poll_check(e, vPk, sHc, 8, "kv" + tagp, sCnt, sRet)
                G.rel |= kv_first
            if g == nst - 2:
                G.rel.add(("V", 2))
                G.rel.add(("K", 3))

        def hook(t):
            sg, sidx, g, sl = G.ks[t]
            out = []
            if t in CRD:
                out += c_reads(CRD[t])
            if t == 0 or (t - 1) in CRD:
                pr = 0 if t == 0 else CRD[t - 1]

                def rel_c(em, pr=pr):
                    em.wait_lgkm0()
                    G.rel.add(("C", pr + 3))
                if t == 0:
                    out.append(rel_c)
                else:
                    rel_c(e)
            if t == 24 and "latepf" in EXP:
                out.append(lambda em: code_prefetch(em, "ka" + tagp, "ka_kernel", "TEXT_END", s(62, 2), t2, PFD, 1))
            if t == 33 and gen.PF_W:
                out += touch(S_K, [(P_WQ, 512 * 8192), (P_WG, 512 * 3584), (P_WU, 512 * 3584)])
            if t == 100 and gen.PF_W:
                out += touch(S_C, [(P_WO, 4096 * 1024), (P_WD, 1792 * 1024)])
            if not with_gu and 72 <= t <= 96 and t % 4 == 0:
                G.rel.add(("X", (t - 68) // 4))
            if with_gu and t in XREL:
                G.rel.add(("X", XREL[t]))
            if 96 <= t < 128 and sidx % 4 == 0:
                p = sidx // 4
                while any(k == ("X", p) for k, _ in G.q):
                    k, ins = G.q.pop(0)
                    assert k in G.rel, k
                    emit_all(e, ins)
            return out
        cnt = [1]

        def seg_end(sg):
            if cnt[0] in (1, 3, 4) or not with_gu and False:
                pass
            if with_gu:
                m = {1: 1, 2: 2, 3: 3, 4: 4}.get(cnt[0])
                if m and "early" not in EXP:
                    stamp(e, m)
            cnt[0] += 1
        G.run(hook, seg_end, queue=queue, released={("W", 2), ("W", 3)}, on_barrier=on_barrier,
              pace=gen.PACE, pre_barrier=pre_barrier)
        while G.q:
            k, ins = G.q.pop(0)
            assert k in G.rel, k
            emit_all(e, ins)
        emit_all(e, q_epi(aQ1, 2))
        tags = [t for _, t in e.vm]
        assert all(t in (("K", 3), ("V", 2), None, "pf") for t in tags[-8:]), tags[-8:]
        assert all(t not in (("K", 0), ("K", 1), ("V", 0)) for t in tags[-16:]), tags[-16:]
        e.wait_vm_tag(lambda tg: tg == ("K", 0))
        e.wait_lgkm0()

    e.I("s_cmp_ge_u32", sh, 28)
    e.I("s_cbranch_scc1", "K2_NOGU")
    st0 = e.state()
    proj(True, "a")
    e.I("s_branch", "K2_ATT")
    e.label("K2_NOGU")
    e.set_state(st0)
    proj(False, "b")
    e.label("K2_ATT")
    e.vm = []
    e.lgkm = []
    e.I("s_nop", 1)
    stamp(e, 5)

    S = lambda par, qb: SET[0].sub((par * 2 + qb) * 16, 16)
    NM = lambda qb: SET[1].sub(qb * 16, 16)
    P = lambda par, qb: SET[1].sub(32 + (par * 2 + qb) * 8, 8)
    O = lambda qb, b: a((qb * 4 + b) * 16, 16)
    KF = lambda fs, si: a(128 + 64 * fs + 4 * si, 4)
    VF = lambda fs, t, b: a(128 + 64 * fs + 32 + 4 * (t * 4 + b), 4)
    vKr, vVr = v(6), v(7)
    vDq = [v(8), v(9)]
    vL = [[v(10), v(11)], [v(24), v(25)]]
    vTs = [v(12), v(13)]
    vTs2 = [v(4, 2), v(4, 2)]
    vTm, vDqT = v(14), [v(15), v(16)]
    vNinf = v(17)
    ET = [v(18 + i) for i in range(6)]
    vQx, vKx, vNx, vInvB, vPw = v(26), v(27), v(28), v(29), v(30)
    RT = [v(32 + i) for i in range(32)]
    QS = 131072
    sPw = sBact

    e.I("v_and_b32", t0, 31, vl)
    e.I("v_lshrrev_b32", t1, 5, vl)
    e.I("v_lshlrev_b32", t1, 2, t1)
    e.I("v_sub_u32", t0, t0, t1)
    e.I("s_lshl_b32", sT0, sQA, 5)
    e.I("s_lshl_b32", sT1, sQB, 5)
    e.I("v_add_u32", vDq[0], sT0, t0)
    e.I("v_add_u32", vDq[1], sT1, t0)
    e.I("v_mov_b32", vNinf, 0xff800000)
    e.I("v_mov_b32", vL[0][0], 0)
    e.I("v_mov_b32", vL[0][1], 0)
    e.I("v_add_u32", vKr, 16384, vl16)
    e.I("v_add_u32", vVr, 65536, vl16)
    e.I("s_lshl_b32", sRot, sw, 12)
    e.I("s_add_u32", sKg, sKg, 4 * 16384)
    e.I("s_add_u32", sVg, sVg, 3 * 16384)
    e.I("s_mov_b32", sKv, 0)
    e.I("s_and_b32", sPw, sw, 1)
    e.I("s_lshl_b32", sPw, sPw, 13)
    e.I("s_lshl_b32", sT0, sw, 13)
    e.I("s_add_u32", sT0, sT0, QS)
    e.I("v_add_u32", vQx, sT0, vl16)
    e.I("s_barrier")
    for si in range(8):
        e.I("ds_read_b128", KF(1, si), vl16, mods="offset:%d" % (si * 1024))
    for si in range(8):
        e.I("ds_read_b128", KF(0, si), vl16, mods="offset:%d" % (8192 + si * 1024))
    for si in range(8):
        for qb in range(2):
            e.I(MFMA, S(0, qb), KF(1, si), qfrag(qb, si), 0 if si == 0 else S(0, qb))
        e.I("ds_write_b128", vQx, qfrag(0, si), mods="offset:%d" % (si * 1024))
    e.I("v_xor_b32", vQx, 8192, vQx)

    def mask_S_inplace(em, Sx, dq):
        for r0 in range(0, 16, 4):
            for i in range(4):
                em.I("v_cmp_ge_i32", MASKS[i], dq, CR[r0 + i])
            for i in range(4):
                em.I("v_cndmask_b32", Sx[r0 + i], vNinf, Sx[r0 + i], MASKS[i])

    def rowmax(em, Sx, dst, tmp):
        em.I("v_max3_f32", dst, Sx[0], Sx[1], Sx[2])
        for r in range(3, 15, 2):
            em.I("v_max3_f32", dst, dst, Sx[r], Sx[r + 1])
        em.I("v_max_f32", dst, dst, Sx[15])
        em.I("v_mov_b32", tmp, dst)
        em.I("v_permlane32_swap_b32", dst, tmp)
        em.I("v_max_f32", dst, dst, tmp)

    for qb in range(2):
        Sx = S(0, qb)
        if qb == 1:
            mask_S_inplace(e, Sx, vDq[1])
        rowmax(e, Sx, RT[0], RT[1])
        for r in range(16):
            e.I("v_sub_f32", Sx[r], Sx[r], RT[0])
        for r in range(16):
            e.I("v_sub_f32", NM(qb)[r], 0, RT[0])
    e.wait_lgkm0()
    stamp(e, 6)

    ret_labels = []

    def sm_stream(par, qb, masked):
        Sx, Px = S(par, qb), P(par, qb)
        out = []
        if masked:
            out.append(I("v_subrev_u32", vDqT[qb], sKv, vDq[qb]))

        def front(k):
            o = []
            if masked:
                o.append(I("v_cmp_ge_i32", MASKS[(2 * k) & 3], vDqT[qb], CR[2 * k]))
                o.append(I("v_cmp_ge_i32", MASKS[(2 * k + 1) & 3], vDqT[qb], CR[2 * k + 1]))
            o.append(I("v_exp_f32", ET[(2 * k) % 6], Sx[2 * k]))
            o.append(I("v_exp_f32", ET[(2 * k + 1) % 6], Sx[2 * k + 1]))
            return o

        def back(k):
            ta, tb = ET[(2 * k) % 6], ET[(2 * k + 1) % 6]
            o = []
            if masked:
                o.append(I("v_cndmask_b32", ta, 0, ta, MASKS[(2 * k) & 3]))
                o.append(I("v_cndmask_b32", tb, 0, tb, MASKS[(2 * k + 1) & 3]))
            if "pk" in EXP:
                pr = v(ta.i, 2)
                if k == 1:
                    o.append(I("v_pk_add_f32", vTs2[qb], v(ET[0].i, 2), pr))
                elif k > 1:
                    o.append(I("v_pk_add_f32", vTs2[qb], vTs2[qb], pr))
                if k == 7:
                    o.append(I("v_add_f32", vTs[qb], vTs2[qb][0], vTs2[qb][1]))
            elif k == 0:
                o.append(I("v_add_f32", vTs[qb], ta, tb))
            else:
                o.append(I("v_add_f32", vTs[qb], vTs[qb], ta))
                o.append(I("v_add_f32", vTs[qb], vTs[qb], tb))
            o.append(I("v_cvt_pk_bf16_f32", Px[k], ta, tb))
            return o
        out += front(0)
        for k in range(8):
            if k + 1 < 8:
                out += front(k + 1)
            out += back(k)
        return out

    def qk_mfmas(par):
        return [I(MFMA, S(1 - par, qb), KF(par, si), qfrag(qb, si), NM(qb) if si == 0 else S(1 - par, qb))
                for si in range(8) for qb in range(2)]

    def pv_mfmas(par, first=(), order=None):
        ms = []
        for t in range(2):
            for b in range(4):
                for qb in range(2):
                    c = 0 if (qb in first and t == 0) else O(qb, b)
                    ms.append(I(MFMA, O(qb, b), VF(par, t, b), P(1 - par, qb).sub(4 * t, 4), c))
        return ms

    def k_reads(par, vaddr, off):
        return [I("ds_read_b128", KF(1 - par, si), vaddr, mods="offset:%d" % (off + si * 1024)) for si in range(8)]

    def v_reads(par, vaddr, off):
        return [I("ds_read_b128", VF(1 - par, si >> 2, si & 3), vaddr, mods="offset:%d" % (off + si * 1024))
                for si in range(8)]

    def step(par, name, qk, masks, pv, rds, dma, kvinc, pv_first=(), extra=(), tail=(), late_rd=True):
        ms = (qk_mfmas(par) if qk else []) + (pv_mfmas(par, pv_first) if pv else [])
        val = sm_stream(par, 0, masks[0]) + sm_stream(par, 1, masks[1])
        if "nords" in EXP:
            rds = []
        if "nodma" in EXP:
            dma = None
        if "nosm" in EXP:
            val = val[:4]
        cut = (len(val) * (9 if late_rd else 7)) // 10
        fill = merge(val[:cut], rds) + val[cut:]
        if extra:
            fill = merge(fill, list(extra))
        if dma:
            fill = merge(fill, dma)
        fill.append(I("v_max_f32", vTm, vTs[0], vTs[1]))
        fill.append(I("v_cmp_nge_f32", VCC, sThr, vTm))
        rid = len(ret_labels)
        ret_labels.append(("K2_RET_%s" % name, par))
        fill.append(I("s_mov_b32", sRet, rid))
        for qb in range(2):
            fill.append(I("v_add_f32", vL[1 - par][qb], vL[par][qb], vTs[qb]))
        fill += list(tail)
        interleave(e, ms, fill, close=True)
        e.I("s_cbranch_vccnz", "K2_RARE%d" % par)
        e.label("K2_RET_%s" % name)
        e.I("s_add_u32", sKv, sKv, kvinc)
        for x in EXP:
            if x.startswith("pad"):
                for _ in range(int(x[3:])):
                    e.I("s_nop", 15)

    def dma_group(kind, vdelta=16384):
        srd = s(S_K if kind == "K" else S_V, 4)
        sg = sKg if kind == "K" else sVg
        out = []
        if kind == "K":
            out.append(I("s_mov_b32", M0, sRot))
        else:
            out.append(I("s_sub_u32", sSt, sRot, vdelta))
            out.append(I("s_and_b32", sSt, sSt, 0xffff))
            out.append(I("s_add_u32", M0, sSt, 65536))
        for i in range(4):
            x = I("buffer_load_dwordx4", vl16, srd, sg, mods="offen offset:%d%s lds" % (1024 * i, KVS))
            x.cost = 16
            out.append(x)
        out.append(I("s_add_u32", sg, sg, 16384))
        return out

    def top():
        e.I("s_waitcnt", "vmcnt(16) lgkmcnt(0)")
        e.lgkm = []
        e.vm = []
        if "nobar" not in EXP:
            e.I("s_barrier")

    ROT = [I("s_add_u32", sRot, sRot, 16384), I("s_and_b32", sRot, sRot, 0xffff)]

    def iter1(name, maskB, first=False, last=False):
        top()
        step(0, name + "a", True, (False, maskB), not first,
             merge([] if last else k_reads(0, vKr, 0), v_reads(0, vVr, 0)), dma_group("K"), 32)
        tail = [I("v_add_u32", vVr, 65536, vKr), I("v_add_u32", vKr, 16384, vKr), I("v_and_b32", vKr, 0xffff, vKr),
                I("s_sub_u32", sCnt, sCnt, 1)] + ROT
        if last:
            rq = [I("ds_read_b128", qfrag(1, si), vQx, mods="offset:%d" % (si * 1024)) for si in range(8)]
            rds = [I("v_add_u32", vKx, sPw, vKr)] + merge(k_reads(1, vKx, 0), v_reads(1, vVr, 8192)) + rq
        else:
            rds = merge(k_reads(1, vKr, 8192), v_reads(1, vVr, 8192))
        step(1, name + "b", not last, (False, maskB), True, rds, dma_group("V"), 32,
             pv_first=(0, 1) if first else (), tail=tail, late_rd=False)

    def step2(par, name, masked, qk=True, pv=True, pv_first=(), extra=()):
        top()
        tail = [I("v_add_u32", vKr, 16384, vKr), I("v_and_b32", vKr, 0xffff, vKr),
                I("v_add_u32", vVr, 16384, vVr), I("v_and_b32", vVr, 0xffff, vVr), I("v_or_b32", vVr, 0x10000, vVr)] + ROT
        step(par, name, qk, (masked, masked), pv, merge(k_reads(par, vKr, 0), v_reads(par, vVr, 0)),
             dma_group("K") + dma_group("V", 32768), 64, pv_first=pv_first, extra=extra, tail=tail, late_rd=False)

    def loop(name, body):
        e.I("s_cmp_eq_u32", sCnt, 0)
        e.I("s_cbranch_scc1", "K2_%s_X" % name)
        e.label("K2_%s_L" % name)
        body()
        e.I("s_cmp_lg_u32", sCnt, 0)
        e.I("s_cbranch_scc1", "K2_%s_L" % name)
        e.label("K2_%s_X" % name)

    def ctx_store(qb_o, scale_regs, sbase, src2=None):
        out = []
        n = 0
        for b in range(4):
            for t in range(2):
                T = [RT[(n % 3) * 8 + 8 + r] for r in range(8)]
                Tq = v(RT[(n % 3) * 8 + 8].i, 4)
                n += 1
                for r in range(8):
                    out.append(I("v_accvgpr_read_b32", T[r], O(qb_o, b)[8 * t + r]))
                for r in range(8):
                    out.append(I("v_mul_f32", T[r], T[r], scale_regs[0]))
                if src2 is not None:
                    for r in range(8):
                        out.append(I("v_fmac_f32", T[r], src2[b * 16 + 8 * t + r], scale_regs[1]))
                for q in range(4):
                    out.append(I("v_cvt_pk_bf16_f32", T[q], T[2 * q], T[2 * q + 1]))
                off = (2 * b + t) * 1024
                if off % 4096 == 0:
                    out.append(I("s_add_u32", sTmp, sbase, off))
                out.append(I("buffer_store_dwordx4", Tq, vl16, s(S_WS, 4), sTmp, mods="offen offset:%d" % (off & 4095),
                             tag="ctx"))
        return out

    iter1("V0", True, first=True)
    if gen.FUSE3:
        e.I("s_lshl_b32", sT0, sj, 7)
        e.I("s_add_u32", sT1, sT0, WS_F + 16 * 128)
        e.I("s_sub_u32", sT0, WS_F + 31 * 128, sT0)
        e.I("s_waitcnt", "vmcnt(8)")
        e.I("s_barrier")
        signal(e, sw, sT0, "ha", RT[3], srd=S_WS)
        signal(e, sw, sT1, "hb", RT[3], srd=S_WS)
    e.I("s_lshl_b32", sCnt, sj, 1)
    e.I("s_sub_u32", sCnt, sCnt, 1)
    e.I("s_max_i32", sCnt, sCnt, 0)
    loop("V1", lambda: iter1("V1", False))
    e.I("s_min_u32", sCnt, sj, 1)
    loop("V2", lambda: iter1("V2", True))
    iter1("V2L", True, last=True)
    stamp(e, 7)
    top()

    e.I("v_add_u32", vNx, 49152, vVr)
    e.I("v_and_b32", vNx, 0xc000, vNx)
    e.I("v_lshlrev_b32", t0, 2, vl)
    e.I("v_add_u32", vNx, vNx, t0)
    e.I("s_lshl_b32", sT0, sw, 8)
    e.I("s_add_u32", sT0, sT0, 65536)
    e.I("v_add_u32", vNx, sT0, vNx)
    e.I("ds_write_b32", vNx, NM(0)[0])
    e.I("v_xor_b32", vNx, 256, vNx)
    e.I("v_mov_b32", RT[0], vL[0][1])
    e.I("v_mov_b32", RT[1], vL[0][1])
    e.I("v_mov_b32", vL[1][0], vL[0][0])
    e.I("v_permlane32_swap_b32", RT[0], RT[1])
    e.I("v_mov_b32", vL[1][1], 0)
    e.I("v_add_f32", RT[0], RT[0], RT[1])
    e.I("v_rcp_f32", vInvB, RT[0])
    e.I("v_add_u32", vKr, sPw, vKr)
    e.I("v_add_u32", vVr, sPw, vVr)
    e.I("s_lshr_b32", sT0, sPw, 8)
    e.I("s_add_u32", sKv, sKv, sT0)
    e.I("s_lshl_b32", sT0, sT0, 1)
    e.I("v_add_u32", vDq[1], 32, vDq[0])
    e.I("v_subrev_u32", vDq[1], sT0, vDq[1])
    pvm = pv_mfmas(0)
    pvB = [m for m in pvm if m.ops[0].i >= 64]
    pvA = [m for m in pvm if m.ops[0].i < 64]
    interleave(e, pvB, k_reads(0, vKr, 0) + dma_group("K"))
    e.wait_lgkm0()
    e.I("s_barrier")
    e.I("ds_read_b32", RT[2], vNx)
    interleave(e, pvA[:4], ROT + [I("v_add_u32", vKr, 16384, vKr), I("v_and_b32", vKr, 0xffff, vKr)])
    interleave(e, pvA[4:], [I("v_mov_b32", NM(1)[r], RT[2]) for r in range(16)])
    bepi = ctx_store(1, [vInvB], sCo[1])
    nb1 = len(bepi) // 2
    qkm = qk_mfmas(0)
    interleave(e, [m for m in qkm if m.ops[0].i == S(1, 0).i] + [m for m in qkm if m.ops[0].i == S(1, 1).i], bepi[:nb1])
    step2(1, "P0", True, pv=False, extra=bepi[nb1:])
    step2(0, "P1", True, pv_first=(1,))
    e.I("s_cmp_eq_u32", sj, 7)
    e.I("s_cbranch_scc1", "K2_DRAIN")
    e.I("s_lshl_b32", sCnt, sj, 1)
    e.I("s_sub_u32", sCnt, 13, sCnt)

    def p2():
        step2(1, "P2a", False)
        step2(0, "P2b", False, extra=[I("s_sub_u32", sCnt, sCnt, 1)])
    loop("P2", p2)
    step2(1, "P3", True)
    step2(0, "P4", True, qk=False)
    e.label("K2_DRAIN")
    e.I("s_waitcnt", "lgkmcnt(0)")
    e.lgkm = []
    for m in pv_mfmas(1):
        e.emit(m)
    stamp(e, 8)
    MS = 17408
    e.I("s_mul_i32", sT0, sw, MS)
    e.I("v_add_u32", vQx, sT0, vl16)
    e.I("v_lshlrev_b32", t0, 2, vl)
    e.I("v_add_u32", vNx, sT0, t0)
    e.I("s_waitcnt", "vmcnt(0)")
    e.I("s_barrier")
    e.I("ds_write_b32", vNx, NM(1)[0], mods="offset:16384")
    e.I("ds_write_b32", vNx, vL[1][1], mods="offset:16640")
    for b in range(4):
        for i in range(4):
            e.I("ds_write_b128", vQx, O(1, b).sub(4 * i, 4), mods="offset:%d" % ((b * 4 + i) * 1024))
    e.I("s_xor_b32", sT1, sw, 1)
    e.I("s_mul_i32", sT0, sT1, MS)
    e.I("v_add_u32", vQx, sT0, vl16)
    e.I("v_add_u32", vNx, sT0, t0)
    e.wait_lgkm0()
    e.I("s_barrier")
    nm2, l2, nm, f1, f2, lt, tq = RT[0], RT[1], RT[2], RT[3], RT[4], RT[5], RT[6]
    e.I("ds_read_b32", nm2, vNx, mods="offset:16384")
    e.I("ds_read_b32", l2, vNx, mods="offset:16640")
    O2 = SET[0]
    for i in range(16):
        e.I("ds_read_b128", O2.sub(4 * i, 4), vQx, mods="offset:%d" % (i * 1024))
    e.I("v_min_f32", nm, NM(0)[0], nm2)
    e.I("v_sub_f32", f1, nm, NM(0)[0])
    e.I("v_sub_f32", f2, nm, nm2)
    e.I("v_exp_f32", f1, f1)
    e.I("v_exp_f32", f2, f2)
    e.I("v_mul_f32", lt, vL[1][0], f1)
    e.I("v_fmac_f32", lt, l2, f2)
    e.I("v_mov_b32", tq, lt)
    e.I("v_permlane32_swap_b32", lt, tq)
    e.I("v_add_f32", lt, lt, tq)
    e.I("v_rcp_f32", lt, lt)
    e.I("v_mul_f32", f1, f1, lt)
    e.I("v_mul_f32", f2, f2, lt)
    emit_all(e, ctx_store(0, [f1, f2], sCo[0], src2=O2))
    stamp(e, 9)
    if gen.FUSE3:
        import gen_k3
        gen_k3.gen_k3(e)
    else:
        stamp_flush(e, 0, s(S_WS, 4), sw, 10)
        e.I("s_endpgm")

    for par in range(2):
        e.label("K2_RARE%d" % par)
        e.vm, e.lgkm = [], []
        e.I("s_nop", 15)
        e.I("s_nop", 7)
        for qb in range(2):
            Sx, Sn, Px = S(par, qb), S(1 - par, qb), P(par, qb)
            dq, dl, f, tmp = RT[0], RT[1], RT[2], RT[3]
            e.I("v_subrev_u32", dq, sKv, vDq[qb])
            mask_S_inplace(e, Sx, dq)
            rowmax(e, Sx, dl, tmp)
            e.I("v_max_f32", dl, 0, dl)
            e.I("v_sub_f32", f, 0, dl)
            e.I("v_exp_f32", f, f)
            for r in range(16):
                e.I("v_sub_f32", Sx[r], Sx[r], dl)
            e.I("v_mul_f32", vL[1 - par][qb], vL[par][qb], f)
            for r in range(16):
                e.I("v_exp_f32", RT[8 + r], Sx[r])
            for r in range(16):
                e.I("v_sub_f32", Sn[r], Sn[r], dl)
            for r in range(16):
                e.I("v_add_f32", vL[1 - par][qb], vL[1 - par][qb], RT[8 + r])
            for k in range(8):
                e.I("v_cvt_pk_bf16_f32", Px[k], RT[8 + 2 * k], RT[9 + 2 * k])
            for r in range(16):
                e.I("v_sub_f32", NM(qb)[r], NM(qb)[r], dl)
            for b in range(4):
                for r0 in range(0, 16, 8):
                    for r in range(8):
                        e.I("v_accvgpr_read_b32", RT[8 + r], O(qb, b)[r0 + r])
                    for r in range(8):
                        e.I("v_mul_f32", RT[8 + r], RT[8 + r], f)
                    for r in range(8):
                        e.I("v_accvgpr_write_b32", O(qb, b)[r0 + r], RT[8 + r])
        e.I("s_nop", 3)
        mine = [(i, l) for i, (l, pp) in enumerate(ret_labels) if pp == par]
        for i, l in mine[:-1]:
            e.I("s_cmp_eq_u32", sRet, i)
            e.I("s_cbranch_scc1", l)
        e.I("s_branch", mine[-1][1])
    e.label(END)
    e.I("s_endpgm")
    return e.text(), dict(vgpr=512, sgpr=102, accum=256, grid=256, block=256, lds=163840)
```

```python
import sys
sys.path.insert(0, "dev")
from asmlib import *
import gen
from gen import *

LOG2E = 1.4426950408889634
QSCALE = LOG2E / (128 ** 0.5)
GC1 = -2.0 * (2.0 / math.pi) ** 0.5 * LOG2E
GC2 = GC1 * 0.044715
THRESH = float(2 ** 24)
CR = [(r & 3) + 8 * (r >> 2) for r in range(16)]
EXP = set()


def gen_ka():
    e = Emitter()
    fused = True
    END = "K2_END"
    KVS = " sc1"
    gen.STAMP_MAP = None
    prologue(e, 256, END)
    S_WS, S_A, S_B, S_C, S_K, S_V = 32, 36, 40, 44, 48, 52
    sw, sh, sj = s(56), s(57), s(58)
    sM0, sTmp, sSt = s(59), s(60), s(61)
    sXA, sXB = s(62), s(63)
    sWgu, sWq0, sWq1 = s(64), s(65), s(66)
    sHo = [s(67), s(68)]
    sCo = [s(69), s(70)]
    sKg, sVg, sRot = s(71), s(72), s(73)
    sCnt, sKv, sRet, sBact, sThr = s(74), s(75), s(76), s(77), s(78)
    sT0, sT1 = s(79), s(80)
    sQA, sQB, sHc = s(81), s(30), s(31)
    MASKS = [s(40, 2), s(42, 2), s(44, 2), s(46, 2)]
    sXrow = [s(71 + i) for i in range(8)]
    sXlds, sWb = s(67), s(68)
    sWb2, sWb3 = s(69), s(70)
    sKo, sVo = s(100), s(101)
    sLN0, sLN1 = s(64), s(65)
    vl, vl16 = v(1), v(2)
    t0, t1, t2 = v(3), v(4), v(5)
    vtr = [v(6), v(7)]
    vWg = [v(8 + i) for i in range(4)]
    vWq = [v(12 + i) for i in range(4)]
    vC2 = v(16)
    GT = [v(17 + i) for i in range(8)]
    vXd = [v(17), v(18)]
    vXr = [v(19 + i) for i in range(4)]
    vLNa, vLNs = v(23), v(24)
    vPl, vOne, vPk = v(25), v(26), v(27)
    PFD = v(28, 4)
    X_, Y_, Z_ = v(64, 64), v(128, 64), v(192, 64)
    SET = [Y_, Z_, X_]
    pool = v(32, 32)
    WR = 98304
    XS_W = 24576

    if "latepf" not in EXP:
        code_prefetch(e, "ka", "ka_kernel", "TEXT_END", s(30, 2), t0, PFD, 1)
    e.I("v_and_b32", vl, 63, v(0))
    e.I("v_lshrrev_b32", t0, 6, v(0))
    e.I("v_lshlrev_b32", vl16, 4, vl)
    e.I("v_readfirstlane_b32", sw, t0)
    head_j(e, sh, sj, sT0, sT1)
    e.I("v_lshrrev_b32", t0, 3, vl)
    e.I("v_lshlrev_b32", t1, 10, t0)
    e.I("v_lshrrev_b32", t0, 1, t0)
    e.I("v_xor_b32", t0, t0, vl)
    e.I("v_and_b32", t0, 7, t0)
    e.I("v_lshlrev_b32", t2, 4, t0)
    e.I("v_add_u32", vXd[0], t1, t2)
    e.I("v_xor_b32", t2, 64, t2)
    e.I("v_add_u32", vXd[1], t1, t2)
    e.I("s_lshl_b32", sT0, sj, 18)
    e.I("s_lshl_b32", sT1, sw, 16)
    e.I("s_add_u32", sT0, sT0, sT1)
    for i in range(8):
        e.I("s_add_u32", sXrow[i], sT0, i * 8192 - (i & 3) * 1024)
    e.I("s_mul_i32", sXlds, sw, XS_W)
    def w_setup():
        wdma_voff(e, vWq, vl, (t0, t1), 8192)
        e.I("s_and_b32", sT0, sw, 1)
        e.I("s_lshl_b32", sT0, sT0, 18)
        e.I("s_lshr_b32", sT1, sw, 1)
        e.I("s_lshl_b32", sT1, sT1, 7)
        e.I("s_lshl_b32", s(3), sh, 8)
        e.I("s_add_u32", sWb, s(3), sT0)
        e.I("s_add_u32", sWb, sWb, sT1)
        e.I("s_lshl_b32", sT0, sw, 18)
        e.I("s_add_u32", sWb2, s(3), sT0)
        e.I("s_add_u32", sWb3, sWb2, 128)
        e.I("s_lshl_b32", sM0, sw, 12)
        e.I("s_add_u32", sM0, sM0, WR)
        make_srd(e, S_B, P_WUK, 512 * 8192)
    if "early_w" in EXP:
        w_setup()
    e.I("s_waitcnt", "lgkmcnt(0)")
    make_srd(e, S_A, P_CKV, 2048 * 1024)
    if "early_w" in EXP:
        make_srd(e, S_B, P_WUK, 512 * 8192)
    stamp(e, 0)

    def c_dma(p):
        out = []
        for i in range(8):
            if i % 4 == 0:
                out.append(I("s_add_u32", M0, sXlds, (p % 3) * 8192 + (i >> 2) * 4096))
            out.append(I("buffer_load_dwordx4", vXd[i & 1], s(S_A, 4), sXrow[i],
                         mods="offen offset:%d lds" % (1024 * (i & 3)), tag=("C", p)))
        out.append(I("v_add_u32", vXd[0], 128, vXd[0]))
        out.append(I("v_add_u32", vXd[1], 128, vXd[1]))
        return out

    def c_jobs(p):
        ins = c_dma(p)
        k = ("C", p)
        return [(k, ins[0:2]), (k, [ins[2]]), (k, [ins[3]]), (k, [ins[4]]), (k, ins[5:7]), (k, [ins[7]]), (k, [ins[8]]),
                (k, ins[9:12])]

    def x_piece(p):
        out = []
        k = ("X", p)
        for rb in range(2):
            sb = sXA if rb == 0 else sXB
            for i in range(4):
                ins = []
                if i == 0:
                    ins.append(I("s_add_u32", sT0 if rb == 0 else sT1, sb, p * 4096))
                ins.append(I("buffer_load_dwordx4", a((rb * 32 + 4 * p + i) * 4, 4), vl16, s(S_WS, 4),
                             sT0 if rb == 0 else sT1, mods="offen offset:%d%s" % (1024 * i, " sc1" if gen.LD_SC1 else ""), tag=k))
                out.append((k, ins))
        return out

    def kv_jobs(kind, st):
        k = (kind, st)
        srd = s(S_K if kind == "K" else S_V, 4)
        base = (0 if kind == "K" else 65536) + (st & 3) * 16384
        out = []
        for i in range(4):
            ins = []
            if i == 0:
                ins.append(I("s_lshl_b32", sSt, sw, 12))
                ins.append(I("s_add_u32", M0, sSt, base))
                ins.append(I("s_add_u32", sSt, sSt, st * 16384))
            ins.append(I("buffer_load_dwordx4", vl16, srd, sSt, mods="offen offset:%d sc1 lds" % (1024 * i), tag=k))
            out.append((k, ins))
        return out

    srcK = dict(srd=s(S_B, 4), voff=vWq, s_base=sWb, stage_stride=64 * 8192)
    srcV0 = dict(srd=s(S_C, 4), voff=vWq, s_base=sWb2, stage_stride=128 * 8192)
    srcV1 = dict(srd=s(S_C, 4), voff=vWq, s_base=sWb3, stage_stride=128 * 8192)
    srcGU = dict(srd=s(S_A, 4), voff=vWg, s_base=sWgu, stage_stride=64 * 3584)
    srcQ0 = dict(srd=s(S_B, 4), voff=vWq, s_base=sWq0, stage_stride=128 * 8192)
    srcQ1 = dict(srd=s(S_B, 4), voff=vWq, s_base=sWq1, stage_stride=128 * 8192)
    acc4 = lambda s0, s1: (lambda rb, nb: (s0, s1)[rb].sub(nb * 16, 16))
    acc2 = lambda s0: (lambda rb, nb: s0.sub((rb * 2 + nb) * 16, 16))
    accK, accV0, accV1, accGU = acc4(X_, Y_), acc2(Z_), acc2(X_), acc4(Y_, Z_)

    def store_block(d, sbase, rb, idxs):
        out = []
        for hh in range(2):
            out += cvt_inplace(d, hh)
            off = rb * 8192 + idxs[hh] * 1024
            out.append(I("s_add_u32", s(3), sbase, off & ~4095))
            out.append(I("buffer_store_dwordx4", d.sub(8 * hh, 4), vl16, s(S_WS, 4), s(3),
                         mods="offen offset:%d" % (off & 4095), tag="kv"))
        return out

    def epiK():
        return [x for rb in range(2) for nb in range(4) for x in store_block(accK(rb, nb), sKo, rb, (2 * nb, 2 * nb + 1))]

    def epiV(acc, o):
        return [x for rb in range(2) for nb in range(2) for x in store_block(acc(rb, nb), sVo, rb, (o + nb, o + 4 + nb))]

    def ln_stream():
        Z = Z_
        LN0, LN1 = Z.sub(0, 4), Z.sub(4, 4)
        X = [Z[8 + i] for i in range(16)]
        D = [Z[24 + i] for i in range(16)]
        sm, sw2, mean, var, pk, mb, vb, sd, rc = [Z[40 + i] for i in range(9)]
        ln = []
        A_ = lambda *x, **k: ln.append(I(*x, **k))
        for i in range(4):
            A_("v_lshlrev_b32", X[2 * i], 16, LN0[i])
            A_("v_and_b32", X[2 * i + 1], 0xffff0000, LN0[i])
            A_("v_lshlrev_b32", X[8 + 2 * i], 16, LN1[i])
            A_("v_and_b32", X[8 + 2 * i + 1], 0xffff0000, LN1[i])

        def allreduce32(r):
            for off in (0x041F, 0x081F, 0x101F, 0x201F, 0x401F):
                A_("ds_swizzle_b32", sw2, r, mods="offset:0x%04x" % off)
                A_("v_add_f32", r, r, sw2)
        A_("v_add_f32", sm, X[0], X[1])
        for i in range(2, 16):
            A_("v_add_f32", sm, sm, X[i])
        allreduce32(sm)
        A_("v_mul_f32", mean, 1.0 / 512, sm)
        for i in range(16):
            A_("v_sub_f32", D[i], X[i], mean)
        A_("v_mul_f32", sm, D[0], D[0])
        for i in range(1, 16):
            A_("v_fmac_f32", sm, D[i], D[i])
        allreduce32(sm)
        A_("v_mul_f32", var, 1.0 / 512, sm)
        A_("v_cvt_pk_bf16_f32", pk, mean, var)
        A_("v_lshlrev_b32", mb, 16, pk)
        A_("v_and_b32", vb, 0xffff0000, pk)
        A_("v_add_f32", vb, 1e-5, vb)
        A_("v_cvt_pk_bf16_f32", pk, vb, vb)
        A_("v_lshlrev_b32", vb, 16, pk)
        A_("v_sqrt_f32", vb, vb)
        A_("v_cvt_pk_bf16_f32", pk, vb, vb)
        A_("v_lshlrev_b32", sd, 16, pk)
        A_("v_rcp_f32", rc, sd)
        for i in range(16):
            A_("v_sub_f32", D[i], X[i], mb)
        for i in range(8):
            A_("v_cvt_pk_bf16_f32", pk, D[2 * i], D[2 * i + 1])
            A_("v_lshlrev_b32", D[2 * i], 16, pk)
            A_("v_and_b32", D[2 * i + 1], 0xffff0000, pk)
        for i in range(16):
            A_("v_mul_f32", X[i], D[i], rc)
            A_("v_fma_f32", D[i], Neg(X[i]), sd, D[i])
            A_("v_fmac_f32", X[i], D[i], rc)
        for i in range(4):
            A_("v_cvt_pk_bf16_f32", LN0[i], X[2 * i], X[2 * i + 1])
            A_("v_cvt_pk_bf16_f32", LN1[i], X[8 + 2 * i], X[8 + 2 * i + 1])
        if gen.FUSE3:
            A_("v_mov_b32", Z[50], 0)
            A_("v_mov_b32", Z[51], 0)
            A_("s_lshl_b32", sHc, s(2), 7)
            A_("s_add_u32", sHc, sHc, WS_F)
            A_("buffer_store_dwordx2", Z.sub(50, 2), "off", s(S_WS, 4), sHc, mods="sc1", tag="ln")
        A_("buffer_store_dwordx4", LN0, vLNs, s(S_WS, 4), sLN0, mods="offen", tag="ln")
        A_("buffer_store_dwordx4", LN1, vLNs, s(S_WS, 4), sLN1, mods="offen", tag="ln")
        return ln

    NOP = lambda em: None

    def gu_epi(rb):
        out = []
        for nb in range(2):
            g_, u_ = accGU(rb, nb), accGU(rb, nb + 2)
            for hh in range(2):
                for half4 in range(2):
                    rs = [8 * hh + 4 * half4 + i for i in range(4)]
                    T = GT[0:4]
                    T2 = GT[4:8]
                    for i, r in enumerate(rs):
                        out.append(I("v_mul_f32", T[i], g_[r], g_[r]))
                    for i, r in enumerate(rs):
                        out.append(I("v_fmaak_f32", T[i], T[i], vC2, GC1))
                    for i, r in enumerate(rs):
                        out.append(I("v_mul_f32", T[i], T[i], g_[r]))
                    for i, r in enumerate(rs):
                        out.append(I("v_exp_f32", T[i], T[i]))
                    for i, r in enumerate(rs):
                        out.append(I("v_mul_f32", T2[i], g_[r], u_[r]))
                    for i, r in enumerate(rs):
                        out.append(I("v_add_f32", T[i], 1.0, T[i]))
                    for i, r in enumerate(rs):
                        out.append(I("v_rcp_f32", T[i], T[i]))
                    out.append(I("s_nop", 0))
                    for i, r in enumerate(rs):
                        out.append(I("v_mul_f32", g_[r], T2[i], T[i]))
                out += cvt_inplace(g_, hh)
                off = (2 * nb + hh) * 1024
                out.append(I("buffer_store_dwordx4", g_.sub(8 * hh, 4), vl16, s(S_WS, 4), sHo[rb],
                             mods="offen offset:%d" % off))
        return out

    def qfrag(qb, sidx):
        b, t = sidx >> 1, sidx & 1
        return X_.sub((qb * 2 + (b & 1)) * 16 + 8 * t + (4 if b >= 2 else 0), 4)

    def q_epi(acc, b0):
        out = []
        for rb in range(2):
            for nb in range(2):
                d = acc(rb, nb)
                for r in range(16):
                    out.append(I("v_mul_f32", d[r], QSCALE, d[r]))
                for t in range(2):
                    f = qfrag(rb, 2 * (b0 + nb) + t)
                    for q in range(4):
                        out.append(I("v_cvt_pk_bf16_f32", f[q], d[8 * t + 2 * q], d[8 * t + 2 * q + 1]))
        return out

    class L(list):
        def I(self, op, *ops, **k):
            self.append(I(op, *ops, **k))

    def setup_b():
        o = L()
        o.I("s_lshl_b32", sT0, sj, 2)
        o.I("s_add_u32", sQB, sT0, sw)
        o.I("s_sub_u32", sQA, 60, sT0)
        o.I("s_add_u32", sQA, sQA, sw)
        o.I("s_lshl_b32", sXA, sQA, 15)
        o.I("s_lshl_b32", sXB, sQB, 15)
        if WS_XN:
            o.I("s_add_u32", sXA, sXA, WS_XN)
            o.I("s_add_u32", sXB, sXB, WS_XN)
        wdma_voff(o, vWg, vl, (t0, t1), 3584)
        o.I("s_and_b32", sT0, sw, 1)
        o.I("s_mul_i32", sT0, sT0, 32 * 3584)
        o.I("s_lshl_b32", sT1, sh, 7)
        o.I("s_add_u32", sWgu, sT0, sT1)
        o.I("s_mov_b32", sWq0, sWb2)
        o.I("s_mov_b32", sWq1, sWb3)
        o.I("s_lshl_b32", sHc, sh, 2)
        o.I("s_add_u32", sHc, sHc, 4)
        o.I("s_cmp_lt_u32", sw, 2)
        g = [I("s_cmp_lt_u32", sw, 2), I("s_cselect_b32", s(S_A), s(P_WG), s(P_WU)),
             I("s_cselect_b32", s(S_A + 1), s(P_WG + 1), s(P_WU + 1))]
        o.append(lambda em: emit_all(em, g))
        o.I("s_mov_b32", s(S_A + 2), 512 * 3584)
        make_srd(o, S_B, P_WQ, 512 * 8192)
        o.I("v_mov_b32", vC2, GC2)
        for qb, sq in ((0, sQA), (1, sQB)):
            o.I("s_mul_i32", sT0, sq, 368 * 1024)
            o.I("s_lshl_b32", sT1, sh, 12)
            o.I("s_add_u32", sHo[qb], sT0, sT1)
            o.I("s_add_u32", sHo[qb], sHo[qb], WS_A3 + 256 * 1024)
        return o

    def setup_c():
        o = L()
        for qb in range(2):
            o.I("s_lshl_b32", sSt, sh, 12)
            o.I("s_add_u32", sCo[qb], sHo[qb], sSt)
            o.I("s_sub_u32", sCo[qb], sCo[qb], 256 * 1024)
        for srd, off in ((S_K, WS_K), (S_V, WS_V)):
            g = [I("s_lshl_b32", sSt, sh, 19), I("s_add_u32", sSt, sSt, off), I("s_add_u32", s(srd), s(P_WS), sSt),
                 I("s_addc_u32", s(srd + 1), s(P_WS + 1), 0)]
            o.append(lambda em, g=g: emit_all(em, g))
            o.I("s_lshl_b32", sSt, sj, 15)
            o.I("s_sub_u32", s(srd + 2), 64 * 8192, sSt)
            o.I("s_mov_b32", s(srd + 3), 0x20000)
        o.I("s_lshl_b32", sKg, sw, 12)
        o.I("s_mov_b32", sVg, sKg)
        o.I("s_mov_b32", sThr, THRESH)
        return o

    def setup_a():
        o = L()
        make_srd(o, S_K, P_X, 2048 * 1024)
        o.I("v_lshrrev_b32", t0, 5, v(0))
        o.I("v_lshlrev_b32", t1, 10, t0)
        o.I("v_and_b32", t2, 31, vl)
        o.I("v_lshlrev_b32", vLNa, 4, t2)
        o.I("v_add_u32", vLNa, vLNa, t1)
        o.I("s_lshl_b32", sT0, s(2), 13)
        o.I("buffer_load_dwordx4", Z_.sub(0, 4), vLNa, s(S_K, 4), sT0, mods="offen")
        o.I("buffer_load_dwordx4", Z_.sub(4, 4), vLNa, s(S_K, 4), sT0, mods="offen offset:512")
        o.I("v_lshrrev_b32", t1, 1, t2)
        o.I("v_lshlrev_b32", t1, 10, t1)
        o.I("v_and_b32", t2, 1, t2)
        o.I("v_lshlrev_b32", t2, 9, t2)
        o.I("v_add_u32", t1, t1, t2)
        o.I("v_lshlrev_b32", t0, 4, t0)
        o.I("v_add_u32", vLNs, t1, t0)
        make_srd(o, S_C, P_WUV, 512 * 8192)
        make_srd(o, S_WS, P_WS, WS_BYTES)
        make_srd(o, S_DBG, P_DBG, 256)
        o.I("s_lshr_b32", sLN0, s(2), 2)
        o.I("s_lshl_b32", sLN0, sLN0, 15)
        o.I("s_and_b32", sLN1, s(2), 3)
        o.I("s_lshl_b32", sLN1, sLN1, 7)
        o.I("s_add_u32", sLN0, sLN0, sLN1)
        if WS_XN:
            o.I("s_add_u32", sLN0, sLN0, WS_XN)
        o.I("s_add_u32", sLN1, sLN0, 16384)
        o.I("s_lshl_b32", sT0, sh, 6)
        o.I("s_lshl_b32", sT1, sj, 3)
        o.I("s_add_u32", sT0, sT0, sT1)
        o.I("s_lshl_b32", sT1, sw, 1)
        o.I("s_add_u32", sT0, sT0, sT1)
        o.I("s_lshl_b32", sT0, sT0, 13)
        o.I("s_add_u32", sKo, sT0, WS_K)
        o.I("s_add_u32", sVo, sT0, WS_V)
        return o

    def touch(srd, bufs):
        g = [I("s_lshl_b32", sCnt, s(2), 2), I("s_add_u32", sCnt, sCnt, sw), I("s_lshl_b32", sCnt, sCnt, 13)]
        p0, n0 = bufs[0]
        g += [I("s_mov_b32", s(srd), s(p0)), I("s_mov_b32", s(srd + 1), s(p0 + 1)), I("s_mov_b32", s(srd + 2), n0),
              I("s_mov_b32", s(srd + 3), 0x20000)]
        for (pp, nn), (_, nprev) in zip(bufs[1:], bufs[:-1]):
            g += [I("s_cmp_ge_u32", sCnt, s(srd + 2)),
                  I("s_cselect_b32", sRet, s(srd + 2), 0),
                  I("s_cselect_b32", s(srd), s(pp), s(srd)), I("s_cselect_b32", s(srd + 1), s(pp + 1), s(srd + 1)),
                  I("s_cselect_b32", s(srd + 2), nn, s(srd + 2)),
                  I("s_sub_u32", sCnt, sCnt, sRet)]
        g += [I("v_lshlrev_b32", t2, 7, vl),
              Untracked(I("buffer_load_dword", PFD[0], t2, s(srd, 4), sCnt, mods="offen"))]
        return [lambda em: emit_all(em, g)]

    def proj(with_gu, tagp):
        ln = ln_stream()
        eV1 = epiV(accV1, 2)
        eK = epiK()
        n34 = len(eK) if "nospread" in EXP else (len(eK) * 3) // 4
        segs = [Seg(4, "WX", accK, srcK, setup_a() + [NOP] * (len(ln) // 3) + ln + [NOP] * (2 * len(ln))),
                Seg(2, "XW", accV0, srcV0, merge(eK[:n34], setup_b())),
                Seg(2, "XW", accV1, srcV1, eK[n34:] + epiV(accV0, 0) + [NOP] * 12)]
        if with_gu:
            aQ0, aQ1 = acc2(X_), acc2(Y_)
            segs += [Seg(4, "WX", accGU, srcGU, eV1 + setup_c() + [NOP] * 70), Seg(2, "WX", aQ0, srcQ0, gu_epi(0)),
                     Seg(2, "WX", aQ1, srcQ1, gu_epi(1) + q_epi(aQ0, 0))]
        else:
            aQ0, aQ1 = acc2(Y_), acc2(Z_)
            segs += [Seg(2, "WX", aQ0, srcQ0, eV1 + setup_c() + [NOP] * 70), Seg(2, "WX", aQ1, srcQ1, q_epi(aQ0, 0))]
        G = Gemm(e, 4, vtr, pool, sM0, sTmp, segs)
        nst = len(G.stages)

        def c_reads(p):
            out = [(lambda em: G.need(("C", p))) if p else (lambda em: em.wait_vm_tag(lambda tg: tg == ("C", p)))]
            for sl in range(4):
                for rb in range(2):
                    out.append(I("ds_read_b128", a((rb * 32 + 4 * p + sl) * 4, 4), vXr[sl],
                                 mods="offset:%d" % ((p % 3) * 8192 + rb * 4096)))
            return out
        emit_all(e, c_dma(0))
        if "early_w" not in EXP:
            w_setup()
        emit_all(e, G.w_dma(0))
        emit_all(e, c_dma(1))
        emit_all(e, G.w_dma(1))
        emit_all(e, c_dma(2))
        e.I("v_and_b32", t0, 31, vl)
        e.I("v_lshlrev_b32", t1, 7, t0)
        e.I("v_add_u32", t1, sXlds, t1)
        e.I("v_bfe_u32", t0, vl, 1, 3)
        e.I("v_lshrrev_b32", t2, 5, vl)
        e.I("v_xor_b32", t0, t0, t2)
        for sl in range(4):
            e.I("v_xor_b32", t2, 2 * sl, t0)
            e.I("v_lshlrev_b32", t2, 4, t2)
            e.I("v_add_u32", vXr[sl], t1, t2)
        tr_addr(e, vtr[0], vtr[1], vl, (t0, t1, t2), WR, False)
        emit_all(e, c_reads(0))
        if "early" in EXP and with_gu:
            stamp(e, 1)
        queue = []
        for g in range(2, nst):
            for p in {3: [3, 4], 4: [5, 6], 5: [7]}.get(g, []):
                queue += c_jobs(p)
            if 16 <= g < 20 and not with_gu:
                queue += x_piece(2 * (g - 16)) + x_piece(2 * (g - 16) + 1)
            queue += G.w_jobs(g)
            if with_gu:
                for p in {16: [0], 17: [1], 18: [2], 19: [3], 20: [4], 21: [5], 22: [6], 23: [7]}.get(g, []):
                    queue += x_piece(p)
        queue += kv_jobs("K", 0) + kv_jobs("K", 1) + kv_jobs("V", 0) + kv_jobs("K", 2) + kv_jobs("V", 1)
        queue += kv_jobs("K", 3) + kv_jobs("V", 2)
        LNSIG = 5
        CRD = {1: 1, 3: 2, 6: 3, 9: 4, 12: 5, 16: 6, 20: 7}
        XREL = {76: 0, 82: 1, 88: 2, 98: 3, 102: 4, 106: 5, 110: 6, 114: 7}
        pub = 20 if with_gu else 17
        kv_first = {("K", i) for i in range(3)} | {("V", 0), ("V", 1)}

        def pre_barrier(g):
            if g == LNSIG:
                e.wait_vm_tag(lambda tg: tg == "ln")
            if g == pub:
                e.wait_vm_tag(lambda tg: tg == "kv")

        def on_barrier(g):
            if "early" in EXP and with_gu and g in (0, 2, 4, 6):
                stamp(e, 2 + g // 2 if g < 6 else 4) if g < 6 else None
            if g == LNSIG:
                signal(e, sw, 0, "ln" + tagp, vOne)
            if g == 11:
                poll_issue(e, vPl, 0)
            if g == 12:
                poll_check(e, vPl, 0, 256, "ln" + tagp, sCnt, sRet)
                if not with_gu:
                    G.rel.add(("X", 0))
            if g == pub:
                signal(e, sw, sHc, "kv" + tagp, vOne)
            if g == nst - 6:
                poll_issue(e, vPk, sHc)
            if g == nst - 5:
                poll_check(e, vPk, sHc, 8, "kv" + tagp, sCnt, sRet)
                G.rel |= kv_first
            if g == nst - 2:
                G.rel.add(("V", 2))
                G.rel.add(("K", 3))

        def hook(t):
            sg, sidx, g, sl = G.ks[t]
            out = []
            if t in CRD:
                out += c_reads(CRD[t])
            if t == 0 or (t - 1) in CRD:
                pr = 0 if t == 0 else CRD[t - 1]

                def rel_c(em, pr=pr):
                    em.wait_lgkm0()
                    G.rel.add(("C", pr + 3))
                if t == 0:
                    out.append(rel_c)
                else:
                    rel_c(e)
            if t == 24 and "latepf" in EXP:
                out.append(lambda em: code_prefetch(em, "ka" + tagp, "ka_kernel", "TEXT_END", s(62, 2), t2, PFD, 1))
            if t == 33 and gen.PF_W:
                out += touch(S_K, [(P_WQ, 512 * 8192), (P_WG, 512 * 3584), (P_WU, 512 * 3584)])
            if t == 100 and gen.PF_W:
                out += touch(S_C, [(P_WO, 4096 * 1024), (P_WD, 1792 * 1024)])
            if not with_gu and 72 <= t <= 96 and t % 4 == 0:
                G.rel.add(("X", (t - 68) // 4))
            if with_gu and t in XREL:
                G.rel.add(("X", XREL[t]))
            if 96 <= t < 128 and sidx % 4 == 0:
                p = sidx // 4
                while any(k == ("X", p) for k, _ in G.q):
                    k, ins = G.q.pop(0)
                    assert k in G.rel, k
                    emit_all(e, ins)
            return out
        cnt = [1]

        def seg_end(sg):
            if cnt[0] in (1, 3, 4) or not with_gu and False:
                pass
            if with_gu:
                m = {1: 1, 2: 2, 3: 3, 4: 4}.get(cnt[0])
                if m and "early" not in EXP:
                    stamp(e, m)
            cnt[0] += 1
        G.run(hook, seg_end, queue=queue, released={("W", 2), ("W", 3)}, on_barrier=on_barrier,
              pace=gen.PACE, pre_barrier=pre_barrier)
        while G.q:
            k, ins = G.q.pop(0)
            assert k in G.rel, k
            emit_all(e, ins)
        emit_all(e, q_epi(aQ1, 2))
        tags = [t for _, t in e.vm]
        assert all(t in (("K", 3), ("V", 2), None, "pf") for t in tags[-8:]), tags[-8:]
        assert all(t not in (("K", 0), ("K", 1), ("V", 0)) for t in tags[-16:]), tags[-16:]
        e.wait_vm_tag(lambda tg: tg == ("K", 0))
        e.wait_lgkm0()

    e.I("s_cmp_ge_u32", sh, 28)
    e.I("s_cbranch_scc1", "K2_NOGU")
    st0 = e.state()
    proj(True, "a")
    e.I("s_branch", "K2_ATT")
    e.label("K2_NOGU")
    e.set_state(st0)
    proj(False, "b")
    e.label("K2_ATT")
    e.vm = []
    e.lgkm = []
    e.I("s_nop", 1)
    stamp(e, 5)

    S = lambda par, qb: SET[0].sub((par * 2 + qb) * 16, 16)
    NM = lambda qb: SET[1].sub(qb * 16, 16)
    P = lambda par, qb: SET[1].sub(32 + (par * 2 + qb) * 8, 8)
    O = lambda qb, b: a((qb * 4 + b) * 16, 16)
    KF = lambda fs, si: a(128 + 64 * fs + 4 * si, 4)
    VF = lambda fs, t, b: a(128 + 64 * fs + 32 + 4 * (t * 4 + b), 4)
    vKr, vVr = v(6), v(7)
    vDq = [v(8), v(9)]
    vL = [[v(10), v(11)], [v(24), v(25)]]
    vTs = [v(12), v(13)]
    vTs2 = [v(4, 2), v(4, 2)]
    vTm, vDqT = v(14), [v(15), v(16)]
    vNinf = v(17)
    ET = [v(18 + i) for i in range(6)]
    vQx, vKx, vNx, vInvB, vPw = v(26), v(27), v(28), v(29), v(30)
    RT = [v(32 + i) for i in range(32)]
    QS = 131072
    sPw = sBact

    e.I("v_and_b32", t0, 31, vl)
    e.I("v_lshrrev_b32", t1, 5, vl)
    e.I("v_lshlrev_b32", t1, 2, t1)
    e.I("v_sub_u32", t0, t0, t1)
    e.I("s_lshl_b32", sT0, sQA, 5)
    e.I("s_lshl_b32", sT1, sQB, 5)
    e.I("v_add_u32", vDq[0], sT0, t0)
    e.I("v_add_u32", vDq[1], sT1, t0)
    e.I("v_mov_b32", vNinf, 0xff800000)
    e.I("v_mov_b32", vL[0][0], 0)
    e.I("v_mov_b32", vL[0][1], 0)
    e.I("v_add_u32", vKr, 16384, vl16)
    e.I("v_add_u32", vVr, 65536, vl16)
    e.I("s_lshl_b32", sRot, sw, 12)
    e.I("s_add_u32", sKg, sKg, 4 * 16384)
    e.I("s_add_u32", sVg, sVg, 3 * 16384)
    e.I("s_mov_b32", sKv, 0)
    e.I("s_and_b32", sPw, sw, 1)
    e.I("s_lshl_b32", sPw, sPw, 13)
    e.I("s_lshl_b32", sT0, sw, 13)
    e.I("s_add_u32", sT0, sT0, QS)
    e.I("v_add_u32", vQx, sT0, vl16)
    e.I("s_barrier")
    for si in range(8):
        e.I("ds_read_b128", KF(1, si), vl16, mods="offset:%d" % (si * 1024))
    for si in range(8):
        e.I("ds_read_b128", KF(0, si), vl16, mods="offset:%d" % (8192 + si * 1024))
    for si in range(8):
        for qb in range(2):
            e.I(MFMA, S(0, qb), KF(1, si), qfrag(qb, si), 0 if si == 0 else S(0, qb))
        e.I("ds_write_b128", vQx, qfrag(0, si), mods="offset:%d" % (si * 1024))
    e.I("v_xor_b32", vQx, 8192, vQx)

    def mask_S_inplace(em, Sx, dq):
        for r0 in range(0, 16, 4):
            for i in range(4):
                em.I("v_cmp_ge_i32", MASKS[i], dq, CR[r0 + i])
            for i in range(4):
                em.I("v_cndmask_b32", Sx[r0 + i], vNinf, Sx[r0 + i], MASKS[i])

    def rowmax(em, Sx, dst, tmp):
        em.I("v_max3_f32", dst, Sx[0], Sx[1], Sx[2])
        for r in range(3, 15, 2):
            em.I("v_max3_f32", dst, dst, Sx[r], Sx[r + 1])
        em.I("v_max_f32", dst, dst, Sx[15])
        em.I("v_mov_b32", tmp, dst)
        em.I("v_permlane32_swap_b32", dst, tmp)
        em.I("v_max_f32", dst, dst, tmp)

    for qb in range(2):
        Sx = S(0, qb)
        if qb == 1:
            mask_S_inplace(e, Sx, vDq[1])
        rowmax(e, Sx, RT[0], RT[1])
        for r in range(16):
            e.I("v_sub_f32", Sx[r], Sx[r], RT[0])
        for r in range(16):
            e.I("v_sub_f32", NM(qb)[r], 0, RT[0])
    e.wait_lgkm0()
    stamp(e, 6)

    ret_labels = []

    def sm_stream(par, qb, masked):
        Sx, Px = S(par, qb), P(par, qb)
        out = []
        if masked:
            out.append(I("v_subrev_u32", vDqT[qb], sKv, vDq[qb]))

        def front(k):
            o = []
            if masked:
                o.append(I("v_cmp_ge_i32", MASKS[(2 * k) & 3], vDqT[qb], CR[2 * k]))
                o.append(I("v_cmp_ge_i32", MASKS[(2 * k + 1) & 3], vDqT[qb], CR[2 * k + 1]))
            o.append(I("v_exp_f32", ET[(2 * k) % 6], Sx[2 * k]))
            o.append(I("v_exp_f32", ET[(2 * k + 1) % 6], Sx[2 * k + 1]))
            return o

        def back(k):
            ta, tb = ET[(2 * k) % 6], ET[(2 * k + 1) % 6]
            o = []
            if masked:
                o.append(I("v_cndmask_b32", ta, 0, ta, MASKS[(2 * k) & 3]))
                o.append(I("v_cndmask_b32", tb, 0, tb, MASKS[(2 * k + 1) & 3]))
            if "pk" in EXP:
                pr = v(ta.i, 2)
                if k == 1:
                    o.append(I("v_pk_add_f32", vTs2[qb], v(ET[0].i, 2), pr))
                elif k > 1:
                    o.append(I("v_pk_add_f32", vTs2[qb], vTs2[qb], pr))
                if k == 7:
                    o.append(I("v_add_f32", vTs[qb], vTs2[qb][0], vTs2[qb][1]))
            elif k == 0:
                o.append(I("v_add_f32", vTs[qb], ta, tb))
            else:
                o.append(I("v_add_f32", vTs[qb], vTs[qb], ta))
                o.append(I("v_add_f32", vTs[qb], vTs[qb], tb))
            o.append(I("v_cvt_pk_bf16_f32", Px[k], ta, tb))
            return o
        out += front(0)
        for k in range(8):
            if k + 1 < 8:
                out += front(k + 1)
            out += back(k)
        return out

    def qk_mfmas(par):
        return [I(MFMA, S(1 - par, qb), KF(par, si), qfrag(qb, si), NM(qb) if si == 0 else S(1 - par, qb))
                for si in range(8) for qb in range(2)]

    def pv_mfmas(par, first=(), order=None):
        ms = []
        for t in range(2):
            for b in range(4):
                for qb in range(2):
                    c = 0 if (qb in first and t == 0) else O(qb, b)
                    ms.append(I(MFMA, O(qb, b), VF(par, t, b), P(1 - par, qb).sub(4 * t, 4), c))
        return ms

    def k_reads(par, vaddr, off):
        return [I("ds_read_b128", KF(1 - par, si), vaddr, mods="offset:%d" % (off + si * 1024)) for si in range(8)]

    def v_reads(par, vaddr, off):
        return [I("ds_read_b128", VF(1 - par, si >> 2, si & 3), vaddr, mods="offset:%d" % (off + si * 1024))
                for si in range(8)]

    def step(par, name, qk, masks, pv, rds, dma, kvinc, pv_first=(), extra=(), tail=(), late_rd=True):
        ms = (qk_mfmas(par) if qk else []) + (pv_mfmas(par, pv_first) if pv else [])
        val = sm_stream(par, 0, masks[0]) + sm_stream(par, 1, masks[1])
        if "nords" in EXP:
            rds = []
        if "nodma" in EXP:
            dma = None
        if "nosm" in EXP:
            val = val[:4]
        cut = (len(val) * (9 if late_rd else 7)) // 10
        fill = merge(val[:cut], rds) + val[cut:]
        if extra:
            fill = merge(fill, list(extra))
        if dma:
            fill = merge(fill, dma)
        fill.append(I("v_max_f32", vTm, vTs[0], vTs[1]))
        fill.append(I("v_cmp_nge_f32", VCC, sThr, vTm))
        rid = len(ret_labels)
        ret_labels.append(("K2_RET_%s" % name, par))
        fill.append(I("s_mov_b32", sRet, rid))
        for qb in range(2):
            fill.append(I("v_add_f32", vL[1 - par][qb], vL[par][qb], vTs[qb]))
        fill += list(tail)
        interleave(e, ms, fill, close=True)
        e.I("s_cbranch_vccnz", "K2_RARE%d" % par)
        e.label("K2_RET_%s" % name)
        e.I("s_add_u32", sKv, sKv, kvinc)
        for x in EXP:
            if x.startswith("pad"):
                for _ in range(int(x[3:])):
                    e.I("s_nop", 15)

    def dma_group(kind, vdelta=16384):
        srd = s(S_K if kind == "K" else S_V, 4)
        sg = sKg if kind == "K" else sVg
        out = []
        if kind == "K":
            out.append(I("s_mov_b32", M0, sRot))
        else:
            out.append(I("s_sub_u32", sSt, sRot, vdelta))
            out.append(I("s_and_b32", sSt, sSt, 0xffff))
            out.append(I("s_add_u32", M0, sSt, 65536))
        for i in range(4):
            x = I("buffer_load_dwordx4", vl16, srd, sg, mods="offen offset:%d%s lds" % (1024 * i, KVS))
            x.cost = 16
            out.append(x)
        out.append(I("s_add_u32", sg, sg, 16384))
        return out

    def top():
        e.I("s_waitcnt", "vmcnt(16) lgkmcnt(0)")
        e.lgkm = []
        e.vm = []
        if "nobar" not in EXP:
            e.I("s_barrier")

    ROT = [I("s_add_u32", sRot, sRot, 16384), I("s_and_b32", sRot, sRot, 0xffff)]

    def iter1(name, maskB, first=False, last=False):
        top()
        step(0, name + "a", True, (False, maskB), not first,
             merge([] if last else k_reads(0, vKr, 0), v_reads(0, vVr, 0)), dma_group("K"), 32)
        tail = [I("v_add_u32", vVr, 65536, vKr), I("v_add_u32", vKr, 16384, vKr), I("v_and_b32", vKr, 0xffff, vKr),
                I("s_sub_u32", sCnt, sCnt, 1)] + ROT
        if last:
            rq = [I("ds_read_b128", qfrag(1, si), vQx, mods="offset:%d" % (si * 1024)) for si in range(8)]
            rds = [I("v_add_u32", vKx, sPw, vKr)] + merge(k_reads(1, vKx, 0), v_reads(1, vVr, 8192)) + rq
        else:
            rds = merge(k_reads(1, vKr, 8192), v_reads(1, vVr, 8192))
        step(1, name + "b", not last, (False, maskB), True, rds, dma_group("V"), 32,
             pv_first=(0, 1) if first else (), tail=tail, late_rd=False)

    def step2(par, name, masked, qk=True, pv=True, pv_first=(), extra=()):
        top()
        tail = [I("v_add_u32", vKr, 16384, vKr), I("v_and_b32", vKr, 0xffff, vKr),
                I("v_add_u32", vVr, 16384, vVr), I("v_and_b32", vVr, 0xffff, vVr), I("v_or_b32", vVr, 0x10000, vVr)] + ROT
        step(par, name, qk, (masked, masked), pv, merge(k_reads(par, vKr, 0), v_reads(par, vVr, 0)),
             dma_group("K") + dma_group("V", 32768), 64, pv_first=pv_first, extra=extra, tail=tail, late_rd=False)

    def loop(name, body):
        e.I("s_cmp_eq_u32", sCnt, 0)
        e.I("s_cbranch_scc1", "K2_%s_X" % name)
        e.label("K2_%s_L" % name)
        body()
        e.I("s_cmp_lg_u32", sCnt, 0)
        e.I("s_cbranch_scc1", "K2_%s_L" % name)
        e.label("K2_%s_X" % name)

    def ctx_store(qb_o, scale_regs, sbase, src2=None):
        out = []
        n = 0
        for b in range(4):
            for t in range(2):
                T = [RT[(n % 3) * 8 + 8 + r] for r in range(8)]
                Tq = v(RT[(n % 3) * 8 + 8].i, 4)
                n += 1
                for r in range(8):
                    out.append(I("v_accvgpr_read_b32", T[r], O(qb_o, b)[8 * t + r]))
                for r in range(8):
                    out.append(I("v_mul_f32", T[r], T[r], scale_regs[0]))
                if src2 is not None:
                    for r in range(8):
                        out.append(I("v_fmac_f32", T[r], src2[b * 16 + 8 * t + r], scale_regs[1]))
                for q in range(4):
                    out.append(I("v_cvt_pk_bf16_f32", T[q], T[2 * q], T[2 * q + 1]))
                off = (2 * b + t) * 1024
                if off % 4096 == 0:
                    out.append(I("s_add_u32", sTmp, sbase, off))
                out.append(I("buffer_store_dwordx4", Tq, vl16, s(S_WS, 4), sTmp, mods="offen offset:%d" % (off & 4095),
                             tag="ctx"))
        return out

    iter1("V0", True, first=True)
    if gen.FUSE3:
        e.I("s_lshl_b32", sT0, sj, 7)
        e.I("s_add_u32", sT1, sT0, WS_F + 16 * 128)
        e.I("s_sub_u32", sT0, WS_F + 31 * 128, sT0)
        e.I("s_waitcnt", "vmcnt(8)")
        e.I("s_barrier")
        signal(e, sw, sT0, "ha", RT[3], srd=S_WS)
        signal(e, sw, sT1, "hb", RT[3], srd=S_WS)
    e.I("s_lshl_b32", sCnt, sj, 1)
    e.I("s_sub_u32", sCnt, sCnt, 1)
    e.I("s_max_i32", sCnt, sCnt, 0)
    loop("V1", lambda: iter1("V1", False))
    e.I("s_min_u32", sCnt, sj, 1)
    loop("V2", lambda: iter1("V2", True))
    iter1("V2L", True, last=True)
    stamp(e, 7)
    top()

    e.I("v_add_u32", vNx, 49152, vVr)
    e.I("v_and_b32", vNx, 0xc000, vNx)
    e.I("v_lshlrev_b32", t0, 2, vl)
    e.I("v_add_u32", vNx, vNx, t0)
    e.I("s_lshl_b32", sT0, sw, 8)
    e.I("s_add_u32", sT0, sT0, 65536)
    e.I("v_add_u32", vNx, sT0, vNx)
    e.I("ds_write_b32", vNx, NM(0)[0])
    e.I("v_xor_b32", vNx, 256, vNx)
    e.I("v_mov_b32", RT[0], vL[0][1])
    e.I("v_mov_b32", RT[1], vL[0][1])
    e.I("v_mov_b32", vL[1][0], vL[0][0])
    e.I("v_permlane32_swap_b32", RT[0], RT[1])
    e.I("v_mov_b32", vL[1][1], 0)
    e.I("v_add_f32", RT[0], RT[0], RT[1])
    e.I("v_rcp_f32", vInvB, RT[0])
    e.I("v_add_u32", vKr, sPw, vKr)
    e.I("v_add_u32", vVr, sPw, vVr)
    e.I("s_lshr_b32", sT0, sPw, 8)
    e.I("s_add_u32", sKv, sKv, sT0)
    e.I("s_lshl_b32", sT0, sT0, 1)
    e.I("v_add_u32", vDq[1], 32, vDq[0])
    e.I("v_subrev_u32", vDq[1], sT0, vDq[1])
    pvm = pv_mfmas(0)
    pvB = [m for m in pvm if m.ops[0].i >= 64]
    pvA = [m for m in pvm if m.ops[0].i < 64]
    interleave(e, pvB, k_reads(0, vKr, 0) + dma_group("K"))
    e.wait_lgkm0()
    e.I("s_barrier")
    e.I("ds_read_b32", RT[2], vNx)
    interleave(e, pvA[:4], ROT + [I("v_add_u32", vKr, 16384, vKr), I("v_and_b32", vKr, 0xffff, vKr)])
    interleave(e, pvA[4:], [I("v_mov_b32", NM(1)[r], RT[2]) for r in range(16)])
    bepi = ctx_store(1, [vInvB], sCo[1])
    nb1 = len(bepi) // 2
    qkm = qk_mfmas(0)
    interleave(e, [m for m in qkm if m.ops[0].i == S(1, 0).i] + [m for m in qkm if m.ops[0].i == S(1, 1).i], bepi[:nb1])
    step2(1, "P0", True, pv=False, extra=bepi[nb1:])
    step2(0, "P1", True, pv_first=(1,))
    e.I("s_cmp_eq_u32", sj, 7)
    e.I("s_cbranch_scc1", "K2_DRAIN")
    e.I("s_lshl_b32", sCnt, sj, 1)
    e.I("s_sub_u32", sCnt, 13, sCnt)

    def p2():
        step2(1, "P2a", False)
        step2(0, "P2b", False, extra=[I("s_sub_u32", sCnt, sCnt, 1)])
    loop("P2", p2)
    step2(1, "P3", True)
    step2(0, "P4", True, qk=False)
    e.label("K2_DRAIN")
    e.I("s_waitcnt", "lgkmcnt(0)")
    e.lgkm = []
    for m in pv_mfmas(1):
        e.emit(m)
    stamp(e, 8)
    MS = 17408
    e.I("s_mul_i32", sT0, sw, MS)
    e.I("v_add_u32", vQx, sT0, vl16)
    e.I("v_lshlrev_b32", t0, 2, vl)
    e.I("v_add_u32", vNx, sT0, t0)
    e.I("s_waitcnt", "vmcnt(0)")
    e.I("s_barrier")
    e.I("ds_write_b32", vNx, NM(1)[0], mods="offset:16384")
    e.I("ds_write_b32", vNx, vL[1][1], mods="offset:16640")
    for b in range(4):
        for i in range(4):
            e.I("ds_write_b128", vQx, O(1, b).sub(4 * i, 4), mods="offset:%d" % ((b * 4 + i) * 1024))
    e.I("s_xor_b32", sT1, sw, 1)
    e.I("s_mul_i32", sT0, sT1, MS)
    e.I("v_add_u32", vQx, sT0, vl16)
    e.I("v_add_u32", vNx, sT0, t0)
    e.wait_lgkm0()
    e.I("s_barrier")
    nm2, l2, nm, f1, f2, lt, tq = RT[0], RT[1], RT[2], RT[3], RT[4], RT[5], RT[6]
    e.I("ds_read_b32", nm2, vNx, mods="offset:16384")
    e.I("ds_read_b32", l2, vNx, mods="offset:16640")
    O2 = SET[0]
    for i in range(16):
        e.I("ds_read_b128", O2.sub(4 * i, 4), vQx, mods="offset:%d" % (i * 1024))
    e.I("v_min_f32", nm, NM(0)[0], nm2)
    e.I("v_sub_f32", f1, nm, NM(0)[0])
    e.I("v_sub_f32", f2, nm, nm2)
    e.I("v_exp_f32", f1, f1)
    e.I("v_exp_f32", f2, f2)
    e.I("v_mul_f32", lt, vL[1][0], f1)
    e.I("v_fmac_f32", lt, l2, f2)
    e.I("v_mov_b32", tq, lt)
    e.I("v_permlane32_swap_b32", lt, tq)
    e.I("v_add_f32", lt, lt, tq)
    e.I("v_rcp_f32", lt, lt)
    e.I("v_mul_f32", f1, f1, lt)
    e.I("v_mul_f32", f2, f2, lt)
    emit_all(e, ctx_store(0, [f1, f2], sCo[0], src2=O2))
    stamp(e, 9)
    if gen.FUSE3:
        import gen_k3
        gen_k3.gen_k3(e)
    else:
        stamp_flush(e, 0, s(S_WS, 4), sw, 10)
        e.I("s_endpgm")

    for par in range(2):
        e.label("K2_RARE%d" % par)
        e.vm, e.lgkm = [], []
        e.I("s_nop", 15)
        e.I("s_nop", 7)
        for qb in range(2):
            Sx, Sn, Px = S(par, qb), S(1 - par, qb), P(par, qb)
            dq, dl, f, tmp = RT[0], RT[1], RT[2], RT[3]
            e.I("v_subrev_u32", dq, sKv, vDq[qb])
            mask_S_inplace(e, Sx, dq)
            rowmax(e, Sx, dl, tmp)
            e.I("v_max_f32", dl, 0, dl)
            e.I("v_sub_f32", f, 0, dl)
            e.I("v_exp_f32", f, f)
            for r in range(16):
                e.I("v_sub_f32", Sx[r], Sx[r], dl)
            e.I("v_mul_f32", vL[1 - par][qb], vL[par][qb], f)
            for r in range(16):
                e.I("v_exp_f32", RT[8 + r], Sx[r])
            for r in range(16):
                e.I("v_sub_f32", Sn[r], Sn[r], dl)
            for r in range(16):
                e.I("v_add_f32", vL[1 - par][qb], vL[1 - par][qb], RT[8 + r])
            for k in range(8):
                e.I("v_cvt_pk_bf16_f32", Px[k], RT[8 + 2 * k], RT[9 + 2 * k])
            for r in range(16):
                e.I("v_sub_f32", NM(qb)[r], NM(qb)[r], dl)
            for b in range(4):
                for r0 in range(0, 16, 8):
                    for r in range(8):
                        e.I("v_accvgpr_read_b32", RT[8 + r], O(qb, b)[r0 + r])
                    for r in range(8):
                        e.I("v_mul_f32", RT[8 + r], RT[8 + r], f)
                    for r in range(8):
                        e.I("v_accvgpr_write_b32", O(qb, b)[r0 + r], RT[8 + r])
        e.I("s_nop", 3)
        mine = [(i, l) for i, (l, pp) in enumerate(ret_labels) if pp == par]
        for i, l in mine[:-1]:
            e.I("s_cmp_eq_u32", sRet, i)
            e.I("s_cbranch_scc1", l)
        e.I("s_branch", mine[-1][1])
    e.label(END)
    e.I("s_endpgm")
    return e.text(), dict(vgpr=512, sgpr=102, accum=256, grid=256, block=256, lds=163840)
```
